```python
import torch

def _softmax(x, axis=-1):
    return torch.softmax(x, dim=axis)

def _gelu(x):
    return torch.nn.functional.gelu(x, approximate='tanh')

def _silu(x):
    return torch.nn.functional.silu(x)

def _sigmoid(x):
    return torch.sigmoid(x)

def _layernorm(x, axis=-1, eps=1e-05):
    m = x.mean(dim=axis, keepdim=True)
    v = x.var(dim=axis, keepdim=True, unbiased=False)
    return (x - m) / torch.sqrt(v + eps)

def _scatter_add(tgt, idx, src, axis=0):
    return tgt.clone().index_add_(axis, idx, src)

def _segment_sum(src, seg, n):
    out = torch.zeros((n,) + src.shape[1:], dtype=src.dtype)
    return out.index_add_(0, seg, src)

def _pad(x, pw):
    flat = tuple((v for pair in reversed(pw) for v in pair))
    return torch.nn.functional.pad(x, flat)
kernel_name = 'interleave_layers__sliding_local_dilated__mixer_gmlp__prompt'

def setup_inputs():

    _w = lambda a: (lambda t: t.to(torch.bfloat16) if t.is_floating_point() else t)(torch.as_tensor(a))

    def _A_setup():
        B, S, D = (1, 2048, 640)
        return {'x': _w((lambda *s: torch.randn(*s, dtype=torch.bfloat16) * 0.05)(B, S, D)), 'wqkv': _w((lambda *s: torch.randn(*s, dtype=torch.bfloat16) * 0.1)(D, 3 * D)), 'wo': _w((lambda *s: torch.randn(*s, dtype=torch.bfloat16) * 0.1)(D, D))}
    _A_in = _A_setup()

    def _B_setup():
        B, S, D, F = (1, 2048, 640, 1728)
        Fh = F // 2
        return {'x': _w((lambda *s: torch.randn(*s, dtype=torch.bfloat16) * 0.05)(B, S, D)), 'w_in': _w((lambda *s: torch.randn(*s, dtype=torch.bfloat16) * 0.8)(D, 2 * Fh)), 'w_sp': _w(0.01 * (lambda *s: torch.randn(*s, dtype=torch.bfloat16) * 0.8)(S, S)), 'b_sp': _w(1.0 + 0.01 * (lambda *s: torch.randn(*s, dtype=torch.bfloat16) * 0.05)(S)), 'w_out': _w((lambda *s: torch.randn(*s, dtype=torch.bfloat16) * 0.05)(Fh, D))}
    _B_in = _B_setup()
    return {'A_x': _A_in['x'], 'A_wqkv': _A_in['wqkv'], 'A_wo': _A_in['wo'], 'B_x': _B_in['x'], 'B_w_in': _B_in['w_in'], 'B_w_sp': _B_in['w_sp'], 'B_b_sp': _B_in['b_sp'], 'B_w_out': _B_in['w_out']}

def reference(A_x, A_wqkv, A_wo, B_x, B_w_in, B_w_sp, B_b_sp, B_w_out):

    def _A_ref(x, wqkv, wo):
        B, S, D = x.shape
        H = 32
        Dh = D // H
        W, dil = (8, 2)
        qkv = (lambda x, *d: x.permute(*d))((x @ wqkv).reshape(B, S, 3, H, Dh), 2, 0, 3, 1, 4)
        q, k, v = (qkv[0], qkv[1], qkv[2])
        scale = Dh ** (-0.5)
        pos = torch.arange(S)
        off = torch.arange(W) * dil
        idx = pos[:, None] - off[None, :]
        mask = idx >= 0
        idx_c = torch.where(mask, idx, 0).reshape(-1)
        kg = k[:, :, idx_c, :].reshape(B, H, S, W, Dh)
        vg = v[:, :, idx_c, :].reshape(B, H, S, W, Dh)
        logits = torch.einsum('bhsd,bhswd->bhsw', q, kg) * scale
        logits = torch.where(mask[None, None, :, :], logits, -1000000000.0)
        attn = _softmax(logits, axis=-1)
        o = torch.einsum('bhsw,bhswd->bhsd', attn, vg)
        return (lambda x, *d: x.permute(*d))(o, 0, 2, 1, 3).reshape(B, S, D) @ wo

    def _B_ref(x, w_in, w_sp, b_sp, w_out):
        B, S, D = x.shape
        F = w_in.shape[-1]
        Fh = F // 2
        z = _gelu(torch.einsum('bsd,df->bsf', x, w_in))
        z1 = z[..., :Fh].clone()
        z2 = _layernorm(z[..., Fh:], axis=-1)
        g = torch.einsum('ts,bsf->btf', w_sp, z2) + b_sp[None, :, None]
        return torch.einsum('bsf,fd->bsd', z1 * g, w_out)
    x = A_x
    x = x + _A_ref(_layernorm(x, axis=-1), A_wqkv, A_wo)
    x = x + _B_ref(_layernorm(x, axis=-1), B_w_in, B_w_sp, B_b_sp, B_w_out)
    x = x + _A_ref(_layernorm(x, axis=-1), A_wqkv, A_wo)
    x = x + _B_ref(_layernorm(x, axis=-1), B_w_in, B_w_sp, B_b_sp, B_w_out)
    return x
```

```python
import re

TRANS = ("v_exp_f32", "v_log_f32", "v_rcp_f32", "v_rsq_f32", "v_sqrt_f32", "v_sin_f32", "v_cos_f32", "v_rcp_iflag_f32")
_reg_re = re.compile(r"^(-|\|)?(abs\()?([vsa])(\d+|\[(\d+):(\d+)\])\)?\|?$")

def regs_of(op):
    op = op.strip()
    if op in ("vcc", "vcc_lo", "vcc_hi"): return {("x", "vcc")}
    if op in ("exec", "exec_lo", "exec_hi"): return {("x", "exec")}
    if op == "m0": return {("x", "m0")}
    m = _reg_re.match(op)
    if not m: return set()
    k = m.group(3)
    if m.group(5) is not None:
        return {(k, i) for i in range(int(m.group(5)), int(m.group(6)) + 1)}
    return {(k, int(m.group(4)))}

class Ins:
    __slots__ = ("text", "mn", "cls", "wr", "rd", "srcA", "srcB", "srcC", "trans", "dpp", "perm", "rdlane", "dl", "wide_store", "dma", "slots", "stdata")
    def __init__(self, text):
        self.text = text
        t = text.split(";")[0].strip()
        parts = t.split(None, 1)
        mn = parts[0]
        self.mn = mn
        rest = parts[1] if len(parts) > 1 else ""
        rest_nomod = re.sub(r"\b(op_sel|op_sel_hi|neg_lo|neg_hi|quad_perm):\[[^\]]*\]", "", rest)
        ops = [o.strip() for o in rest_nomod.split(",")] if rest_nomod.strip() else []
        if ops:
            last = ops[-1].split()
            ops[-1] = last[0] if last else ""
        self.wr = set(); self.rd = set(); self.srcA = self.srcB = self.srcC = set()
        self.trans = self.dpp = self.perm = self.rdlane = self.dl = self.wide_store = self.dma = False
        self.stdata = set()
        self.slots = 1
        R = [regs_of(o) for o in ops]
        base = mn.replace("_e32", "").replace("_e64", "").replace("_dpp", "").replace("_sdwa", "")
        if mn.startswith("v_mfma"):
            self.cls = "mfma"; self.wr = R[0]; self.srcA, self.srcB, self.srcC = R[1], R[2], R[3]
            self.rd = R[1] | R[2] | R[3]
        elif mn.startswith("v_"):
            self.cls = "valu"
            self.trans = base in TRANS
            self.dpp = ("row_" in rest) or ("quad_perm" in rest) or ("wave_" in rest)
            self.dl = base.startswith("v_dot")
            if base.startswith("v_permlane"):
                self.perm = True; self.wr = R[0] | R[1]; self.rd = R[0] | R[1]
            elif base in ("v_readfirstlane_b32", "v_readlane_b32"):
                self.rdlane = True; self.wr = R[0]; self.rd = set().union(*R[1:])
            elif base.startswith("v_cmpx"):
                self.wr = R[0] | {("x", "exec")}; self.rd = set().union(*R[1:])
            elif base in ("v_add_co_u32", "v_sub_co_u32", "v_addc_co_u32", "v_subb_co_u32", "v_subrev_co_u32", "v_mad_u64_u32"):
                self.wr = R[0] | R[1]; self.rd = set().union(*R[2:])
            elif base == "v_nop":
                pass
            else:
                self.wr = R[0]; self.rd = set().union(*R[1:]) if len(R) > 1 else set()
                if base.startswith("v_fmac") or base.startswith("v_dot2c") or base.startswith("v_pk_fmac") or base == "v_writelane_b32" or self.dpp:
                    self.rd |= R[0]
                if self.dl and len(R) > 3: self.srcC = R[3]
        elif mn.startswith("buffer_") or mn.startswith("global_"):
            self.cls = "vmem"
            islds = bool(re.search(r"\blds\b", rest)) or "load_lds" in mn
            if "load" in mn and not islds:
                self.wr = R[0]; self.rd = set().union(*R[1:])
            elif mn in ("buffer_wbl2", "buffer_inv"):
                pass
            else:
                self.rd = set().union(*R) if R else set()
                if islds: self.dma = True; self.rd |= {("x", "m0")}
                if "store" in mn or "atomic" in mn:
                    self.stdata = R[0] if mn.startswith("buffer_") else R[1]
                    if "x4" in mn or "x3" in mn: self.wide_store = True
                    if "atomic" in mn and re.search(r"\bsc0\b", rest):
                        self.wr = R[0]
        elif mn.startswith("ds_"):
            self.cls = "ds"
            if mn.startswith("ds_read") or "rtn" in mn or "permute" in mn or "swizzle" in mn:
                self.wr = R[0]; self.rd = set().union(*R[1:])
            else:
                self.rd = set().union(*R)
        elif mn.startswith("s_"):
            self.cls = "salu"
            if mn == "s_nop":
                self.slots = int(ops[0], 0) + 1
            elif mn.startswith(("s_cmp", "s_bitcmp", "s_waitcnt", "s_barrier", "s_branch", "s_cbranch", "s_endpgm", "s_setprio", "s_sleep", "s_setpc")):
                self.rd = set().union(*R) if R else set()
            else:
                self.wr = R[0] if R else set(); self.rd = set().union(*R[1:]) if len(R) > 1 else set()
                if "saveexec" in mn: self.wr |= {("x", "exec")}
        else:
            raise ValueError("unknown instr: " + text)

def need(p, c):
    n = 0
    pv = {r for r in p.wr if r[0] in "va"}
    ps = {r for r in p.wr if r[0] == "s" or r == ("x", "vcc")}
    if p.cls == "valu":
        if c.cls == "mfma" and pv & c.rd: n = max(n, 2)
        if c.cls == "valu":
            if (c.perm or c.dpp) and pv & c.rd: n = max(n, 2)
            if c.rdlane and pv & c.rd: n = max(n, 1)
            if p.trans and not c.trans and pv & c.rd: n = max(n, 1)
            if ps & c.rd: n = max(n, 4 if (c.rdlane or c.mn.startswith("v_writelane")) else 2)
            if p.dl and (pv & (c.rd | c.wr)):
                if not (c.mn == p.mn and (pv & c.rd) <= c.srcC and not ((pv & c.rd) & ((c.rd - c.srcC)))):
                    n = max(n, 3)
            if ("x", "exec") in p.wr: n = max(n, 5)
        if c.cls in ("vmem", "ds"):
            if p.trans and pv & c.rd: n = max(n, 1)
            if p.dl and pv & c.rd: n = max(n, 3)
        if c.cls == "mfma" and p.dl and pv & c.rd: n = max(n, 3)
        if c.cls == "mfma" and ("x", "exec") in p.wr: n = max(n, 4)
        if c.cls == "vmem" and ps & c.rd: n = max(n, 5)
        if c.cls == "salu" and ps & c.rd: n = max(n, 2)
    if p.cls == "mfma":
        big = "32x32" in p.mn
        d = 12 if big else 8
        if c.cls == "mfma":
            if p.wr & (c.srcA | c.srcB): n = max(n, d)
            if p.wr & c.srcC and not (p.wr == c.srcC and c.mn == p.mn): n = max(n, d - 2)
            if p.wr & c.wr and not (p.wr == c.srcC): n = max(n, d)
        elif c.cls in ("valu", "vmem", "ds"):
            if p.wr & (c.rd | c.wr): n = max(n, d)
            if c.cls == "valu" and p.srcC & c.wr: n = max(n, 7 if big else 3)
    if p.cls == "salu" and ("x", "m0") in p.wr and c.cls == "vmem" and c.dma: n = max(n, 1)
    if p.cls == "vmem" and p.wide_store and (p.stdata & c.wr): n = max(n, 2)
    return n

class Asm:
    def __init__(self):
        self.lines = []
        self.launches = []
        self.kernels = []
        self.lbl = 0
        self.hist = []
        self.nops_added = 0
    def raw(self, s):
        self.lines.append(s)
    def __call__(self, s):
        for ln in s.split("\n"):
            ln = ln.strip()
            if not ln: continue
            if ln.startswith(";"):
                self.lines.append("    " + ln); continue
            if ln.endswith(":") or ln.startswith("."):
                self.lines.append(ln); continue
            ins = Ins(ln)
            dist = 0; req = 0
            for p in reversed(self.hist):
                r = need(p, ins) - dist
                if r > req: req = r
                dist += p.slots
                if dist >= 20: break
            while req > 0:
                k = min(req, 16)
                nop = Ins(f"s_nop {k-1}")
                self.lines.append("    " + nop.text); self.hist.append(nop); self.nops_added += k
                req -= k
            self.lines.append("    " + ln)
            self.hist.append(ins)
            if len(self.hist) > 40: self.hist = self.hist[-24:]
    def fence(self, n=12):
        self(f"s_nop {n-1}")
    def label(self, base="L"):
        self.lbl += 1
        return f"{base}_{self.lbl}"
    def begin_kernel(self, name):
        self.lines += [f".globl {name}", ".p2align 8", f".type {name},@function", f"{name}:"]
        self.hist = []
    def end_kernel(self, name, vgpr, sgpr=102, accum=None, wgy=False):
        if accum is None:
            accum = (vgpr + 3) // 4 * 4
        self.kernels.append((name, vgpr, sgpr, accum, wgy))
    def launch(self, name, grid, block, lds=0):
        self.launches.append(f"; @launch kernel={name} grid=({grid[0]},{grid[1]},{grid[2]}) block=({block[0]},{block[1]},{block[2]}) lds={lds}")
    def text(self, header=""):
        out = []
        if header:
            out += ["; " + h for h in header.strip().split("\n")]
        out += self.launches
        out += ['.amdgcn_target "amdgcn-amd-amdhsa--gfx950"', ".text"]
        out += self.lines
        out += ['.section .rodata,"a"']
        for (name, vgpr, sgpr, accum, wgy) in self.kernels:
            out += [".p2align 6", f".amdhsa_kernel {name}",
                    f"  .amdhsa_next_free_vgpr {vgpr}",
                    f"  .amdhsa_next_free_sgpr {sgpr}",
                    f"  .amdhsa_accum_offset {accum}",
                    "  .amdhsa_group_segment_fixed_size 0",
                    "  .amdhsa_kernarg_size 88",
                    "  .amdhsa_user_sgpr_count 2",
                    "  .amdhsa_user_sgpr_kernarg_segment_ptr 1",
                    "  .amdhsa_system_sgpr_workgroup_id_x 1"]
            if wgy:
                out += ["  .amdhsa_system_sgpr_workgroup_id_y 1"]
            out += ["  .amdhsa_float_denorm_mode_32 3", ".end_amdhsa_kernel"]
        return "\n".join(out) + "\n"
    def srd(self, d, base, nbytes):
        self(f"s_mov_b32 s{d}, s{base}")
        self(f"s_and_b32 s{d+1}, s{base+1}, 0xffff")
        self(f"s_mov_b32 s{d+2}, {nbytes}")
        self(f"s_mov_b32 s{d+3}, 0x00020000")

def vr(b, n=1):
    return f"v{b}" if n == 1 else f"v[{b}:{b+n-1}]"
def sr(b, n=1):
    return f"s{b}" if n == 1 else f"s[{b}:{b+n-1}]"
```

```python
from asmlib import *
from layout import *

NJOBS = 230
def emit_k0(a, name="k0_kernel", code_prefetch=None):
    a.begin_kernel(name)
    a(f"s_cmp_ge_u32 s2, {NJOBS}\ns_cbranch_scc1 K0_end")
    a("s_load_dwordx16 s[16:31], s[0:1], 0\ns_load_dwordx2 s[32:33], s[0:1], 80")
    a("v_lshrrev_b32 v1, 6, v0\nv_and_b32 v0, 63, v0")
    a("v_readfirstlane_b32 s13, v1")
    a("v_lshrrev_b32 v2, 4, v0\nv_and_b32 v3, 15, v0")
    a("v_lshlrev_b32 v4, 4, v0")
    a("s_waitcnt lgkmcnt(0)")
    a.srd(4, 32, 0x10000000)
    a("s_mov_b32 s11, 0x00020000")
    a("s_cmp_ge_u32 s2, 228\ns_cbranch_scc1 K0_zero")
    a("s_cmp_ge_u32 s2, 164\ns_cbranch_scc1 K0_x")
    a("v_lshrrev_b32 v5, 3, v0\nv_and_b32 v6, 7, v0\nv_lshrrev_b32 v7, 1, v5\nv_and_b32 v7, 3, v7\nv_lshlrev_b32 v7, 1, v7\nv_xor_b32 v6, v6, v7\nv_lshlrev_b32 v6, 4, v6")
    a("s_cmp_ge_u32 s2, 134\ns_cbranch_scc1 K0_wout")
    a("s_cmp_ge_u32 s2, 114\ns_cbranch_scc1 K0_wo")
    a("s_cmp_ge_u32 s2, 60\ns_cbranch_scc1 K0_win")

    def rowmap(kind):
        if kind == "x":
            a("s_lshr_b32 s44, s42, 4\ns_lshr_b32 s45, s44, 2\ns_add_u32 s45, s45, s44")
            a("s_mul_i32 s46, s44, 5\ns_sub_u32 s46, s46, 156\ns_cmp_lt_u32 s44, 32\ns_cselect_b32 s45, s45, s46")
            a("s_lshl_b32 s45, s45, 4\ns_and_b32 s46, s42, 8\ns_add_u32 s43, s45, s46")
        elif kind == "o":
            a("s_lshr_b32 s44, s42, 5\ns_lshl_b32 s44, s44, 3\ns_add_u32 s44, s44, s42")
            a(f"s_mul_i32 s45, s42, 5\ns_sub_u32 s45, s45, {5*512-32}\ns_cmp_lt_u32 s42, 512\ns_cselect_b32 s43, s44, s45")
        elif kind == "u":
            a("s_lshr_b32 s44, s42, 4\ns_mul_i32 s45, s44, 43\ns_lshr_b32 s45, s45, 8")
            a("s_add_u32 s46, s44, s45\ns_lshr_b32 s45, s45, 2\ns_sub_u32 s46, s46, s45")
            a("s_sub_u32 s47, s44, 48\ns_cmp_ge_u32 s44, 51\ns_cselect_b32 s45, 1, 0\ns_add_u32 s47, s47, s45")
            a("s_mul_i32 s47, s47, 7\ns_sub_u32 s47, s47, s45\ns_add_u32 s47, s47, 6")
            a("s_cmp_lt_u32 s44, 48\ns_cselect_b32 s45, s46, s47")
            a("s_lshl_b32 s45, s45, 4\ns_and_b32 s46, s42, 8\ns_add_u32 s43, s45, s46")
    def dma(kind, pitch, nper):
        a(f"s_mov_b32 s34, {pitch}\nv_mul_lo_u32 v8, v5, s34\nv_add_u32 v8, v8, v6")
        a("s_lshl_b32 s48, s13, 3\ns_add_u32 s48, s48, s36\ns_lshl_b32 s49, s13, 10")
        for m in range(nper):
            a(f"s_add_u32 s42, s48, {32*m}")
            rowmap(kind)
            a(f"s_mul_i32 s43, s43, {pitch}\ns_add_u32 s43, s43, s35\ns_add_u32 m0, s49, {4096*m}")
            a("buffer_load_dwordx4 v8, s[8:11], s43 offen lds")
    def src(b, nbytes):
        a(f"s_mov_b32 s8, s{b}\ns_and_b32 s9, s{b+1}, 0xffff\ns_mov_b32 s10, {nbytes}")

    src(18, 640*1920*2)
    a("s_lshr_b32 s50, s2, 1\ns_and_b32 s51, s2, 1")
    a("s_lshl_b32 s35, s50, 7\ns_mul_i32 s36, s51, 320")
    dma("x", 3840, 10)
    a("s_mul_i32 s52, s50, 26\ns_lshr_b32 s52, s52, 8")
    a("s_mul_i32 s53, s52, 640\ns_lshl_b32 s54, s50, 6\ns_sub_u32 s54, s54, s53\ns_lshl_b32 s53, s13, 4\ns_add_u32 s54, s54, s53")
    a("v_add_u32 v10, s54, v3")
    a("v_mul_u32_u24 v11, 1639, v10\nv_lshrrev_b32 v11, 16, v11")
    a("v_mul_u32_u24 v12, 40, v11\nv_sub_u32 v12, v10, v12")
    a("v_add_u32 v13, 80, v12")
    a("v_cmp_le_u32 vcc, 20, v12\nv_cndmask_b32 v14, 0, 1, vcc")
    a("v_mul_u32_u24 v15, 20, v14\nv_sub_u32 v15, v12, v15")
    a("s_lshl_b32 s53, s52, 4\nv_lshl_add_u32 v16, v14, 5, v15\nv_add_u32 v16, s53, v16")
    a("s_lshl_b32 s53, s52, 3\ns_add_u32 s53, s53, 48\nv_lshl_add_u32 v17, v14, 2, v15\nv_add_u32 v17, s53, v17")
    a("v_cmp_gt_u32 vcc, 16, v15\nv_cndmask_b32 v16, v17, v16, vcc")
    a("s_cmp_eq_u32 s52, 2\ns_cselect_b64 vcc, -1, 0\nv_cndmask_b32 v16, v16, v13, vcc")
    a("v_lshrrev_b32 v13, 4, v16\nv_and_b32 v14, 15, v16\nv_lshlrev_b32 v13, 10, v13\nv_lshl_add_u32 v13, v14, 4, v13\nv_lshl_add_u32 v13, v2, 8, v13")
    a(f"s_mov_b32 s53, {160*KB}\nv_mul_lo_u32 v9, v11, s53\nv_add_u32 v9, v9, v13")
    a("v_lshl_add_u32 v18, v11, 7, v16\nv_lshlrev_b32 v18, 2, v18")
    a(f"s_mul_i32 s38, s51, {80*KB}\ns_add_u32 s38, s38, {WQ}\ns_mov_b32 s39, {8*KB}\ns_mov_b32 s40, 10")
    a(f"s_lshl_b32 s41, s51, 13\ns_add_u32 s41, s41, {CSQ}")
    a("s_branch K0_common")
    a("K0_win:")
    src(24, 640*1728*2)
    a("s_sub_u32 s50, s2, 60\ns_and_b32 s51, s50, 1\ns_lshr_b32 s50, s50, 1")
    a("s_lshl_b32 s35, s50, 7\ns_mul_i32 s36, s51, 320")
    dma("x", 3456, 10)
    a("s_lshl_b32 s52, s50, 2\ns_add_u32 s52, s52, s13")
    a("s_cmp_ge_u32 s52, 54\ns_cselect_b32 s53, 54, 0\ns_cselect_b32 s54, 8, 0\ns_sub_u32 s52, s52, s53")
    a("s_cmp_ge_u32 s52, 27\ns_cselect_b32 s53, 27, 0\ns_cselect_b32 s55, 4, 0\ns_sub_u32 s52, s52, s53\ns_add_u32 s54, s54, s55")
    a("s_mul_i32 s53, s52, 37\ns_lshr_b32 s53, s53, 8\ns_add_u32 s54, s54, s53\ns_mul_i32 s53, s53, 7\ns_sub_u32 s52, s52, s53")
    a(f"s_mul_i32 s38, s54, {140*KB}\ns_lshl_b32 s53, s52, 10\ns_add_u32 s38, s38, s53\ns_mul_i32 s53, s51, {70*KB}\ns_add_u32 s38, s38, s53\ns_add_u32 s38, s38, {WI}")
    a(f"s_mov_b32 s39, {7*KB}\ns_mov_b32 s40, 10\nv_mov_b32 v9, v4\nv_lshlrev_b32 v18, 2, v3")
    a(f"s_lshl_b32 s41, s51, 13\ns_lshl_b32 s53, s54, 9\ns_add_u32 s41, s41, s53\ns_lshl_b32 s53, s52, 6\ns_add_u32 s41, s41, s53\ns_add_u32 s41, s41, {CSI}")
    a("s_branch K0_common")
    a("K0_wo:")
    src(20, 640*640*2)
    a("s_sub_u32 s50, s2, 114\ns_and_b32 s51, s50, 1\ns_lshr_b32 s50, s50, 1")
    a("s_lshl_b32 s35, s50, 7\ns_mul_i32 s36, s51, 320")
    dma("o", 1280, 10)
    a("s_lshl_b32 s52, s50, 2\ns_add_u32 s52, s52, s13\ns_mul_i32 s54, s52, 52\ns_lshr_b32 s54, s54, 8\ns_mul_i32 s53, s54, 5\ns_sub_u32 s52, s52, s53")
    a(f"s_mul_i32 s38, s54, {100*KB}\ns_lshl_b32 s53, s52, 10\ns_add_u32 s38, s38, s53\ns_mul_i32 s53, s51, {50*KB}\ns_add_u32 s38, s38, s53\ns_add_u32 s38, s38, {WO}")
    a(f"s_mov_b32 s39, {5*KB}\ns_mov_b32 s40, 10\nv_mov_b32 v9, v4\nv_mov_b32 v18, 0\ns_mov_b32 s41, -1")
    a("s_branch K0_common")
    a("K0_wout:")
    src(30, 864*640*2)
    a("s_sub_u32 s51, s2, 134\ns_mul_i32 s50, s51, 86\ns_lshr_b32 s50, s50, 8\ns_mul_i32 s53, s50, 3\ns_sub_u32 s51, s51, s53")
    a("s_lshl_b32 s35, s50, 7\ns_mul_i32 s36, s51, 288")
    dma("u", 1280, 9)
    a("s_lshl_b32 s52, s50, 2\ns_add_u32 s52, s52, s13\ns_mul_i32 s54, s52, 52\ns_lshr_b32 s54, s54, 8\ns_mul_i32 s53, s54, 5\ns_sub_u32 s52, s52, s53")
    a(f"s_mul_i32 s38, s54, {135*KB}\ns_lshl_b32 s53, s52, 10\ns_add_u32 s38, s38, s53\ns_mul_i32 s53, s51, {45*KB}\ns_add_u32 s38, s38, s53\ns_add_u32 s38, s38, {WT}")
    a(f"s_mov_b32 s39, {5*KB}\ns_mov_b32 s40, 9\nv_mov_b32 v9, v4\nv_mov_b32 v18, 0\ns_mov_b32 s41, -1")
    a("K0_common:")
    a.fence(4)
    a("v_lshrrev_b32 v21, 2, v3\nv_lshl_add_u32 v21, v2, 2, v21")
    a("v_lshrrev_b32 v22, 1, v21\nv_and_b32 v22, 3, v22\nv_lshlrev_b32 v22, 1, v22")
    a("v_bfe_u32 v23, v3, 1, 1\ns_lshl_b32 s53, s13, 1\nv_add_u32 v23, s53, v23\nv_xor_b32 v23, v23, v22")
    a("v_lshlrev_b32 v20, 7, v21\nv_lshl_add_u32 v20, v23, 4, v20\nv_and_b32 v23, 1, v3\nv_lshl_add_u32 v20, v23, 3, v20")
    a("v_mov_b32 v19, 0\nv_mov_b32 v24, 0x3f803f80")
    if code_prefetch: code_prefetch(a, 25, 26)
    a("s_waitcnt vmcnt(0)\ns_barrier")
    for ks in range(10):
        a(f"ds_read_b64_tr_b16 v[{32+4*ks}:{33+4*ks}], v20 offset:{ks*4096}")
        a(f"ds_read_b64_tr_b16 v[{34+4*ks}:{35+4*ks}], v20 offset:{ks*4096+2048}")
    for ks in range(10):
        if ks == 9:
            a("s_cmp_lt_u32 s40, 10\ns_cbranch_scc1 K0_end")
        a(f"s_waitcnt lgkmcnt({min(15, 18-2*ks)})")
        a(f"buffer_store_dwordx4 v[{32+4*ks}:{35+4*ks}], v9, s[4:7], s38 offen\ns_add_u32 s38, s38, s39")
        for j in range(4):
            a(f"v_dot2_f32_bf16 v19, v{32+4*ks+j}, v24, v19")
    a("s_cmp_eq_u32 s41, -1\ns_cbranch_scc1 K0_end")
    a("v_mov_b32 v21, v19\nv_permlane32_swap_b32 v21, v19\nv_add_f32 v19, v19, v21")
    a("v_mov_b32 v21, v19\nv_permlane16_swap_b32 v21, v19\nv_add_f32 v19, v19, v21")
    a("s_mov_b64 exec, 0xffff\nbuffer_store_dword v19, v18, s[4:7], s41 offen")
    a("s_endpgm")
    a("K0_x:")
    src(16, 2048*640*2)
    a(f"s_sub_u32 s50, s2, 164\ns_mul_i32 s35, s50, {32*1280}\ns_lshl_b32 s49, s13, 10\ns_lshl_b32 s48, s13, 6")
    a("v_add_u32 v5, s48, v0")
    for m in range(10):
        a(f"v_add_u32 v6, {256*m}, v5\nv_mul_u32_u24 v7, 52429, v6\nv_lshrrev_b32 v7, 22, v7")
        a("v_and_b32 v8, 15, v7\nv_xor_b32 v8, v8, v6\nv_lshlrev_b32 v8, 4, v8")
        a(f"s_add_u32 m0, s49, {4096*m}")
        a("buffer_load_dwordx4 v8, s[8:11], s35 offen lds")
    a("s_and_b32 s51, s13, 1\ns_lshr_b32 s52, s13, 1")
    a("s_lshl_b32 s53, s51, 4\nv_add_u32 v9, s53, v3\nv_mul_u32_u24 v10, 1280, v9\nv_and_b32 v11, 1, v2\nv_lshl_add_u32 v10, v11, 3, v10")
    a("v_lshrrev_b32 v11, 1, v2\nv_xor_b32 v11, v11, v3\nv_lshlrev_b32 v11, 4, v11")
    a("v_mov_b32 v18, 0\nv_mov_b32 v19, 0\nv_mov_b32 v24, 0x3f803f80")
    a(f"s_mul_i32 s38, s52, {10*128*KB}\ns_lshl_b32 s53, s50, 11\ns_add_u32 s38, s38, s53\ns_lshl_b32 s53, s51, 10\ns_add_u32 s38, s38, s53\ns_add_u32 s38, s38, {IT0+XIN}")
    a("s_mul_i32 s54, s52, 20")
    if code_prefetch: code_prefetch(a, 25, 26)
    a("s_waitcnt vmcnt(0)\ns_barrier")
    for j in range(20):
        a(f"s_add_u32 s44, s54, {j}\ns_lshr_b32 s45, s44, 2\ns_add_u32 s45, s45, s44\ns_mul_i32 s46, s44, 5\ns_sub_u32 s46, s46, 156\ns_cmp_lt_u32 s44, 32\ns_cselect_b32 s45, s45, s46")
        a("s_lshl_b32 s45, s45, 5\ns_and_b32 s46, s45, 0xff\ns_andn2_b32 s45, s45, 0xff")
        a(f"v_xor_b32 v12, s46, v11\nv_add3_u32 v12, v12, v10, s45\nds_read_b64 v[{32+2*j}:{33+2*j}], v12")
    for ks in range(10):
        a(f"s_waitcnt lgkmcnt({min(15, 18-2*ks)})")
        a(f"buffer_store_dwordx4 v[{32+4*ks}:{35+4*ks}], v4, s[4:7], s38 offen\ns_add_u32 s38, s38, {128*KB}")
        for j in range(4):
            a(f"v_dot2_f32_bf16 v18, v{32+4*ks+j}, v24, v18")
            a(f"v_dot2_f32_bf16 v19, v{32+4*ks+j}, v{32+4*ks+j}, v19")
    a("v_lshlrev_b32 v12, 14, v2\nv_lshl_add_u32 v12, v9, 3, v12")
    a(f"s_lshl_b32 s38, s52, 16\ns_lshl_b32 s53, s50, 8\ns_add_u32 s38, s38, s53\ns_add_u32 s38, s38, {IT0+STIN}")
    a("buffer_store_dwordx2 v[18:19], v12, s[4:7], s38 offen")
    a("s_endpgm")
    a("K0_zero:")
    a("v_mov_b32 v8, 0\nv_mov_b32 v9, 0\nv_mov_b32 v10, 0\nv_mov_b32 v11, 0")
    a(f"s_sub_u32 s50, s2, 228\ns_mul_i32 s38, s50, {ITS}\ns_add_u32 s38, s38, {IT0+ZS}\ns_lshl_b32 s53, s13, 12\ns_add_u32 s38, s38, s53")
    a(f"s_lshl_b32 s39, s50, 15\ns_add_u32 s39, s39, {CNT}\ns_lshl_b32 s53, s13, 13\ns_add_u32 s39, s39, s53\ns_add_u32 s40, s39, 4096")
    for j in range(4):
        a(f"buffer_store_dwordx4 v[8:11], v4, s[4:7], s38 offen offset:{j*1024}")
        a(f"buffer_store_dwordx4 v[8:11], v4, s[4:7], s39 offen offset:{j*1024}")
        a(f"buffer_store_dwordx4 v[8:11], v4, s[4:7], s40 offen offset:{j*1024}")
    a("K0_end:\ns_endpgm")
    a.end_kernel(name, 72, sgpr=64)

if __name__ == "__main__":
    a = Asm()
    a.launch("k0_kernel", (NJOBS,1,1), (256,1,1), lds=40960)
    emit_k0(a)
    open("k0.s","w").write(a.text())
```

```python
import numpy as np
KB = 1024
S, D, H, DH, F, FH = 2048, 640, 32, 20, 1728, 864
off = 0
def alloc(n):
    global off
    o = off; off += (n + 4095) // 4096 * 4096
    return o
WQ = alloc(16*20*8*KB)
WO = alloc(8*20*5*KB)
WI = alloc(16*20*7*KB)
WT = alloc(8*27*5*KB + 8*KB)
CSQ = alloc(16*KB)
CSI = alloc(16*KB)
CNT = alloc(64*KB)
IT0 = off
XIN = alloc(20*128*KB) - IT0
STIN = alloc(8*2048*8) - IT0
OB = alloc(20*128*KB) - IT0
XMID = alloc(20*128*KB) - IT0
STMID = alloc(8*2048*8) - IT0
Z1 = alloc(128*8*4*KB) - IT0
Z2 = alloc(64*56*KB) - IT0
ZS = alloc(2048*8) - IT0
UB = alloc(28*128*KB) - IT0
ITS = off - IT0
WS_USED = IT0 + 2*ITS

def xorder():
    vt = np.arange(40)
    T = np.where(vt < 32, 5*(vt >> 2) + (vt & 3), 5*(vt-32) + 4)
    return (16*T[:, None] + np.arange(16)[None, :]).reshape(-1)
def oorder():
    r = np.arange(640)
    rp = r - 512
    return np.where(r < 512, r + 8*(r >> 5), 40*(rp >> 3) + 32 + (rp & 7))
def ustart(cb): return 27*(cb >> 2) + 7*(cb & 3)
def ucount(cb): return 6 if (cb & 3) == 3 else 7
def uorder():
    T = []
    for vt in range(54):
        if vt < 48: T.append(ustart(vt//6) + vt % 6)
        else:
            n = vt-48; cb = 4*(n//3) + n % 3; T.append(ustart(cb) + 6)
    T = np.array(T)
    return (16*T[:, None] + np.arange(16)[None, :]).reshape(-1)
_l = np.arange(64); _g = _l >> 4; _i = _l & 15; _e = np.arange(8)
RHO = 16*(_e[None, :] >> 2) + 4*_g[:, None] + (_e[None, :] & 3)

def pack_act(M, order):
    rows, K = M.shape
    Mv = M[:, order]
    ns = K // 32
    out = np.empty((ns, rows//16, 64, 8), M.dtype)
    for s in range(ns):
        blk = Mv[:, 32*s:32*s+32].reshape(rows//16, 16, 32)
        out[s] = blk[:, _i[:, None], RHO]
    return out
def unpack_act(U, order):
    ns, nrt = U.shape[:2]
    Mv = np.empty((nrt, 16, ns*32), U.dtype)
    for s in range(ns):
        tmp = np.empty((nrt, 16, 32), U.dtype)
        tmp[:, _i[:, None], RHO] = U[s]
        Mv[:, :, 32*s:32*s+32] = tmp
    Mv = Mv.reshape(nrt*16, ns*32)
    M = np.empty_like(Mv); M[:, order] = Mv
    return M
def qkv_cols(hp):
    c = -np.ones((8, 16), int)
    for sec in range(2):
        for h in range(2):
            for d in range(20):
                col = 640*sec + 40*hp + 20*h + d
                if d < 16: c[sec + 2*h, d] = col
                else: c[4, 8*sec + 4*h + d - 16] = col
    for w in range(40):
        c[5 + (w >> 4), w & 15] = 1280 + 40*hp + w
    return c
def pack_w(W, order, cols):
    Wt = W[order, :].T
    nT = cols.shape[0]
    M = Wt[np.maximum(cols.reshape(-1), 0)]
    U = pack_act(M, np.arange(M.shape[1]))
    mask = np.broadcast_to((cols >= 0)[None, :, _i, None], U.shape)
    return U, mask
def win_cols(cb):
    zp, b = cb >> 3, cb & 7
    c = -np.ones((7, 16), int)
    for sl in range(ucount(b)):
        c[sl] = 16*(54*zp + ustart(b) + sl) + np.arange(16)
    return c
def blk5_cols(cb):
    return (80*cb + np.arange(80)).reshape(5, 16)
if __name__ == "__main__":
    print("WS_USED", WS_USED/2**20, "MB; IT0", hex(IT0), "ITS", hex(ITS))
    for o in (xorder(), oorder(), uorder()):
        assert sorted(o) == list(range(len(o)))
    assert all((vt*43) >> 8 == vt//6 for vt in range(54))
    assert all((c*1639) >> 16 == c//40 for c in range(640))
    assert all((t*37) >> 8 == t//7 for t in range(27))
    assert all((t*52) >> 8 == t//5 for t in range(40))
    assert all((p*52429) >> 22 == p//80 for p in range(2560))
    assert all((j*86) >> 8 == j//3 for j in range(30))
    assert all((j*26) >> 8 == j//10 for j in range(30))
    print("ok")
```

```python
import sys, math, struct
from asmlib import *
from layout import *
from k0 import emit_k0, NJOBS

LDS_TOTAL = 163840
SCR = 0
DR0, DRSZ = 16*KB, 56*KB
WR0, WRSZ = 72*KB, 88*KB

def f2u(x): return struct.unpack("<I", struct.pack("<f", x))[0]

PH = {
    1: dict(nks=20, nD=9, nW=8),
    2: dict(nks=20, nD=4, nW=5),
    3: dict(nks=20, nD=8, nW=7),
    4: dict(nks=64, nD=7, nW=4),
    5: dict(nks=27, nD=4, nW=5),
}
CFG = dict(P0=2, PER=2)

def schedule(ring, size, n, P0, PER):
    addr = []; ptr = 0
    for k in range(n):
        if ptr + size > ring: ptr = 0
        addr.append(ptr); ptr += size
    after = []
    for k in range(n):
        e = -1
        for m in range(k):
            if addr[m] < addr[k] + size and addr[k] < addr[m] + size: e = max(e, m + 1)
        ramp = -1 if k < P0 else (k - P0) // PER
        e = max(e, ramp, after[-1] if after else -1)
        assert e <= k - 1, (k, e)
        after.append(e)
    return addr, after

class LG:
    def __init__(s, a): s.a = a; s.out = []
    def op(s, text, regs=()):
        s.a(text); s.out.append(set(regs))
    def need(s, regs):
        regs = set(regs); idx = -1
        for k, r in enumerate(s.out):
            if r & regs: idx = k
        if idx >= 0:
            n = min(len(s.out) - 1 - idx, 15)
            s.a(f"s_waitcnt lgkmcnt({n})")
            s.out = s.out[len(s.out) - n:] if n else []
    def drain(s):
        if s.out: s.a("s_waitcnt lgkmcnt(0)"); s.out = []

def R(b, n): return range(b, b + n)
def mfma(d, A, B, C=None):
    c = vr(d, 4) if C is None else C
    return f"v_mfma_f32_16x16x32_bf16 {vr(d,4)}, {vr(A,4)}, {vr(B,4)}, {c}"

def prologue(a, p):
    L = f"P{p}"
    a(f"{L}_body:")
    a(f"s_cmp_ge_u32 s2, 256\ns_cbranch_scc1 {L}_end")
    a("s_load_dwordx4 s[20:23], s[0:1], 40\ns_load_dwordx2 s[24:25], s[0:1], 64\ns_load_dwordx2 s[26:27], s[0:1], 80")
    a("v_lshrrev_b32 v1, 6, v0\nv_and_b32 v0, 63, v0\nv_readfirstlane_b32 s13, v1")
    a("v_lshrrev_b32 v1, 4, v0\nv_and_b32 v2, 15, v0\nv_lshlrev_b32 v3, 4, v0")
    a("s_and_b32 s15, s2, 7\ns_lshr_b32 s16, s2, 3")
    if p in (1, 3):
        a("s_lshr_b32 s17, s15, 1\ns_lshl_b32 s17, s17, 2\ns_lshr_b32 s18, s16, 3\ns_add_u32 s17, s17, s18")
        a("s_and_b32 s18, s15, 1\ns_lshl_b32 s18, s18, 3\ns_and_b32 s19, s16, 7\ns_add_u32 s18, s18, s19")
    else:
        a("s_lshr_b32 s17, s15, 1\ns_lshl_b32 s17, s17, 3\ns_lshr_b32 s18, s16, 2\ns_add_u32 s17, s17, s18")
        a("s_and_b32 s18, s15, 1\ns_lshl_b32 s18, s18, 2\ns_and_b32 s19, s16, 3\ns_add_u32 s18, s18, s19")
    a("s_waitcnt lgkmcnt(0)")
    a.srd(4, 26, 0x10000000)
    a(f"s_cmp_ge_u32 s13, 6\ns_cbranch_scc1 {L}_ldD\ns_cmp_ge_u32 s13, 4\ns_cbranch_scc1 {L}_ldW")

def loader(a, p, which):
    ph = PH[p]; L = f"P{p}"
    nks = ph["nks"]; nst = (nks + 1) // 2
    nU = ph["nD"] if which == "D" else ph["nW"]
    ring0, ringsz = (DR0, DRSZ) if which == "D" else (WR0, WRSZ)
    addr, after = schedule(ringsz, 2*nU*KB, nst, CFG["P0"], CFG["PER"])
    ph["addr" + which] = addr
    a(f"{L}_ld{which}:")
    a("s_and_b32 s19, s13, 1")
    a(f"s_mul_i32 s30, s19, {nU*KB}\ns_add_u32 s30, s30, {ring0}")
    wsp = (p == 4 and which == "W")
    if which == "D":
        if p == 1:
            stride = 128*KB
            a(f"s_lshl_b32 s31, s17, 13\ns_add_u32 s31, s31, s12\ns_add_u32 s31, s31, {XIN}")
            a(f"s_cmp_eq_u32 s17, 0\ns_cselect_b32 s33, 0, {KB}")
        elif p == 2:
            stride = 128*KB; a(f"s_lshl_b32 s31, s17, 12\ns_add_u32 s31, s31, s12\ns_add_u32 s31, s31, {OB}")
        elif p == 3:
            stride = 128*KB; a(f"s_lshl_b32 s31, s17, 13\ns_add_u32 s31, s31, s12\ns_add_u32 s31, s31, {XMID}")
        elif p == 4:
            stride = 56*KB; a(f"s_mul_i32 s31, s18, {7*KB}\ns_add_u32 s31, s31, s12\ns_add_u32 s31, s31, {Z2}")
        elif p == 5:
            stride = 128*KB; a(f"s_lshl_b32 s31, s17, 12\ns_add_u32 s31, s31, s12\ns_add_u32 s31, s31, {UB}")
    else:
        if p == 1: stride = 8*KB; a(f"s_mul_i32 s31, s18, {160*KB}\ns_add_u32 s31, s31, {WQ}")
        elif p == 2: stride = 5*KB; a(f"s_mul_i32 s31, s18, {100*KB}\ns_add_u32 s31, s31, {WO}")
        elif p == 3: stride = 7*KB; a(f"s_mul_i32 s31, s18, {140*KB}\ns_add_u32 s31, s31, {WI}")
        elif p == 5: stride = 5*KB; a(f"s_mul_i32 s31, s18, {135*KB}\ns_add_u32 s31, s31, {WT}")
        elif p == 4:
            a.srd(8, 20, 2048*2048*2)
            a("s_lshl_b32 s31, s17, 18\ns_lshl_b32 s32, s19, 17\ns_add_u32 s31, s31, s32")
            a("v_lshrrev_b32 v4, 3, v0\nv_lshlrev_b32 v4, 12, v4\nv_and_b32 v5, 7, v0\nv_xor_b32 v5, v5, v1")
            for m in range(4):
                a(f"v_xor_b32 v6, {4*(m&1)}, v5\nv_lshl_add_u32 v{8+m}, v6, 4, v4\nv_add_u32 v{8+m}, {m*(8*4096-1024)}, v{8+m}")
    if not wsp:
        a(f"s_mul_i32 s32, s19, {stride}\ns_add_u32 s31, s31, s32")
    issued = []
    def issue(n):
        if wsp:
            a(f"s_add_u32 m0, s30, {addr[n]}\ns_add_u32 s32, s31, {n*128}")
            for m in range(4):
                a(f"buffer_load_dwordx4 v{8+m}, s[8:11], s32 offen offset:{m*KB} lds"); issued.append(n)
            return
        g0 = n*2*stride
        u = 0
        if which == "D" and p == 1:
            a(f"s_add_u32 m0, s30, {addr[n]}\ns_add_u32 s32, s31, {g0}\ns_sub_u32 s32, s32, s33")
            a("buffer_load_dwordx4 v3, s[4:7], s32 offen lds"); issued.append(n)
            u = 1
        while u < nU:
            k = min(4, nU - u)
            gu = u - 1 if (which == "D" and p == 1) else u
            a(f"s_add_u32 m0, s30, {addr[n] + u*KB}\ns_add_u32 s32, s31, {g0 + gu*KB}")
            for j in range(k):
                a(f"buffer_load_dwordx4 v3, s[4:7], s32 offen offset:{j*KB} lds"); issued.append(n)
            u += k
    for n in range(nst):
        if after[n] == -1: issue(n)
    for n in range(nst):
        cnt = sum(1 for x in issued if x > n)
        assert cnt <= 63
        a(f"s_waitcnt vmcnt({cnt})\ns_barrier")
        for m in range(nst):
            if after[m] == n: issue(m)
    a("s_endpgm")

def mainloop(a, lg, p, NB, reads, mf, hooks=None, pre=None, last_hook=None):
    ph = PH[p]; nks = ph["nks"]; nst = (nks + 1) // 2
    hooks = hooks or {}
    def inter(rd, ms):
        rd = list(rd); ms = list(ms)
        i = 0
        for (txt, nd) in ms:
            lg.need(nd)
            a(txt)
            if txt.startswith("v_mfma") and i < len(rd):
                lg.op(*rd[i]); i += 1
        while i < len(rd):
            lg.op(*rd[i]); i += 1
    lag = 1 if NB == 2 else 2
    for n in range(nst):
        lg.drain()
        a("s_barrier")
        if n in hooks: hooks[n]()
        ts = [t for t in (2*n, 2*n+1) if t < nks]
        if NB == 2:
            for t in ts:
                inter(reads(t, t % 2), mf(t-1, (t-1) % 2) if t >= 1 else [])
        else:
            rd = sum([reads(t, t % 4) for t in ts], [])
            ms = sum([mf(t, t % 4) for t in (2*n-2, 2*n-1) if t >= 0], [])
            inter(rd, ms)
    tail = [nks-1] if NB == 2 else [t for t in (2*nst-2, 2*nst-1) if t < nks]
    extra = last_hook() if last_hook else []
    inter(extra, sum([mf(t, t % NB) for t in tail], []))

def lds_addr(ph, which, t, unit):
    nU = ph["n" + which]
    return (DR0 if which == "D" else WR0) + ph["addr" + which][t // 2] + (t % 2)*nU*KB + unit*KB
def wsel(addr, base_lo, base_hi):
    o = addr - WR0
    return (base_lo, o) if o < 49152 else (base_hi, o - 49152)

def xreduce(a, op, v, t):
    a(f"v_mov_b32 v{t}, v{v}\nv_permlane32_swap_b32 v{t}, v{v}\n{op} v{v}, v{v}, v{t}")
    a(f"v_mov_b32 v{t}, v{v}\nv_permlane16_swap_b32 v{t}, v{v}\n{op} v{v}, v{v}, v{t}")

def stats_load(a, vtok, vst, stoff):
    a(f"s_add_u32 s34, s12, {stoff}")
    for b in range(8):
        a(f"buffer_load_dwordx2 {vr(vst+2*b,2)}, v{vtok}, s[4:7], s34 offen")
        if b < 7: a("s_add_u32 s34, s34, 16384")
def stats_reduce(a, vst, n):
    for b in (1, 3, 5, 7): a(f"v_pk_add_f32 {vr(vst+2*b-2,2)}, {vr(vst+2*b-2,2)}, {vr(vst+2*b,2)}")
    a(f"v_pk_add_f32 {vr(vst,2)}, {vr(vst,2)}, {vr(vst+4,2)}\nv_pk_add_f32 {vr(vst+8,2)}, {vr(vst+8,2)}, {vr(vst+12,2)}")
    a(f"v_pk_add_f32 {vr(vst,2)}, {vr(vst,2)}, {vr(vst+8,2)}")
    finish_stats(a, vst, vst+2, n)
def finish_stats(a, v, t, n):
    a(f"v_mul_f32 v{t}, {hex(f2u(1.0/n))}, v{v}")
    a(f"v_mul_f32 v{v+1}, {hex(f2u(1.0/n))}, v{v+1}")
    a(f"v_fma_f32 v{v+1}, -v{t}, v{t}, v{v+1}")
    a(f"v_max_f32 v{v+1}, 0, v{v+1}\nv_add_f32 v{v+1}, {hex(f2u(1e-5))}, v{v+1}")
    a(f"v_rsq_f32 v{v}, v{v+1}")
    a(f"v_mul_f32 v{v+1}, v{t}, v{v}\nv_sub_f32 v{v+1}, 0, v{v+1}")

BC_LO = "op_sel:[0,0,0] op_sel_hi:[1,0,1]"
BC_HI = "op_sel:[0,1,0] op_sel_hi:[1,1,1]"
def bc2(hi): return "op_sel:[0,1] op_sel_hi:[1,1]" if hi else "op_sel:[0,0] op_sel_hi:[1,0]"
def bc3(hi): return BC_HI if hi else BC_LO

def fix_T(a, acc, cs, st, tmp):
    for h in (0, 2):
        a(f"v_pk_mul_f32 {vr(tmp+h,2)}, {vr(cs+h,2)}, {vr(st,2)} {bc2(1)}")
    for h in (0, 2):
        a(f"v_pk_fma_f32 {vr(acc+h,2)}, {vr(acc+h,2)}, {vr(st,2)}, {vr(tmp+h,2)} {bc3(0)}")
def fix_N(a, acc, csreg, rs, nm, tmp):
    cp = csreg & ~1
    for h in (0, 2):
        a(f"v_pk_mul_f32 {vr(tmp+h,2)}, {vr(nm+h,2)}, {vr(cp,2)} {bc2(csreg & 1)}")
    for h in (0, 2):
        a(f"v_pk_fma_f32 {vr(acc+h,2)}, {vr(acc+h,2)}, {vr(rs+h,2)}, {vr(tmp+h,2)}")
def cvt2(a, d, acc):
    a(f"v_cvt_pk_bf16_f32 v{d}, v{acc}, v{acc+1}\nv_cvt_pk_bf16_f32 v{d+1}, v{acc+2}, v{acc+3}")

def cons1(a):
    ph = PH[1]; lg = LG(a)
    vD, vH, vW0, vW1, vT0, vT1, vV0, vV1 = 4, 5, 6, 7, 8, 9, 10, 11
    vS = 12
    vST = 16
    ACC = 32
    FB = 104
    X = 208
    def acc(t, x): return ACC + 4*(2*t + x)
    accHT, accHV = ACC + 64, ACC + 68
    a(f"s_lshl_b32 s30, s13, 11\ns_add_u32 s30, s30, {DR0 + KB}\nv_add_u32 v{vD}, s30, v3\nv_add_u32 v{vH}, {DR0}, v3")
    a(f"v_add_u32 v{vW0}, {WR0}, v3\nv_add_u32 v{vW1}, {WR0+49152}, v3")
    a("s_min_u32 s31, s13, 2\ns_lshl_b32 s32, s31, 1\ns_add_u32 s32, s32, 1\ns_min_u32 s32, s32, 4\ns_add_u32 s33, s31, 5")
    a(f"s_lshl_b32 s34, s32, 10\nv_add_u32 v{vT0}, s34, v{vW0}\nv_add_u32 v{vT1}, s34, v{vW1}")
    a(f"s_lshl_b32 s34, s33, 10\nv_add_u32 v{vV0}, s34, v{vW0}\nv_add_u32 v{vV1}, s34, v{vW1}")
    a(f"s_lshl_b32 s34, s18, 9\ns_add_u32 s34, s34, {CSQ}\ns_add_u32 s35, s34, 8192\nv_lshlrev_b32 v13, 3, v0")
    a(f"buffer_load_dwordx2 {vr(X,2)}, v13, s[4:7], s34 offen\nbuffer_load_dwordx2 {vr(X+2,2)}, v13, s[4:7], s35 offen")
    a("s_lshl_b32 s34, s17, 7\ns_lshl_b32 s35, s13, 5\ns_add_u32 s35, s35, s34\ns_max_u32 s34, s34, 16\ns_sub_u32 s34, s34, 48")
    a("v_add_u32 v14, s35, v0\nv_add_u32 v15, s34, v0\nv_cmp_gt_u32 vcc, 32, v0\nv_cndmask_b32 v14, v15, v14, vcc\nv_lshlrev_b32 v14, 3, v14")
    stats_load(a, 14, vST, STIN)
    for r in range(72): a(f"v_mov_b32 v{ACC+r}, 0")
    a(f"s_lshl_b32 s36, s13, 10\nv_add_u32 v13, s36, v13\nv_lshlrev_b32 v{vS}, 2, v0\nv_add_u32 v{vS}, s36, v{vS}")
    a(f"s_waitcnt vmcnt(8)\nv_pk_add_f32 {vr(X,2)}, {vr(X,2)}, {vr(X+2,2)}")
    lg.op(f"ds_write_b64 v13, {vr(X,2)} offset:512")
    def hook_stats():
        a("s_waitcnt vmcnt(0)")
        stats_reduce(a, vST, 640)
        lg.op(f"ds_write_b32 v{vS}, v{vST}")
        lg.op(f"ds_write_b32 v{vS}, v{vST+1} offset:256")
    def fb(buf, k): return FB + 52*buf + 4*k
    def reads(t, buf):
        def rd(k, base, off): return (f"ds_read_b128 {vr(fb(buf,k),4)}, v{base} offset:{off}", R(fb(buf,k),4))
        d0 = lds_addr(ph, "D", t, 0) - DR0
        out = [rd(0, vD, d0)]
        def w(k, u, lo, hi):
            b, o = wsel(lds_addr(ph, "W", t, u), lo, hi); return rd(k, b, o)
        out += [w(3, 0, vW0, vW1), rd(1, vD, d0 + KB)]
        out += [w(3+u, u, vW0, vW1) for u in range(1, 8)]
        out += [rd(2, vH, d0), w(11, 0, vT0, vT1), w(12, 0, vV0, vV1)]
        return out
    def mf(t, buf):
        out = []
        for u in range(8):
            for x in range(2):
                A, B = fb(buf, x), fb(buf, 3+u)
                out.append((mfma(acc(u,x), B, A) if u < 5 else mfma(acc(u,x), A, B), list(R(A,4)) + list(R(B,4))))
        out.append((mfma(accHT, fb(buf,11), fb(buf,2)), list(R(fb(buf,11),4)) + list(R(fb(buf,2),4))))
        out.append((mfma(accHV, fb(buf,2), fb(buf,12)), list(R(fb(buf,12),4)) + list(R(fb(buf,2),4))))
        return out
    E = FB
    stT = [E, E+2, E+4]
    rsN = [E+8, E+12, E+16]; nmN = [E+20, E+24, E+28]
    csT = [E+32, E+36, E+40, E+44, E+48]; csHT = X
    csV = [X+4, X+5, X+6]; csHV = X+7
    def last_hook():
        a(f"v_lshlrev_b32 v13, 2, v2\nv_add_u32 v13, s36, v13\nv_lshlrev_b32 v14, 4, v1\nv_add_u32 v14, s36, v14")
        a("s_lshl_b32 s34, s32, 6\nv_add_u32 v15, s34, v14\ns_lshl_b32 s34, s33, 6\nv_add_u32 v16, s34, v13")
        out = []
        for x in (1, 2, 0):
            out.append((f"ds_read2_b32 {vr(stT[x],2)}, v13 offset0:{16*x} offset1:{64+16*x}", R(stT[x],2)))
            out.append((f"ds_read_b128 {vr(rsN[x],4)}, v14 offset:{64*x}", R(rsN[x],4)))
            out.append((f"ds_read_b128 {vr(nmN[x],4)}, v14 offset:{256+64*x}", R(nmN[x],4)))
        for t in range(5): out.append((f"ds_read_b128 {vr(csT[t],4)}, v14 offset:{512+64*t}", R(csT[t],4)))
        out.append((f"ds_read_b128 {vr(csHT,4)}, v15 offset:512", R(csHT,4)))
        for t in range(3): out.append((f"ds_read_b32 v{csV[t]}, v13 offset:{512+64*(5+t)}", [csV[t]]))
        out.append((f"ds_read_b32 v{csHV}, v16 offset:512", [csHV]))
        return out
    mainloop(a, lg, 1, 2, reads, mf, hooks={2: hook_stats}, last_hook=last_hook)
    lg.drain()
    G = FB + 52
    QF = {(0,0): G, (1,0): G+4, (0,1): G+8, (1,1): G+12}
    KF = {(0,0): G+16, (1,0): G+20, (0,1): G+24, (1,1): G+28, (0,'p'): G+32, (1,'p'): G+36}
    VF = [X+8, X+14, X+20]
    TMP = G+40
    HT, HV = G+44, G+46
    T4r = G+48
    BI = X+26
    BIa = X+34
    ONES = X+38
    a("s_mov_b32 s40, 0xffff\ns_mov_b32 s41, 0\ns_mov_b32 s42, 0xffff0000\ns_mov_b32 s43, 0")
    def prep(x):
        for t in range(5): fix_T(a, acc(t,x), csT[t], stT[x], TMP)
        for t in range(3): fix_N(a, acc(5+t,x), csV[t], rsN[x], nmN[x], TMP)
        cvt2(a, QF[(0,x)], acc(0,x)); cvt2(a, KF[(0,x)], acc(1,x)); cvt2(a, QF[(1,x)], acc(2,x)); cvt2(a, KF[(1,x)], acc(3,x))
        cvt2(a, T4r, acc(4,x))
        for t in range(3): cvt2(a, VF[t] + 2 + 2*x, acc(5+t,x))
        for j in range(2):
            a(f"v_cndmask_b32 v{QF[(0,x)]+2+j}, 0, v{T4r+j}, s[40:41]\nv_cndmask_b32 v{QF[(1,x)]+2+j}, 0, v{T4r+j}, s[42:43]")
            a(f"v_mov_b32 v{KF[(0,x)]+2+j}, v{T4r+j}\nv_mov_b32 v{KF[(1,x)]+2+j}, v{T4r+j}")
        for j in range(2):
            a(f"v_permlane32_swap_b32 v{KF[(0,x)]+2+j}, v{KF[(1,x)]+2+j}")
        for j in range(2):
            a(f"v_mov_b32 v{KF[(0,x)]+2+j}, v{KF[(1,x)]+2+j}")
    fix_T(a, accHT, csHT, stT[2], TMP); fix_N(a, accHV, csHV, rsN[2], nmN[2], TMP)
    cvt2(a, HT, accHT); cvt2(a, HV, accHV)
    a(f"v_lshlrev_b32 v13, 3, v0\ns_lshl_b32 s34, s31, 9\nv_add_u32 v14, s34, v13")
    lg.op(f"ds_write_b64 v14, {vr(HT,2)} offset:4096"); lg.op(f"ds_write_b64 v14, {vr(HV,2)} offset:{4096+1536}")
    prep(1)
    a(f"s_mul_i32 s34, s13, 3072\nv_add_u32 v14, s34, v13")
    a("s_cmp_eq_u32 s13, 3\ns_cbranch_scc1 P1_nopub")
    for k, r in enumerate([KF[(0,1)], KF[(1,1)], T4r, VF[0]+4, VF[1]+4, VF[2]+4]):
        a(f"ds_write_b64 v14, {vr(r,2)} offset:{4096+3072+512*k}")
    a("P1_nopub:")
    a("s_waitcnt lgkmcnt(0)\ns_barrier"); lg.out = []
    a("v_or_b32 v15, 256, v14")
    lg.op(f"ds_read_b64 {vr(KF[(0,'p')],2)}, v14 offset:4096", R(KF[(0,'p')],2))
    lg.op(f"ds_read_b64 {vr(KF[(1,'p')],2)}, v14 offset:{4096+512}", R(KF[(1,'p')],2))
    lg.op(f"ds_read_b64 {vr(KF[(0,'p')]+2,2)}, v15 offset:{4096+1024}", R(KF[(0,'p')]+2,2))
    lg.op(f"ds_read_b64 {vr(KF[(1,'p')]+2,2)}, v15 offset:{4096+1024}", R(KF[(1,'p')]+2,2))
    for t in range(3): lg.op(f"ds_read_b64 {vr(VF[t],2)}, v14 offset:{4096+1536+512*t}", R(VF[t],2))
    prep(0)
    a("v_lshlrev_b32 v16, 2, v1\nv_sub_u32 v16, v2, v16\nv_mov_b32 v17, 0xff800000")
    for kt in range(2):
        for r in range(4):
            a(f"v_add_u32 v18, {16 - 16*kt - r}, v16\nv_and_b32 v18, 0xfffffff1, v18\nv_cmp_eq_u32 vcc, 0, v18\nv_cndmask_b32 v{BI+4*kt+r}, v17, 0, vcc")
    a("s_add_u32 s34, s17, s13\ns_cmp_eq_u32 s34, 0\ns_cselect_b64 vcc, -1, 0")
    for r in range(4): a(f"v_cndmask_b32 v{BIa+r}, v{BI+r}, v17, vcc")
    for r in range(4): a(f"v_mov_b32 v{ONES+r}, 0x3f803f80")
    c = (DH ** -0.5) * math.log2(math.e)
    a(f"s_mov_b32 s44, {hex(f2u(c))}\ns_mov_b32 s45, {hex(f2u(c))}")
    a(f"s_lshl_b32 s34, s18, 17\ns_lshl_b32 s35, s17, 13\ns_lshl_b32 s37, s13, 11\ns_add_u32 s35, s35, s37\ns_add_u32 s35, s35, s12\ns_add_u32 s35, s35, {OB}\ns_add_u32 s34, s34, s35")
    a(f"s_lshr_b32 s37, s18, 2\ns_add_u32 s37, s37, 16\ns_lshl_b32 s37, s37, 17\ns_add_u32 s35, s35, s37\ns_and_b32 s37, s18, 1\ns_lshl_b32 s37, s37, 9\ns_add_u32 s35, s35, s37\ns_and_b32 s37, s18, 2\ns_lshl_b32 s37, s37, 2\ns_add_u32 s35, s35, s37")
    def attn(x, W):
        pk = 'p' if x == 0 else 0
        Sr = {0: W, 1: W+8}; M = {0: W+16, 1: W+18}; PF = {0: W+20, 1: W+24}
        bp = BIa if x == 0 else BI
        for h in range(2):
            lg.need(R(KF[(h,pk)],4))
            a(mfma(Sr[h], KF[(h,pk)], QF[(h,x)], "0")); a(mfma(Sr[h]+4, KF[(h,x)], QF[(h,x)], "0"))
        for h in range(2):
            for j in range(4):
                b = (bp + 2*j) if j < 2 else (BI + 2*j)
                a(f"v_pk_fma_f32 {vr(Sr[h]+2*j,2)}, {vr(Sr[h]+2*j,2)}, s[44:45], {vr(b,2)}")
        for h in range(2):
            s_, m = Sr[h], M[h]
            a(f"v_max3_f32 v{m}, v{s_}, v{s_+1}, v{s_+2}\nv_max3_f32 v{m+1}, v{s_+3}, v{s_+4}, v{s_+5}\nv_max3_f32 v{m}, v{m}, v{s_+6}, v{s_+7}\nv_max_f32 v{m}, v{m}, v{m+1}")
        for sw in ("v_permlane32_swap_b32", "v_permlane16_swap_b32"):
            for h in range(2): a(f"v_mov_b32 v{M[h]+1}, v{M[h]}")
            for h in range(2): a(f"{sw} v{M[h]+1}, v{M[h]}")
            for h in range(2): a(f"v_max_f32 v{M[h]}, v{M[h]}, v{M[h]+1}")
        for h in range(2):
            for j in range(4):
                a(f"v_pk_add_f32 {vr(Sr[h]+2*j,2)}, {vr(Sr[h]+2*j,2)}, {vr(M[h],2)} op_sel:[0,0] op_sel_hi:[1,0] neg_lo:[0,1] neg_hi:[0,1]")
            for j in range(8): a(f"v_exp_f32 v{Sr[h]+j}, v{Sr[h]+j}")
        for h in range(2):
            cvt2(a, PF[h], Sr[h]); cvt2(a, PF[h]+2, Sr[h]+4)
        vo = 2*x
        for t in range(3): lg.need(R(VF[t],2))
        L0, L1, O0, O1a = W+28, W+32, Sr[0], Sr[0]+4
        O1b, O2 = Sr[1], Sr[1]+4
        a(mfma(L0, ONES, PF[0], "0")); a(mfma(L1, ONES, PF[1], "0"))
        a(mfma(O0, VF[0]+vo, PF[0], "0")); a(mfma(O1a, VF[1]+vo, PF[0], "0"))
        a(mfma(O1b, VF[1]+vo, PF[1], "0")); a(mfma(O2, VF[2]+vo, PF[1], "0"))
        a(f"v_rcp_f32 v{L0}, v{L0}\nv_rcp_f32 v{L1}, v{L1}")
        a(f"v_cndmask_b32 v{L0+1}, v{L1}, v{L0}, s[40:41]")
        for j in (0, 2): a(f"v_pk_mul_f32 {vr(O0+j,2)}, {vr(O0+j,2)}, {vr(L0,2)} {bc2(0)}")
        for j in range(4): a(f"v_cndmask_b32 v{O1a+j}, v{O1b+j}, v{O1a+j}, s[40:41]")
        for j in (0, 2): a(f"v_pk_mul_f32 {vr(O1a+j,2)}, {vr(O1a+j,2)}, {vr(L0,2)} {bc2(1)}")
        for j in (0, 2): a(f"v_pk_mul_f32 {vr(O2+j,2)}, {vr(O2+j,2)}, {vr(L1,2)} {bc2(0)}")
        cvt2(a, PF[0], O0); cvt2(a, PF[0]+2, O1a); cvt2(a, PF[1], O2)
        a(f"buffer_store_dwordx4 {vr(PF[0],4)}, v3, s[4:7], s34 offen offset:{x*KB}")
        a(f"s_mov_b64 exec, 0xffffffff\nbuffer_store_dwordx2 {vr(PF[1],2)}, v3, s[4:7], s35 offen offset:{x*KB}\ns_mov_b64 exec, -1")
    attn(1, ACC); attn(0, ACC+36)
    a("s_endpgm")

def cons25(a, p):
    ph = PH[p]; lg = LG(a)
    vD, vW0, vW1 = 4, 6, 7
    ACC = 32; FB = 64; X = 160
    a(f"s_lshl_b32 s30, s13, 10\ns_add_u32 s30, s30, {DR0}\nv_add_u32 v{vD}, s30, v3")
    a(f"v_add_u32 v{vW0}, {WR0}, v3\nv_add_u32 v{vW1}, {WR0+49152}, v3")
    a("s_lshl_b32 s33, s17, 2\ns_add_u32 s33, s33, s13\ns_lshl_b32 s34, s33, 10")
    a("s_lshl_b32 s31, s18, 18\ns_add_u32 s31, s31, s34")
    a("s_lshr_b32 s32, s18, 1\ns_add_u32 s32, s32, 16\ns_lshl_b32 s32, s32, 17\ns_add_u32 s32, s32, s34\ns_and_b32 s35, s18, 1\ns_lshl_b32 s35, s35, 3\ns_add_u32 s32, s32, s35")
    src = XIN if p == 2 else XMID
    a(f"s_add_u32 s35, s12, {src}\ns_add_u32 s36, s35, s31\ns_add_u32 s37, s36, {128*KB}\ns_add_u32 s35, s35, s32")
    a(f"buffer_load_dwordx4 {vr(X,4)}, v3, s[4:7], s36 offen\nbuffer_load_dwordx4 {vr(X+4,4)}, v3, s[4:7], s37 offen\nbuffer_load_dwordx2 {vr(X+8,2)}, v3, s[4:7], s35 offen")
    a("s_mov_b32 s38, 0xffff0000\ns_waitcnt vmcnt(0)")
    for j in range(10):
        a(f"v_lshlrev_b32 v{ACC+2*j}, 16, v{X+j}\nv_and_b32 v{ACC+2*j+1}, s38, v{X+j}")
    def fb(buf, k): return FB + 24*buf + 4*k
    def reads(t, buf):
        def rd(k, base, off): return (f"ds_read_b128 {vr(fb(buf,k),4)}, v{base} offset:{off}", R(fb(buf,k),4))
        out = [rd(0, vD, lds_addr(ph, "D", t, 0) - DR0)]
        for u in range(5):
            b, o = wsel(lds_addr(ph, "W", t, u), vW0, vW1); out.append(rd(1+u, b, o))
        return out
    def mf(t, buf):
        return [(mfma(ACC+4*u, fb(buf,1+u), fb(buf,0)), list(R(fb(buf,0),4)) + list(R(fb(buf,1+u),4))) for u in range(5)]
    mainloop(a, lg, p, 4, reads, mf)
    for u in range(5): cvt2(a, X+2*u, ACC+4*u)
    if p == 5:
        a("s_cmp_eq_u32 s14, 1\ns_cbranch_scc1 P5_final")
    dst = XMID if p == 2 else ITS + XIN
    dstst = STMID if p == 2 else ITS + STIN
    a(f"s_add_u32 s35, s12, {dst}\ns_add_u32 s36, s35, s31\ns_add_u32 s37, s36, {128*KB}\ns_add_u32 s35, s35, s32")
    a(f"buffer_store_dwordx4 {vr(X,4)}, v3, s[4:7], s36 offen\nbuffer_store_dwordx4 {vr(X+4,4)}, v3, s[4:7], s37 offen\nbuffer_store_dwordx2 {vr(X+8,2)}, v3, s[4:7], s35 offen")
    a(f"v_mov_b32 v{X+12}, 0\nv_mov_b32 v{X+13}, 0\nv_mov_b32 v{X+14}, 0x3f803f80")
    for j in range(10):
        a(f"v_dot2_f32_bf16 v{X+12}, v{X+j}, v{X+14}, v{X+12}\nv_dot2_f32_bf16 v{X+13}, v{X+j}, v{X+j}, v{X+13}")
    xreduce(a, "v_add_f32", X+12, X+15); xreduce(a, "v_add_f32", X+13, X+16)
    a(f"s_lshl_b32 s35, s18, 14\ns_lshl_b32 s36, s33, 7\ns_add_u32 s35, s35, s36\ns_add_u32 s35, s35, s12\ns_add_u32 s35, s35, {dstst}")
    a(f"v_lshlrev_b32 v{X+15}, 3, v2\ns_mov_b64 exec, 0xffff\nbuffer_store_dwordx2 {vr(X+12,2)}, v{X+15}, s[4:7], s35 offen")
    a("s_endpgm")
    if p == 5:
        a("P5_final:")
        a.fence(2)
        a.srd(8, 24, 2048*640*2)
        a(f"s_lshl_b32 s35, s13, 12\nv_mul_u32_u24 v{X+12}, 176, v2\nv_lshl_add_u32 v{X+12}, v1, 3, v{X+12}\nv_add_u32 v{X+12}, s35, v{X+12}")
        for u in range(5): a(f"ds_write_b64 v{X+12}, {vr(X+2*u,2)} offset:{32*u}")
        for j in range(3):
            c, row, cc, la, ga = X+16, X+17, X+18, X+20+j, X+24+j
            a(f"v_add_u32 v{c}, {64*j}, v0\nv_mul_u32_u24 v{row}, 205, v{c}\nv_lshrrev_b32 v{row}, 11, v{row}\nv_mul_u32_u24 v{cc}, 10, v{row}\nv_sub_u32 v{cc}, v{c}, v{cc}\nv_lshlrev_b32 v{cc}, 4, v{cc}")
            a(f"v_mul_u32_u24 v{la}, 176, v{row}\nv_add3_u32 v{la}, v{la}, v{cc}, s35\nv_mul_u32_u24 v{ga}, 1280, v{row}\nv_add_u32 v{ga}, v{ga}, v{cc}")
        a(f"s_mul_i32 s36, s33, {16*1280}\ns_mul_i32 s37, s18, 160\ns_add_u32 s36, s36, s37\ns_waitcnt lgkmcnt(0)")
        for j in range(3): a(f"ds_read_b128 {vr(X+28+4*j,4)}, v{X+20+j}")
        for j in range(3):
            a(f"s_waitcnt lgkmcnt({2-j})")
            if j == 2: a("s_mov_b64 exec, 0xffffffff")
            a(f"buffer_store_dwordx4 {vr(X+28+4*j,4)}, v{X+24+j}, s[8:11], s36 offen")
        a("s_endpgm")

GC1 = -2.0 * math.sqrt(2.0/math.pi) * math.log2(math.e)
GC2 = GC1 * 0.044715
def gelu4(a, x, t):
    for h in (0, 2): a(f"v_pk_mul_f32 {vr(t+h,2)}, {vr(x+h,2)}, {vr(x+h,2)}")
    for h in (0, 2): a(f"v_pk_fma_f32 {vr(t+h,2)}, {vr(t+h,2)}, s[44:45], v[14:15]")
    for h in (0, 2): a(f"v_pk_mul_f32 {vr(t+h,2)}, {vr(t+h,2)}, {vr(x+h,2)}")
    for j in range(4): a(f"v_exp_f32 v{t+j}, v{t+j}")
    for h in (0, 2): a(f"v_pk_add_f32 {vr(t+h,2)}, {vr(t+h,2)}, 1.0 op_sel_hi:[1,0]")
    for j in range(4): a(f"v_rcp_f32 v{t+j}, v{t+j}")
    for h in (0, 2): a(f"v_pk_mul_f32 {vr(x+h,2)}, {vr(x+h,2)}, {vr(t+h,2)}")

def cons3(a):
    ph = PH[3]
    vD, vW0, vW1, vS = 4, 6, 7, 12
    vST = 16; ACC = 32; FB = 88; X = 160
    def acc(t, x): return ACC + 4*(2*t + x)
    lg = LG(a)
    a(f"s_lshl_b32 s30, s13, 11\ns_add_u32 s30, s30, {DR0}\nv_add_u32 v{vD}, s30, v3")
    a(f"v_add_u32 v{vW0}, {WR0}, v3\nv_add_u32 v{vW1}, {WR0+49152}, v3")
    a(f"s_lshl_b32 s34, s18, 9\ns_add_u32 s34, s34, {CSI}\ns_add_u32 s35, s34, 8192\nv_lshlrev_b32 v13, 3, v0")
    a(f"buffer_load_dwordx2 {vr(X,2)}, v13, s[4:7], s34 offen\nbuffer_load_dwordx2 {vr(X+2,2)}, v13, s[4:7], s35 offen")
    a("s_lshl_b32 s34, s17, 7\ns_lshl_b32 s35, s13, 5\ns_add_u32 s35, s35, s34")
    a("v_and_b32 v14, 31, v0\nv_add_u32 v14, s35, v14\nv_lshlrev_b32 v14, 3, v14")
    stats_load(a, 14, vST, STMID)
    for r in range(56): a(f"v_mov_b32 v{ACC+r}, 0")
    a(f"s_lshl_b32 s36, s13, 10\nv_add_u32 v13, s36, v13\nv_lshlrev_b32 v{vS}, 2, v0\nv_add_u32 v{vS}, s36, v{vS}")
    a(f"s_waitcnt vmcnt(8)\nv_pk_add_f32 {vr(X,2)}, {vr(X,2)}, {vr(X+2,2)}")
    lg.op(f"ds_write_b64 v13, {vr(X,2)} offset:512")
    a(f"s_mov_b32 s44, {hex(f2u(GC2))}\ns_mov_b32 s45, {hex(f2u(GC2))}\nv_mov_b32 v14, {hex(f2u(GC1))}\nv_mov_b32 v15, {hex(f2u(GC1))}")
    a(f"v_lshlrev_b32 v8, 2, v2\nv_add_u32 v8, s36, v8\nv_lshlrev_b32 v9, 4, v1\nv_add_u32 v9, s36, v9")
    a("s_and_b32 s37, s18, 7\ns_and_b32 s38, s18, 3")
    lg.drain()
    a("s_cmp_ge_u32 s18, 8\ns_cbranch_scc1 P3_z2")
    def fb(buf, k): return FB + 36*buf + 4*k
    def reads(t, buf):
        def rd(k, base, off): return (f"ds_read_b128 {vr(fb(buf,k),4)}, v{base} offset:{off}", R(fb(buf,k),4))
        d0 = lds_addr(ph, "D", t, 0) - DR0
        def w(u):
            b, o = wsel(lds_addr(ph, "W", t, u), vW0, vW1); return rd(2+u, b, o)
        return [rd(0, vD, d0), w(0), rd(1, vD, d0+KB)] + [w(u) for u in range(1, 7)]
    for var in ("z1", "z2"):
        if var == "z2": a("P3_z2:"); a.fence(2)
        lg = LG(a)
        def hook_stats():
            a("s_waitcnt vmcnt(0)")
            stats_reduce(a, vST, 640)
            lg.op(f"ds_write_b32 v{vS}, v{vST}"); lg.op(f"ds_write_b32 v{vS}, v{vST+1} offset:256")
        def mf(t, buf):
            out = []
            for u in range(7):
                for x in range(2):
                    A, B = fb(buf, x), fb(buf, 2+u)
                    out.append((mfma(acc(u,x), B, A) if var == "z1" else mfma(acc(u,x), A, B), list(R(A,4)) + list(R(B,4))))
            return out
        if var == "z1":
            stT = [X, X+2]; csT = [X+4+4*t for t in range(7)]
            def last_hook():
                out = [(f"ds_read2_b32 {vr(stT[x],2)}, v8 offset0:{16*x} offset1:{64+16*x}", R(stT[x],2)) for x in range(2)]
                out += [(f"ds_read_b128 {vr(csT[t],4)}, v9 offset:{512+64*t}", R(csT[t],4)) for t in range(7)]
                return out
        else:
            rsN = [X, X+4]; nmN = [X+8, X+12]; csV = [X+16+t for t in range(7)]
            def last_hook():
                out = []
                for x in range(2):
                    out.append((f"ds_read_b128 {vr(rsN[x],4)}, v9 offset:{64*x}", R(rsN[x],4)))
                    out.append((f"ds_read_b128 {vr(nmN[x],4)}, v9 offset:{256+64*x}", R(nmN[x],4)))
                out += [(f"ds_read_b32 v{csV[t]}, v8 offset:{512+64*t}", [csV[t]]) for t in range(7)]
                return out
        mainloop(a, lg, 3, 2, reads, mf, hooks={2: hook_stats}, last_hook=last_hook)
        lg.drain()
        TMP = X+40; PK = FB
        if var == "z1":
            a(f"s_lshl_b32 s34, s17, 18\ns_lshl_b32 s39, s13, 16\ns_add_u32 s34, s34, s39\ns_lshl_b32 s39, s37, 12\ns_add_u32 s34, s34, s39\ns_add_u32 s34, s34, s12\ns_add_u32 s34, s34, {Z1}\ns_add_u32 s39, s34, 32768")
            for u in range(7):
                if u == 6: a("s_cmp_eq_u32 s38, 3\ns_cbranch_scc1 P3_end\nv_lshlrev_b32 v13, 3, v0")
                for x in range(2):
                    fix_T(a, acc(u,x), csT[u], stT[x], TMP+4*x); gelu4(a, acc(u,x), TMP+4*x)
                    cvt2(a, PK + 16*x + 2*u, acc(u,x))
                    so = "s34" if x == 0 else "s39"
                    if u in (1, 3, 5): a(f"buffer_store_dwordx4 {vr(PK+16*x+2*u-2,4)}, v3, s[4:7], {so} offen offset:{(u//2)*KB}")
                    if u == 6: a(f"buffer_store_dwordx2 {vr(PK+16*x+12,2)}, v13, s[4:7], {so} offen offset:{3*KB}")
            a("s_endpgm")
        else:
            a(f"s_lshl_b32 s34, s17, 2\ns_add_u32 s34, s34, s13\ns_mul_i32 s34, s34, {56*KB}\ns_mul_i32 s39, s37, {7*KB}\ns_add_u32 s34, s34, s39\ns_add_u32 s34, s34, s12\ns_add_u32 s34, s34, {Z2}\ns_add_u32 s39, s34, 4096")
            SM = X+48
            for r in range(16): a(f"v_mov_b32 v{SM+r}, 0")
            for u in range(7):
                if u == 6: a("s_cmp_eq_u32 s38, 3\ns_cbranch_scc1 P3_z2red")
                for x in range(2):
                    fix_N(a, acc(u,x), csV[u], rsN[x], nmN[x], TMP+4*x); gelu4(a, acc(u,x), TMP+4*x)
                    cvt2(a, PK + 4*u + 2*x, acc(u,x))
                    for h in (0, 2):
                        a(f"v_pk_add_f32 {vr(SM+4*x+h,2)}, {vr(SM+4*x+h,2)}, {vr(acc(u,x)+h,2)}")
                        a(f"v_pk_fma_f32 {vr(SM+8+4*x+h,2)}, {vr(acc(u,x)+h,2)}, {vr(acc(u,x)+h,2)}, {vr(SM+8+4*x+h,2)}")
                so, oo = ("s34", u) if u < 4 else ("s39", u-4)
                a(f"buffer_store_dwordx4 {vr(PK+4*u,4)}, v3, s[4:7], {so} offen offset:{oo*KB}")
            a("P3_z2red:"); a.fence(2)
            RA = ACC
            for j in range(8):
                a(f"v_add_f32_dpp v{RA+j}, v{SM+j}, v{SM+j} row_ror:8 row_mask:0xf bank_mask:0x3")
                a(f"v_add_f32_dpp v{RA+j}, v{SM+8+j}, v{SM+8+j} row_ror:8 row_mask:0xf bank_mask:0xc")
            for j in range(4):
                a(f"v_add_f32_dpp v{RA+8+j}, v{RA+j}, v{RA+j} row_half_mirror row_mask:0xf bank_mask:0x5")
                a(f"v_add_f32_dpp v{RA+8+j}, v{RA+4+j}, v{RA+4+j} row_half_mirror row_mask:0xf bank_mask:0xa")
            for j in range(4): a(f"v_add_f32_dpp v{RA+8+j}, v{RA+8+j}, v{RA+8+j} quad_perm:[1,0,3,2] row_mask:0xf bank_mask:0xf")
            for j in range(4): a(f"v_add_f32_dpp v{RA+8+j}, v{RA+8+j}, v{RA+8+j} quad_perm:[2,3,0,1] row_mask:0xf bank_mask:0xf")
            a("s_mov_b32 s40, 0xaaaaaaaa\ns_mov_b32 s41, 0xaaaaaaaa\ns_mov_b32 s42, 0xcccccccc\ns_mov_b32 s43, 0xcccccccc")
            a(f"v_cndmask_b32 v{RA}, v{RA+8}, v{RA+9}, s[40:41]\nv_cndmask_b32 v{RA+1}, v{RA+10}, v{RA+11}, s[40:41]\nv_cndmask_b32 v{RA}, v{RA}, v{RA+1}, s[42:43]")
            a(f"v_and_b32 v{RA+1}, 3, v2\nv_lshl_add_u32 v{RA+1}, v1, 2, v{RA+1}\nv_bfe_u32 v{RA+2}, v2, 2, 1\nv_lshl_add_u32 v{RA+1}, v{RA+2}, 4, v{RA+1}\nv_lshlrev_b32 v{RA+1}, 3, v{RA+1}\nv_lshrrev_b32 v{RA+2}, 3, v2\nv_lshl_add_u32 v{RA+1}, v{RA+2}, 2, v{RA+1}")
            a(f"s_lshl_b32 s35, s35, 3\ns_add_u32 s35, s35, s12\ns_add_u32 s35, s35, {ZS}")
            a(f"buffer_atomic_add_f32 v{RA}, v{RA+1}, s[4:7], s35 offen")
            a("s_endpgm")

def cons4(a):
    ph = PH[4]; lg = LG(a)
    vD, vW0, vW1, vRS, vMU = 4, 6, 7, 8, 9
    ACC = 16
    ZR = 48
    FB = 64
    X = 240
    RS0, MU0 = 0, 8192
    a(f"v_add_u32 v{vD}, {DR0}, v3")
    a("s_lshl_b32 s30, s13, 11\nv_lshlrev_b32 v10, 7, v2\nv_add_u32 v10, s30, v10\nv_and_b32 v11, 1, v1\nv_lshl_add_u32 v10, v11, 3, v10")
    a("v_lshrrev_b32 v11, 1, v1\nv_lshrrev_b32 v12, 1, v2\nv_xor_b32 v11, v11, v12\nv_lshlrev_b32 v11, 4, v11")
    WA = [5, 6, 7, 13]; WB = [X+12, X+13, X+14, X+15]
    for q in range(4):
        a(f"v_xor_b32 v12, {32*q}, v11\nv_add3_u32 v{WA[q]}, v12, v10, v14" if False else f"v_xor_b32 v12, {32*q}, v11\nv_add_u32 v12, v12, v10\nv_add_u32 v{WA[q]}, {WR0}, v12\nv_add_u32 v{WB[q]}, {WR0+49152}, v12")
    a(f"v_lshlrev_b32 v{vRS}, 4, v1")
    a(f"v_and_b32 v{vMU}, 1, v2\nv_lshlrev_b32 v{vMU}, 6, v{vMU}\nv_lshl_add_u32 v{vMU}, v1, 4, v{vMU}\nv_add_u32 v{vMU}, {MU0}, v{vMU}")
    T = FB
    a(f"s_lshl_b32 s31, s13, 10\ns_add_u32 s31, s31, s12\ns_add_u32 s31, s31, {ZS}")
    for j in range(4):
        a(f"buffer_load_dwordx4 {vr(T+4*j,4)}, v3, s[4:7], s31 offen")
        if j < 3: a("s_add_u32 s31, s31, 4096")
    a(f"s_lshl_b32 s33, s17, 2\ns_add_u32 s33, s33, s13\ns_lshl_b32 s34, s33, 15\ns_lshl_b32 s35, s18, 12\ns_add_u32 s34, s34, s35\ns_add_u32 s34, s34, s12\ns_add_u32 s34, s34, {Z1}")
    a("v_lshlrev_b32 v14, 3, v0\nv_lshlrev_b32 v15, 1, v2")
    for u in range(3): a(f"buffer_load_dwordx4 {vr(ZR+4*u,4)}, v3, s[4:7], s34 offen offset:{u*KB}")
    a(f"buffer_load_dwordx2 {vr(ZR+12,2)}, v14, s[4:7], s34 offen offset:{3*KB}")
    a.srd(8, 22, 4096)
    a(f"s_lshl_b32 s35, s33, 5\nbuffer_load_ushort v{ZR+14}, v15, s[8:11], s35 offen")
    for r in range(32): a(f"v_mov_b32 v{ACC+r}, 0")
    a(f"s_lshl_b32 s30, s13, 9\nv_add_u32 v10, s30, v14")
    a("v_lshlrev_b32 v11, 7, v1\nv_add_u32 v11, s30, v11")
    a("v_bfe_u32 v12, v0, 1, 2\nv_lshl_add_u32 v11, v12, 4, v11\nv_bfe_u32 v12, v0, 3, 1\nv_lshl_add_u32 v11, v12, 3, v11\nv_and_b32 v12, 1, v0\nv_lshl_add_u32 v11, v12, 2, v11")
    a("s_mov_b32 s38, 0xffff0000")
    for j in range(4):
        a(f"s_waitcnt vmcnt({8-j})")
        b = T + 4*j; t = T + 16
        for k in range(2):
            v = b + 2*k
            a(f"v_mul_f32 v{t+k}, {hex(f2u(1.0/FH))}, v{v}\nv_mul_f32 v{v+1}, {hex(f2u(1.0/FH))}, v{v+1}\nv_fma_f32 v{v+1}, -v{t+k}, v{t+k}, v{v+1}")
            a(f"v_max_f32 v{v+1}, 0, v{v+1}\nv_add_f32 v{v+1}, {hex(f2u(1e-5))}, v{v+1}\nv_rsq_f32 v{t+2+k}, v{v+1}")
        a(f"v_cvt_pk_bf16_f32 v{t+4}, v{t}, v{t+1}\nv_lshlrev_b32 v{t+5}, 16, v{t+4}\nv_and_b32 v{t+6}, s38, v{t+4}")
        a(f"v_sub_f32 v{t+5}, v{t}, v{t+5}\nv_sub_f32 v{t+6}, v{t+1}, v{t+6}\nv_cvt_pk_bf16_f32 v{t+5}, v{t+5}, v{t+6}")
        lg.op(f"ds_write_b64 v10, {vr(t+2,2)} offset:{RS0+2048*j}")
        lg.op(f"ds_write_b32 v11, v{t+4} offset:{MU0+2048*j}")
        lg.op(f"ds_write_b32 v11, v{t+5} offset:{MU0+2048*j+64}")
        lg.drain()
    def fb(buf, k): return FB + 44*buf + 4*k
    def reads(t, buf):
        def rd(k, base, off): return (f"ds_read_b128 {vr(fb(buf,k),4)}, v{base} offset:{off}", R(fb(buf,k),4))
        wo_ = ph["addrW"][t//2]
        out = []
        for h in range(2):
            q = 2*(t % 2) + h
            b, o = (WA[q], wo_) if wo_ < 49152 else (WB[q], wo_ - 49152)
            out.append((f"ds_read_b64 {vr(fb(buf,0)+2*h,2)}, v{b} offset:{o}", R(fb(buf,0)+2*h,2)))
            out.append(rd(1+h, vRS, RS0 + t*128 + 64*h))
        d0 = lds_addr(ph, "D", t, 0) - DR0
        out += [rd(3+u, vD, d0 + u*KB) for u in range(7)]
        out.append(rd(10, vMU, t*128))
        return out
    def mf(t, buf):
        w, rs = fb(buf,0), fb(buf,1)
        out = []
        for j in range(4):
            out.append((f"v_lshlrev_b32 v{X+2*j}, 16, v{w+j}", [w+j])); out.append((f"v_and_b32 v{X+2*j+1}, s38, v{w+j}", [w+j]))
        for j in range(4): out.append((f"v_pk_mul_f32 {vr(X+2*j,2)}, {vr(X+2*j,2)}, {vr(rs+2*j,2)}", [rs+2*j, rs+2*j+1]))
        for j in range(4): out.append((f"v_cvt_pk_bf16_f32 v{w+j}, v{X+2*j}, v{X+2*j+1}", []))
        for u in range(8): out.append((mfma(ACC+4*u, fb(buf,3+u), w), list(R(fb(buf,3+u),4))))
        return out
    mainloop(a, lg, 4, 4, reads, mf)
    a("s_waitcnt vmcnt(0)")
    a(f"v_lshlrev_b32 v{X}, 16, v{ZR+14}\nv_sub_f32 v{X}, v{X}, v{ACC+28}\nv_sub_f32 v{X}, v{X}, v{ACC+29}")
    a(f"s_lshl_b32 s34, s33, 10\ns_add_u32 s34, s34, s12\ns_add_u32 s34, s34, {UB}\ns_mul_i32 s35, s18, {3*128*KB}\ns_add_u32 s35, s35, s34")
    a(f"s_lshr_b32 s36, s18, 2\ns_sub_u32 s36, s18, s36\ns_lshr_b32 s37, s36, 1\ns_add_u32 s37, s37, 24\ns_lshl_b32 s37, s37, 17\ns_add_u32 s34, s34, s37\ns_and_b32 s36, s36, 1\ns_lshl_b32 s36, s36, 3\ns_add_u32 s34, s34, s36")
    PK = FB
    for u in range(7):
        if u == 6: a("s_and_b32 s36, s18, 3\ns_cmp_eq_u32 s36, 3\ns_cbranch_scc1 P4_end")
        for h in range(2):
            z = ZR + 2*u + h
            a(f"v_lshlrev_b32 v{X+2+2*h}, 16, v{z}\nv_and_b32 v{X+3+2*h}, s38, v{z}")
            a(f"v_pk_add_f32 {vr(ACC+4*u+2*h,2)}, {vr(ACC+4*u+2*h,2)}, {vr(X,2)} {bc2(0)}")
            a(f"v_pk_mul_f32 {vr(ACC+4*u+2*h,2)}, {vr(ACC+4*u+2*h,2)}, {vr(X+2+2*h,2)}")
        cvt2(a, PK+2*u, ACC+4*u)
        if u in (1, 3, 5):
            a(f"buffer_store_dwordx4 {vr(PK+2*u-2,4)}, v3, s[4:7], s35 offen\ns_add_u32 s35, s35, {128*KB}")
        if u == 6: a(f"buffer_store_dwordx2 {vr(PK+12,2)}, v3, s[4:7], s34 offen")
    a("s_endpgm")

def build(nl=None, extra_empty=0):
    a = Asm()
    a.launch("k0_kernel", (NJOBS,1,1), (256,1,1), lds=40960)
    for it in range(2):
        for p in range(1, 6):
            a.launch(f"p{p}{'ab'[it]}_kernel", (256,1,1), (512,1,1), lds=LDS_TOTAL)
    for _ in range(extra_empty): a.launch("empty_kernel", (256,1,1), (256,1,1), lds=0)
    emit_k0(a)
    for p in range(1, 6):
        a.begin_kernel(f"p{p}b_kernel")
        a(f"s_mov_b32 s12, {IT0+ITS}\ns_mov_b32 s14, 1\ns_branch P{p}_body")
        a.end_kernel(f"p{p}b_kernel", 256, sgpr=64)
        a.begin_kernel(f"p{p}a_kernel")
        a(f"s_mov_b32 s12, {IT0}\ns_mov_b32 s14, 0")
        a.end_kernel(f"p{p}a_kernel", 256, sgpr=64)
        la = Asm(); loader(la, p, "W"); loader(la, p, "D")
        prologue(a, p)
        {1: cons1, 2: lambda a: cons25(a, 2), 3: cons3, 4: cons4, 5: lambda a: cons25(a, 5)}[p](a)
        a.lines += la.lines
        a(f"P{p}_end:\ns_endpgm")
    if extra_empty:
        a.begin_kernel("empty_kernel"); a("s_endpgm"); a.end_kernel("empty_kernel", 8, sgpr=16)
    return a

if __name__ == "__main__":
    out = sys.argv[1] if len(sys.argv) > 1 else "main.s"
    ee = int(sys.argv[2]) if len(sys.argv) > 2 else 0
    a = build(extra_empty=ee)
    open(out, "w").write(a.text())
    print("lines", len(a.lines), "nops", a.nops_added)
```

```python
from asmlib import *
from layout import *

NJOBS = 230
import struct
def emit_k0(a, name="k0_kernel", code_prefetch=None):
    a.begin_kernel(name)
    a(f"s_cmp_ge_u32 s2, {NJOBS}\ns_cbranch_scc1 K0_end")
    a("s_load_dwordx16 s[16:31], s[0:1], 0\ns_load_dwordx2 s[32:33], s[0:1], 80")
    a("v_lshrrev_b32 v1, 6, v0\nv_and_b32 v0, 63, v0")
    a("v_readfirstlane_b32 s13, v1")
    a("v_lshrrev_b32 v2, 4, v0\nv_and_b32 v3, 15, v0")
    a("v_lshlrev_b32 v4, 4, v0")
    a("s_waitcnt lgkmcnt(0)")
    a.srd(4, 32, 0x10000000)
    a("s_mov_b32 s11, 0x00020000")
    a("s_cmp_ge_u32 s2, 228\ns_cbranch_scc1 K0_zero")
    a("s_cmp_ge_u32 s2, 164\ns_cbranch_scc1 K0_x")
    a("v_lshrrev_b32 v5, 3, v0\nv_and_b32 v6, 7, v0\nv_lshrrev_b32 v7, 1, v5\nv_and_b32 v7, 3, v7\nv_lshlrev_b32 v7, 1, v7\nv_xor_b32 v6, v6, v7\nv_lshlrev_b32 v6, 4, v6")
    a("s_cmp_ge_u32 s2, 134\ns_cbranch_scc1 K0_wout")
    a("s_cmp_ge_u32 s2, 114\ns_cbranch_scc1 K0_wo")
    a("s_cmp_ge_u32 s2, 60\ns_cbranch_scc1 K0_win")

    def rowmap(kind):
        if kind == "x":
            a("s_lshr_b32 s44, s42, 4\ns_lshr_b32 s45, s44, 2\ns_add_u32 s45, s45, s44")
            a("s_mul_i32 s46, s44, 5\ns_sub_u32 s46, s46, 156\ns_cmp_lt_u32 s44, 32\ns_cselect_b32 s45, s45, s46")
            a("s_lshl_b32 s45, s45, 4\ns_and_b32 s46, s42, 8\ns_add_u32 s43, s45, s46")
        elif kind == "o":
            a("s_lshr_b32 s44, s42, 5\ns_lshl_b32 s44, s44, 3\ns_add_u32 s44, s44, s42")
            a(f"s_mul_i32 s45, s42, 5\ns_sub_u32 s45, s45, {5*512-32}\ns_cmp_lt_u32 s42, 512\ns_cselect_b32 s43, s44, s45")
        elif kind == "u":
            a("s_lshr_b32 s44, s42, 4\ns_mul_i32 s45, s44, 43\ns_lshr_b32 s45, s45, 8")
            a("s_add_u32 s46, s44, s45\ns_lshr_b32 s45, s45, 2\ns_sub_u32 s46, s46, s45")
            a("s_sub_u32 s47, s44, 48\ns_cmp_ge_u32 s44, 51\ns_cselect_b32 s45, 1, 0\ns_add_u32 s47, s47, s45")
            a("s_mul_i32 s47, s47, 7\ns_sub_u32 s47, s47, s45\ns_add_u32 s47, s47, 6")
            a("s_cmp_lt_u32 s44, 48\ns_cselect_b32 s45, s46, s47")
            a("s_lshl_b32 s45, s45, 4\ns_and_b32 s46, s42, 8\ns_add_u32 s43, s45, s46")
    def dma(kind, pitch, nper):
        a(f"s_mov_b32 s34, {pitch}\nv_mul_lo_u32 v8, v5, s34\nv_add_u32 v8, v8, v6")
        a("s_lshl_b32 s48, s13, 3\ns_add_u32 s48, s48, s36\ns_lshl_b32 s49, s13, 10")
        for m in range(nper):
            a(f"s_add_u32 s42, s48, {32*m}")
            rowmap(kind)
            a(f"s_mul_i32 s43, s43, {pitch}\ns_add_u32 s43, s43, s35\ns_add_u32 m0, s49, {4096*m}")
            a("buffer_load_dwordx4 v8, s[8:11], s43 offen lds")
    def src(b, nbytes):
        a(f"s_mov_b32 s8, s{b}\ns_and_b32 s9, s{b+1}, 0xffff\ns_mov_b32 s10, {nbytes}")

    src(18, 640*1920*2)
    a("s_lshr_b32 s50, s2, 1\ns_and_b32 s51, s2, 1")
    a("s_lshl_b32 s35, s50, 7\ns_mul_i32 s36, s51, 320")
    dma("x", 3840, 10)
    a("s_mul_i32 s52, s50, 26\ns_lshr_b32 s52, s52, 8")
    a("s_mul_i32 s53, s52, 640\ns_lshl_b32 s54, s50, 6\ns_sub_u32 s54, s54, s53\ns_lshl_b32 s53, s13, 4\ns_add_u32 s54, s54, s53")
    a("v_add_u32 v10, s54, v3")
    a("v_mul_u32_u24 v11, 1639, v10\nv_lshrrev_b32 v11, 16, v11")
    a("v_mul_u32_u24 v12, 40, v11\nv_sub_u32 v12, v10, v12")
    a("v_add_u32 v13, 80, v12")
    a("v_cmp_le_u32 vcc, 20, v12\nv_cndmask_b32 v14, 0, 1, vcc")
    a("v_mul_u32_u24 v15, 20, v14\nv_sub_u32 v15, v12, v15")
    a("s_lshl_b32 s53, s52, 4\nv_lshl_add_u32 v16, v14, 5, v15\nv_add_u32 v16, s53, v16")
    a("s_lshl_b32 s53, s52, 3\ns_add_u32 s53, s53, 48\nv_lshl_add_u32 v17, v14, 2, v15\nv_add_u32 v17, s53, v17")
    a("v_cmp_gt_u32 vcc, 16, v15\nv_cndmask_b32 v16, v17, v16, vcc")
    a("s_cmp_eq_u32 s52, 2\ns_cselect_b64 vcc, -1, 0\nv_cndmask_b32 v16, v16, v13, vcc")
    a("v_lshrrev_b32 v13, 4, v16\nv_and_b32 v14, 15, v16\nv_lshlrev_b32 v13, 10, v13\nv_lshl_add_u32 v13, v14, 4, v13\nv_lshl_add_u32 v13, v2, 8, v13")
    a(f"s_mov_b32 s53, {160*KB}\nv_mul_lo_u32 v9, v11, s53\nv_add_u32 v9, v9, v13")
    a("v_lshl_add_u32 v18, v11, 7, v16\nv_lshlrev_b32 v18, 2, v18")
    a(f"s_mul_i32 s38, s51, {80*KB}\ns_add_u32 s38, s38, {WQ}\ns_mov_b32 s39, {8*KB}\ns_mov_b32 s40, 10")
    a(f"s_lshl_b32 s41, s51, 13\ns_add_u32 s41, s41, {CSQ}")
    a("s_branch K0_common")
    a("K0_win:")
    src(24, 640*1728*2)
    a("s_sub_u32 s50, s2, 60\ns_and_b32 s51, s50, 1\ns_lshr_b32 s50, s50, 1")
    a("s_lshl_b32 s35, s50, 7\ns_mul_i32 s36, s51, 320")
    dma("x", 3456, 10)
    a("s_lshl_b32 s52, s50, 2\ns_add_u32 s52, s52, s13")
    a("s_cmp_ge_u32 s52, 54\ns_cselect_b32 s53, 54, 0\ns_cselect_b32 s54, 8, 0\ns_sub_u32 s52, s52, s53")
    a("s_cmp_ge_u32 s52, 27\ns_cselect_b32 s53, 27, 0\ns_cselect_b32 s55, 4, 0\ns_sub_u32 s52, s52, s53\ns_add_u32 s54, s54, s55")
    a("s_mul_i32 s53, s52, 37\ns_lshr_b32 s53, s53, 8\ns_add_u32 s54, s54, s53\ns_mul_i32 s53, s53, 7\ns_sub_u32 s52, s52, s53")
    a(f"s_mul_i32 s38, s54, {140*KB}\ns_lshl_b32 s53, s52, 10\ns_add_u32 s38, s38, s53\ns_mul_i32 s53, s51, {70*KB}\ns_add_u32 s38, s38, s53\ns_add_u32 s38, s38, {WI}")
    a(f"s_mov_b32 s39, {7*KB}\ns_mov_b32 s40, 10\nv_mov_b32 v9, v4\nv_lshlrev_b32 v18, 2, v3")
    a(f"s_lshl_b32 s41, s51, 13\ns_lshl_b32 s53, s54, 9\ns_add_u32 s41, s41, s53\ns_lshl_b32 s53, s52, 6\ns_add_u32 s41, s41, s53\ns_add_u32 s41, s41, {CSI}")
    a("s_branch K0_common")
    a("K0_wo:")
    src(20, 640*640*2)
    a("s_sub_u32 s50, s2, 114\ns_and_b32 s51, s50, 1\ns_lshr_b32 s50, s50, 1")
    a("s_lshl_b32 s35, s50, 7\ns_mul_i32 s36, s51, 320")
    dma("o", 1280, 10)
    a("s_lshl_b32 s52, s50, 2\ns_add_u32 s52, s52, s13\ns_mul_i32 s54, s52, 52\ns_lshr_b32 s54, s54, 8\ns_mul_i32 s53, s54, 5\ns_sub_u32 s52, s52, s53")
    a(f"s_mul_i32 s38, s54, {100*KB}\ns_lshl_b32 s53, s52, 10\ns_add_u32 s38, s38, s53\ns_mul_i32 s53, s51, {50*KB}\ns_add_u32 s38, s38, s53\ns_add_u32 s38, s38, {WO}")
    a(f"s_mov_b32 s39, {5*KB}\ns_mov_b32 s40, 10\nv_mov_b32 v9, v4\nv_mov_b32 v18, 0\ns_mov_b32 s41, -1")
    a("s_branch K0_common")
    a("K0_wout:")
    src(30, 864*640*2)
    a("s_sub_u32 s51, s2, 134\ns_mul_i32 s50, s51, 86\ns_lshr_b32 s50, s50, 8\ns_mul_i32 s53, s50, 3\ns_sub_u32 s51, s51, s53")
    a("s_lshl_b32 s35, s50, 7\ns_mul_i32 s36, s51, 288")
    dma("u", 1280, 9)
    a("s_lshl_b32 s52, s50, 2\ns_add_u32 s52, s52, s13\ns_mul_i32 s54, s52, 52\ns_lshr_b32 s54, s54, 8\ns_mul_i32 s53, s54, 5\ns_sub_u32 s52, s52, s53")
    a(f"s_mul_i32 s38, s54, {135*KB}\ns_lshl_b32 s53, s52, 10\ns_add_u32 s38, s38, s53\ns_mul_i32 s53, s51, {45*KB}\ns_add_u32 s38, s38, s53\ns_add_u32 s38, s38, {WT}")
    a(f"s_mov_b32 s39, {5*KB}\ns_mov_b32 s40, 9\nv_mov_b32 v9, v4\nv_mov_b32 v18, 0\ns_mov_b32 s41, -1")
    a("K0_common:")
    a.fence(4)
    a("v_lshrrev_b32 v21, 2, v3\nv_lshl_add_u32 v21, v2, 2, v21")
    a("v_lshrrev_b32 v22, 1, v21\nv_and_b32 v22, 3, v22\nv_lshlrev_b32 v22, 1, v22")
    a("v_bfe_u32 v23, v3, 1, 1\ns_lshl_b32 s53, s13, 1\nv_add_u32 v23, s53, v23\nv_xor_b32 v23, v23, v22")
    a("v_lshlrev_b32 v20, 7, v21\nv_lshl_add_u32 v20, v23, 4, v20\nv_and_b32 v23, 1, v3\nv_lshl_add_u32 v20, v23, 3, v20")
    a("v_mov_b32 v19, 0\nv_mov_b32 v24, 0x3f803f80")
    if code_prefetch: code_prefetch(a, 25, 26)
    a("s_waitcnt vmcnt(0)\ns_barrier")
    for ks in range(10):
        a(f"ds_read_b64_tr_b16 v[{32+4*ks}:{33+4*ks}], v20 offset:{ks*4096}")
        a(f"ds_read_b64_tr_b16 v[{34+4*ks}:{35+4*ks}], v20 offset:{ks*4096+2048}")
    for ks in range(10):
        if ks == 9:
            a("s_cmp_lt_u32 s40, 10\ns_cbranch_scc1 K0_end")
        a(f"s_waitcnt lgkmcnt({min(15, 18-2*ks)})")
        a(f"buffer_store_dwordx4 v[{32+4*ks}:{35+4*ks}], v9, s[4:7], s38 offen\ns_add_u32 s38, s38, s39")
        for j in range(4):
            a(f"v_dot2_f32_bf16 v19, v{32+4*ks+j}, v24, v19")
    a("s_cmp_eq_u32 s41, -1\ns_cbranch_scc1 K0_end")
    a("v_mov_b32 v21, v19\nv_permlane32_swap_b32 v21, v19\nv_add_f32 v19, v19, v21")
    a("v_mov_b32 v21, v19\nv_permlane16_swap_b32 v21, v19\nv_add_f32 v19, v19, v21")
    a("s_mov_b64 exec, 0xffff\nbuffer_store_dword v19, v18, s[4:7], s41 offen")
    a("s_endpgm")
    a("K0_x:")
    src(16, 2048*640*2)
    a(f"s_sub_u32 s50, s2, 164\ns_mul_i32 s35, s50, {32*1280}\ns_lshl_b32 s49, s13, 10\ns_lshl_b32 s48, s13, 6")
    a("v_add_u32 v5, s48, v0")
    for m in range(10):
        a(f"v_add_u32 v6, {256*m}, v5\nv_mul_u32_u24 v7, 52429, v6\nv_lshrrev_b32 v7, 22, v7")
        a("v_and_b32 v8, 15, v7\nv_xor_b32 v8, v8, v6\nv_lshlrev_b32 v8, 4, v8")
        a(f"s_add_u32 m0, s49, {4096*m}")
        a("buffer_load_dwordx4 v8, s[8:11], s35 offen lds")
    a("s_and_b32 s51, s13, 1\ns_lshr_b32 s52, s13, 1")
    a("s_lshl_b32 s53, s51, 4\nv_add_u32 v9, s53, v3\nv_mul_u32_u24 v10, 1280, v9\nv_and_b32 v11, 1, v2\nv_lshl_add_u32 v10, v11, 3, v10")
    a("v_lshrrev_b32 v11, 1, v2\nv_xor_b32 v11, v11, v3\nv_lshlrev_b32 v11, 4, v11")
    a("v_mov_b32 v18, 0\nv_mov_b32 v19, 0\nv_mov_b32 v24, 0x3f803f80")
    a(f"s_mul_i32 s38, s52, {10*128*KB}\ns_lshl_b32 s53, s50, 11\ns_add_u32 s38, s38, s53\ns_lshl_b32 s53, s51, 10\ns_add_u32 s38, s38, s53\ns_add_u32 s38, s38, {IT0+XIN}")
    a("s_mul_i32 s54, s52, 20")
    a("s_sub_u32 s53, 4, s52\nv_lshlrev_b32 v13, s53, v0\ns_mul_i32 s53, s52, 504\ns_add_u32 s53, s53, 8\nv_add_u32 v14, s53, v13")
    if code_prefetch: code_prefetch(a, 25, 26)
    a("s_waitcnt vmcnt(0)\ns_barrier")
    for j in range(20):
        a(f"s_add_u32 s44, s54, {j}\ns_lshr_b32 s45, s44, 2\ns_add_u32 s45, s45, s44\ns_mul_i32 s46, s44, 5\ns_sub_u32 s46, s46, 156\ns_cmp_lt_u32 s44, 32\ns_cselect_b32 s45, s45, s46")
        a("s_lshl_b32 s45, s45, 5\ns_and_b32 s46, s45, 0xff\ns_andn2_b32 s45, s45, 0xff")
        a(f"v_xor_b32 v12, s46, v11\nv_add3_u32 v12, v12, v10, s45\nds_read_b64 v[{32+2*j}:{33+2*j}], v12")
    for ks in range(10):
        a(f"s_waitcnt lgkmcnt({min(15, 18-2*ks)})")
        if ks < 6: a(f"buffer_store_dwordx4 v[{32+4*ks}:{35+4*ks}], v4, s[4:7], s38 offen")
        else: a(f"buffer_store_dwordx2 v[{32+4*ks}:{33+4*ks}], v13, s[4:7], s38 offen\nbuffer_store_dwordx2 v[{34+4*ks}:{35+4*ks}], v14, s[4:7], s38 offen")
        a(f"s_add_u32 s38, s38, {128*KB}")
        for j in range(4):
            a(f"v_dot2_f32_bf16 v18, v{32+4*ks+j}, v24, v18")
            a(f"v_dot2_f32_bf16 v19, v{32+4*ks+j}, v{32+4*ks+j}, v19")
    a("v_lshlrev_b32 v12, 14, v2\nv_lshl_add_u32 v12, v9, 3, v12")
    a(f"s_lshl_b32 s38, s52, 16\ns_lshl_b32 s53, s50, 8\ns_add_u32 s38, s38, s53\ns_add_u32 s38, s38, {IT0+STIN}")
    a("buffer_store_dwordx2 v[18:19], v12, s[4:7], s38 offen")
    a("s_endpgm")
    a("K0_zero:")
    src(28, 4096)
    a("s_lshl_b32 s41, s13, 10\nbuffer_load_dwordx4 v[12:15], v4, s[8:11], s41 offen")
    a("v_mov_b32 v8, 0\nv_mov_b32 v9, 0\nv_mov_b32 v10, 0\nv_mov_b32 v11, 0")
    a(f"s_sub_u32 s50, s2, 228\ns_mul_i32 s38, s50, {ITS}\ns_add_u32 s38, s38, {IT0+ZS}\ns_lshl_b32 s53, s13, 12\ns_add_u32 s38, s38, s53")
    a(f"s_lshl_b32 s39, s50, 15\ns_add_u32 s39, s39, {CNT}\ns_lshl_b32 s53, s13, 13\ns_add_u32 s39, s39, s53\ns_add_u32 s40, s39, 4096")
    for j in range(4):
        a(f"buffer_store_dwordx4 v[8:11], v4, s[4:7], s38 offen offset:{j*1024}")
        a(f"buffer_store_dwordx4 v[8:11], v4, s[4:7], s39 offen offset:{j*1024}")
        a(f"buffer_store_dwordx4 v[8:11], v4, s[4:7], s40 offen offset:{j*1024}")
    a(f"s_add_u32 s41, s41, {BSP}\ns_waitcnt vmcnt(12)\nbuffer_store_dwordx4 v[12:15], v4, s[4:7], s41 offen")
    a("K0_end:\ns_endpgm")
    a.end_kernel(name, 72, sgpr=64)

if __name__ == "__main__":
    a = Asm()
    a.launch("k0_kernel", (NJOBS,1,1), (256,1,1), lds=40960)
    emit_k0(a)
    open("k0.s","w").write(a.text())
```

```python
import numpy as np
KB = 1024
S, D, H, DH, F, FH = 2048, 640, 32, 20, 1728, 864
off = 0
def alloc(n):
    global off
    o = off; off += (n + 4095) // 4096 * 4096
    return o
WQ = alloc(16*20*8*KB)
WO = alloc(8*20*5*KB)
WI = alloc(16*20*7*KB)
WT = alloc(8*27*5*KB + 8*KB)
CSQ = alloc(16*KB)
CSI = alloc(16*KB)
CNT = alloc(64*KB)
BSP = alloc(4*KB)
WSP = alloc(8192*KB)
WSCALE = 64.0
IT0 = off
XIN = alloc(20*128*KB) - IT0
STIN = alloc(8*2048*8) - IT0
OB = alloc(20*128*KB) - IT0
XMID = alloc(20*128*KB) - IT0
STMID = alloc(8*2048*8) - IT0
Z1 = alloc(128*8*4*KB) - IT0
Z2 = alloc(64*56*KB) - IT0
ZS = alloc(2048*8) - IT0
UB = alloc(28*128*KB) - IT0
ITS = off - IT0
WS_USED = IT0 + 2*ITS

def xorder():
    vt = np.arange(40)
    T = np.where(vt < 32, 5*(vt >> 2) + (vt & 3), 5*(vt-32) + 4)
    return (16*T[:, None] + np.arange(16)[None, :]).reshape(-1)
def oorder():
    r = np.arange(640)
    rp = r - 512
    return np.where(r < 512, r + 8*(r >> 5), 40*(rp >> 3) + 32 + (rp & 7))
def ustart(cb): return 27*(cb >> 2) + 7*(cb & 3)
def ucount(cb): return 6 if (cb & 3) == 3 else 7
def uorder():
    T = []
    for vt in range(54):
        if vt < 48: T.append(ustart(vt//6) + vt % 6)
        else:
            n = vt-48; cb = 4*(n//3) + n % 3; T.append(ustart(cb) + 6)
    T = np.array(T)
    return (16*T[:, None] + np.arange(16)[None, :]).reshape(-1)
_l = np.arange(64); _g = _l >> 4; _i = _l & 15; _e = np.arange(8)
RHO = 16*(_e[None, :] >> 2) + 4*_g[:, None] + (_e[None, :] & 3)

def pack_act(M, order):
    rows, K = M.shape
    Mv = M[:, order]
    ns = K // 32
    out = np.empty((ns, rows//16, 64, 8), M.dtype)
    for s in range(ns):
        blk = Mv[:, 32*s:32*s+32].reshape(rows//16, 16, 32)
        out[s] = blk[:, _i[:, None], RHO]
    return out
def unpack_act(U, order):
    ns, nrt = U.shape[:2]
    Mv = np.empty((nrt, 16, ns*32), U.dtype)
    for s in range(ns):
        tmp = np.empty((nrt, 16, 32), U.dtype)
        tmp[:, _i[:, None], RHO] = U[s]
        Mv[:, :, 32*s:32*s+32] = tmp
    Mv = Mv.reshape(nrt*16, ns*32)
    M = np.empty_like(Mv); M[:, order] = Mv
    return M
def fix_split(U, s0):
    U = U.copy()
    V = U[s0:].reshape(U.shape[0]-s0, U.shape[1], 2, 64, 4).transpose(0,1,3,2,4).reshape(U.shape[0]-s0, U.shape[1], 64, 8)
    U[s0:] = V
    return U
def qkv_cols(hp):
    c = -np.ones((8, 16), int)
    for sec in range(2):
        for h in range(2):
            for d in range(20):
                col = 640*sec + 40*hp + 20*h + d
                if d < 16: c[sec + 2*h, d] = col
                else: c[4, 8*sec + 4*h + d - 16] = col
    for w in range(40):
        c[5 + (w >> 4), w & 15] = 1280 + 40*hp + w
    return c
def pack_w(W, order, cols):
    Wt = W[order, :].T
    nT = cols.shape[0]
    M = Wt[np.maximum(cols.reshape(-1), 0)]
    U = pack_act(M, np.arange(M.shape[1]))
    mask = np.broadcast_to((cols >= 0)[None, :, _i, None], U.shape)
    return U, mask
def win_cols(cb):
    zp, b = cb >> 3, cb & 7
    c = -np.ones((7, 16), int)
    for sl in range(ucount(b)):
        c[sl] = 16*(54*zp + ustart(b) + sl) + np.arange(16)
    return c
def blk5_cols(cb):
    return (80*cb + np.arange(80)).reshape(5, 16)
if __name__ == "__main__":
    print("WS_USED", WS_USED/2**20, "MB; IT0", hex(IT0), "ITS", hex(ITS))
    for o in (xorder(), oorder(), uorder()):
        assert sorted(o) == list(range(len(o)))
    assert all((vt*43) >> 8 == vt//6 for vt in range(54))
    assert all((c*1639) >> 16 == c//40 for c in range(640))
    assert all((t*37) >> 8 == t//7 for t in range(27))
    assert all((t*52) >> 8 == t//5 for t in range(40))
    assert all((p*52429) >> 22 == p//80 for p in range(2560))
    assert all((j*86) >> 8 == j//3 for j in range(30))
    assert all((j*26) >> 8 == j//10 for j in range(30))
    print("ok")
```

```python
import sys, math, struct
from asmlib import *
from layout import *
from k0 import emit_k0, NJOBS

LDS_TOTAL = 163840
CFG = dict(RT=0, WG=1, FLAG=0, L1=27, RPM1=4, RPM3=4, SUK=40, STL=5, PQ=1, PIT=1, ST=0, HOLD=1, ILV=0, PRIO=0, XA=0, XB=0, XC=0, XD=0, RPM4=4, NOWSP=0, PROF=0, TOUCH=0, ROT=1, POLL4=7, SLEEP=1, WSPL=9, SIG3=2, PKMUL=1, CODEPF=1, DSC1=1, PER=2, P0=2, P0S=4, DT=0)
PROFB = 200*1024*1024
def f2u(x): return struct.unpack("<I", struct.pack("<f", x))[0]

PH = {
    "1":  dict(nks=20, nD=9, nW=8, lag=0, D=(20, 4), W=(96, 4)),
    "2":  dict(nks=20, nD=4, nW=5, lag=1, D=(20, 7), W=(80, 8)),
    "3a": dict(nks=20, nD=4, nW=7, lag=0, D=(20, 10), W=(104, 4)),
    "3b": dict(nks=20, nD=0, nW=7, lag=0, D=None, W=(104, 4)),
    "4":  dict(nks=64, nD=7, nW=4, lag=1, D=(20, 6), W=(104, 7)),
    "5":  dict(nks=27, nD=4, nW=5, lag=1, D=(20, 7), W=(80, 8)),
}
ORDER = ["1", "2", "3a", "3b", "4", "5"]
RS0, MU0 = 4096, 8192
NM0, CS0, CS1, EX0 = 768, 1536, 2048, 3072
NROT = {'1': 8, '2': 8, '3a': 8, '3b': 8, '4': 32, '5': 12}
SPLIT = {'1': 16, '2': 16, '3a': 16, '3b': 16, '4': 99, '5': 24}
LSCHED = [(("1",7),2), (("1",8),2), (("1",9),2), (("1",10),10), (("1","X"),10)]
CSCHED = [(("1","G"),6), (("2",10),6), (("2","G"),6)] + [(("3a",n),1) for n in range(1,9)]
CA, CB, CC, CD, CE = 0, 16, 48, 80, 112

BARS = []; BIDX = {}
ALLOC = {"D": [], "W": []}
def plan():
    BARS.clear(); BIDX.clear(); ALLOC["D"].clear(); ALLOC["W"].clear()
    for q in ORDER:
        ph = PH[q]; ph["nst"] = (ph["nks"] + 1) // 2
        for n in range(ph["nst"] + 1): BARS.append((q, n))
        if q == "1": BARS.append((q, "X"))
        if q in ("1", "2", "4", "5"): BARS.append((q, "G")); BARS.append((q, "F"))
    for i, b in enumerate(BARS): BIDX[b] = i
    NB = len(BARS)
    gate = {"1": -1, "2": BIDX[("1","F")], "3a": BIDX[("2","F")], "4": BIDX[("3b", 10)], "5": BIDX[("4","F")]}
    def rel(q, n, kind):
        if q == "3a" and kind == "D": q = "3b"
        return BIDX[(q, min(n + 1 + PH[q]["lag"], PH[q]["nst"]))]
    rot = {(q, k): 0 for q in ORDER for k in "DW"}
    def build():
        al = {"D": [], "W": []}
        for q in ORDER:
            ph = PH[q]
            for k in "DW":
                if ph[k] is None: continue
                base, ns = ph[k]; sz = 2*ph["n"+k]*KB
                for n in range(ph["nst"]):
                    al[k].append(dict(q=q, n=n, k=k, addr=base*KB + sz*((n + rot[(q,k)]) % ns), size=sz, use=BIDX[(q,n)], rel=rel(q,n,k)))
        allv = al["D"] + al["W"]
        for k in "DW":
            prev = -NB; used = {}
            for x in al[k]:
                e = -NB
                for y in allv:
                    if y is x or not (y["addr"] < x["addr"] + x["size"] and x["addr"] < y["addr"] + y["size"]):
                        if y is x: e = max(e, y["rel"] - NB)
                        continue
                    if y["use"] < x["use"]: e = max(e, y["rel"])
                    else:
                        assert y["use"] > x["use"], (x, y)
                        e = max(e, y["rel"] - NB)
                if k == "D": e = max(e, gate[x["q"]])
                e = max(e, prev)
                def cap(b):
                    if BARS[b % NB] == ("3b", 10) and k == "D": return CFG["P0"]
                    if BARS[b % NB][1] == "F": return (CFG["P0"] if x["q"] == "1" else CFG["P0S"]) if k == "D" else 0
                    if CFG["WG"] and BARS[b % NB] in (("2", 10), ("4", 32), ("5", 14)): return 0
                    if CFG["WG"] and BARS[b % NB][1] == "G" and (CFG["WG"] > 1 or BARS[b % NB][0] != "1"): return CFG["PER"]
                    if BARS[b % NB][1] == "G" or (CFG["HOLD"] and BARS[b % NB] in (("1", 10), ("1", "X"))): return 0
                    return CFG["PER"]
                while used.get(e % NB, 0) >= cap(e): e += 1
                used[e % NB] = used.get(e % NB, 0) + 1
                prev = e
                x["after"] = e
            last = al[k][-1]["after"] - NB
            for x in al[k]: x["after"] = max(x["after"], last)
            for x in al[k]: assert x["after"] < x["use"], x
        return al
    def cost(al): return sum(x["after"] for k in "DW" for x in al[k])
    for _ in range(3):
        for key in rot:
            if PH[key[0]][key[1]] is None: continue
            best = None
            for r in range(PH[key[0]][key[1]][1]):
                rot[key] = r
                try: c = cost(build())
                except AssertionError: continue
                if best is None or c < best[0]: best = (c, r)
            rot[key] = best[1]
    al = build()
    for k in "DW":
        ALLOC[k] += al[k]
        for x in al[k]: PH[x["q"]].setdefault("addr"+k, {})[x["n"]] = x["addr"]
    PH["3b"]["addrD"] = PH["3a"]["addrD"]; PH["3b"]["nD"] = 4
def bname(i):
    NB = len(BARS); return ("prev:" if i < 0 else "") + "%s.%s" % BARS[i % NB]

class LG:
    def __init__(s, a): s.a = a; s.out = []
    def op(s, text, regs=()):
        s.a(text); s.out.append(set(regs))
    def need(s, regs):
        regs = set(regs); idx = -1
        for k, r in enumerate(s.out):
            if r & regs: idx = k
        if idx >= 0:
            n = min(len(s.out) - 1 - idx, 15)
            s.a(f"s_waitcnt lgkmcnt({n})")
            s.out = s.out[len(s.out) - n:] if n else []
    def drain(s):
        if s.out: s.a("s_waitcnt lgkmcnt(0)"); s.out = []

def R(b, n): return range(b, b + n)
def mfma(d, A, B, C=None, ty="bf16"):
    c = vr(d, 4) if C is None else C
    return f"v_mfma_f32_16x16x32_{ty} {vr(d,4)}, {vr(A,4)}, {vr(B,4)}, {c}"
def stamp2(a, q, r=(250, 251)):
    if CFG["PROF"] == 2 and q in PQ[CFG["PQ"]]:
        lab = a.label("ST2")
        a(f"s_cmp_eq_u32 s14, {CFG['PIT']}\ns_cbranch_scc0 {lab}\ns_memtime s[60:61]\ns_mov_b32 m0, s62\ns_waitcnt lgkmcnt(0)\nv_writelane_b32 v{r[0]}, s60, m0\ns_add_u32 s62, s62, 1\n{lab}:")
PQ = {1: ("1", "2"), 3: ("3a", "3b"), 5: ("5", ), 4: ("4",)}
def stamp(a, lg=None, r=(250, 251), force=False):
    if CFG["PROF"] == 1 or (force and CFG["PROF"]):
        if lg: lg.drain()
        a(f"{'s_memrealtime' if CFG['RT'] else 's_memtime'} s[60:61]\nv_cmp_eq_u32 s[64:65], s62, v0\ns_waitcnt lgkmcnt(0)\nv_mov_b32 v{r[1]}, s60\nv_cndmask_b32 v{r[0]}, v{r[0]}, v{r[1]}, s[64:65]\ns_add_u32 s62, s62, 1")
def mkbase(a, regs, lo, hi, src):
    n = (hi - lo + 65535) // 65536
    assert n <= len(regs), (lo, hi, regs)
    for k in range(n): a(f"v_add_u32 v{regs[k]}, {lo + 65536*k}, v{src}")
    def f(addr):
        assert lo <= addr < hi, (lo, hi, addr)
        return regs[(addr - lo) >> 16], (addr - lo) & 0xffff
    return f
def uaddr(q, which, t, unit):
    ph = PH[q]
    return ph["addr" + which][t // 2] + (t % 2)*ph["n" + which]*KB + unit*KB
def rng(q, which):
    ph = PH[q]; ad = ph["addr" + which].values()
    return min(ad), max(ad) + 2*ph["n" + which]*KB

def loader(a, which):
    NB = len(BARS); al = [x for x in ALLOC["D"] + ALLOC["W"] if not x.get("local")]
    L = "LD" + which
    a(f"{L}:")
    if CFG["PROF"]: a("v_mov_b32 v8, v250")
    a("s_and_b32 s19, s13, 1")
    if CFG["PRIO"]: a(f"s_setprio {CFG['PRIO']}")
    gb = {}; st = {}
    defs = {("D","1"): (f"s_lshl_b32 @, s48, 13\ns_add_u32 @, @, {XIN}", 128*KB),
            ("D","2"): (f"s_lshl_b32 @, s50, 12\ns_add_u32 @, @, {OB}", 128*KB),
            ("D","3a"): (f"s_lshl_b32 @, s50, 12\ns_add_u32 @, @, {XMID}", 128*KB),
            ("D","4"): (f"s_mul_i32 @, s51, {7*KB}\ns_add_u32 @, @, {Z2}", 56*KB),
            ("D","5"): (f"s_lshl_b32 @, s50, 12\ns_add_u32 @, @, {UB}", 128*KB),
            ("W","1"): (f"s_mul_i32 @, s49, {160*KB}\ns_add_u32 @, @, {WQ}", 8*KB),
            ("W","2"): (f"s_mul_i32 @, s51, {100*KB}\ns_add_u32 @, @, {WO}", 5*KB),
            ("W","3a"): (f"s_mul_i32 @, s51, {140*KB}\ns_add_u32 @, @, {WI + 8*140*KB}", 7*KB),
            ("W","3b"): (f"s_mul_i32 @, s51, {140*KB}\ns_add_u32 @, @, {WI}", 7*KB),
            ("W","4"): (f"s_lshl_b32 @, s50, 18\ns_add_u32 @, @, {WSP}", 4*KB),
            ("W","5"): (f"s_mul_i32 @, s51, {135*KB}\ns_add_u32 @, @, {WT}", 5*KB)}
    order = [("W","1"), ("D","1")] + [k for k in defs if k[1] != "1"]
    regs = {k: 30 + j for j, k in enumerate(defs)}
    pof = {4: 41, 5: 42, 7: 43, 8: 44, 9: 45}
    for nU, r in pof.items(): a(f"s_mul_i32 s{r}, s19, {nU*KB}")
    a(f"s_cmp_eq_u32 s48, 0\ns_cselect_b32 s56, 0, {KB}")
    a(f"v_and_b32 v9, 0xffffff7f, v3\ns_and_b32 s66, s51, 3\ns_cmp_eq_u32 s66, 3\ns_cselect_b32 s66, {KB}, 0")
    issued = []; emit = [True]; it = [0]
    cap = [None]
    def A(t):
        if cap[0] is not None: cap[0] += [l for l in t.split("\n") if l.strip()]
        elif emit[0]: a(t)
    def setup(keys):
        for key in keys:
            txt, stride = defs[key]; r = regs[key]
            a(txt.replace("@", f"s{r}")); gb[key] = r; st[key] = stride
            a(f"s_mul_i32 s46, s19, {stride}\ns_add_u32 s{r}, s{r}, s46")
            if key[0] == "D": a(f"s_add_u32 s{r}, s{r}, s12")
    for key in defs: gb[key] = regs[key]; st[key] = defs[key][1]
    def share(k, q, n):
        nU = PH[q]["n" + k]
        big = (k == "D") == (which == "A")
        if q in ("3b", "4"): big = (n % 2 == 0) == (which == "A")
        m = (nU + 1) // 2 if big else nU // 2
        return (0, m) if which == "A" else (nU - m, nU)
    def issue(x):
        k, q, n = x["k"], x["q"], x["n"]; nU = PH[q]["n" + k]; tag = (k, q, n); key = (k, q)
        sc = " sc1" if (k == "D" or q == "4") else ""
        g0 = n*2*st[key]; u, u1 = share(k, q, n)
        halo = (k == "D" and q == "1")
        if halo and u == 0:
            A(f"s_add_u32 m0, s{pof[nU]}, {x['addr']}\ns_add_u32 s54, s{gb[key]}, {g0}\ns_sub_u32 s54, s54, s56")
            A(f"buffer_load_dwordx4 v3, s[4:7], s54 offen{sc} lds"); issued.append(tag)
            u = 1
        assert u1 - u <= 4
        gu = u - 1 if halo else u
        A(f"s_add_u32 m0, s{pof[nU]}, {x['addr'] + u*KB}\ns_add_u32 s54, s{gb[key]}, {g0 + gu*KB}")
        if q == "5" and n == 13: A(f"s_mul_i32 s55, s19, {st[key]}\ns_sub_u32 s54, s54, s55")
        for j in range(u1 - u):
            vo = 9 if (key == ("W","1") and u + j == 7) else 3
            if nU == 7 and u + j == 6: A("s_sub_u32 s54, s54, s66")
            A(f"buffer_load_dwordx4 v{vo}, s[4:7], s54 offen offset:{j*KB}{sc} lds"); issued.append(tag)
    def poll(q):
        lab = f"PL{q}"
        A(f"s_cmp_lg_u32 s19, 0\ns_cbranch_scc1 {lab}_done")
        if q == "1": A(f"s_cmp_eq_u32 s14, 1\ns_cbranch_scc1 {lab}_done")
        if emit[0]: stamp(a, r=(8, 19))
        FL = CFG["FLAG"]
        tgt = 1 if FL else {"2": 16}.get(q, 8)
        o = "v56" if q == "2" else "v57"
        ad = f"{o}, s[4:7], s54 offen" if FL else "off, s[4:7], s54"
        if q == "2": A(f"s_lshr_b32 s54, s50, 1\ns_lshl_b32 s54, s54, 7\ns_add_u32 s54, s54, s52")
        elif q in ("3a", "5"): A(f"s_lshl_b32 s54, s50, 7\ns_add_u32 s54, s54, s52\ns_add_u32 s54, s54, {(CB if q == '3a' else CD)*128}")
        elif q == "4": ad = "v20, s[4:7], s52 offen"
        else: ad = "v21, s[4:7], 0 offen"
        A("s_mov_b32 s55, 0")
        if q == "4":
            wait([("p4",)], "p4"); A(f"s_branch {lab}_chk")
        if q == "4" and FL:
            A(f"{lab}:\nbuffer_load_dwordx4 v[60:63], {ad} sc1\ns_waitcnt vmcnt(0)\n{lab}_chk:\nv_and_b32 v60, v60, v61\nv_and_b32 v62, v62, v63\nv_and_b32 v22, v60, v62")
        else: A(f"{lab}:\nbuffer_load_dword v22, {ad} sc1\ns_waitcnt vmcnt(0)\n{lab}_chk:")
        A(f"v_cmp_ne_u32 vcc, {tgt}, v22\ns_cmp_eq_u64 vcc, 0\ns_cbranch_scc1 {lab}_ok")
        A(f"s_sleep {CFG['SLEEP']}\ns_add_u32 s55, s55, 1\ns_cmp_lt_u32 s55, 0x40000\ns_cbranch_scc1 {lab}\n{lab}_ok:")
        if emit[0]: stamp(a, r=(8, 19))
        A(f"{lab}_done:")
    def poll4_issue():
        ld = "buffer_load_dwordx4 v[60:63]" if CFG["FLAG"] else "buffer_load_dword v22"
        A(f"s_cmp_lg_u32 s19, 0\ns_cbranch_scc1 PL4_i\n{ld}, v20, s[4:7], s52 offen sc1\nPL4_i:")
        marks["p4"] = len(issued)
    marks = {}
    def signal(q):
        c, r = {"1": (CA, "s48"), "2": (CB, "s50"), "3a": (CC, "s50"), "4": (CD, "s50"), "5": (CE, "s50")}[q]
        lab = f"SG{q}"
        A(f"s_cmp_lg_u32 s19, 0\ns_cbranch_scc1 {lab}\ns_lshl_b32 s54, {r}, 7\ns_add_u32 s54, s54, s52\ns_add_u32 s54, s54, {c*128}")
        if CFG["FLAG"]: A(f"s_lshl_b32 s55, {'s49' if q == '1' else 's51'}, 2\ns_add_u32 s54, s54, s55")
        A(f"s_mov_b64 exec, 1\n{'buffer_store_dword' if CFG['FLAG'] else 'buffer_atomic_add'} v13, off, s[4:7], s54 sc1\ns_mov_b64 exec, -1\n{lab}:")
    T = 24
    def zsload():
        for j in range(4):
            A(f"buffer_load_dwordx4 {vr(T+4*j,4)}, v3, s[4:7], s47 offen offset:{j*KB} sc1"); issued.append(("zs", j))
    waits = {}
    def wait(tags, key):
        if key == "p4": cnt = min(62, len(issued) - marks["p4"])
        else:
            idx = max([i for i, t in enumerate(issued) if t in tags], default=-1)
            cnt = min(62, len(issued) - 1 - idx) if idx >= 0 else 63
        waits[key] = min(waits.get(key, 63), cnt)
        if waits[key] < 63: A(f"s_waitcnt vmcnt({waits[key]})")
    def tables():
        for j in range(4):
            wait([("zs", j)], ("zs", j))
            b = T + 4*j; t = (10, 11, 12) if j & 1 else (14, 15, 23)
            for k in range(4): A(f"v_mul_f32 v{b+k}, {hex(f2u(1.0/FH))}, v{b+k}")
            for v in (b, b+2): A(f"v_fma_f32 v{v+1}, -v{v}, v{v}, v{v+1}")
            for v in (b, b+2): A(f"v_max_f32 v{v+1}, 0, v{v+1}")
            for v in (b, b+2): A(f"v_add_f32 v{v+1}, {hex(f2u(1e-5))}, v{v+1}")
            for v in (b, b+2): A(f"v_rsq_f32 v{v+1}, v{v+1}")
            A(f"v_cvt_pk_f16_f32 v{t[0]}, v{b}, v{b+2}\nv_cvt_pk_f16_f32 v{b+1}, v{b+1}, v{b+3}\nv_cvt_f32_f16 v{t[1]}, v{t[0]}\nv_cvt_f32_f16_sdwa v{t[2]}, v{t[0]} dst_sel:DWORD dst_unused:UNUSED_PAD src0_sel:WORD_1")
            A(f"ds_write_b32 v16, v{b+1} offset:{RS0+256*j}\nds_write_b32 v17, v{t[0]} offset:{MU0+512*j}")
            A(f"v_sub_f32 v{t[1]}, v{b}, v{t[1]}\nv_sub_f32 v{t[2]}, v{b+2}, v{t[2]}\nv_cvt_pk_f16_f32 v{t[1]}, v{t[1]}, v{t[2]}")
            A(f"ds_write_b32 v17, v{t[1]} offset:{MU0+512*j+64}")
        A("s_waitcnt lgkmcnt(0)")
    WR = 64
    def wsp_load():
        lab = f"WL{which}"
        A(f"s_cmp_eq_u32 s14, 1\ns_cbranch_scc1 {lab}")
        for m in range(8): A(f"buffer_load_dwordx4 {vr(WR+4*m,4)}, v4, s[8:11], s57 offen offset:{128*m}")
        A(f"{lab}:")
    def wsp_conv():
        lab = f"WC{which}"
        A(f"s_cmp_eq_u32 s14, 1\ns_cbranch_scc1 {lab}\ns_waitcnt vmcnt(0)")
        for m in range(8):
            w = WR + 4*m; t = 40 + 8*(m & 1)
            for j in range(4): A(f"v_dot2_f32_bf16 v{t+2*j}, v{w+j}, s67, 0\nv_dot2_f32_bf16 v{t+2*j+1}, v{w+j}, s68, 0")
            for j in range(4): A(f"v_cvt_pk_f16_f32 v{w+j}, v{t+2*j}, v{t+2*j+1}")
            A(f"s_add_u32 s54, s59, {m*8192}")
            for hh in range(2): A(f"buffer_store_dwordx2 {vr(w+2*hh,2)}, v5, s[4:7], s54 offen offset:{256*hh} sc1")
        A(f"{lab}:")
    ev = {}; late = {}; pre = {}
    def at(b, f): ev.setdefault(BIDX[b], []).append(f)
    def lat(b, f): late.setdefault(BIDX[b], []).append(f)
    if which == "B":
        for q in ("1", "2", "4", "5"): at((q, "G"), lambda q=q: signal(q))
        at(("3b", CFG["SIG3"]), lambda: signal("3a"))
    lat(("1", CFG["WSPL"]), wsp_load); at(("1", "G"), wsp_conv)
    SR = 40
    def stload(q):
        for c in range(3 if q == "1" else 1):
            A(f"s_add_u32 s54, s12, s{(69, 70, 71)[c] if q == '1' else 58}\ns_add_u32 s55, s54, 16384")
            A(f"buffer_load_dwordx2 {vr(SR+4*c,2)}, v6, s[4:7], s54 offen sc1\nbuffer_load_dwordx2 {vr(SR+4*c+2,2)}, v6, s[4:7], s55 offen sc1")
            issued.extend([("st", q)]*2)
    def stcalc(q):
        wait([("st", q)], ("st", q))
        v = SR
        for c in range(3 if q == "1" else 1): A(f"v_pk_add_f32 {vr(v+4*c,2)}, {vr(v+4*c,2)}, {vr(v+4*c+2,2)}")
        if q == "1":
            A(f"v_mov_b32 v{v+6}, v{v+4}\nv_mov_b32 v{v+7}, v{v+5}")
            for k in range(2): A(f"v_permlane32_swap_b32 v{v+k}, v{v+8+k}")
            for k in range(2): A(f"v_permlane32_swap_b32 v{v+4+k}, v{v+6+k}")
            A(f"v_pk_add_f32 {vr(v,2)}, {vr(v,2)}, {vr(v+8,2)}\nv_pk_add_f32 {vr(v+2,2)}, {vr(v+4,2)}, {vr(v+6,2)}")
        else:
            A(f"v_mov_b32 v{v+2}, v{v}\nv_mov_b32 v{v+3}, v{v+1}")
            for k in range(2): A(f"v_permlane32_swap_b32 v{v+k}, v{v+2+k}")
            A(f"v_pk_add_f32 {vr(v,2)}, {vr(v,2)}, {vr(v+2,2)}\nv_mov_b32 v{v+2}, v{v}\nv_mov_b32 v{v+3}, v{v+1}")
        for k in range(2): A(f"v_permlane16_swap_b32 v{v+k}, v{v+2+k}")
        A(f"v_pk_add_f32 {vr(v,2)}, {vr(v,2)}, {vr(v+2,2)}")
        t = v + 2
        A(f"v_mul_f32 v{t}, {hex(f2u(1.0/640))}, v{v}\nv_mul_f32 v{v+1}, {hex(f2u(1.0/640))}, v{v+1}\nv_fma_f32 v{v+1}, -v{t}, v{t}, v{v+1}")
        A(f"v_max_f32 v{v+1}, 0, v{v+1}\nv_add_f32 v{v+1}, {hex(f2u(1e-5))}, v{v+1}\nv_rsq_f32 v{v}, v{v+1}")
        A(f"v_mul_f32 v{v+1}, -v{t}, v{v}")
        A(f"ds_write2_b32 v{7 if q == '1' else 18}, v{v}, v{v+1} offset0:0 offset1:{NM0//4}\ns_waitcnt lgkmcnt(0)")
    for q in ("1", "3a"):
        lat((q, CFG["STL"]), lambda q=q: stload(q)); lat((q, 8), lambda q=q: stcalc(q))
    if which == "A":
        lat(("1","G"), lambda: poll("2")); lat(("2","G"), lambda: poll("3a")); lat(("4","G"), lambda: poll("5")); lat(("5","G"), lambda: poll("1"))
        at(("3b", CFG["POLL4"]), poll4_issue); lat(("3b", 9), lambda: poll("4"))
    at(("3b", 10), zsload); lat(("3b", 10), tables)
    def issue_at(bs):
        xs = [x for x in al if x["after"] in bs]
        xs.sort(key=lambda x: (x["use"] - x["after"], x["k"]))
        for x in xs: issue(x)
    def body():
        issue_at((-1,))
        for b in range(NB):
            tags = [(x["k"], x["q"], x["n"]) for x in al if x["use"] == b]
            if b in pre: A(pre[b])
            if emit[0] and isinstance(BARS[b][1], int): stamp2(a, BARS[b][0], (8, 19))
            if tags: wait(tags, ("u", b))
            if emit[0] and isinstance(BARS[b][1], int) and BARS[b][0] != "4": stamp2(a, BARS[b][0], (8, 19))
            A("s_barrier")
            for f in ev.get(b, []): f()
            if b < NB - 1: issue_at((b, b - NB))
            for f in late.get(b, []): f()
    def pro():
        for x in al:
            if x["after"] < -1: issue(x)
    emit[0] = False
    pro(); body(); it[0] = 1; body()
    issued.clear(); emit[0] = True; it[0] = 0
    setup(order[:1]); pro(); setup(order[1:])
    if CFG["FLAG"]:
        a(f"v_lshrrev_b32 v20, 1, v0\nv_lshlrev_b32 v20, 7, v20\nv_and_b32 v13, 1, v0\nv_lshl_add_u32 v20, v13, 4, v20\nv_add_u32 v20, {CC*128}, v20\nv_mov_b32 v13, 1")
        a("v_lshlrev_b32 v56, 2, v2\nv_and_b32 v57, 28, v56")
        a(f"v_min_u32 v21, 2, v1\ns_lshl_b32 s46, s48, 1\nv_add_u32 v21, s46, v21\nv_max_u32 v21, 1, v21\nv_lshl_add_u32 v21, v21, 7, v57\nv_add_u32 v21, {(CE-1)*128 + CNT}, v21")
    else:
        a(f"v_and_b32 v20, 31, v0\nv_lshlrev_b32 v20, 7, v20\nv_add_u32 v20, {CC*128}, v20\nv_mov_b32 v13, 1")
        a(f"v_min_u32 v21, 2, v0\ns_lshl_b32 s46, s48, 1\nv_add_u32 v21, s46, v21\nv_max_u32 v21, 1, v21\nv_lshlrev_b32 v21, 7, v21\nv_add_u32 v21, {(CE-1)*128 + CNT}, v21")
    a("v_bfe_u32 v18, v0, 1, 2\nv_lshlrev_b32 v17, 4, v18\nv_bfe_u32 v18, v0, 3, 1\nv_lshl_add_u32 v17, v18, 3, v17\nv_and_b32 v18, 1, v0\nv_lshl_add_u32 v17, v18, 2, v17")
    a(f"s_sub_u32 s46, s13, 4\ns_lshl_b32 s47, s46, 12\ns_add_u32 s47, s47, {IT0+ZS}\ns_lshl_b32 s54, s46, 4\nv_add_u32 v18, s54, v1\nv_lshl_add_u32 v16, v18, 6, v17\nv_lshl_add_u32 v17, v18, 7, v17")
    a.srd(8, 20, 2048*2048*2)
    a("v_lshrrev_b32 v10, 3, v0\nv_and_b32 v7, 7, v0\nv_lshlrev_b32 v7, 4, v7\nv_lshl_add_u32 v4, v10, 12, v7")
    a("v_lshlrev_b32 v5, 4, v10\nv_and_b32 v11, 1, v0\nv_lshl_add_u32 v5, v11, 9, v5\nv_and_b32 v11, 4, v0\nv_lshl_add_u32 v5, v11, 10, v5\nv_and_b32 v11, 2, v0\nv_lshl_add_u32 v5, v11, 2, v5")
    a(f"s_lshl_b32 s57, s50, 18\ns_lshl_b32 s54, s46, 16\ns_add_u32 s59, s57, s54\ns_lshr_b32 s54, s51, 1\ns_lshl_b32 s54, s54, 10\ns_add_u32 s59, s59, s54\ns_and_b32 s54, s51, 1\ns_lshl_b32 s54, s54, 7\ns_add_u32 s59, s59, s54\ns_add_u32 s59, s59, {WSP}")
    a("s_lshl_b32 s54, s46, 10\ns_add_u32 s57, s57, s54\ns_lshl_b32 s54, s51, 15\ns_add_u32 s57, s57, s54\ns_mov_b32 s67, 0x4280\ns_mov_b32 s68, 0x42800000")
    a("v_lshlrev_b32 v6, 15, v1\nv_lshl_add_u32 v6, v2, 3, v6\ns_lshl_b32 s54, s46, 6\nv_lshlrev_b32 v18, 2, v2\nv_add_u32 v18, s54, v18")
    a("v_and_b32 v7, 1, v1\nv_lshl_add_u32 v7, v7, 8, v18\nv_lshlrev_b32 v10, 2, v2\nv_add_u32 v10, 512, v10\nv_cmp_eq_u32 vcc, 2, v1\nv_cndmask_b32 v7, v7, v10, vcc")
    a(f"s_lshl_b32 s71, s48, 10\ns_lshl_b32 s54, s46, 7\ns_add_u32 s69, s71, s54\ns_add_u32 s70, s69, {STIN+384}\ns_max_u32 s69, s69, 128\ns_add_u32 s69, s69, {STIN-128}\ns_add_u32 s71, s71, {STIN+896}")
    a(f"s_lshl_b32 s58, s50, 9\ns_add_u32 s58, s58, s54\ns_add_u32 s58, s58, {STMID}")
    a(f"{L}_loop:")
    body()
    a(f"s_cmp_eq_u32 s14, 1\ns_cbranch_scc1 FINL\ns_mov_b32 s14, 1\ns_add_u32 s47, s47, {ITS}\ns_add_u32 s12, s12, {ITS}\ns_add_u32 s52, s52, 32768")
    for j in range(5): a(f"s_add_u32 s{30+j}, s{30+j}, {ITS}")
    a(f"s_branch {L}_loop")

def weave(a, lg, ms, rd, va=(), rpm=1, vpm=0, vskip=0):
    rd = list(rd); va = list(va); i = j = 0; acc = 0.0
    for mi, (txt, nd) in enumerate(ms):
        lg.need(nd); a(txt)
        acc += rpm
        while acc >= 1 and i < len(rd): lg.op(*rd[i]); i += 1; acc -= 1
        for _ in range(vpm if mi >= vskip else 0):
            if j < len(va): lg.need(va[j][1]); a(va[j][0]); j += 1
    while i < len(rd): lg.op(*rd[i]); i += 1
    while j < len(va): lg.need(va[j][1]); a(va[j][0]); j += 1

def mainloop(a, lg, q, NBUF, reads, mf, hooks=None, last_hook=None, rpm=2, prebar=None, tailf=None, cv=None):
    ph = PH[q]; nks = ph["nks"]; nst = ph["nst"]
    hooks = hooks or {}; prebar = prebar or {}
    for n in range(nst):
        if not ph["lag"] or n == 0: lg.drain()
        if n in prebar: a(prebar[n])
        if n == 0: stamp(a, lg)
        if n == 0 and q == "1": a("s_cmp_eq_u32 s14, 0\ns_cbranch_scc1 P1_nof\ns_barrier\nP1_nof:")
        if n == 0 and q in ("2", "3a", "5"): a("s_barrier")
        if q != "4": stamp2(a, q)
        a("s_barrier")
        stamp2(a, q)
        if n == 0: stamp(a, lg)
        if n in hooks: hooks[n]()
        ts = [t for t in (2*n, 2*n+1) if t < nks]
        if NBUF == 2:
            for t in ts:
                weave(a, lg, mf(t-1, (t-1) % 2) if t >= 1 else [], reads(t, t % 2), rpm=rpm)
        elif cv:
            r0, r1 = reads(2*n, (2*n) % 4), reads(2*n+1, (2*n+1) % 4)
            rd = r0[:3] + r1[:3] + r0[3:] + r1[3:]
            if n == 0:
                weave(a, lg, [], rd, cv(0, 0))
            else:
                h = len(rd) // 2
                weave(a, lg, mf(2*n-2, (2*n-2) % 4), rd[:h], cv(2*n-1, (2*n-1) % 4), rpm=1, vpm=1)
                weave(a, lg, mf(2*n-1, (2*n-1) % 4), rd[h:], cv(2*n, (2*n) % 4), rpm=1, vpm=1)
        else:
            rd = sum([reads(t, t % 4) for t in ts], [])
            ms = sum([mf(t, t % 4) for t in (2*n-2, 2*n-1) if t >= 0], [])
            weave(a, lg, ms, rd, rpm=rpm)
    tail = [nks-1] if NBUF == 2 else [t for t in (2*nst-2, 2*nst-1) if t < nks]
    extra = last_hook() if last_hook else []
    if tailf: tailf()
    else: weave(a, lg, sum([mf(t, t % NBUF) for t in tail], []), extra, rpm=rpm)
    stamp2(a, q)
    a("s_barrier")
    stamp2(a, q)
    stamp(a, lg)
def poolloop(a, lg, q, regions, spare, frags, mfs, last, L, rpm):
    ph = PH[q]; nks = ph["nks"]; nst = ph["nst"]
    RD = [(t, nm, fn) for t in range(nks) for nm, fn in frags(t)]
    MS = [(t, fn, nms) for t in range(nks) for fn, nms in mfs(t)]
    lastuse = {}
    for i, (t, fn, nms) in enumerate(MS):
        for nm in nms: lastuse[(t, nm)] = i
    per = len(MS) // nst
    free = [list(regions[0]), list(regions[1]), list(spare)]
    home = {r: k for k in range(3) for r in free[k]}
    loc = {}; ri = [0]; last = list(last)
    def rd(tmax, force=False):
        if ri[0] >= len(RD) or RD[ri[0]][0] > tmax: return False
        t, nm, fn = RD[ri[0]]
        for k in (t & 1, 2) + ((1 - (t & 1),) if force else ()):
            if free[k]:
                r = free[k].pop(0); loc[(t, nm)] = r; lg.op(*fn(r)); ri[0] += 1; return True
        assert not force
        return False
    def rdlast():
        busy = {x for r in loc.values() for x in R(r, 4)}
        for k, (txt, regs) in enumerate(last):
            if not busy & set(regs): lg.op(txt, regs); last.pop(k); return True
        return False
    mi = 0
    for n in range(nst):
        lg.drain()
        if n == 0:
            stamp(a, lg)
            if q == "1": a("s_cmp_eq_u32 s14, 0\ns_cbranch_scc1 P1_nof\ns_barrier\nP1_nof:")
            elif q != "3b": a("s_barrier")
        stamp2(a, q); a("s_barrier"); stamp2(a, q)
        if n == 0: stamp(a, lg)
        tmax = 2*n + 1; acc_ = 0.0
        end = per*(n+1) - L if n < nst - 1 else len(MS)
        if n == 0:
            for _ in range(len(frags(0))): rd(0)
        while mi < end:
            t, fn, nms = MS[mi]
            while any((t, nm) not in loc for nm in nms): rd(tmax, True)
            lg.need([x for nm in nms for x in R(loc[(t, nm)], 4)])
            a(fn({nm: loc[(t, nm)] for nm in nms}))
            for nm in nms:
                if lastuse[(t, nm)] == mi: r = loc.pop((t, nm)); free[home[r]].append(r)
            mi += 1; acc_ = min(acc_ + rpm, 2*rpm)
            while acc_ >= 1 and (rd(tmax) or (ri[0] >= len(RD) and rdlast())): acc_ -= 1
        while rd(tmax, True): pass
    while rdlast(): pass
    assert not last
    stamp2(a, q); a("s_barrier"); stamp2(a, q)
    stamp(a, lg)
class Cap(Asm):
    def __call__(s, t): s.lines += [l.strip() for l in t.split("\n") if l.strip()]
def gbar(a, nxt, first=False):
    if not first: stamp(a)
    c = Cap(); nxt(c); L = c.lines
    ld = [i for i, l in enumerate(L) if l.startswith("buffer_load")]
    K = max(ld[-1] + 1, CFG["SUK"])
    while K < len(L) and L[K].startswith("s_cselect"): K += 1
    for l in L[:K]: a(l)
    if first: a("s_cmp_eq_u32 s14, 0\ns_cbranch_scc1 P1_nog")
    a(f"s_waitcnt vmcnt({len(ld)})")
    stamp(a)
    a("s_barrier")
    if first: a("P1_nog:")
    for l in L[K:]: a(l)
    a("s_waitcnt vmcnt(0)")

def xreduce(a, op, v, t):
    a(f"v_mov_b32 v{t}, v{v}\nv_permlane32_swap_b32 v{t}, v{v}\n{op} v{v}, v{v}, v{t}")
    a(f"v_mov_b32 v{t}, v{v}\nv_permlane16_swap_b32 v{t}, v{v}\n{op} v{v}, v{v}, v{t}")
def bc2(hi): return "op_sel:[0,1] op_sel_hi:[1,1]" if hi else "op_sel:[0,0] op_sel_hi:[1,0]"
def bc3(hi): return "op_sel:[0,1,0] op_sel_hi:[1,1,1]" if hi else "op_sel:[0,0,0] op_sel_hi:[1,0,1]"
def fix_T(a, acc, cs, st, tmp):
    for h in (0, 2): a(f"v_pk_mul_f32 {vr(tmp+h,2)}, {vr(cs+h,2)}, {vr(st,2)} {bc2(1)}")
    for h in (0, 2): a(f"v_pk_fma_f32 {vr(acc+h,2)}, {vr(acc+h,2)}, {vr(st,2)}, {vr(tmp+h,2)} {bc3(0)}")
def fix_N(a, acc, csreg, rs, nm, tmp):
    cp = csreg & ~1
    for h in (0, 2): a(f"v_pk_mul_f32 {vr(tmp+h,2)}, {vr(nm+h,2)}, {vr(cp,2)} {bc2(csreg & 1)}")
    for h in (0, 2): a(f"v_pk_fma_f32 {vr(acc+h,2)}, {vr(acc+h,2)}, {vr(rs+h,2)}, {vr(tmp+h,2)}")
def cvt2(a, d, acc, ty="bf16"):
    a(f"v_cvt_pk_{ty}_f32 v{d}, v{acc}, v{acc+1}\nv_cvt_pk_{ty}_f32 v{d+1}, v{acc+2}, v{acc+3}")
def rdD(q, t, dst, bD, addr, v8, lo):
    if t < SPLIT[q]: return rd128(dst, bD(addr))
    o = (addr - lo) // 512
    assert (addr - lo) % 512 == 0 and o + 1 < 256
    return (f"ds_read2st64_b64 {vr(dst,4)}, v{v8} offset0:{o} offset1:{o+1}", R(dst,4))
def rd128(dst, ba): return (f"ds_read_b128 {vr(dst,4)}, v{ba[0]} offset:{ba[1]}", R(dst,4))

P1C = dict(ACC=32, FB=104, X=208)
def setup1(a):
    q = "1"; ACC = P1C["ACC"]; X = P1C["X"]
    dlo, dhi = rng(q, "D"); wlo, whi = rng(q, "W")
    a(f"s_lshl_b32 s34, s49, 9\ns_add_u32 s34, s34, {CSQ}\ns_add_u32 s35, s34, 8192\nv_lshlrev_b32 v19, 3, v0")
    a(f"buffer_load_dwordx2 {vr(X,2)}, v19, s[4:7], s34 offen\nbuffer_load_dwordx2 {vr(X+2,2)}, v19, s[4:7], s35 offen")
    a(f"s_lshl_b32 s30, s13, 11\ns_add_u32 s30, s30, {KB}\nv_add_u32 v13, s30, v3")
    P1C["bD"] = mkbase(a, [4, 5], dlo, dhi, 13); P1C["bH"] = mkbase(a, [6, 7], dlo, dhi, 3); P1C["bW"] = mkbase(a, [8], wlo, whi, 3)
    a(f"v_add_u32 v252, {dlo}, v19\nv_add_u32 v11, s30, v252")
    a("s_min_u32 s31, s13, 2\ns_lshl_b32 s32, s31, 1\ns_add_u32 s32, s32, 1\ns_min_u32 s32, s32, 4\ns_add_u32 s33, s31, 5")
    a("s_lshl_b32 s34, s32, 10\nv_add_u32 v9, s34, v8\ns_lshl_b32 s34, s33, 10\nv_add_u32 v10, s34, v8")
    BI = X+26; BIa = X+34; ONES = X+38
    a("s_mov_b32 s40, 0xffff\ns_mov_b32 s41, 0\ns_mov_b32 s42, 0xffff0000\ns_mov_b32 s43, 0")
    a("v_lshlrev_b32 v16, 2, v1\nv_sub_u32 v16, v2, v16\nv_mov_b32 v17, 0xff800000")
    for kt in range(2):
        for r in range(4):
            a(f"v_add_u32 v18, {16 - 16*kt - r}, v16\nv_and_b32 v18, 0xfffffff1, v18\nv_cmp_eq_u32 vcc, 0, v18\nv_cndmask_b32 v{BI+4*kt+r}, v17, 0, vcc")
    a("s_add_u32 s34, s48, s13\ns_cmp_eq_u32 s34, 0\ns_cselect_b64 s[38:39], -1, 0")
    for r in range(4): a(f"v_cndmask_b32 v{BIa+r}, v{BI+r}, v17, s[38:39]\nv_mov_b32 v{ONES+r}, 0x3f803f80")
    c = (DH ** -0.5) * math.log2(math.e)
    a(f"s_mov_b32 s44, {hex(f2u(c))}\ns_mov_b32 s45, {hex(f2u(c))}")
    a(f"s_lshl_b32 s46, s49, 17\ns_lshl_b32 s47, s48, 13\ns_lshl_b32 s37, s13, 11\ns_add_u32 s47, s47, s37\ns_add_u32 s47, s47, s12\ns_add_u32 s47, s47, {OB}\ns_add_u32 s46, s46, s47")
    a(f"s_lshr_b32 s37, s49, 2\ns_add_u32 s37, s37, 16\ns_lshl_b32 s37, s37, 17\ns_add_u32 s47, s47, s37\ns_and_b32 s37, s49, 3\ns_lshl_b32 s37, s37, 8\ns_add_u32 s47, s47, s37")
    a("s_lshl_b32 s36, s13, 7\nv_lshlrev_b32 v18, 2, v2\nv_add_u32 v13, s36, v18\nv_lshlrev_b32 v23, 4, v1\nv_add_u32 v14, s36, v23")
    a("s_lshl_b32 s34, s32, 6\nv_add_u32 v15, s34, v23\ns_lshl_b32 s34, s33, 6\nv_add_u32 v12, s34, v18")
    a("s_lshl_b32 s34, s31, 9\nv_add_u32 v20, s34, v19\ns_mul_i32 s34, s13, 3072\nv_add_u32 v21, s34, v19\nv_or_b32 v22, 256, v21")
def cons1(a):
    q = "1"; lg = LG(a)
    ACC = P1C["ACC"]; FB = P1C["FB"]; X = P1C["X"]; bD, bH, bW = P1C["bD"], P1C["bH"], P1C["bW"]
    def acc(t, x): return ACC + 4*(2*t + x)
    accHT, accHV = ACC + 64, ACC + 68
    dlo, dhi = rng(q, "D")
    BI = X+26; BIa = X+34; ONES = X+38
    a(f"v_pk_add_f32 {vr(X,2)}, {vr(X,2)}, {vr(X+2,2)}")
    lg.op(f"ds_write_b64 v19, {vr(X,2)} offset:{CS0}")
    def frags(t):
        d0 = uaddr(q, "D", t, 0); w0 = uaddr(q, "W", t, 0)
        out = [("Ah", lambda r: rdD(q, t, r, bH, d0, 252, dlo)), ("BT", lambda r: rd128(r, (9, bW(w0)[1]))), ("BV", lambda r: rd128(r, (10, bW(w0)[1])))]
        As = [("A0", lambda r: rdD(q, t, r, bD, d0, 11, dlo)), ("A1", lambda r: rdD(q, t, r, bD, d0+KB, 11, dlo))]
        Bs = [(f"B{u}", lambda r, u=u: rd128(r, bW(w0+u*KB))) for u in range(8)]
        if t == 19: return out + As[1:] + Bs + As[:1]
        return out + [As[0], Bs[0], As[1]] + Bs[1:]
    def mfs(t):
        out = []; C0 = "0" if t == 0 else None
        for u in range(8):
            for x in range(2):
                A, B = f"A{x}", f"B{u}"
                out.append((lambda m, u=u, x=x, A=A, B=B: mfma(acc(u,x), m[B], m[A], C0) if u < 5 else mfma(acc(u,x), m[A], m[B], C0), (A, B)))
        h = [(lambda m: mfma(accHT, m["BT"], m["Ah"], C0), ("BT", "Ah")), (lambda m: mfma(accHV, m["Ah"], m["BV"], C0), ("Ah", "BV"))]
        if t == 19: return h + out[1::2] + out[0::2]
        return h + out
    E = FB
    stT = [E, E+2, E+4]; rsN = [E+8, E+12, E+16]; nmN = [E+20, E+24, E+28]
    csT = [E+32, E+36, E+40, E+44, E+48]; csHT = X
    csV = [X+4, X+5, X+6]; csHV = X+7
    def last_hook():
        out = []
        for x in (2, 1, 0):
            va, vb, o = (18, 23, 0) if x == 2 else (13, 14, 64+64*x)
            out.append((f"ds_read2_b32 {vr(stT[x],2)}, v{va} offset0:{o//4} offset1:{(NM0+o)//4}", R(stT[x],2)))
            out.append(rd128(rsN[x], (vb, o))); out.append(rd128(nmN[x], (vb, NM0+o)))
            if x == 2:
                out.append(rd128(csHT, (15, CS0))); out.append((f"ds_read_b32 v{csHV}, v12 offset:{CS0}", [csHV]))
            if x == 1:
                for t in range(5): out.append(rd128(csT[t], (23, CS0+64*t)))
                for t in range(3): out.append((f"ds_read_b32 v{csV[t]}, v18 offset:{CS0+64*(5+t)}", [csV[t]]))
        return out
    poolloop(a, lg, q, [[FB+52*b+4*k for k in range(13)] for b in range(2)], [X+8, X+12, X+16, X+20, 24, 28], frags, mfs, last_hook(), CFG["L1"], CFG["RPM1"]/4)
    lg.drain()
    G = FB + 52
    QF = {(0,0): G, (1,0): G+4, (0,1): G+8, (1,1): G+12}
    KF = {(0,0): G+16, (1,0): G+20, (0,1): G+24, (1,1): G+28, (0,'p'): G+32, (1,'p'): G+36}
    VF = [X+8, X+14, X+20]
    TMP = G+40; HT, HV = G+44, G+46; T4r = G+48; TM2 = 24
    def prep_kv(x):
        for k, t in enumerate((1, 3, 4)): fix_T(a, acc(t,x), csT[t], stT[x], (TMP, TM2)[k & 1])
        for t in range(3): fix_N(a, acc(5+t,x), csV[t], rsN[x], nmN[x], (TM2, TMP)[t & 1])
        cvt2(a, KF[(0,x)], acc(1,x)); cvt2(a, KF[(1,x)], acc(3,x)); cvt2(a, T4r + 2*x, acc(4,x))
        for t in range(3): cvt2(a, VF[t] + 2 + 2*x, acc(5+t,x))
    def prep_q(x):
        for k, t in enumerate((0, 2)): fix_T(a, acc(t,x), csT[t], stT[x], (TMP, TM2)[k & 1])
        T4 = T4r + 2*x
        for j in range(2):
            a(f"v_mov_b32 v{KF[(0,x)]+2+j}, v{T4+j}\nv_mov_b32 v{KF[(1,x)]+2+j}, v{T4+j}")
        cvt2(a, QF[(0,x)], acc(0,x)); cvt2(a, QF[(1,x)], acc(2,x))
        for j in range(2): a(f"v_permlane32_swap_b32 v{KF[(0,x)]+2+j}, v{KF[(1,x)]+2+j}")
        for j in range(2):
            a(f"v_cndmask_b32 v{QF[(0,x)]+2+j}, 0, v{T4+j}, s[40:41]\nv_cndmask_b32 v{QF[(1,x)]+2+j}, 0, v{T4+j}, s[42:43]")
        for j in range(2): a(f"v_mov_b32 v{KF[(0,x)]+2+j}, v{KF[(1,x)]+2+j}")
    fix_T(a, accHT, csHT, stT[2], TMP); fix_N(a, accHV, csHV, rsN[2], nmN[2], TM2)
    cvt2(a, HT, accHT); cvt2(a, HV, accHV)
    a(f"ds_write_b64 v20, {vr(HT,2)} offset:4096\nds_write_b64 v20, {vr(HV,2)} offset:{4096+1536}")
    prep_kv(1)
    for k, r in enumerate([KF[(0,1)], KF[(1,1)], T4r+2, VF[0]+4, VF[1]+4, VF[2]+4]):
        a(f"ds_write_b64 v21, {vr(r,2)} offset:{4096+3072+512*k}")
    prep_kv(0)
    a("s_waitcnt lgkmcnt(0)\ns_barrier")
    lg.op(f"ds_read_b64 {vr(KF[(0,'p')],2)}, v21 offset:4096", R(KF[(0,'p')],2))
    lg.op(f"ds_read_b64 {vr(KF[(1,'p')],2)}, v21 offset:{4096+512}", R(KF[(1,'p')],2))
    lg.op(f"ds_read_b64 {vr(KF[(0,'p')]+2,2)}, v22 offset:{4096+1024}", R(KF[(0,'p')]+2,2))
    lg.op(f"ds_read_b64 {vr(KF[(1,'p')]+2,2)}, v22 offset:{4096+1024}", R(KF[(1,'p')]+2,2))
    for t in range(3): lg.op(f"ds_read_b64 {vr(VF[t],2)}, v21 offset:{4096+1536+512*t}", R(VF[t],2))
    prep_q(1); prep_q(0)
    lg.drain()
    XS = (1, 0)
    Wb = {1: ACC, 0: ACC + 36}
    Sr = {(x,h): Wb[x] + 8*h for x in XS for h in range(2)}
    M = {(x,h): Wb[x] + 16 + 2*h for x in XS for h in range(2)}
    PF = {(x,h): Wb[x] + 20 + 4*h for x in XS for h in range(2)}
    XH = [(x,h) for x in XS for h in range(2)]
    for (x,h) in XH:
        pk = 'p' if x == 0 else 0
        a(mfma(Sr[x,h], KF[(h,pk)], QF[(h,x)], "0")); a(mfma(Sr[x,h]+4, KF[(h,x)], QF[(h,x)], "0"))
    for (x,h) in XH:
        bp = BIa if x == 0 else BI
        for j in range(4):
            b = (bp + 2*j) if j < 2 else (BI + 2*j)
            a(f"v_pk_fma_f32 {vr(Sr[x,h]+2*j,2)}, {vr(Sr[x,h]+2*j,2)}, s[44:45], {vr(b,2)}")
        s_, m = Sr[x,h], M[x,h]
        a(f"v_max3_f32 v{m}, v{s_}, v{s_+1}, v{s_+2}\nv_max3_f32 v{m+1}, v{s_+3}, v{s_+4}, v{s_+5}\nv_max3_f32 v{m}, v{m}, v{s_+6}, v{s_+7}\nv_max_f32 v{m}, v{m}, v{m+1}")
    for sw in ("v_permlane32_swap_b32", "v_permlane16_swap_b32"):
        for k in XH: a(f"v_mov_b32 v{M[k]+1}, v{M[k]}")
        for k in XH: a(f"{sw} v{M[k]+1}, v{M[k]}")
        for k in XH: a(f"v_max_f32 v{M[k]}, v{M[k]}, v{M[k]+1}")
    for x in XS:
        for h in range(2):
            k = (x,h)
            for j in range(4):
                a(f"v_pk_add_f32 {vr(Sr[k]+2*j,2)}, {vr(Sr[k]+2*j,2)}, {vr(M[k],2)} op_sel:[0,0] op_sel_hi:[1,0] neg_lo:[0,1] neg_hi:[0,1]")
            for j in range(8): a(f"v_exp_f32 v{Sr[k]+j}, v{Sr[k]+j}")
        for h in range(2):
            cvt2(a, PF[x,h], Sr[x,h]); cvt2(a, PF[x,h]+2, Sr[x,h]+4)
        vo = 2*x; W = Wb[x]
        L0, L1, O0, O1a, O1b, O2 = W+28, W+32, W, W+4, W+8, W+12
        a(mfma(L0, ONES, PF[x,0], "0")); a(mfma(L1, ONES, PF[x,1], "0"))
        a(mfma(O0, VF[0]+vo, PF[x,0], "0")); a(mfma(O1a, VF[1]+vo, PF[x,0], "0"))
        a(mfma(O1b, VF[1]+vo, PF[x,1], "0")); a(mfma(O2, VF[2]+vo, PF[x,1], "0"))
    for x in XS:
        W = Wb[x]
        L0, L1, O0, O1a, O1b, O2 = W+28, W+32, W, W+4, W+8, W+12
        a(f"v_rcp_f32 v{L0}, v{L0}\nv_rcp_f32 v{L1}, v{L1}")
        for j in range(4): a(f"v_cndmask_b32 v{O1a+j}, v{O1b+j}, v{O1a+j}, s[40:41]")
        a(f"v_cndmask_b32 v{L0+1}, v{L1}, v{L0}, s[40:41]")
        for j in (0, 2): a(f"v_pk_mul_f32 {vr(O0+j,2)}, {vr(O0+j,2)}, {vr(L0,2)} {bc2(0)}")
        for j in (0, 2): a(f"v_pk_mul_f32 {vr(O1a+j,2)}, {vr(O1a+j,2)}, {vr(L0,2)} {bc2(1)}")
        for j in (0, 2): a(f"v_pk_mul_f32 {vr(O2+j,2)}, {vr(O2+j,2)}, {vr(L1,2)} {bc2(0)}")
        cvt2(a, PF[x,0], O0); cvt2(a, PF[x,0]+2, O1a); cvt2(a, PF[x,1], O2)
        a(f"buffer_store_dwordx4 {vr(PF[x,0],4)}, v3, s[4:7], s46 offen offset:{x*KB} sc1")
        a(f"s_mov_b64 exec, 0xffffffff\nbuffer_store_dwordx2 {vr(PF[x,1],2)}, v19, s[4:7], s47 offen offset:{x*KB} sc1\ns_mov_b64 exec, -1")
    gbar(a, lambda c: setup25(c, "2"))

P25 = {}
def setup25(a, q):
    X = 160
    dlo, dhi = rng(q, "D"); wlo, whi = rng(q, "W")
    a("v_lshlrev_b32 v8, 3, v0")
    a("s_lshl_b32 s33, s50, 2\ns_add_u32 s33, s33, s13\ns_lshl_b32 s34, s33, 10")
    a("s_lshl_b32 s31, s51, 18\ns_add_u32 s31, s31, s34")
    a("s_lshr_b32 s32, s51, 1\ns_add_u32 s32, s32, 16\ns_lshl_b32 s32, s32, 17\ns_add_u32 s32, s32, s34\ns_and_b32 s35, s51, 1\ns_lshl_b32 s35, s35, 9\ns_add_u32 s32, s32, s35")
    src = XIN if q == "2" else XMID
    a(f"s_add_u32 s35, s12, {src}\ns_add_u32 s36, s35, s31\ns_add_u32 s37, s36, {128*KB}\ns_add_u32 s35, s35, s32")
    a(f"buffer_load_dwordx4 {vr(X,4)}, v3, s[4:7], s36 offen sc1\nbuffer_load_dwordx4 {vr(X+4,4)}, v3, s[4:7], s37 offen sc1\nbuffer_load_dwordx2 {vr(X+8,2)}, v8, s[4:7], s35 offen sc1")
    a("s_lshl_b32 s30, s13, 10\nv_add_u32 v13, s30, v3")
    P25[q] = (mkbase(a, [4], dlo, dhi, 13), mkbase(a, [6, 7], wlo, whi, 3))
    a(f"s_add_u32 s30, s30, {dlo}\nv_add_u32 v5, s30, v8")
    dst = XMID if q == "2" else ITS + XIN
    dstst = STMID if q == "2" else ITS + STIN
    a(f"s_add_u32 s35, s12, {dst}\ns_add_u32 s36, s35, s31\ns_add_u32 s37, s36, {128*KB}\ns_add_u32 s35, s35, s32")
    a(f"s_lshl_b32 s39, s51, 14\ns_lshl_b32 s40, s33, 7\ns_add_u32 s39, s39, s40\ns_add_u32 s39, s39, s12\ns_add_u32 s39, s39, {dstst}")
    a(f"v_mov_b32 v{X+12}, 0\nv_mov_b32 v{X+13}, 0\nv_mov_b32 v{X+14}, 0x3f803f80\nv_lshlrev_b32 v{X+17}, 3, v2\nv_mov_b32 v{X+18}, 0\nv_mov_b32 v{X+19}, 0")
    if q == "5":
        a(f"s_mul_i32 s41, s13, 2816\ns_add_u32 s41, s41, 4096\nv_mul_u32_u24 v{X+40}, 176, v2\nv_lshl_add_u32 v{X+40}, v1, 3, v{X+40}\nv_add_u32 v{X+40}, s41, v{X+40}")
        for j in range(3):
            c, row, cc, la, ga = X+41, X+42, X+43, X+20+j, X+24+j
            a(f"v_add_u32 v{c}, {64*j}, v0\nv_mul_u32_u24 v{row}, 205, v{c}\nv_lshrrev_b32 v{row}, 11, v{row}\nv_mul_u32_u24 v{cc}, 10, v{row}\nv_sub_u32 v{cc}, v{c}, v{cc}\nv_lshlrev_b32 v{cc}, 4, v{cc}")
            a(f"v_mul_u32_u24 v{la}, 176, v{row}\nv_add3_u32 v{la}, v{la}, v{cc}, s41\nv_mul_u32_u24 v{ga}, 1280, v{row}\nv_add_u32 v{ga}, v{ga}, v{cc}")
        a(f"s_mul_i32 s42, s33, {16*1280}\ns_mul_i32 s43, s51, 160\ns_add_u32 s42, s42, s43")
        a.srd(8, 24, 2048*640*2)
    a("s_mov_b32 s38, 0xffff0000")
def cons25(a, q):
    lg = LG(a)
    ACC = 32; FB = 64; X = 160
    dlo, dhi = rng(q, "D"); bD, bW = P25[q]
    for j in range(10):
        a(f"v_lshlrev_b32 v{ACC+2*j}, 16, v{X+j}\nv_and_b32 v{ACC+2*j+1}, s38, v{X+j}")
    def fb(buf, k): return FB + 24*buf + 4*k
    def reads(t, buf):
        return [rdD(q, t, fb(buf,0), bD, uaddr(q, "D", t, 0), 5, dlo)] + [rd128(fb(buf,1+u), bW(uaddr(q, "W", t, u))) for u in range(5)]
    def mf(t, buf):
        return [(mfma(ACC+4*u, fb(buf,1+u), fb(buf,0)), list(R(fb(buf,0),4)) + list(R(fb(buf,1+u),4))) for u in range(5)]
    mainloop(a, lg, q, 4, reads, mf, rpm=1.25)
    for u in range(5): cvt2(a, X+2*u, ACC+4*u)
    if q == "5":
        a("s_cmp_eq_u32 s14, 1\ns_cbranch_scc1 P5_final")
    a(f"buffer_store_dwordx4 {vr(X,4)}, v3, s[4:7], s36 offen sc1\nbuffer_store_dwordx4 {vr(X+4,4)}, v3, s[4:7], s37 offen sc1\nbuffer_store_dwordx2 {vr(X+8,2)}, v8, s[4:7], s35 offen sc1")
    for j in range(0, 10, 2):
        a(f"v_dot2_f32_bf16 v{X+12}, v{X+j}, v{X+14}, v{X+12}\nv_dot2_f32_bf16 v{X+13}, v{X+j}, v{X+j}, v{X+13}")
        a(f"v_dot2_f32_bf16 v{X+18}, v{X+j+1}, v{X+14}, v{X+18}\nv_dot2_f32_bf16 v{X+19}, v{X+j+1}, v{X+j+1}, v{X+19}")
    a(f"v_pk_add_f32 {vr(X+12,2)}, {vr(X+12,2)}, {vr(X+18,2)}")
    for sw in ("v_permlane32_swap_b32", "v_permlane16_swap_b32"):
        a(f"v_mov_b32 v{X+18}, v{X+12}\nv_mov_b32 v{X+19}, v{X+13}\n{sw} v{X+18}, v{X+12}\n{sw} v{X+19}, v{X+13}\nv_pk_add_f32 {vr(X+12,2)}, {vr(X+12,2)}, {vr(X+18,2)}")
    a(f"s_mov_b64 exec, 0xffff\nbuffer_store_dwordx2 {vr(X+12,2)}, v{X+17}, s[4:7], s39 offen sc1\ns_mov_b64 exec, -1")
    if q == "2": gbar(a, setup3)
    if q == "5":
        a(f"s_mov_b32 s14, 1\ns_add_u32 s12, s12, {ITS}")
        stamp(a)
        a("s_branch C_loop")
        a("P5_final:")
        a.fence(2)
        for u in range(5): a(f"ds_write_b64 v{X+40}, {vr(X+2*u,2)} offset:{32*u}")
        a("s_waitcnt lgkmcnt(0)")
        for j in range(3): a(f"ds_read_b128 {vr(X+28+4*j,4)}, v{X+20+j}")
        for j in range(3):
            a(f"s_waitcnt lgkmcnt({2-j})")
            if j == 2: a("s_mov_b64 exec, 0xffffffff")
            a(f"buffer_store_dwordx4 {vr(X+28+4*j,4)}, v{X+24+j}, s[8:11], s42 offen")
        a("s_mov_b64 exec, -1")
        stamp(a)
        a("s_barrier\ns_barrier\ns_branch FIN")

GC1 = -2.0 * math.sqrt(2.0/math.pi) * math.log2(math.e)
GC2 = GC1 * 0.044715
def gelu(a, xs, ts):
    P = list(zip(xs, ts))
    for x, t in P:
        for h in (0, 2): a(f"v_pk_mul_f32 {vr(t+h,2)}, {vr(x+h,2)}, {vr(x+h,2)}")
    for x, t in P:
        for h in (0, 2): a(f"v_pk_fma_f32 {vr(t+h,2)}, {vr(t+h,2)}, s[44:45], v[14:15]")
    for x, t in P:
        for h in (0, 2): a(f"v_pk_mul_f32 {vr(t+h,2)}, {vr(t+h,2)}, {vr(x+h,2)}")
    for x, t in P:
        for j in range(4): a(f"v_exp_f32 v{t+j}, v{t+j}")
    for x, t in P:
        for h in (0, 2): a(f"v_pk_add_f32 {vr(t+h,2)}, {vr(t+h,2)}, 1.0 op_sel_hi:[1,0]")
    for x, t in P:
        for j in range(4): a(f"v_rcp_f32 v{t+j}, v{t+j}")
    for x, t in P:
        for h in (0, 2): a(f"v_pk_mul_f32 {vr(x+h,2)}, {vr(x+h,2)}, {vr(t+h,2)}")
ZR = 32
P3C = {}
def setup3(a):
    q = "3a"; X = 192; SM = 32
    dlo, dhi = rng(q, "D"); wlo, whi = rng(q, "W")
    a(f"s_lshl_b32 s34, s51, 9\ns_add_u32 s34, s34, {CSI}\ns_add_u32 s35, s34, 8192\nv_lshlrev_b32 v22, 3, v0")
    a("s_and_b32 s38, s51, 3\ns_cmp_eq_u32 s38, 3\ns_cselect_b32 s38, 47, 55\ns_lshl_b32 s38, s38, 3\nv_min_u32 v7, s38, v22")
    a(f"buffer_load_dwordx2 {vr(X,2)}, v7, s[4:7], s34 offen\nbuffer_load_dwordx2 {vr(X+2,2)}, v7, s[4:7], s35 offen")
    a(f"s_add_u32 s34, s34, 4096\ns_add_u32 s35, s35, 4096\nbuffer_load_dwordx2 {vr(X+4,2)}, v7, s[4:7], s34 offen\nbuffer_load_dwordx2 {vr(X+6,2)}, v7, s[4:7], s35 offen")
    a("s_and_b32 s31, s13, 1\ns_lshr_b32 s32, s13, 1")
    setup4(a)
    a("s_lshl_b32 s30, s31, 11\nv_add_u32 v13, s30, v3")
    P3C["bD"] = mkbase(a, [4, 5], dlo, dhi, 13)
    a(f"s_add_u32 s30, s30, {dlo}\nv_add_u32 v252, s30, v22")
    a("s_lshl_b32 s30, s32, 12\nv_add_u32 v13, s30, v3")
    P3C["bW"] = mkbase(a, [6], wlo, whi, 13)
    for r in range(16): a(f"v_mov_b32 v{SM+r}, 0")
    a(f"s_mov_b32 s44, {hex(f2u(GC2))}\ns_mov_b32 s45, {hex(f2u(GC2))}\nv_mov_b32 v14, {hex(f2u(GC1))}\nv_mov_b32 v15, {hex(f2u(GC1))}")
    a("s_lshl_b32 s34, s32, 8\ns_lshl_b32 s35, s31, 7\nv_lshlrev_b32 v10, 2, v2\nv_add_u32 v8, s34, v10\nv_add_u32 v10, s35, v10")
    a("v_lshlrev_b32 v12, 4, v1\nv_add_u32 v9, s35, v12\nv_add_u32 v12, s34, v12")
    a("s_and_b32 s38, s51, 3\ns_cmp_eq_u32 s38, 3\ns_cselect_b32 s38, 2, 3\ns_cmp_eq_u32 s32, 0\ns_cselect_b32 s38, 4, s38")
    a(f"s_lshl_b32 s36, s33, 8\ns_mul_i32 s39, s33, {56*KB}\ns_mul_i32 s34, s51, {7*KB}\ns_add_u32 s39, s39, s34\ns_lshl_b32 s34, s32, 12\ns_add_u32 s39, s39, s34\ns_add_u32 s39, s39, s12\ns_add_u32 s39, s39, {Z2}")
    a(f"s_add_u32 s36, s36, s12\ns_add_u32 s36, s36, {ZS}")
    a("s_mov_b32 s40, 0xaaaaaaaa\ns_mov_b32 s41, 0xaaaaaaaa\ns_mov_b32 s42, 0xcccccccc\ns_mov_b32 s43, 0xcccccccc")
    a("v_and_b32 v11, 3, v2\nv_lshl_add_u32 v11, v1, 2, v11\nv_bfe_u32 v13, v2, 2, 1\nv_lshl_add_u32 v11, v13, 4, v11\nv_lshlrev_b32 v11, 3, v11\nv_lshrrev_b32 v13, 3, v2\nv_lshl_add_u32 v11, v13, 2, v11")
def cons3(a):
    q = "3a"; lg = LG(a)
    ACC = 64; FB = 96; X = 192; SM = 32
    def acc(t, x): return ACC + 4*(2*t + x)
    dlo, dhi = rng(q, "D"); wlo, whi = rng(q, "W"); bD, bW = P3C["bD"], P3C["bW"]
    a(f"v_pk_add_f32 {vr(X,2)}, {vr(X,2)}, {vr(X+2,2)}\nv_pk_add_f32 {vr(X+4,2)}, {vr(X+4,2)}, {vr(X+6,2)}")
    lg.op(f"ds_write_b64 v22, {vr(X,2)} offset:{CS0}"); lg.op(f"ds_write_b64 v22, {vr(X+4,2)} offset:{CS1}")
    a(f"v_lshlrev_b32 v{P4R['BI']}, 16, v{P4R['BI']}\nv_lshlrev_b32 v{P4R['BI']+1}, 16, v{P4R['BI']+1}")
    def fb(buf, k): return FB + 24*buf + 4*k
    def reads(t, buf):
        d0 = uaddr(q, "D", t, 0); w0 = uaddr(q, "W", t, 0)
        return [rdD(q, t, fb(buf,0), bD, d0, 252, dlo), rd128(fb(buf,2), bW(w0)), rdD(q, t, fb(buf,1), bD, d0+KB, 252, dlo)] + [rd128(fb(buf,2+u), bW(w0+u*KB)) for u in range(1, 4)]
    def mf(t, buf):
        return [(mfma(acc(u,x), fb(buf,x), fb(buf,2+u), "0" if t == 0 else None), list(R(fb(buf,x),4)) + list(R(fb(buf,2+u),4))) for u in range(4) for x in range(2)]
    rsN = [X, X+4]; nmN = [X+8, X+12]; csV = [X+16+t for t in range(4)]
    def last_hook():
        out = []
        for x in range(2): out += [rd128(rsN[x], (9, 64*x)), rd128(nmN[x], (9, NM0+64*x))]
        return out + [(f"ds_read_b32 v{csV[t]}, v8 offset:{CS1+64*t}", [csV[t]]) for t in range(4)]
    mainloop(a, lg, q, 4, reads, mf, last_hook=last_hook, rpm=CFG["RPM3"]/4)
    lg.drain()
    TMP = X+40; PK = X+24
    for u in range(4):
        if u >= 2: a(f"s_cmp_eq_u32 s38, {u}\ns_cbranch_scc1 P3_red")
        for x in range(2): fix_N(a, acc(u,x), csV[u], rsN[x], nmN[x], TMP+4*x)
        gelu(a, [acc(u,0), acc(u,1)], [TMP, TMP+4])
        for x in range(2): cvt2(a, PK + 4*u + 2*x, acc(u,x), "f16")
        a(f"buffer_store_dwordx4 {vr(PK+4*u,4)}, v3, s[4:7], s39 offen offset:{u*KB} sc1")
        for x in range(2):
            for h in (0, 2):
                a(f"v_pk_add_f32 {vr(SM+4*x+h,2)}, {vr(SM+4*x+h,2)}, {vr(acc(u,x)+h,2)}")
                a(f"v_pk_fma_f32 {vr(SM+8+4*x+h,2)}, {vr(acc(u,x)+h,2)}, {vr(acc(u,x)+h,2)}, {vr(SM+8+4*x+h,2)}")
    a("P3_red:"); a.fence(2)
    RA = ACC
    for j in range(8):
        a(f"v_add_f32_dpp v{RA+j}, v{SM+j}, v{SM+j} row_ror:8 row_mask:0xf bank_mask:0x3")
    for j in range(8):
        a(f"v_add_f32_dpp v{RA+j}, v{SM+8+j}, v{SM+8+j} row_ror:8 row_mask:0xf bank_mask:0xc")
    for j in range(4): a(f"v_add_f32_dpp v{RA+8+j}, v{RA+j}, v{RA+j} row_half_mirror row_mask:0xf bank_mask:0x5")
    for j in range(4): a(f"v_add_f32_dpp v{RA+8+j}, v{RA+4+j}, v{RA+4+j} row_half_mirror row_mask:0xf bank_mask:0xa")
    for j in range(4): a(f"v_add_f32_dpp v{RA+8+j}, v{RA+8+j}, v{RA+8+j} quad_perm:[1,0,3,2] row_mask:0xf bank_mask:0xf")
    for j in range(4): a(f"v_add_f32_dpp v{RA+8+j}, v{RA+8+j}, v{RA+8+j} quad_perm:[2,3,0,1] row_mask:0xf bank_mask:0xf")
    a(f"v_cndmask_b32 v{RA}, v{RA+8}, v{RA+9}, s[40:41]\nv_cndmask_b32 v{RA+1}, v{RA+10}, v{RA+11}, s[40:41]\nv_cndmask_b32 v{RA}, v{RA}, v{RA+1}, s[42:43]")
    a(f"buffer_atomic_add_f32 v{RA}, v11, s[4:7], s36 offen")
    q = "3b"; lg = LG(a)
    assert rng(q, "W") == (wlo, whi)
    def mf(t, buf):
        return [(mfma(acc(u,x), fb(buf,2+u), fb(buf,x), "0" if t == 0 else None), list(R(fb(buf,x),4)) + list(R(fb(buf,2+u),4))) for u in range(4) for x in range(2)]
    stT = [X, X+2]; csT = [X+4+4*t for t in range(4)]
    def last_hook():
        return [(f"ds_read2_b32 {vr(stT[x],2)}, v10 offset0:{16*x} offset1:{NM0//4+16*x}", R(stT[x],2)) for x in range(2)] + [rd128(csT[t], (12, CS0+64*t)) for t in range(4)]
    mainloop(a, lg, q, 4, reads, mf, last_hook=last_hook, rpm=CFG["RPM3"]/4, prebar={CFG["SIG3"]: "s_waitcnt vmcnt(0)"})
    lg.drain()
    TMP = X+40
    for x in range(2):
        for u in range(2): fix_T(a, acc(u,x), csT[u], stT[x], TMP+4*(2*x+u))
    gelu(a, [acc(u,x) for x in range(2) for u in range(2)], [TMP+4*k for k in range(4)])
    for u in range(2):
        for x in range(2): cvt2(a, ZR+2*(2*u+x), acc(u,x))
    for u in (2, 3):
        a(f"s_cmp_eq_u32 s38, {u}\ns_cbranch_scc1 P3b_done1")
        for x in range(2): fix_T(a, acc(u,x), csT[u], stT[x], TMP+4*x)
        gelu(a, [acc(u,0), acc(u,1)], [TMP, TMP+4])
        for x in range(2): cvt2(a, ZR+2*(2*u+x), acc(u,x))
    cons4(a, 0)
    a("s_branch P4_done")
    a("P3b_done1:"); a.fence(2)
    cons4(a, 1)
    a("P4_done:"); a.fence(2)
    gbar(a, lambda c: setup25(c, "5"))

P4R = dict(bD=[16, 17], W=[18, 19], MU=20, EX=21, L8=22, BI=24)
def setup4(a):
    q = "4"; r = P4R
    dlo, dhi = rng(q, "D"); wlo, whi = rng(q, "W")
    P4R["f"] = mkbase(a, r["bD"], dlo, dhi, 3)
    w0, rs = r["W"]; mu = r["MU"]
    a(f"s_lshl_b32 s34, s31, 11\ns_add_u32 s34, s34, {wlo}\nv_add_u32 v{w0}, s34, v3\nv_lshlrev_b32 v{rs}, 4, v1")
    a(f"v_and_b32 v{mu}, 1, v2\nv_lshlrev_b32 v{mu}, 6, v{mu}\nv_lshl_add_u32 v{mu}, v1, 4, v{mu}")
    a(f"s_lshl_b32 s34, s31, 9\nv_add_u32 v{r['EX']}, s34, v{r['L8']}")
    a(f"s_lshl_b32 s33, s50, 1\ns_add_u32 s33, s33, s31\nv_lshlrev_b32 v{r['BI']}, 1, v2")
    a(f"s_lshl_b32 s34, s33, 6\ns_add_u32 s34, s34, {BSP}\nbuffer_load_ushort v{r['BI']+1}, v{r['BI']}, s[4:7], s34 offen offset:32\nbuffer_load_ushort v{r['BI']}, v{r['BI']}, s[4:7], s34 offen")
    a(f"s_lshl_b32 s46, s33, 11\ns_add_u32 s46, s46, s12\ns_add_u32 s46, s46, {UB}\ns_mul_i32 s47, s51, 3\ns_lshl_b32 s34, s32, 1\ns_add_u32 s47, s47, s34\ns_lshl_b32 s47, s47, 17\ns_add_u32 s47, s47, s46")
    a(f"s_lshr_b32 s34, s51, 2\ns_sub_u32 s34, s51, s34\ns_lshr_b32 s56, s34, 1\ns_add_u32 s56, s56, 24\ns_lshl_b32 s56, s56, 17\ns_add_u32 s46, s46, s56\ns_and_b32 s34, s34, 1\ns_lshl_b32 s34, s34, 9\ns_add_u32 s46, s46, s34")
    a(f"s_add_u32 s56, s47, {128*KB}\ns_mov_b32 s57, 0xffff0000\ns_mov_b32 s58, {hex(f2u(1.0/WSCALE))}\ns_mov_b32 s59, {hex(f2u(1.0/WSCALE))}")
def cons4(a, ch):
    q = "4"; lg = LG(a); r = P4R
    ACC = 64; FB = 96; X = 208
    wlo = rng(q, "W")[0]; bD = r["f"]
    def acc(t, x): return ACC + 4*(2*t + x)
    def fb(buf, k): return FB + 28*buf + 4*k
    def reads(t, buf):
        w = [rd128(fb(buf,x), (r["W"][0], uaddr(q, "W", t, x) - wlo)) for x in range(2)]
        z = [rd128(fb(buf,2+u), bD(uaddr(q, "D", t, 4*ch+u))) for u in range(4-ch)]
        if ch: z.append(rd128(fb(buf,5), (r["MU"], MU0 + t*128)))
        return [rd128(fb(buf,6), (r["W"][1], RS0 + t*64))] + w + z
    def cv(t, buf):
        rs = fb(buf,6)
        return [(f"v_pk_mul_f16 v{fb(buf,x)+j}, v{fb(buf,x)+j}, v{rs+j}", [fb(buf,x)+j, rs+j]) for x in range(2) for j in range(4)]
    def mf(t, buf):
        return [(mfma(acc(u,x), fb(buf,2+u), fb(buf,x), "0" if t == 0 else None, ty="f16"), list(R(fb(buf,2+u),4))) for x in range(2) for u in range(4)]
    B = r["BI"]
    def tail():
        m0, m1 = mf(62, 2), mf(63, 3)
        weave(a, lg, m0, [], cv(63, 3), vpm=2)
        if not ch: weave(a, lg, m1, []); return
        weave(a, lg, [m1[3], m1[7]] + m1[:3], [])
        for x in range(2): a(f"v_add_f32 v{X+x}, v{acc(3,x)}, v{acc(3,x)+1}")
        for x in range(2): a(f"v_fma_f32 v{B+x}, -v{X+x}, s58, v{B+x}")
        lg.op(f"ds_write_b64 v{r['EX']}, {vr(B,2)} offset:{EX0}")
        weave(a, lg, m1[4:7], [])
        lg.drain()
    mainloop(a, lg, q, 4, reads, mf, cv=cv, tailf=tail)
    if not ch: lg.op(f"ds_read_b64 {vr(B,2)}, v{r['EX']} offset:{EX0}", R(B,2))
    PK = FB; T2 = FB + 16
    for u0 in (0, 2):
        us = (u0, u0+1) if not (ch and u0) else (2,)
        if ch and u0: a("s_cmp_eq_u32 s38, 2\ns_cbranch_scc1 P4_done")
        for u in us:
            for x in range(2):
                for h in range(2):
                    z = ZR + 2*(2*u+x) + h; t = T2 + 4*(2*u+x) + 2*h
                    a(f"v_lshlrev_b32 v{t}, 16, v{z}\nv_and_b32 v{t+1}, s57, v{z}")
        lg.drain()
        for x in range(2):
            for u in us:
                for h in (0, 2): a(f"v_pk_fma_f32 {vr(acc(u,x)+h,2)}, {vr(acc(u,x)+h,2)}, s[58:59], {vr(B,2)} op_sel:[0,0,{x}] op_sel_hi:[1,1,{x}]")
            for u in us:
                for h in (0, 2): a(f"v_pk_mul_f32 {vr(acc(u,x)+h,2)}, {vr(acc(u,x)+h,2)}, {vr(T2+4*(2*u+x)+h,2)}")
            pk = PK + 4*(u0 + x)
            for u in us: cvt2(a, pk + 2*(u & 1), acc(u,x))
            if len(us) == 2: a(f"buffer_store_dwordx4 {vr(pk,4)}, v3, s[4:7], s{56 if u0 else 47} offen offset:{x*KB} sc1")
            else: a(f"buffer_store_dwordx2 {vr(pk,2)}, v{r['L8']}, s[4:7], s46 offen offset:{x*KB} sc1")

def code_prefetch(a, va, vd):
    if not CFG["CODEPF"]: return
    lab = a.label("CPF")
    a(f"s_getpc_b64 s[56:57]\n{lab}:\ns_add_u32 s56, s56, main_kernel-{lab}\ns_addc_u32 s57, s57, 0")
    a(f"s_lshr_b32 s58, s2, 3\ns_lshl_b32 s58, s58, 2\ns_add_u32 s58, s58, s13\ns_mul_i32 s58, s58, 1024\nv_and_b32 v{va}, 7, v0\nv_lshlrev_b32 v{va}, 7, v{va}\nv_add_u32 v{va}, s58, v{va}")
    a(f"v_min_u32 v{va}, MAIN_END-main_kernel-4, v{va}\nglobal_load_dword v{vd}, v{va}, s[56:57]")

def build():
    plan()
    a = Asm()
    a.launch("k0_kernel", (NJOBS,1,1), (256,1,1), lds=40960)
    a.launch("main_kernel", (256,1,1), (512,1,1), lds=LDS_TOTAL)
    emit_k0(a, code_prefetch=code_prefetch)
    a.begin_kernel("main_kernel")
    a("s_cmp_ge_u32 s2, 256\ns_cbranch_scc1 END")
    a("s_load_dwordx4 s[20:23], s[0:1], 40\ns_load_dwordx2 s[24:25], s[0:1], 64\ns_load_dwordx2 s[26:27], s[0:1], 80")
    a("v_lshrrev_b32 v1, 6, v0\nv_and_b32 v0, 63, v0\nv_readfirstlane_b32 s13, v1")
    a("v_lshrrev_b32 v1, 4, v0\nv_and_b32 v2, 15, v0\nv_lshlrev_b32 v3, 4, v0")
    a(f"s_mov_b32 s12, {IT0}\ns_mov_b32 s14, 0\ns_mov_b32 s52, {CNT}\ns_mov_b32 s62, 0")
    a("s_and_b32 s15, s2, 7\ns_lshr_b32 s53, s2, 3\ns_lshr_b32 s16, s15, 1\ns_and_b32 s17, s15, 1")
    a("s_lshl_b32 s48, s16, 2\ns_lshr_b32 s18, s53, 3\ns_add_u32 s48, s48, s18\ns_lshl_b32 s49, s17, 3\ns_and_b32 s18, s53, 7\ns_add_u32 s49, s49, s18")
    a("s_lshl_b32 s50, s16, 3\ns_lshr_b32 s18, s53, 2\ns_add_u32 s50, s50, s18\ns_lshl_b32 s51, s17, 2\ns_and_b32 s18, s53, 3\ns_add_u32 s51, s51, s18")
    a("s_waitcnt lgkmcnt(0)")
    a.srd(4, 26, 0x10000000)
    if CFG["PROF"]: a("s_memrealtime s[60:61]\ns_waitcnt lgkmcnt(0)\nv_writelane_b32 v250, s60, 62")
    stamp(a, force=True)
    a("s_cmp_ge_u32 s13, 6\ns_cbranch_scc1 LDB\ns_cmp_ge_u32 s13, 4\ns_cbranch_scc1 LDA")
    a("C_loop:"); a.fence(2)
    gbar(a, setup1, True)
    cons1(a); cons25(a, "2"); cons3(a); cons25(a, "5")
    a.hist = []; loader(a, "A"); a.hist = []; loader(a, "B")
    a("FINL:")
    if CFG["PROF"]: a("v_mov_b32 v250, v8")
    a("FIN:"); a.fence(4)
    a("s_waitcnt vmcnt(0)")
    if CFG["PROF"]:
        stamp(a)
        a("s_memrealtime s[60:61]\ns_waitcnt lgkmcnt(0)\nv_writelane_b32 v250, s60, 63")
        a(f"s_lshl_b32 s60, s2, 3\ns_add_u32 s60, s60, s13\ns_lshl_b32 s60, s60, 8\ns_add_u32 s60, s60, {PROFB}")
        a("v_lshlrev_b32 v251, 2, v0\nbuffer_store_dword v250, v251, s[4:7], s60 offen")
    a("END:\ns_endpgm\nMAIN_END:")
    a.end_kernel("main_kernel", 256, sgpr=72)
    return a

if __name__ == "__main__":
    out = sys.argv[1] if len(sys.argv) > 1 else "mega.s"
    for kv in sys.argv[2:]:
        k, v = kv.split("="); CFG[k] = int(v)
    a = build()
    open(out, "w").write(a.text())
    print("lines", len(a.lines), "nops", a.nops_added, "bars", len(BARS))
    if CFG.get("SHOW"):
        for k in "DW":
            for x in ALLOC[k]: print(k, x["q"], x["n"], x["addr"]//KB, "after", bname(x["after"]), "rel", bname(x["rel"]))
```

```python
import sys, math, struct
from asmlib import *
from layout import *
from k0 import emit_k0, NJOBS

LDS_TOTAL = 163840
CFG = dict(LT=6, ROLL=1, RT=0, WG=1, FLAG=0, L1=27, RPM1=4, RPM3=4, SUK=40, STL=5, PQ=1, PIT=1, ST=0, HOLD=1, ILV=0, PRIO=0, XA=0, XB=0, XC=0, XD=0, RPM4=4, NOWSP=0, PROF=0, TOUCH=0, ROT=1, POLL4=7, SLEEP=1, WSPL=9, SIG3=2, PKMUL=1, CODEPF=1, DSC1=1, PER=2, P0=2, P0S=4, DT=0)
PROFB = 200*1024*1024
def f2u(x): return struct.unpack("<I", struct.pack("<f", x))[0]

PH = {
    "1":  dict(nks=20, nD=9, nW=8, lag=0, D=(20, 4), W=(96, 4)),
    "2":  dict(nks=20, nD=4, nW=5, lag=1, D=(20, 7), W=(80, 8)),
    "3a": dict(nks=20, nD=4, nW=7, lag=0, D=(20, 10), W=(104, 4)),
    "3b": dict(nks=20, nD=0, nW=7, lag=0, D=None, W=(104, 4)),
    "4":  dict(nks=64, nD=7, nW=4, lag=1, D=(20, 6), W=(112, 6)),
    "5":  dict(nks=27, nD=4, nW=5, lag=1, D=(20, 7), W=(80, 8)),
}
ORDER = ["1", "2", "3a", "3b", "4", "5"]
RS0, MU0 = 4096, 8192
NM0, CS0, CS1, EX0 = 768, 1536, 2048, 3072
NROT = {'1': 8, '2': 8, '3a': 8, '3b': 8, '4': 32, '5': 12}
SPLIT = {'1': 16, '2': 16, '3a': 16, '3b': 16, '4': 99, '5': 24}
LSCHED = [(("1",7),2), (("1",8),2), (("1",9),2), (("1",10),10), (("1","X"),10)]
CSCHED = [(("1","G"),6), (("2",10),6), (("2","G"),6)] + [(("3a",n),1) for n in range(1,9)]
CA, CB, CC, CD, CE = 0, 16, 48, 80, 112

OVR = {("4","W",0): 104*KB}
BARS = []; BIDX = {}
ALLOC = {"D": [], "W": []}
def plan():
    BARS.clear(); BIDX.clear(); ALLOC["D"].clear(); ALLOC["W"].clear()
    for q in ORDER:
        ph = PH[q]; ph["nst"] = (ph["nks"] + 1) // 2
        for n in range(ph["nst"] + 1): BARS.append((q, n))
        if q == "1": BARS.append((q, "X"))
        if q in ("1", "2", "4", "5"): BARS.append((q, "G")); BARS.append((q, "F"))
    for i, b in enumerate(BARS): BIDX[b] = i
    NB = len(BARS)
    gate = {"1": -1, "2": BIDX[("1","F")], "3a": BIDX[("2","F")], "4": BIDX[("3b", 10)], "5": BIDX[("4","F")]}
    def rel(q, n, kind):
        if q == "3a" and kind == "D": q = "3b"
        return BIDX[(q, min(n + 1 + PH[q]["lag"], PH[q]["nst"]))]
    rot = {(q, k): 0 for q in ORDER for k in "DW"}
    def build():
        al = {"D": [], "W": []}
        for q in ORDER:
            ph = PH[q]
            for k in "DW":
                if ph[k] is None: continue
                base, ns = ph[k]; sz = 2*ph["n"+k]*KB
                for n in range(ph["nst"]):
                    al[k].append(dict(q=q, n=n, k=k, addr=OVR.get((q,k,n), base*KB + sz*((n + rot[(q,k)]) % ns)), size=sz, use=BIDX[(q,n)], rel=rel(q,n,k)))
        allv = al["D"] + al["W"]
        for k in "DW":
            prev = -NB; used = {}
            for x in al[k]:
                e = -NB
                for y in allv:
                    if y is x or not (y["addr"] < x["addr"] + x["size"] and x["addr"] < y["addr"] + y["size"]):
                        if y is x: e = max(e, y["rel"] - NB)
                        continue
                    if y["use"] < x["use"]: e = max(e, y["rel"])
                    else:
                        assert y["use"] > x["use"], (x, y)
                        e = max(e, y["rel"] - NB)
                if k == "D": e = max(e, gate[x["q"]])
                e = max(e, prev)
                def cap(b):
                    if BARS[b % NB] == ("3b", 10) and k == "D": return CFG["P0"]
                    if BARS[b % NB][1] == "F": return (CFG["P0"] if x["q"] == "1" else CFG["P0S"]) if k == "D" else 0
                    if CFG["WG"] and BARS[b % NB] in (("2", 10), ("4", 32), ("5", 14)): return 0
                    if CFG["WG"] and BARS[b % NB][1] == "G" and (CFG["WG"] > 1 or BARS[b % NB][0] != "1"): return CFG["PER"]
                    if BARS[b % NB][1] == "G" or (CFG["HOLD"] and BARS[b % NB] in (("1", 10), ("1", "X"))): return 0
                    return CFG["PER"]
                while used.get(e % NB, 0) >= cap(e): e += 1
                used[e % NB] = used.get(e % NB, 0) + 1
                prev = e
                x["after"] = e
            last = al[k][-1]["after"] - NB
            for x in al[k]: x["after"] = max(x["after"], last)
            for x in al[k]: assert x["after"] < x["use"], x
        return al
    def cost(al): return sum(max(0, CFG["LT"] - (x["use"] - x["after"]))**2 * 1000 + x["after"] for k in "DW" for x in al[k])
    import itertools
    keys = [k for k in rot if PH[k[0]][k[1]] is not None]
    def tryset(ks):
        best = None
        for rs_ in itertools.product(*[range(PH[k[0]][k[1]][1]) for k in ks]):
            for k, r in zip(ks, rs_): rot[k] = r
            try: c = cost(build())
            except AssertionError: continue
            if best is None or c < best[0]: best = (c, rs_)
        for k, r in zip(ks, best[1]): rot[k] = r
        return best[0]
    import os, pickle
    ck = repr((sorted((q, sorted((k, v) for k, v in PH[q].items() if k in ("nks","nD","nW","lag","D","W"))) for q in ORDER), sorted(OVR.items()), [CFG[k] for k in ("LT","P0","P0S","WG","HOLD","PER")]))
    cache = pickle.load(open("plan.pkl", "rb")) if os.path.exists("plan.pkl") else {}
    if ck in cache: rot.update(cache[ck])
    else:
        wk = [k for k in keys if k[1] == "W"]
        for _ in range(2):
            for k in keys: tryset([k])
            for i in range(len(wk)):
                tryset([wk[i], wk[(i+1) % len(wk)]])
                dk = (wk[i][0], "D")
                if dk in keys: tryset([dk, wk[(i+1) % len(wk)]])
        cache[ck] = dict(rot); pickle.dump(cache, open("plan.pkl", "wb"))
    al = build()
    for k in "DW":
        ALLOC[k] += al[k]
        for x in al[k]: PH[x["q"]].setdefault("addr"+k, {})[x["n"]] = x["addr"]
    PH["3b"]["addrD"] = PH["3a"]["addrD"]; PH["3b"]["nD"] = 4
def bname(i):
    NB = len(BARS); return ("prev:" if i < 0 else "") + "%s.%s" % BARS[i % NB]

class LG:
    def __init__(s, a): s.a = a; s.out = []
    def op(s, text, regs=()):
        s.a(text); s.out.append(set(regs))
    def need(s, regs):
        regs = set(regs); idx = -1
        for k, r in enumerate(s.out):
            if r & regs: idx = k
        if idx >= 0:
            n = min(len(s.out) - 1 - idx, 15)
            s.a(f"s_waitcnt lgkmcnt({n})")
            s.out = s.out[len(s.out) - n:] if n else []
    def drain(s):
        if s.out: s.a("s_waitcnt lgkmcnt(0)"); s.out = []

def R(b, n): return range(b, b + n)
def mfma(d, A, B, C=None, ty="bf16"):
    c = vr(d, 4) if C is None else C
    return f"v_mfma_f32_16x16x32_{ty} {vr(d,4)}, {vr(A,4)}, {vr(B,4)}, {c}"
def stamp2(a, q, r=(250, 251)):
    if CFG["PROF"] == 2 and q in PQ[CFG["PQ"]]:
        lab = a.label("ST2")
        a(f"s_cmp_eq_u32 s14, {CFG['PIT']}\ns_cbranch_scc0 {lab}\ns_memtime s[60:61]\ns_mov_b32 m0, s62\ns_waitcnt lgkmcnt(0)\nv_writelane_b32 v{r[0]}, s60, m0\ns_add_u32 s62, s62, 1\n{lab}:")
PQ = {1: ("1", "2"), 3: ("3a", "3b"), 5: ("5", ), 4: ("4",)}
def stamp(a, lg=None, r=(250, 251), force=False):
    if CFG["PROF"] == 1 or (force and CFG["PROF"]):
        if lg: lg.drain()
        a(f"{'s_memrealtime' if CFG['RT'] else 's_memtime'} s[60:61]\nv_cmp_eq_u32 s[64:65], s62, v0\ns_waitcnt lgkmcnt(0)\nv_mov_b32 v{r[1]}, s60\nv_cndmask_b32 v{r[0]}, v{r[0]}, v{r[1]}, s[64:65]\ns_add_u32 s62, s62, 1")
def mkbase(a, regs, lo, hi, src):
    n = (hi - lo + 65535) // 65536
    assert n <= len(regs), (lo, hi, regs)
    for k in range(n): a(f"v_add_u32 v{regs[k]}, {lo + 65536*k}, v{src}")
    def f(addr):
        assert lo <= addr < hi, (lo, hi, addr)
        return regs[(addr - lo) >> 16], (addr - lo) & 0xffff
    return f
def uaddr(q, which, t, unit):
    ph = PH[q]
    return ph["addr" + which][t // 2] + (t % 2)*ph["n" + which]*KB + unit*KB
def rng(q, which):
    ph = PH[q]; ad = ph["addr" + which].values()
    return min(ad), max(ad) + 2*ph["n" + which]*KB

def loader(a, which):
    NB = len(BARS); al = [x for x in ALLOC["D"] + ALLOC["W"] if not x.get("local")]
    L = "LD" + which
    a(f"{L}:")
    if CFG["PROF"]: a("v_mov_b32 v8, v250")
    a("s_and_b32 s19, s13, 1")
    if CFG["PRIO"]: a(f"s_setprio {CFG['PRIO']}")
    gb = {}; st = {}
    defs = {("D","1"): (f"s_lshl_b32 @, s48, 13\ns_add_u32 @, @, {XIN}", 128*KB),
            ("D","2"): (f"s_lshl_b32 @, s50, 12\ns_add_u32 @, @, {OB}", 128*KB),
            ("D","3a"): (f"s_lshl_b32 @, s50, 12\ns_add_u32 @, @, {XMID}", 128*KB),
            ("D","4"): (f"s_mul_i32 @, s51, {7*KB}\ns_add_u32 @, @, {Z2}", 56*KB),
            ("D","5"): (f"s_lshl_b32 @, s50, 12\ns_add_u32 @, @, {UB}", 128*KB),
            ("W","1"): (f"s_mul_i32 @, s49, {160*KB}\ns_add_u32 @, @, {WQ}", 8*KB),
            ("W","2"): (f"s_mul_i32 @, s51, {100*KB}\ns_add_u32 @, @, {WO}", 5*KB),
            ("W","3a"): (f"s_mul_i32 @, s51, {140*KB}\ns_add_u32 @, @, {WI + 8*140*KB}", 7*KB),
            ("W","3b"): (f"s_mul_i32 @, s51, {140*KB}\ns_add_u32 @, @, {WI}", 7*KB),
            ("W","4"): (f"s_lshl_b32 @, s50, 18\ns_add_u32 @, @, {WSP}", 4*KB),
            ("W","5"): (f"s_mul_i32 @, s51, {135*KB}\ns_add_u32 @, @, {WT}", 5*KB)}
    order = [("W","1"), ("D","1")] + [k for k in defs if k[1] != "1"]
    regs = {k: 30 + j for j, k in enumerate(defs)}
    pof = {4: 41, 5: 42, 7: 43, 8: 44, 9: 45}
    for nU, r in pof.items(): a(f"s_mul_i32 s{r}, s19, {nU*KB}")
    a(f"s_cmp_eq_u32 s48, 0\ns_cselect_b32 s56, 0, {KB}")
    a(f"v_and_b32 v9, 0xffffff7f, v3\ns_and_b32 s66, s51, 3\ns_cmp_eq_u32 s66, 3\ns_cselect_b32 s66, {KB}, 0")
    issued = []; emit = [True]; it = [0]
    cap = [None]
    def A(t):
        if cap[0] is not None: cap[0] += [l for l in t.split("\n") if l.strip()]
        elif emit[0]: a(t)
    def setup(keys):
        for key in keys:
            txt, stride = defs[key]; r = regs[key]
            a(txt.replace("@", f"s{r}")); gb[key] = r; st[key] = stride
            a(f"s_mul_i32 s46, s19, {stride}\ns_add_u32 s{r}, s{r}, s46")
            if key[0] == "D": a(f"s_add_u32 s{r}, s{r}, s12")
    for key in defs: gb[key] = regs[key]; st[key] = defs[key][1]
    def share(k, q, n):
        nU = PH[q]["n" + k]
        big = (k == "D") == (which == "A")
        if q in ("3b", "4"): big = (n % 2 == 0) == (which == "A")
        m = (nU + 1) // 2 if big else nU // 2
        return (0, m) if which == "A" else (nU - m, nU)
    def issue(x):
        k, q, n = x["k"], x["q"], x["n"]; nU = PH[q]["n" + k]; tag = (k, q, n); key = (k, q)
        sc = " sc1" if (k == "D" or q == "4") else ""
        g0 = n*2*st[key]; u, u1 = share(k, q, n)
        halo = (k == "D" and q == "1")
        if halo and u == 0:
            A(f"s_add_u32 m0, s{pof[nU]}, {x['addr']}\ns_add_u32 s54, s{gb[key]}, {g0}\ns_sub_u32 s54, s54, s56")
            A(f"buffer_load_dwordx4 v3, s[4:7], s54 offen{sc} lds"); issued.append(tag)
            u = 1
        assert u1 - u <= 4
        gu = u - 1 if halo else u
        A(f"s_add_u32 m0, s{pof[nU]}, {x['addr'] + u*KB}\ns_add_u32 s54, s{gb[key]}, {g0 + gu*KB}")
        if q == "5" and n == 13: A(f"s_mul_i32 s55, s19, {st[key]}\ns_sub_u32 s54, s54, s55")
        for j in range(u1 - u):
            vo = 9 if (key == ("W","1") and u + j == 7) else 3
            if nU == 7 and u + j == 6: A("s_sub_u32 s54, s54, s66")
            A(f"buffer_load_dwordx4 v{vo}, s[4:7], s54 offen offset:{j*KB}{sc} lds"); issued.append(tag)
    def poll(q):
        lab = f"PL{q}"
        A(f"s_cmp_lg_u32 s19, 0\ns_cbranch_scc1 {lab}_done")
        if q == "1": A(f"s_cmp_eq_u32 s14, 1\ns_cbranch_scc1 {lab}_done")
        if emit[0]: stamp(a, r=(8, 19))
        FL = CFG["FLAG"]
        tgt = 1 if FL else {"2": 16}.get(q, 8)
        o = "v56" if q == "2" else "v57"
        ad = f"{o}, s[4:7], s54 offen" if FL else "off, s[4:7], s54"
        if q == "2": A(f"s_lshr_b32 s54, s50, 1\ns_lshl_b32 s54, s54, 7\ns_add_u32 s54, s54, s52")
        elif q in ("3a", "5"): A(f"s_lshl_b32 s54, s50, 7\ns_add_u32 s54, s54, s52\ns_add_u32 s54, s54, {(CB if q == '3a' else CD)*128}")
        elif q == "4": ad = "v20, s[4:7], s52 offen"
        else: ad = "v21, s[4:7], 0 offen"
        A("s_mov_b32 s55, 0")
        if q == "4":
            wait([("p4",)], "p4"); A(f"s_branch {lab}_chk")
        if q == "4" and FL:
            A(f"{lab}:\nbuffer_load_dwordx4 v[60:63], {ad} sc1\ns_waitcnt vmcnt(0)\n{lab}_chk:\nv_and_b32 v60, v60, v61\nv_and_b32 v62, v62, v63\nv_and_b32 v22, v60, v62")
        else: A(f"{lab}:\nbuffer_load_dword v22, {ad} sc1\ns_waitcnt vmcnt(0)\n{lab}_chk:")
        A(f"v_cmp_ne_u32 vcc, {tgt}, v22\ns_cmp_eq_u64 vcc, 0\ns_cbranch_scc1 {lab}_ok")
        A(f"s_sleep {CFG['SLEEP']}\ns_add_u32 s55, s55, 1\ns_cmp_lt_u32 s55, 0x40000\ns_cbranch_scc1 {lab}\n{lab}_ok:")
        if emit[0]: stamp(a, r=(8, 19))
        A(f"{lab}_done:")
    def poll4_issue():
        ld = "buffer_load_dwordx4 v[60:63]" if CFG["FLAG"] else "buffer_load_dword v22"
        A(f"s_cmp_lg_u32 s19, 0\ns_cbranch_scc1 PL4_i\n{ld}, v20, s[4:7], s52 offen sc1\nPL4_i:")
        marks["p4"] = len(issued)
    marks = {}
    def signal(q):
        c, r = {"1": (CA, "s48"), "2": (CB, "s50"), "3a": (CC, "s50"), "4": (CD, "s50"), "5": (CE, "s50")}[q]
        lab = f"SG{q}"
        A(f"s_cmp_lg_u32 s19, 0\ns_cbranch_scc1 {lab}\ns_lshl_b32 s54, {r}, 7\ns_add_u32 s54, s54, s52\ns_add_u32 s54, s54, {c*128}")
        if CFG["FLAG"]: A(f"s_lshl_b32 s55, {'s49' if q == '1' else 's51'}, 2\ns_add_u32 s54, s54, s55")
        A(f"s_mov_b64 exec, 1\n{'buffer_store_dword' if CFG['FLAG'] else 'buffer_atomic_add'} v13, off, s[4:7], s54 sc1\ns_mov_b64 exec, -1\n{lab}:")
    T = 24
    def zsload():
        for j in range(4):
            A(f"buffer_load_dwordx4 {vr(T+4*j,4)}, v3, s[4:7], s47 offen offset:{j*KB} sc1"); issued.append(("zs", j))
    waits = {}
    def wait(tags, key):
        if key == "p4": cnt = min(62, len(issued) - marks["p4"])
        else:
            idx = max([i for i, t in enumerate(issued) if t in tags], default=-1)
            cnt = min(62, len(issued) - 1 - idx) if idx >= 0 else 63
        waits[key] = min(waits.get(key, 63), cnt)
        if waits[key] < 63: A(f"s_waitcnt vmcnt({waits[key]})")
    def tables():
        for j in range(4):
            wait([("zs", j)], ("zs", j))
            b = T + 4*j; t = (10, 11, 12) if j & 1 else (14, 15, 23)
            for k in range(4): A(f"v_mul_f32 v{b+k}, {hex(f2u(1.0/FH))}, v{b+k}")
            for v in (b, b+2): A(f"v_fma_f32 v{v+1}, -v{v}, v{v}, v{v+1}")
            for v in (b, b+2): A(f"v_max_f32 v{v+1}, 0, v{v+1}")
            for v in (b, b+2): A(f"v_add_f32 v{v+1}, {hex(f2u(1e-5))}, v{v+1}")
            for v in (b, b+2): A(f"v_rsq_f32 v{v+1}, v{v+1}")
            A(f"v_cvt_pk_f16_f32 v{t[0]}, v{b}, v{b+2}\nv_cvt_pk_f16_f32 v{b+1}, v{b+1}, v{b+3}\nv_cvt_f32_f16 v{t[1]}, v{t[0]}\nv_cvt_f32_f16_sdwa v{t[2]}, v{t[0]} dst_sel:DWORD dst_unused:UNUSED_PAD src0_sel:WORD_1")
            A(f"ds_write_b32 v16, v{b+1} offset:{RS0+256*j}\nds_write_b32 v17, v{t[0]} offset:{MU0+512*j}")
            A(f"v_sub_f32 v{t[1]}, v{b}, v{t[1]}\nv_sub_f32 v{t[2]}, v{b+2}, v{t[2]}\nv_cvt_pk_f16_f32 v{t[1]}, v{t[1]}, v{t[2]}")
            A(f"ds_write_b32 v17, v{t[1]} offset:{MU0+512*j+64}")
        A("s_waitcnt lgkmcnt(0)")
    WR = 64
    def wsp_load():
        lab = f"WL{which}"
        A(f"s_cmp_eq_u32 s14, 1\ns_cbranch_scc1 {lab}")
        for m in range(8): A(f"buffer_load_dwordx4 {vr(WR+4*m,4)}, v4, s[8:11], s57 offen offset:{128*m}")
        A(f"{lab}:")
    def wsp_conv():
        lab = f"WC{which}"
        A(f"s_cmp_eq_u32 s14, 1\ns_cbranch_scc1 {lab}\ns_waitcnt vmcnt(0)")
        for m in range(8):
            w = WR + 4*m; t = 40 + 8*(m & 1)
            for j in range(4): A(f"v_dot2_f32_bf16 v{t+2*j}, v{w+j}, s67, 0\nv_dot2_f32_bf16 v{t+2*j+1}, v{w+j}, s68, 0")
            for j in range(4): A(f"v_cvt_pk_f16_f32 v{w+j}, v{t+2*j}, v{t+2*j+1}")
            A(f"s_add_u32 s54, s59, {m*8192}")
            for hh in range(2): A(f"buffer_store_dwordx2 {vr(w+2*hh,2)}, v5, s[4:7], s54 offen offset:{256*hh} sc1")
        A(f"{lab}:")
    ev = {}; late = {}; pre = {}
    def at(b, f): ev.setdefault(BIDX[b], []).append(f)
    def lat(b, f): late.setdefault(BIDX[b], []).append(f)
    if which == "B":
        for q in ("1", "2", "4", "5"): at((q, "G"), lambda q=q: signal(q))
        at(("3b", CFG["SIG3"]), lambda: signal("3a"))
    lat(("1", CFG["WSPL"]), wsp_load); at(("1", "G"), wsp_conv)
    SR = 40
    def stload(q):
        for c in range(3 if q == "1" else 1):
            A(f"s_add_u32 s54, s12, s{(69, 70, 71)[c] if q == '1' else 58}\ns_add_u32 s55, s54, 16384")
            A(f"buffer_load_dwordx2 {vr(SR+4*c,2)}, v6, s[4:7], s54 offen sc1\nbuffer_load_dwordx2 {vr(SR+4*c+2,2)}, v6, s[4:7], s55 offen sc1")
            issued.extend([("st", q)]*2)
    def stcalc(q):
        wait([("st", q)], ("st", q))
        v = SR
        for c in range(3 if q == "1" else 1): A(f"v_pk_add_f32 {vr(v+4*c,2)}, {vr(v+4*c,2)}, {vr(v+4*c+2,2)}")
        if q == "1":
            A(f"v_mov_b32 v{v+6}, v{v+4}\nv_mov_b32 v{v+7}, v{v+5}")
            for k in range(2): A(f"v_permlane32_swap_b32 v{v+k}, v{v+8+k}")
            for k in range(2): A(f"v_permlane32_swap_b32 v{v+4+k}, v{v+6+k}")
            A(f"v_pk_add_f32 {vr(v,2)}, {vr(v,2)}, {vr(v+8,2)}\nv_pk_add_f32 {vr(v+2,2)}, {vr(v+4,2)}, {vr(v+6,2)}")
        else:
            A(f"v_mov_b32 v{v+2}, v{v}\nv_mov_b32 v{v+3}, v{v+1}")
            for k in range(2): A(f"v_permlane32_swap_b32 v{v+k}, v{v+2+k}")
            A(f"v_pk_add_f32 {vr(v,2)}, {vr(v,2)}, {vr(v+2,2)}\nv_mov_b32 v{v+2}, v{v}\nv_mov_b32 v{v+3}, v{v+1}")
        for k in range(2): A(f"v_permlane16_swap_b32 v{v+k}, v{v+2+k}")
        A(f"v_pk_add_f32 {vr(v,2)}, {vr(v,2)}, {vr(v+2,2)}")
        t = v + 2
        A(f"v_mul_f32 v{t}, {hex(f2u(1.0/640))}, v{v}\nv_mul_f32 v{v+1}, {hex(f2u(1.0/640))}, v{v+1}\nv_fma_f32 v{v+1}, -v{t}, v{t}, v{v+1}")
        A(f"v_max_f32 v{v+1}, 0, v{v+1}\nv_add_f32 v{v+1}, {hex(f2u(1e-5))}, v{v+1}\nv_rsq_f32 v{v}, v{v+1}")
        A(f"v_mul_f32 v{v+1}, -v{t}, v{v}")
        A(f"ds_write2_b32 v{7 if q == '1' else 18}, v{v}, v{v+1} offset0:0 offset1:{NM0//4}\ns_waitcnt lgkmcnt(0)")
    for q in ("1", "3a"):
        lat((q, CFG["STL"]), lambda q=q: stload(q)); lat((q, 8), lambda q=q: stcalc(q))
    if which == "A":
        lat(("1","G"), lambda: poll("2")); lat(("2","G"), lambda: poll("3a")); lat(("4","G"), lambda: poll("5")); lat(("5","G"), lambda: poll("1"))
        at(("3b", CFG["POLL4"]), poll4_issue); lat(("3b", 9), lambda: poll("4"))
    at(("3b", 10), zsload); lat(("3b", 10), tables)
    def issue_at(bs):
        xs = [x for x in al if x["after"] in bs]
        xs.sort(key=lambda x: (x["use"] - x["after"], x["k"]))
        for x in xs: issue(x)
    def body():
        issue_at((-1,))
        for b in range(NB):
            tags = [(x["k"], x["q"], x["n"]) for x in al if x["use"] == b]
            if b in pre: A(pre[b])
            if emit[0] and isinstance(BARS[b][1], int) and BARS[b][1] < 30: stamp2(a, BARS[b][0], (8, 19))
            if tags: wait(tags, ("u", b))
            if emit[0] and isinstance(BARS[b][1], int) and BARS[b][1] < 30: stamp2(a, BARS[b][0], (8, 19))
            A("s_barrier")
            for f in ev.get(b, []): f()
            if b < NB - 1: issue_at((b, b - NB))
            for f in late.get(b, []): f()
    def pro():
        for x in al:
            if x["after"] < -1: issue(x)
    emit[0] = False
    pro(); body(); it[0] = 1; body()
    issued.clear(); emit[0] = True; it[0] = 0
    setup(order[:1]); pro(); setup(order[1:])
    if CFG["FLAG"]:
        a(f"v_lshrrev_b32 v20, 1, v0\nv_lshlrev_b32 v20, 7, v20\nv_and_b32 v13, 1, v0\nv_lshl_add_u32 v20, v13, 4, v20\nv_add_u32 v20, {CC*128}, v20\nv_mov_b32 v13, 1")
        a("v_lshlrev_b32 v56, 2, v2\nv_and_b32 v57, 28, v56")
        a(f"v_min_u32 v21, 2, v1\ns_lshl_b32 s46, s48, 1\nv_add_u32 v21, s46, v21\nv_max_u32 v21, 1, v21\nv_lshl_add_u32 v21, v21, 7, v57\nv_add_u32 v21, {(CE-1)*128 + CNT}, v21")
    else:
        a(f"v_and_b32 v20, 31, v0\nv_lshlrev_b32 v20, 7, v20\nv_add_u32 v20, {CC*128}, v20\nv_mov_b32 v13, 1")
        a(f"v_min_u32 v21, 2, v0\ns_lshl_b32 s46, s48, 1\nv_add_u32 v21, s46, v21\nv_max_u32 v21, 1, v21\nv_lshlrev_b32 v21, 7, v21\nv_add_u32 v21, {(CE-1)*128 + CNT}, v21")
    a("v_bfe_u32 v18, v0, 1, 2\nv_lshlrev_b32 v17, 4, v18\nv_bfe_u32 v18, v0, 3, 1\nv_lshl_add_u32 v17, v18, 3, v17\nv_and_b32 v18, 1, v0\nv_lshl_add_u32 v17, v18, 2, v17")
    a(f"s_sub_u32 s46, s13, 4\ns_lshl_b32 s47, s46, 12\ns_add_u32 s47, s47, {IT0+ZS}\ns_lshl_b32 s54, s46, 4\nv_add_u32 v18, s54, v1\nv_lshl_add_u32 v16, v18, 6, v17\nv_lshl_add_u32 v17, v18, 7, v17")
    a.srd(8, 20, 2048*2048*2)
    a("v_lshrrev_b32 v10, 3, v0\nv_and_b32 v7, 7, v0\nv_lshlrev_b32 v7, 4, v7\nv_lshl_add_u32 v4, v10, 12, v7")
    a("v_lshlrev_b32 v5, 4, v10\nv_and_b32 v11, 1, v0\nv_lshl_add_u32 v5, v11, 9, v5\nv_and_b32 v11, 4, v0\nv_lshl_add_u32 v5, v11, 10, v5\nv_and_b32 v11, 2, v0\nv_lshl_add_u32 v5, v11, 2, v5")
    a(f"s_lshl_b32 s57, s50, 18\ns_lshl_b32 s54, s46, 16\ns_add_u32 s59, s57, s54\ns_lshr_b32 s54, s51, 1\ns_lshl_b32 s54, s54, 10\ns_add_u32 s59, s59, s54\ns_and_b32 s54, s51, 1\ns_lshl_b32 s54, s54, 7\ns_add_u32 s59, s59, s54\ns_add_u32 s59, s59, {WSP}")
    a("s_lshl_b32 s54, s46, 10\ns_add_u32 s57, s57, s54\ns_lshl_b32 s54, s51, 15\ns_add_u32 s57, s57, s54\ns_mov_b32 s67, 0x4280\ns_mov_b32 s68, 0x42800000")
    a("v_lshlrev_b32 v6, 15, v1\nv_lshl_add_u32 v6, v2, 3, v6\ns_lshl_b32 s54, s46, 6\nv_lshlrev_b32 v18, 2, v2\nv_add_u32 v18, s54, v18")
    a("v_and_b32 v7, 1, v1\nv_lshl_add_u32 v7, v7, 8, v18\nv_lshlrev_b32 v10, 2, v2\nv_add_u32 v10, 512, v10\nv_cmp_eq_u32 vcc, 2, v1\nv_cndmask_b32 v7, v7, v10, vcc")
    a(f"s_lshl_b32 s71, s48, 10\ns_lshl_b32 s54, s46, 7\ns_add_u32 s69, s71, s54\ns_add_u32 s70, s69, {STIN+384}\ns_max_u32 s69, s69, 128\ns_add_u32 s69, s69, {STIN-128}\ns_add_u32 s71, s71, {STIN+896}")
    a(f"s_lshl_b32 s58, s50, 9\ns_add_u32 s58, s58, s54\ns_add_u32 s58, s58, {STMID}")
    if CFG["CODEPF"] > 1 and which == "B":
        lab = a.label("CPM")
        a(f"s_getpc_b64 s[60:61]\n{lab}:\ns_sub_u32 s60, s60, {lab}-main_kernel\ns_subb_u32 s61, s61, 0")
        a(f"s_lshl_b32 s54, s53, 1\ns_add_u32 s54, s54, s19\ns_mul_i32 s54, s54, 1536\nv_min_u32 v10, 11, v0\nv_lshlrev_b32 v10, 7, v10\nv_add_u32 v10, s54, v10")
        a(f"v_min_u32 v10, MAIN_END-main_kernel-4, v10\nglobal_load_dword v11, v10, s[60:61]")
    a(f"{L}_loop:")
    body()
    a(f"s_cmp_eq_u32 s14, 1\ns_cbranch_scc1 FINL\ns_mov_b32 s14, 1\ns_add_u32 s47, s47, {ITS}\ns_add_u32 s12, s12, {ITS}\ns_add_u32 s52, s52, 32768")
    for j in range(5): a(f"s_add_u32 s{30+j}, s{30+j}, {ITS}")
    a(f"s_branch {L}_loop")

def weave(a, lg, ms, rd, va=(), rpm=1, vpm=0, vskip=0):
    rd = list(rd); va = list(va); i = j = 0; acc = 0.0
    for mi, (txt, nd) in enumerate(ms):
        lg.need(nd); a(txt)
        acc += rpm
        while acc >= 1 and i < len(rd): lg.op(*rd[i]); i += 1; acc -= 1
        for _ in range(vpm if mi >= vskip else 0):
            if j < len(va): lg.need(va[j][1]); a(va[j][0]); j += 1
    while i < len(rd): lg.op(*rd[i]); i += 1
    while j < len(va): lg.need(va[j][1]); a(va[j][0]); j += 1

def mainloop(a, lg, q, NBUF, reads, mf, hooks=None, last_hook=None, rpm=2, prebar=None, tailf=None, cv=None, roll=None):
    ph = PH[q]; nks = ph["nks"]; nst = ph["nst"]
    hooks = hooks or {}; prebar = prebar or {}
    for n in range(nst):
        if roll:
            n0, per, lab, inc = roll
            if n == n0: a(f"s_mov_b32 s37, {(nst - n0)//per}\n{lab}:"); st0 = [set(x) for x in lg.out]
            if n == n0 + per:
                assert st0 == lg.out and (nst - n0) % per == 0
                for k in "DW": assert all(ph["addr"+k][m] == ph["addr"+k][m-per] for m in range(n, nst))
                a(f"{inc}\ns_sub_u32 s37, s37, 1\ns_cmp_lg_u32 s37, 0\ns_cbranch_scc1 {lab}")
                break
        if not ph["lag"] or n == 0: lg.drain()
        if n in prebar: a(prebar[n])
        if n == 0: stamp(a, lg)
        if n == 0 and q == "1": a("s_cmp_eq_u32 s14, 0\ns_cbranch_scc1 P1_nof\ns_barrier\nP1_nof:")
        if n == 0 and q in ("2", "3a", "5"): a("s_barrier")
        if n < 30: stamp2(a, q)
        a("s_barrier")
        if n < 30: stamp2(a, q)
        if n == 0: stamp(a, lg)
        if n in hooks: hooks[n]()
        ts = [t for t in (2*n, 2*n+1) if t < nks]
        if NBUF == 2:
            for t in ts:
                weave(a, lg, mf(t-1, (t-1) % 2) if t >= 1 else [], reads(t, t % 2), rpm=rpm)
        elif cv:
            r0, r1 = reads(2*n, (2*n) % 4), reads(2*n+1, (2*n+1) % 4)
            rd = r0[:3] + r1[:3] + r0[3:] + r1[3:]
            if n == 0:
                weave(a, lg, [], rd, cv(0, 0))
            else:
                h = len(rd) // 2
                weave(a, lg, mf(2*n-2, (2*n-2) % 4), rd[:h], cv(2*n-1, (2*n-1) % 4), rpm=1, vpm=1)
                weave(a, lg, mf(2*n-1, (2*n-1) % 4), rd[h:], cv(2*n, (2*n) % 4), rpm=1, vpm=1)
        else:
            rd = sum([reads(t, t % 4) for t in ts], [])
            ms = sum([mf(t, t % 4) for t in (2*n-2, 2*n-1) if t >= 0], [])
            weave(a, lg, ms, rd, rpm=rpm)
    tail = [nks-1] if NBUF == 2 else [t for t in (2*nst-2, 2*nst-1) if t < nks]
    extra = last_hook() if last_hook else []
    if tailf: tailf()
    else: weave(a, lg, sum([mf(t, t % NBUF) for t in tail], []), extra, rpm=rpm)
    if q != "4": stamp2(a, q)
    a("s_barrier")
    if q != "4": stamp2(a, q)
    stamp(a, lg)
def poolloop(a, lg, q, regions, spare, frags, mfs, last, L, rpm):
    ph = PH[q]; nks = ph["nks"]; nst = ph["nst"]
    RD = [(t, nm, fn) for t in range(nks) for nm, fn in frags(t)]
    MS = [(t, fn, nms) for t in range(nks) for fn, nms in mfs(t)]
    lastuse = {}
    for i, (t, fn, nms) in enumerate(MS):
        for nm in nms: lastuse[(t, nm)] = i
    per = len(MS) // nst
    free = [list(regions[0]), list(regions[1]), list(spare)]
    home = {r: k for k in range(3) for r in free[k]}
    loc = {}; ri = [0]; last = list(last)
    def rd(tmax, force=False):
        if ri[0] >= len(RD) or RD[ri[0]][0] > tmax: return False
        t, nm, fn = RD[ri[0]]
        for k in (t & 1, 2) + ((1 - (t & 1),) if force else ()):
            if free[k]:
                r = free[k].pop(0); loc[(t, nm)] = r; lg.op(*fn(r)); ri[0] += 1; return True
        assert not force
        return False
    def rdlast():
        busy = {x for r in loc.values() for x in R(r, 4)}
        for k, (txt, regs) in enumerate(last):
            if not busy & set(regs): lg.op(txt, regs); last.pop(k); return True
        return False
    mi = 0
    for n in range(nst):
        lg.drain()
        if n == 0:
            stamp(a, lg)
            if q == "1": a("s_cmp_eq_u32 s14, 0\ns_cbranch_scc1 P1_nof\ns_barrier\nP1_nof:")
            elif q != "3b": a("s_barrier")
        stamp2(a, q); a("s_barrier"); stamp2(a, q)
        if n == 0: stamp(a, lg)
        tmax = 2*n + 1; acc_ = 0.0
        end = per*(n+1) - L if n < nst - 1 else len(MS)
        if n == 0:
            for _ in range(len(frags(0))): rd(0)
        while mi < end:
            t, fn, nms = MS[mi]
            while any((t, nm) not in loc for nm in nms): rd(tmax, True)
            lg.need([x for nm in nms for x in R(loc[(t, nm)], 4)])
            a(fn({nm: loc[(t, nm)] for nm in nms}))
            for nm in nms:
                if lastuse[(t, nm)] == mi: r = loc.pop((t, nm)); free[home[r]].append(r)
            mi += 1; acc_ = min(acc_ + rpm, 2*rpm)
            while acc_ >= 1 and (rd(tmax) or (ri[0] >= len(RD) and rdlast())): acc_ -= 1
        while rd(tmax, True): pass
    while rdlast(): pass
    assert not last
    stamp2(a, q); a("s_barrier"); stamp2(a, q)
    stamp(a, lg)
class Cap(Asm):
    def __call__(s, t): s.lines += [l.strip() for l in t.split("\n") if l.strip()]
def gbar(a, nxt, first=False):
    if not first: stamp(a)
    c = Cap(); nxt(c); L = c.lines
    ld = [i for i, l in enumerate(L) if l.startswith("buffer_load")]
    K = max(ld[-1] + 1, CFG["SUK"])
    while K < len(L) and L[K].startswith("s_cselect"): K += 1
    for l in L[:K]: a(l)
    if first: a("s_cmp_eq_u32 s14, 0\ns_cbranch_scc1 P1_nog")
    a(f"s_waitcnt vmcnt({len(ld)})")
    stamp(a)
    a("s_barrier")
    if first: a("P1_nog:")
    for l in L[K:]: a(l)
    a("s_waitcnt vmcnt(0)")

def xreduce(a, op, v, t):
    a(f"v_mov_b32 v{t}, v{v}\nv_permlane32_swap_b32 v{t}, v{v}\n{op} v{v}, v{v}, v{t}")
    a(f"v_mov_b32 v{t}, v{v}\nv_permlane16_swap_b32 v{t}, v{v}\n{op} v{v}, v{v}, v{t}")
def bc2(hi): return "op_sel:[0,1] op_sel_hi:[1,1]" if hi else "op_sel:[0,0] op_sel_hi:[1,0]"
def bc3(hi): return "op_sel:[0,1,0] op_sel_hi:[1,1,1]" if hi else "op_sel:[0,0,0] op_sel_hi:[1,0,1]"
def fix_T(a, acc, cs, st, tmp):
    for h in (0, 2): a(f"v_pk_mul_f32 {vr(tmp+h,2)}, {vr(cs+h,2)}, {vr(st,2)} {bc2(1)}")
    for h in (0, 2): a(f"v_pk_fma_f32 {vr(acc+h,2)}, {vr(acc+h,2)}, {vr(st,2)}, {vr(tmp+h,2)} {bc3(0)}")
def fix_N(a, acc, csreg, rs, nm, tmp):
    cp = csreg & ~1
    for h in (0, 2): a(f"v_pk_mul_f32 {vr(tmp+h,2)}, {vr(nm+h,2)}, {vr(cp,2)} {bc2(csreg & 1)}")
    for h in (0, 2): a(f"v_pk_fma_f32 {vr(acc+h,2)}, {vr(acc+h,2)}, {vr(rs+h,2)}, {vr(tmp+h,2)}")
def cvt2(a, d, acc, ty="bf16"):
    a(f"v_cvt_pk_{ty}_f32 v{d}, v{acc}, v{acc+1}\nv_cvt_pk_{ty}_f32 v{d+1}, v{acc+2}, v{acc+3}")
def rdD(q, t, dst, bD, addr, v8, lo):
    if t < SPLIT[q]: return rd128(dst, bD(addr))
    o = (addr - lo) // 512
    assert (addr - lo) % 512 == 0 and o + 1 < 256
    return (f"ds_read2st64_b64 {vr(dst,4)}, v{v8} offset0:{o} offset1:{o+1}", R(dst,4))
def rd128(dst, ba): return (f"ds_read_b128 {vr(dst,4)}, v{ba[0]} offset:{ba[1]}", R(dst,4))

P1C = dict(ACC=32, FB=104, X=208)
def setup1(a):
    q = "1"; ACC = P1C["ACC"]; X = P1C["X"]
    dlo, dhi = rng(q, "D"); wlo, whi = rng(q, "W")
    a(f"s_lshl_b32 s34, s49, 9\ns_add_u32 s34, s34, {CSQ}\ns_add_u32 s35, s34, 8192\nv_lshlrev_b32 v19, 3, v0")
    a(f"buffer_load_dwordx2 {vr(X,2)}, v19, s[4:7], s34 offen\nbuffer_load_dwordx2 {vr(X+2,2)}, v19, s[4:7], s35 offen")
    a(f"s_lshl_b32 s30, s13, 11\ns_add_u32 s30, s30, {KB}\nv_add_u32 v13, s30, v3")
    P1C["bD"] = mkbase(a, [4, 5], dlo, dhi, 13); P1C["bH"] = mkbase(a, [6, 7], dlo, dhi, 3); P1C["bW"] = mkbase(a, [8], wlo, whi, 3)
    a(f"v_add_u32 v252, {dlo}, v19\nv_add_u32 v11, s30, v252")
    a("s_min_u32 s31, s13, 2\ns_lshl_b32 s32, s31, 1\ns_add_u32 s32, s32, 1\ns_min_u32 s32, s32, 4\ns_add_u32 s33, s31, 5")
    a("s_lshl_b32 s34, s32, 10\nv_add_u32 v9, s34, v8\ns_lshl_b32 s34, s33, 10\nv_add_u32 v10, s34, v8")
    BI = X+26; BIa = X+34; ONES = X+38
    a("s_mov_b32 s40, 0xffff\ns_mov_b32 s41, 0\ns_mov_b32 s42, 0xffff0000\ns_mov_b32 s43, 0")
    a("v_lshlrev_b32 v16, 2, v1\nv_sub_u32 v16, v2, v16\nv_mov_b32 v17, 0xff800000")
    for kt in range(2):
        for r in range(4):
            a(f"v_add_u32 v18, {16 - 16*kt - r}, v16\nv_and_b32 v18, 0xfffffff1, v18\nv_cmp_eq_u32 vcc, 0, v18\nv_cndmask_b32 v{BI+4*kt+r}, v17, 0, vcc")
    a("s_add_u32 s34, s48, s13\ns_cmp_eq_u32 s34, 0\ns_cselect_b64 s[38:39], -1, 0")
    for r in range(4): a(f"v_cndmask_b32 v{BIa+r}, v{BI+r}, v17, s[38:39]\nv_mov_b32 v{ONES+r}, 0x3f803f80")
    c = (DH ** -0.5) * math.log2(math.e)
    a(f"s_mov_b32 s44, {hex(f2u(c))}\ns_mov_b32 s45, {hex(f2u(c))}")
    a(f"s_lshl_b32 s46, s49, 17\ns_lshl_b32 s47, s48, 13\ns_lshl_b32 s37, s13, 11\ns_add_u32 s47, s47, s37\ns_add_u32 s47, s47, s12\ns_add_u32 s47, s47, {OB}\ns_add_u32 s46, s46, s47")
    a(f"s_lshr_b32 s37, s49, 2\ns_add_u32 s37, s37, 16\ns_lshl_b32 s37, s37, 17\ns_add_u32 s47, s47, s37\ns_and_b32 s37, s49, 3\ns_lshl_b32 s37, s37, 8\ns_add_u32 s47, s47, s37")
    a("s_lshl_b32 s36, s13, 7\nv_lshlrev_b32 v18, 2, v2\nv_add_u32 v13, s36, v18\nv_lshlrev_b32 v23, 4, v1\nv_add_u32 v14, s36, v23")
    a("s_lshl_b32 s34, s32, 6\nv_add_u32 v15, s34, v23\ns_lshl_b32 s34, s33, 6\nv_add_u32 v12, s34, v18")
    a("s_lshl_b32 s34, s31, 9\nv_add_u32 v20, s34, v19\ns_mul_i32 s34, s13, 3072\nv_add_u32 v21, s34, v19\nv_or_b32 v22, 256, v21")
def cons1(a):
    q = "1"; lg = LG(a)
    ACC = P1C["ACC"]; FB = P1C["FB"]; X = P1C["X"]; bD, bH, bW = P1C["bD"], P1C["bH"], P1C["bW"]
    def acc(t, x): return ACC + 4*(2*t + x)
    accHT, accHV = ACC + 64, ACC + 68
    dlo, dhi = rng(q, "D")
    BI = X+26; BIa = X+34; ONES = X+38
    a(f"v_pk_add_f32 {vr(X,2)}, {vr(X,2)}, {vr(X+2,2)}")
    lg.op(f"ds_write_b64 v19, {vr(X,2)} offset:{CS0}")
    def frags(t):
        d0 = uaddr(q, "D", t, 0); w0 = uaddr(q, "W", t, 0)
        out = [("Ah", lambda r: rdD(q, t, r, bH, d0, 252, dlo)), ("BT", lambda r: rd128(r, (9, bW(w0)[1]))), ("BV", lambda r: rd128(r, (10, bW(w0)[1])))]
        As = [("A0", lambda r: rdD(q, t, r, bD, d0, 11, dlo)), ("A1", lambda r: rdD(q, t, r, bD, d0+KB, 11, dlo))]
        Bs = [(f"B{u}", lambda r, u=u: rd128(r, bW(w0+u*KB))) for u in range(8)]
        if t == 19: return out + As[1:] + Bs + As[:1]
        return out + [As[0], Bs[0], As[1]] + Bs[1:]
    def mfs(t):
        out = []; C0 = "0" if t == 0 else None
        for u in range(8):
            for x in range(2):
                A, B = f"A{x}", f"B{u}"
                out.append((lambda m, u=u, x=x, A=A, B=B: mfma(acc(u,x), m[B], m[A], C0) if u < 5 else mfma(acc(u,x), m[A], m[B], C0), (A, B)))
        h = [(lambda m: mfma(accHT, m["BT"], m["Ah"], C0), ("BT", "Ah")), (lambda m: mfma(accHV, m["Ah"], m["BV"], C0), ("Ah", "BV"))]
        if t == 19: return h + out[1::2] + out[0::2]
        return h + out
    E = FB
    stT = [E, E+2, E+4]; rsN = [E+8, E+12, E+16]; nmN = [E+20, E+24, E+28]
    csT = [E+32, E+36, E+40, E+44, E+48]; csHT = X
    csV = [X+4, X+5, X+6]; csHV = X+7
    def last_hook():
        out = []
        for x in (2, 1, 0):
            va, vb, o = (18, 23, 0) if x == 2 else (13, 14, 64+64*x)
            out.append((f"ds_read2_b32 {vr(stT[x],2)}, v{va} offset0:{o//4} offset1:{(NM0+o)//4}", R(stT[x],2)))
            out.append(rd128(rsN[x], (vb, o))); out.append(rd128(nmN[x], (vb, NM0+o)))
            if x == 2:
                out.append(rd128(csHT, (15, CS0))); out.append((f"ds_read_b32 v{csHV}, v12 offset:{CS0}", [csHV]))
            if x == 1:
                for t in range(5): out.append(rd128(csT[t], (23, CS0+64*t)))
                for t in range(3): out.append((f"ds_read_b32 v{csV[t]}, v18 offset:{CS0+64*(5+t)}", [csV[t]]))
        return out
    poolloop(a, lg, q, [[FB+52*b+4*k for k in range(13)] for b in range(2)], [X+8, X+12, X+16, X+20, 24, 28], frags, mfs, last_hook(), CFG["L1"], CFG["RPM1"]/4)
    lg.drain()
    G = FB + 52
    QF = {(0,0): G, (1,0): G+4, (0,1): G+8, (1,1): G+12}
    KF = {(0,0): G+16, (1,0): G+20, (0,1): G+24, (1,1): G+28, (0,'p'): G+32, (1,'p'): G+36}
    VF = [X+8, X+14, X+20]
    TMP = G+40; HT, HV = G+44, G+46; T4r = G+48; TM2 = 24
    def prep_kv(x):
        for k, t in enumerate((1, 3, 4)): fix_T(a, acc(t,x), csT[t], stT[x], (TMP, TM2)[k & 1])
        for t in range(3): fix_N(a, acc(5+t,x), csV[t], rsN[x], nmN[x], (TM2, TMP)[t & 1])
        cvt2(a, KF[(0,x)], acc(1,x)); cvt2(a, KF[(1,x)], acc(3,x)); cvt2(a, T4r + 2*x, acc(4,x))
        for t in range(3): cvt2(a, VF[t] + 2 + 2*x, acc(5+t,x))
    def prep_q(x):
        for k, t in enumerate((0, 2)): fix_T(a, acc(t,x), csT[t], stT[x], (TMP, TM2)[k & 1])
        T4 = T4r + 2*x
        for j in range(2):
            a(f"v_mov_b32 v{KF[(0,x)]+2+j}, v{T4+j}\nv_mov_b32 v{KF[(1,x)]+2+j}, v{T4+j}")
        cvt2(a, QF[(0,x)], acc(0,x)); cvt2(a, QF[(1,x)], acc(2,x))
        for j in range(2): a(f"v_permlane32_swap_b32 v{KF[(0,x)]+2+j}, v{KF[(1,x)]+2+j}")
        for j in range(2):
            a(f"v_cndmask_b32 v{QF[(0,x)]+2+j}, 0, v{T4+j}, s[40:41]\nv_cndmask_b32 v{QF[(1,x)]+2+j}, 0, v{T4+j}, s[42:43]")
        for j in range(2): a(f"v_mov_b32 v{KF[(0,x)]+2+j}, v{KF[(1,x)]+2+j}")
    fix_T(a, accHT, csHT, stT[2], TMP); fix_N(a, accHV, csHV, rsN[2], nmN[2], TM2)
    cvt2(a, HT, accHT); cvt2(a, HV, accHV)
    a(f"ds_write_b64 v20, {vr(HT,2)} offset:4096\nds_write_b64 v20, {vr(HV,2)} offset:{4096+1536}")
    prep_kv(1)
    for k, r in enumerate([KF[(0,1)], KF[(1,1)], T4r+2, VF[0]+4, VF[1]+4, VF[2]+4]):
        a(f"ds_write_b64 v21, {vr(r,2)} offset:{4096+3072+512*k}")
    prep_kv(0)
    a("s_waitcnt lgkmcnt(0)\ns_barrier")
    lg.op(f"ds_read_b64 {vr(KF[(0,'p')],2)}, v21 offset:4096", R(KF[(0,'p')],2))
    lg.op(f"ds_read_b64 {vr(KF[(1,'p')],2)}, v21 offset:{4096+512}", R(KF[(1,'p')],2))
    lg.op(f"ds_read_b64 {vr(KF[(0,'p')]+2,2)}, v22 offset:{4096+1024}", R(KF[(0,'p')]+2,2))
    lg.op(f"ds_read_b64 {vr(KF[(1,'p')]+2,2)}, v22 offset:{4096+1024}", R(KF[(1,'p')]+2,2))
    for t in range(3): lg.op(f"ds_read_b64 {vr(VF[t],2)}, v21 offset:{4096+1536+512*t}", R(VF[t],2))
    prep_q(1); prep_q(0)
    lg.drain()
    XS = (1, 0)
    Wb = {1: ACC, 0: ACC + 36}
    Sr = {(x,h): Wb[x] + 8*h for x in XS for h in range(2)}
    M = {(x,h): Wb[x] + 16 + 2*h for x in XS for h in range(2)}
    PF = {(x,h): Wb[x] + 20 + 4*h for x in XS for h in range(2)}
    XH = [(x,h) for x in XS for h in range(2)]
    for (x,h) in XH:
        pk = 'p' if x == 0 else 0
        a(mfma(Sr[x,h], KF[(h,pk)], QF[(h,x)], "0")); a(mfma(Sr[x,h]+4, KF[(h,x)], QF[(h,x)], "0"))
    for (x,h) in XH:
        bp = BIa if x == 0 else BI
        for j in range(4):
            b = (bp + 2*j) if j < 2 else (BI + 2*j)
            a(f"v_pk_fma_f32 {vr(Sr[x,h]+2*j,2)}, {vr(Sr[x,h]+2*j,2)}, s[44:45], {vr(b,2)}")
        s_, m = Sr[x,h], M[x,h]
        a(f"v_max3_f32 v{m}, v{s_}, v{s_+1}, v{s_+2}\nv_max3_f32 v{m+1}, v{s_+3}, v{s_+4}, v{s_+5}\nv_max3_f32 v{m}, v{m}, v{s_+6}, v{s_+7}\nv_max_f32 v{m}, v{m}, v{m+1}")
    for sw in ("v_permlane32_swap_b32", "v_permlane16_swap_b32"):
        for k in XH: a(f"v_mov_b32 v{M[k]+1}, v{M[k]}")
        for k in XH: a(f"{sw} v{M[k]+1}, v{M[k]}")
        for k in XH: a(f"v_max_f32 v{M[k]}, v{M[k]}, v{M[k]+1}")
    for x in XS:
        for h in range(2):
            k = (x,h)
            for j in range(4):
                a(f"v_pk_add_f32 {vr(Sr[k]+2*j,2)}, {vr(Sr[k]+2*j,2)}, {vr(M[k],2)} op_sel:[0,0] op_sel_hi:[1,0] neg_lo:[0,1] neg_hi:[0,1]")
            for j in range(8): a(f"v_exp_f32 v{Sr[k]+j}, v{Sr[k]+j}")
        for h in range(2):
            cvt2(a, PF[x,h], Sr[x,h]); cvt2(a, PF[x,h]+2, Sr[x,h]+4)
        vo = 2*x; W = Wb[x]
        L0, L1, O0, O1a, O1b, O2 = W+28, W+32, W, W+4, W+8, W+12
        a(mfma(L0, ONES, PF[x,0], "0")); a(mfma(L1, ONES, PF[x,1], "0"))
        a(mfma(O0, VF[0]+vo, PF[x,0], "0")); a(mfma(O1a, VF[1]+vo, PF[x,0], "0"))
        a(mfma(O1b, VF[1]+vo, PF[x,1], "0")); a(mfma(O2, VF[2]+vo, PF[x,1], "0"))
    for x in XS:
        W = Wb[x]
        L0, L1, O0, O1a, O1b, O2 = W+28, W+32, W, W+4, W+8, W+12
        a(f"v_rcp_f32 v{L0}, v{L0}\nv_rcp_f32 v{L1}, v{L1}")
        for j in range(4): a(f"v_cndmask_b32 v{O1a+j}, v{O1b+j}, v{O1a+j}, s[40:41]")
        a(f"v_cndmask_b32 v{L0+1}, v{L1}, v{L0}, s[40:41]")
        for j in (0, 2): a(f"v_pk_mul_f32 {vr(O0+j,2)}, {vr(O0+j,2)}, {vr(L0,2)} {bc2(0)}")
        for j in (0, 2): a(f"v_pk_mul_f32 {vr(O1a+j,2)}, {vr(O1a+j,2)}, {vr(L0,2)} {bc2(1)}")
        for j in (0, 2): a(f"v_pk_mul_f32 {vr(O2+j,2)}, {vr(O2+j,2)}, {vr(L1,2)} {bc2(0)}")
        cvt2(a, PF[x,0], O0); cvt2(a, PF[x,0]+2, O1a); cvt2(a, PF[x,1], O2)
        a(f"buffer_store_dwordx4 {vr(PF[x,0],4)}, v3, s[4:7], s46 offen offset:{x*KB} sc1")
        a(f"s_mov_b64 exec, 0xffffffff\nbuffer_store_dwordx2 {vr(PF[x,1],2)}, v19, s[4:7], s47 offen offset:{x*KB} sc1\ns_mov_b64 exec, -1")
    gbar(a, lambda c: setup25(c, "2"))

P25 = {}
def setup25(a, q):
    X = 160
    dlo, dhi = rng(q, "D"); wlo, whi = rng(q, "W")
    a("v_lshlrev_b32 v8, 3, v0")
    a("s_lshl_b32 s33, s50, 2\ns_add_u32 s33, s33, s13\ns_lshl_b32 s34, s33, 10")
    a("s_lshl_b32 s31, s51, 18\ns_add_u32 s31, s31, s34")
    a("s_lshr_b32 s32, s51, 1\ns_add_u32 s32, s32, 16\ns_lshl_b32 s32, s32, 17\ns_add_u32 s32, s32, s34\ns_and_b32 s35, s51, 1\ns_lshl_b32 s35, s35, 9\ns_add_u32 s32, s32, s35")
    src = XIN if q == "2" else XMID
    a(f"s_add_u32 s35, s12, {src}\ns_add_u32 s36, s35, s31\ns_add_u32 s37, s36, {128*KB}\ns_add_u32 s35, s35, s32")
    a(f"buffer_load_dwordx4 {vr(X,4)}, v3, s[4:7], s36 offen sc1\nbuffer_load_dwordx4 {vr(X+4,4)}, v3, s[4:7], s37 offen sc1\nbuffer_load_dwordx2 {vr(X+8,2)}, v8, s[4:7], s35 offen sc1")
    a("s_lshl_b32 s30, s13, 10\nv_add_u32 v13, s30, v3")
    P25[q] = (mkbase(a, [4], dlo, dhi, 13), mkbase(a, [6, 7], wlo, whi, 3))
    a(f"s_add_u32 s30, s30, {dlo}\nv_add_u32 v5, s30, v8")
    dst = XMID if q == "2" else ITS + XIN
    dstst = STMID if q == "2" else ITS + STIN
    a(f"s_add_u32 s35, s12, {dst}\ns_add_u32 s36, s35, s31\ns_add_u32 s37, s36, {128*KB}\ns_add_u32 s35, s35, s32")
    a(f"s_lshl_b32 s39, s51, 14\ns_lshl_b32 s40, s33, 7\ns_add_u32 s39, s39, s40\ns_add_u32 s39, s39, s12\ns_add_u32 s39, s39, {dstst}")
    a(f"v_mov_b32 v{X+12}, 0\nv_mov_b32 v{X+13}, 0\nv_mov_b32 v{X+14}, 0x3f803f80\nv_lshlrev_b32 v{X+17}, 3, v2\nv_mov_b32 v{X+18}, 0\nv_mov_b32 v{X+19}, 0")
    if q == "5":
        a(f"s_mul_i32 s41, s13, 2816\ns_add_u32 s41, s41, 4096\nv_mul_u32_u24 v{X+40}, 176, v2\nv_lshl_add_u32 v{X+40}, v1, 3, v{X+40}\nv_add_u32 v{X+40}, s41, v{X+40}")
        for j in range(3):
            c, row, cc, la, ga = X+41, X+42, X+43, X+20+j, X+24+j
            a(f"v_add_u32 v{c}, {64*j}, v0\nv_mul_u32_u24 v{row}, 205, v{c}\nv_lshrrev_b32 v{row}, 11, v{row}\nv_mul_u32_u24 v{cc}, 10, v{row}\nv_sub_u32 v{cc}, v{c}, v{cc}\nv_lshlrev_b32 v{cc}, 4, v{cc}")
            a(f"v_mul_u32_u24 v{la}, 176, v{row}\nv_add3_u32 v{la}, v{la}, v{cc}, s41\nv_mul_u32_u24 v{ga}, 1280, v{row}\nv_add_u32 v{ga}, v{ga}, v{cc}")
        a(f"s_mul_i32 s42, s33, {16*1280}\ns_mul_i32 s43, s51, 160\ns_add_u32 s42, s42, s43")
        a.srd(8, 24, 2048*640*2)
    a("s_mov_b32 s38, 0xffff0000")
def cons25(a, q):
    lg = LG(a)
    ACC = 32; FB = 64; X = 160
    dlo, dhi = rng(q, "D"); bD, bW = P25[q]
    for j in range(10):
        a(f"v_lshlrev_b32 v{ACC+2*j}, 16, v{X+j}\nv_and_b32 v{ACC+2*j+1}, s38, v{X+j}")
    def fb(buf, k): return FB + 24*buf + 4*k
    def reads(t, buf):
        return [rdD(q, t, fb(buf,0), bD, uaddr(q, "D", t, 0), 5, dlo)] + [rd128(fb(buf,1+u), bW(uaddr(q, "W", t, u))) for u in range(5)]
    def mf(t, buf):
        return [(mfma(ACC+4*u, fb(buf,1+u), fb(buf,0)), list(R(fb(buf,0),4)) + list(R(fb(buf,1+u),4))) for u in range(5)]
    mainloop(a, lg, q, 4, reads, mf, rpm=1.25)
    for u in range(5): cvt2(a, X+2*u, ACC+4*u)
    if q == "5":
        a("s_cmp_eq_u32 s14, 1\ns_cbranch_scc1 P5_final")
    a(f"buffer_store_dwordx4 {vr(X,4)}, v3, s[4:7], s36 offen sc1\nbuffer_store_dwordx4 {vr(X+4,4)}, v3, s[4:7], s37 offen sc1\nbuffer_store_dwordx2 {vr(X+8,2)}, v8, s[4:7], s35 offen sc1")
    for j in range(0, 10, 2):
        a(f"v_dot2_f32_bf16 v{X+12}, v{X+j}, v{X+14}, v{X+12}\nv_dot2_f32_bf16 v{X+13}, v{X+j}, v{X+j}, v{X+13}")
        a(f"v_dot2_f32_bf16 v{X+18}, v{X+j+1}, v{X+14}, v{X+18}\nv_dot2_f32_bf16 v{X+19}, v{X+j+1}, v{X+j+1}, v{X+19}")
    a(f"v_pk_add_f32 {vr(X+12,2)}, {vr(X+12,2)}, {vr(X+18,2)}")
    for sw in ("v_permlane32_swap_b32", "v_permlane16_swap_b32"):
        a(f"v_mov_b32 v{X+18}, v{X+12}\nv_mov_b32 v{X+19}, v{X+13}\n{sw} v{X+18}, v{X+12}\n{sw} v{X+19}, v{X+13}\nv_pk_add_f32 {vr(X+12,2)}, {vr(X+12,2)}, {vr(X+18,2)}")
    a(f"s_mov_b64 exec, 0xffff\nbuffer_store_dwordx2 {vr(X+12,2)}, v{X+17}, s[4:7], s39 offen sc1\ns_mov_b64 exec, -1")
    if q == "2": gbar(a, setup3)
    if q == "5":
        a(f"s_mov_b32 s14, 1\ns_add_u32 s12, s12, {ITS}")
        stamp(a)
        a("s_branch C_loop")
        a("P5_final:")
        a.fence(2)
        for u in range(5): a(f"ds_write_b64 v{X+40}, {vr(X+2*u,2)} offset:{32*u}")
        a("s_waitcnt lgkmcnt(0)")
        for j in range(3): a(f"ds_read_b128 {vr(X+28+4*j,4)}, v{X+20+j}")
        for j in range(3):
            a(f"s_waitcnt lgkmcnt({2-j})")
            if j == 2: a("s_mov_b64 exec, 0xffffffff")
            a(f"buffer_store_dwordx4 {vr(X+28+4*j,4)}, v{X+24+j}, s[8:11], s42 offen")
        a("s_mov_b64 exec, -1")
        stamp(a)
        a("s_barrier\ns_barrier\ns_branch FIN")

GC1 = -2.0 * math.sqrt(2.0/math.pi) * math.log2(math.e)
GC2 = GC1 * 0.044715
def gelu(a, xs, ts):
    P = list(zip(xs, ts))
    for x, t in P:
        for h in (0, 2): a(f"v_pk_mul_f32 {vr(t+h,2)}, {vr(x+h,2)}, {vr(x+h,2)}")
    for x, t in P:
        for h in (0, 2): a(f"v_pk_fma_f32 {vr(t+h,2)}, {vr(t+h,2)}, s[44:45], v[14:15]")
    for x, t in P:
        for h in (0, 2): a(f"v_pk_mul_f32 {vr(t+h,2)}, {vr(t+h,2)}, {vr(x+h,2)}")
    for x, t in P:
        for j in range(4): a(f"v_exp_f32 v{t+j}, v{t+j}")
    for x, t in P:
        for h in (0, 2): a(f"v_pk_add_f32 {vr(t+h,2)}, {vr(t+h,2)}, 1.0 op_sel_hi:[1,0]")
    for x, t in P:
        for j in range(4): a(f"v_rcp_f32 v{t+j}, v{t+j}")
    for x, t in P:
        for h in (0, 2): a(f"v_pk_mul_f32 {vr(x+h,2)}, {vr(x+h,2)}, {vr(t+h,2)}")
ZR = 32
P3C = {}
def setup3(a):
    q = "3a"; X = 192; SM = 32
    dlo, dhi = rng(q, "D"); wlo, whi = rng(q, "W")
    a(f"s_lshl_b32 s34, s51, 9\ns_add_u32 s34, s34, {CSI}\ns_add_u32 s35, s34, 8192\nv_lshlrev_b32 v22, 3, v0")
    a("s_and_b32 s38, s51, 3\ns_cmp_eq_u32 s38, 3\ns_cselect_b32 s38, 47, 55\ns_lshl_b32 s38, s38, 3\nv_min_u32 v7, s38, v22")
    a(f"buffer_load_dwordx2 {vr(X,2)}, v7, s[4:7], s34 offen\nbuffer_load_dwordx2 {vr(X+2,2)}, v7, s[4:7], s35 offen")
    a(f"s_add_u32 s34, s34, 4096\ns_add_u32 s35, s35, 4096\nbuffer_load_dwordx2 {vr(X+4,2)}, v7, s[4:7], s34 offen\nbuffer_load_dwordx2 {vr(X+6,2)}, v7, s[4:7], s35 offen")
    a("s_and_b32 s31, s13, 1\ns_lshr_b32 s32, s13, 1")
    setup4(a)
    a("s_lshl_b32 s30, s31, 11\nv_add_u32 v13, s30, v3")
    P3C["bD"] = mkbase(a, [4, 5], dlo, dhi, 13)
    a(f"s_add_u32 s30, s30, {dlo}\nv_add_u32 v252, s30, v22")
    a("s_lshl_b32 s30, s32, 12\nv_add_u32 v13, s30, v3")
    P3C["bW"] = mkbase(a, [6], wlo, whi, 13)
    for r in range(16): a(f"v_mov_b32 v{SM+r}, 0")
    a(f"s_mov_b32 s44, {hex(f2u(GC2))}\ns_mov_b32 s45, {hex(f2u(GC2))}\nv_mov_b32 v14, {hex(f2u(GC1))}\nv_mov_b32 v15, {hex(f2u(GC1))}")
    a("s_lshl_b32 s34, s32, 8\ns_lshl_b32 s35, s31, 7\nv_lshlrev_b32 v10, 2, v2\nv_add_u32 v8, s34, v10\nv_add_u32 v10, s35, v10")
    a("v_lshlrev_b32 v12, 4, v1\nv_add_u32 v9, s35, v12\nv_add_u32 v12, s34, v12")
    a("s_and_b32 s38, s51, 3\ns_cmp_eq_u32 s38, 3\ns_cselect_b32 s38, 2, 3\ns_cmp_eq_u32 s32, 0\ns_cselect_b32 s38, 4, s38")
    a(f"s_lshl_b32 s36, s33, 8\ns_mul_i32 s39, s33, {56*KB}\ns_mul_i32 s34, s51, {7*KB}\ns_add_u32 s39, s39, s34\ns_lshl_b32 s34, s32, 12\ns_add_u32 s39, s39, s34\ns_add_u32 s39, s39, s12\ns_add_u32 s39, s39, {Z2}")
    a(f"s_add_u32 s36, s36, s12\ns_add_u32 s36, s36, {ZS}")
    a("s_mov_b32 s40, 0xaaaaaaaa\ns_mov_b32 s41, 0xaaaaaaaa\ns_mov_b32 s42, 0xcccccccc\ns_mov_b32 s43, 0xcccccccc")
    a("v_and_b32 v11, 3, v2\nv_lshl_add_u32 v11, v1, 2, v11\nv_bfe_u32 v13, v2, 2, 1\nv_lshl_add_u32 v11, v13, 4, v11\nv_lshlrev_b32 v11, 3, v11\nv_lshrrev_b32 v13, 3, v2\nv_lshl_add_u32 v11, v13, 2, v11")
def cons3(a):
    q = "3a"; lg = LG(a)
    ACC = 64; FB = 96; X = 192; SM = 32
    def acc(t, x): return ACC + 4*(2*t + x)
    dlo, dhi = rng(q, "D"); wlo, whi = rng(q, "W"); bD, bW = P3C["bD"], P3C["bW"]
    a(f"v_pk_add_f32 {vr(X,2)}, {vr(X,2)}, {vr(X+2,2)}\nv_pk_add_f32 {vr(X+4,2)}, {vr(X+4,2)}, {vr(X+6,2)}")
    lg.op(f"ds_write_b64 v22, {vr(X,2)} offset:{CS0}"); lg.op(f"ds_write_b64 v22, {vr(X+4,2)} offset:{CS1}")
    a(f"v_lshlrev_b32 v{P4R['BI']}, 16, v{P4R['BI']}\nv_lshlrev_b32 v{P4R['BI']+1}, 16, v{P4R['BI']+1}")
    def fb(buf, k): return FB + 24*buf + 4*k
    def reads(t, buf):
        d0 = uaddr(q, "D", t, 0); w0 = uaddr(q, "W", t, 0)
        return [rdD(q, t, fb(buf,0), bD, d0, 252, dlo), rd128(fb(buf,2), bW(w0)), rdD(q, t, fb(buf,1), bD, d0+KB, 252, dlo)] + [rd128(fb(buf,2+u), bW(w0+u*KB)) for u in range(1, 4)]
    def mf(t, buf):
        return [(mfma(acc(u,x), fb(buf,x), fb(buf,2+u), "0" if t == 0 else None), list(R(fb(buf,x),4)) + list(R(fb(buf,2+u),4))) for u in range(4) for x in range(2)]
    rsN = [X, X+4]; nmN = [X+8, X+12]; csV = [X+16+t for t in range(4)]
    def last_hook():
        out = []
        for x in range(2): out += [rd128(rsN[x], (9, 64*x)), rd128(nmN[x], (9, NM0+64*x))]
        return out + [(f"ds_read_b32 v{csV[t]}, v8 offset:{CS1+64*t}", [csV[t]]) for t in range(4)]
    mainloop(a, lg, q, 4, reads, mf, last_hook=last_hook, rpm=CFG["RPM3"]/4)
    lg.drain()
    TMP = X+40; PK = X+24
    for u in range(4):
        if u >= 2: a(f"s_cmp_eq_u32 s38, {u}\ns_cbranch_scc1 P3_red")
        for x in range(2): fix_N(a, acc(u,x), csV[u], rsN[x], nmN[x], TMP+4*x)
        gelu(a, [acc(u,0), acc(u,1)], [TMP, TMP+4])
        for x in range(2): cvt2(a, PK + 4*u + 2*x, acc(u,x), "f16")
        a(f"buffer_store_dwordx4 {vr(PK+4*u,4)}, v3, s[4:7], s39 offen offset:{u*KB} sc1")
        for x in range(2):
            for h in (0, 2):
                a(f"v_pk_add_f32 {vr(SM+4*x+h,2)}, {vr(SM+4*x+h,2)}, {vr(acc(u,x)+h,2)}")
                a(f"v_pk_fma_f32 {vr(SM+8+4*x+h,2)}, {vr(acc(u,x)+h,2)}, {vr(acc(u,x)+h,2)}, {vr(SM+8+4*x+h,2)}")
    a("P3_red:"); a.fence(2)
    RA = ACC
    for j in range(8):
        a(f"v_add_f32_dpp v{RA+j}, v{SM+j}, v{SM+j} row_ror:8 row_mask:0xf bank_mask:0x3")
    for j in range(8):
        a(f"v_add_f32_dpp v{RA+j}, v{SM+8+j}, v{SM+8+j} row_ror:8 row_mask:0xf bank_mask:0xc")
    for j in range(4): a(f"v_add_f32_dpp v{RA+8+j}, v{RA+j}, v{RA+j} row_half_mirror row_mask:0xf bank_mask:0x5")
    for j in range(4): a(f"v_add_f32_dpp v{RA+8+j}, v{RA+4+j}, v{RA+4+j} row_half_mirror row_mask:0xf bank_mask:0xa")
    for j in range(4): a(f"v_add_f32_dpp v{RA+8+j}, v{RA+8+j}, v{RA+8+j} quad_perm:[1,0,3,2] row_mask:0xf bank_mask:0xf")
    for j in range(4): a(f"v_add_f32_dpp v{RA+8+j}, v{RA+8+j}, v{RA+8+j} quad_perm:[2,3,0,1] row_mask:0xf bank_mask:0xf")
    a(f"v_cndmask_b32 v{RA}, v{RA+8}, v{RA+9}, s[40:41]\nv_cndmask_b32 v{RA+1}, v{RA+10}, v{RA+11}, s[40:41]\nv_cndmask_b32 v{RA}, v{RA}, v{RA+1}, s[42:43]")
    a(f"buffer_atomic_add_f32 v{RA}, v11, s[4:7], s36 offen")
    q = "3b"; lg = LG(a)
    assert rng(q, "W") == (wlo, whi)
    def mf(t, buf):
        return [(mfma(acc(u,x), fb(buf,2+u), fb(buf,x), "0" if t == 0 else None), list(R(fb(buf,x),4)) + list(R(fb(buf,2+u),4))) for u in range(4) for x in range(2)]
    stT = [X, X+2]; csT = [X+4+4*t for t in range(4)]
    def last_hook():
        return [(f"ds_read2_b32 {vr(stT[x],2)}, v10 offset0:{16*x} offset1:{NM0//4+16*x}", R(stT[x],2)) for x in range(2)] + [rd128(csT[t], (12, CS0+64*t)) for t in range(4)]
    mainloop(a, lg, q, 4, reads, mf, last_hook=last_hook, rpm=CFG["RPM3"]/4, prebar={CFG["SIG3"]: "s_waitcnt vmcnt(0)"})
    lg.drain()
    TMP = X+40
    for x in range(2):
        for u in range(2): fix_T(a, acc(u,x), csT[u], stT[x], TMP+4*(2*x+u))
    gelu(a, [acc(u,x) for x in range(2) for u in range(2)], [TMP+4*k for k in range(4)])
    for u in range(2):
        for x in range(2): cvt2(a, ZR+2*(2*u+x), acc(u,x))
    for u in (2, 3):
        a(f"s_cmp_eq_u32 s38, {u}\ns_cbranch_scc1 P3b_done1")
        for x in range(2): fix_T(a, acc(u,x), csT[u], stT[x], TMP+4*x)
        gelu(a, [acc(u,0), acc(u,1)], [TMP, TMP+4])
        for x in range(2): cvt2(a, ZR+2*(2*u+x), acc(u,x))
    cons4(a, 0)
    a("s_branch P4_done")
    a("P3b_done1:"); a.fence(2)
    cons4(a, 1)
    a("P4_done:"); a.fence(2)
    gbar(a, lambda c: setup25(c, "5"))

P4R = dict(bD=[16, 17], W=[18, 19], MU=20, EX=21, L8=22, BI=24)
def setup4(a):
    q = "4"; r = P4R
    dlo, dhi = rng(q, "D"); wlo, whi = rng(q, "W")
    P4R["f"] = mkbase(a, r["bD"], dlo, dhi, 3)
    w0, rs = r["W"]; mu = r["MU"]
    a(f"s_lshl_b32 s34, s31, 11\ns_add_u32 s34, s34, {wlo}\nv_add_u32 v{w0}, s34, v3\nv_lshlrev_b32 v{rs}, 4, v1")
    a(f"v_and_b32 v{mu}, 1, v2\nv_lshlrev_b32 v{mu}, 6, v{mu}\nv_lshl_add_u32 v{mu}, v1, 4, v{mu}")
    a(f"s_lshl_b32 s34, s31, 9\nv_add_u32 v{r['EX']}, s34, v{r['L8']}")
    a(f"s_lshl_b32 s33, s50, 1\ns_add_u32 s33, s33, s31\nv_lshlrev_b32 v{r['BI']}, 1, v2")
    a(f"s_lshl_b32 s34, s33, 6\ns_add_u32 s34, s34, {BSP}\nbuffer_load_ushort v{r['BI']+1}, v{r['BI']}, s[4:7], s34 offen offset:32\nbuffer_load_ushort v{r['BI']}, v{r['BI']}, s[4:7], s34 offen")
    a(f"s_lshl_b32 s46, s33, 11\ns_add_u32 s46, s46, s12\ns_add_u32 s46, s46, {UB}\ns_mul_i32 s47, s51, 3\ns_lshl_b32 s34, s32, 1\ns_add_u32 s47, s47, s34\ns_lshl_b32 s47, s47, 17\ns_add_u32 s47, s47, s46")
    a(f"s_lshr_b32 s34, s51, 2\ns_sub_u32 s34, s51, s34\ns_lshr_b32 s56, s34, 1\ns_add_u32 s56, s56, 24\ns_lshl_b32 s56, s56, 17\ns_add_u32 s46, s46, s56\ns_and_b32 s34, s34, 1\ns_lshl_b32 s34, s34, 9\ns_add_u32 s46, s46, s34")
    a(f"s_add_u32 s56, s47, {128*KB}\ns_mov_b32 s57, 0xffff0000\ns_mov_b32 s58, {hex(f2u(1.0/WSCALE))}\ns_mov_b32 s59, {hex(f2u(1.0/WSCALE))}")
def cons4(a, ch):
    q = "4"; lg = LG(a); r = P4R
    ACC = 64; FB = 96; X = 208
    wlo = rng(q, "W")[0]; bD = r["f"]
    def acc(t, x): return ACC + 4*(2*t + x)
    def fb(buf, k): return FB + 28*buf + 4*k
    def reads(t, buf):
        w = [rd128(fb(buf,x), (r["W"][0], uaddr(q, "W", t, x) - wlo)) for x in range(2)]
        z = [rd128(fb(buf,2+u), bD(uaddr(q, "D", t, 4*ch+u))) for u in range(4-ch)]
        if ch: z.append(rd128(fb(buf,5), (r["MU"], MU0 + t*128)))
        return [rd128(fb(buf,6), (r["W"][1], RS0 + t*64))] + w + z
    def cv(t, buf):
        rs = fb(buf,6)
        return [(f"v_pk_mul_f16 v{fb(buf,x)+j}, v{fb(buf,x)+j}, v{rs+j}", [fb(buf,x)+j, rs+j]) for x in range(2) for j in range(4)]
    def mf(t, buf):
        return [(mfma(acc(u,x), fb(buf,2+u), fb(buf,x), "0" if t == 0 else None, ty="f16"), list(R(fb(buf,2+u),4))) for x in range(2) for u in range(4)]
    B = r["BI"]
    def tail():
        m0, m1 = mf(62, 2), mf(63, 3)
        weave(a, lg, m0, [], cv(63, 3), vpm=2)
        if not ch: weave(a, lg, m1, []); return
        weave(a, lg, [m1[3], m1[7]] + m1[:3], [])
        for x in range(2): a(f"v_add_f32 v{X+x}, v{acc(3,x)}, v{acc(3,x)+1}")
        for x in range(2): a(f"v_fma_f32 v{B+x}, -v{X+x}, s58, v{B+x}")
        lg.op(f"ds_write_b64 v{r['EX']}, {vr(B,2)} offset:{EX0}")
        weave(a, lg, m1[4:7], [])
        lg.drain()
    inc = f"v_add_u32 v{r['W'][1]}, {12*64}, v{r['W'][1]}" + (f"\nv_add_u32 v{r['MU']}, {12*128}, v{r['MU']}" if ch else "")
    mainloop(a, lg, q, 4, reads, mf, cv=cv, tailf=tail, roll=(2, 6, f"P4_loop{ch}", inc) if CFG["ROLL"] else None)
    if not ch: lg.op(f"ds_read_b64 {vr(B,2)}, v{r['EX']} offset:{EX0}", R(B,2))
    PK = FB; T2 = FB + 16
    for u0 in (0, 2):
        us = (u0, u0+1) if not (ch and u0) else (2,)
        if ch and u0: a("s_cmp_eq_u32 s38, 2\ns_cbranch_scc1 P4_done")
        for u in us:
            for x in range(2):
                for h in range(2):
                    z = ZR + 2*(2*u+x) + h; t = T2 + 4*(2*u+x) + 2*h
                    a(f"v_lshlrev_b32 v{t}, 16, v{z}\nv_and_b32 v{t+1}, s57, v{z}")
        lg.drain()
        for x in range(2):
            for u in us:
                for h in (0, 2): a(f"v_pk_fma_f32 {vr(acc(u,x)+h,2)}, {vr(acc(u,x)+h,2)}, s[58:59], {vr(B,2)} op_sel:[0,0,{x}] op_sel_hi:[1,1,{x}]")
            for u in us:
                for h in (0, 2): a(f"v_pk_mul_f32 {vr(acc(u,x)+h,2)}, {vr(acc(u,x)+h,2)}, {vr(T2+4*(2*u+x)+h,2)}")
            pk = PK + 4*(u0 + x)
            for u in us: cvt2(a, pk + 2*(u & 1), acc(u,x))
            if len(us) == 2: a(f"buffer_store_dwordx4 {vr(pk,4)}, v3, s[4:7], s{56 if u0 else 47} offen offset:{x*KB} sc1")
            else: a(f"buffer_store_dwordx2 {vr(pk,2)}, v{r['L8']}, s[4:7], s46 offen offset:{x*KB} sc1")

def code_prefetch(a, va, vd):
    if not CFG["CODEPF"]: return
    lab = a.label("CPF")
    a(f"s_getpc_b64 s[56:57]\n{lab}:\ns_add_u32 s56, s56, main_kernel-{lab}\ns_addc_u32 s57, s57, 0")
    a(f"s_lshr_b32 s58, s2, 3\ns_lshl_b32 s58, s58, 2\ns_add_u32 s58, s58, s13\ns_mul_i32 s58, s58, 1024\nv_and_b32 v{va}, 7, v0\nv_lshlrev_b32 v{va}, 7, v{va}\nv_add_u32 v{va}, s58, v{va}")
    a(f"v_min_u32 v{va}, MAIN_END-main_kernel-4, v{va}\nglobal_load_dword v{vd}, v{va}, s[56:57]")

def build():
    plan()
    a = Asm()
    a.launch("k0_kernel", (NJOBS,1,1), (256,1,1), lds=40960)
    a.launch("main_kernel", (256,1,1), (512,1,1), lds=LDS_TOTAL)
    emit_k0(a, code_prefetch=code_prefetch)
    a.begin_kernel("main_kernel")
    a("s_cmp_ge_u32 s2, 256\ns_cbranch_scc1 END")
    a("s_load_dwordx4 s[20:23], s[0:1], 40\ns_load_dwordx2 s[24:25], s[0:1], 64\ns_load_dwordx2 s[26:27], s[0:1], 80")
    a("v_lshrrev_b32 v1, 6, v0\nv_and_b32 v0, 63, v0\nv_readfirstlane_b32 s13, v1")
    a("v_lshrrev_b32 v1, 4, v0\nv_and_b32 v2, 15, v0\nv_lshlrev_b32 v3, 4, v0")
    a(f"s_mov_b32 s12, {IT0}\ns_mov_b32 s14, 0\ns_mov_b32 s52, {CNT}\ns_mov_b32 s62, 0")
    a("s_and_b32 s15, s2, 7\ns_lshr_b32 s53, s2, 3\ns_lshr_b32 s16, s15, 1\ns_and_b32 s17, s15, 1")
    a("s_lshl_b32 s48, s16, 2\ns_lshr_b32 s18, s53, 3\ns_add_u32 s48, s48, s18\ns_lshl_b32 s49, s17, 3\ns_and_b32 s18, s53, 7\ns_add_u32 s49, s49, s18")
    a("s_lshl_b32 s50, s16, 3\ns_lshr_b32 s18, s53, 2\ns_add_u32 s50, s50, s18\ns_lshl_b32 s51, s17, 2\ns_and_b32 s18, s53, 3\ns_add_u32 s51, s51, s18")
    a("s_waitcnt lgkmcnt(0)")
    a.srd(4, 26, 0x10000000)
    if CFG["PROF"]: a("s_memrealtime s[60:61]\ns_waitcnt lgkmcnt(0)\nv_writelane_b32 v250, s60, 62")
    stamp(a, force=True)
    a("s_cmp_ge_u32 s13, 6\ns_cbranch_scc1 LDB\ns_cmp_ge_u32 s13, 4\ns_cbranch_scc1 LDA")
    a("C_loop:"); a.fence(2)
    gbar(a, setup1, True)
    cons1(a); cons25(a, "2"); cons3(a); cons25(a, "5")
    a.hist = []; loader(a, "A"); a.hist = []; loader(a, "B")
    a("FINL:")
    if CFG["PROF"]: a("v_mov_b32 v250, v8")
    a("FIN:"); a.fence(4)
    a("s_waitcnt vmcnt(0)")
    if CFG["PROF"]:
        stamp(a)
        a("s_memrealtime s[60:61]\ns_waitcnt lgkmcnt(0)\nv_writelane_b32 v250, s60, 63")
        a(f"s_lshl_b32 s60, s2, 3\ns_add_u32 s60, s60, s13\ns_lshl_b32 s60, s60, 8\ns_add_u32 s60, s60, {PROFB}")
        a("v_lshlrev_b32 v251, 2, v0\nbuffer_store_dword v250, v251, s[4:7], s60 offen")
    a("END:\ns_endpgm\nMAIN_END:")
    a.end_kernel("main_kernel", 256, sgpr=72)
    return a

if __name__ == "__main__":
    out = sys.argv[1] if len(sys.argv) > 1 else "mega.s"
    for kv in sys.argv[2:]:
        k, v = kv.split("="); CFG[k] = int(v)
    a = build()
    open(out, "w").write(a.text())
    print("lines", len(a.lines), "nops", a.nops_added, "bars", len(BARS))
    if CFG.get("SHOW"):
        for k in "DW":
            for x in ALLOC[k]: print(k, x["q"], x["n"], x["addr"]//KB, "after", bname(x["after"]), "rel", bname(x["rel"]))
```

```python
import sys, math, struct
from asmlib import *
from layout import *
from k0 import emit_k0, NJOBS

LDS_TOTAL = 163840
CFG = dict(TSP=2, DEF=0, DZP=2, G4=10, TBL=0, PD=3, PS=2, P04=4, WS2=4, WS3=1, CP=4, PG=6, LT=6, ROLL=1, RT=0, WG=2, FLAG=0, L1=27, RPM1=4, RPM3=4, SUK=40, STL=5, PQ=1, PIT=1, ST=0, HOLD=1, ILV=0, PRIO=0, XA=0, XB=0, XC=0, XD=0, RPM4=4, NOWSP=0, PROF=0, TOUCH=0, ROT=1, POLL4=2, SLEEP=1, WSPL=9, SIG3=2, PKMUL=1, CODEPF=1, DSC1=1, PER=2, P0=4, P0S=7, DT=0)
PROFB = 200*1024*1024
def f2u(x): return struct.unpack("<I", struct.pack("<f", x))[0]

PH = {
    "1":  dict(nks=20, nD=9, nW=8, lag=0, D=(20, 4), W=(96, 4)),
    "2":  dict(nks=20, nD=4, nW=5, lag=1, D=(20, 7), W=(80, 8)),
    "3a": dict(nks=20, nD=4, nW=7, lag=0, D=(20, 10), W=(104, 4)),
    "3b": dict(nks=20, nD=0, nW=7, lag=0, D=None, W=(104, 4)),
    "4":  dict(nks=64, nD=7, nW=4, lag=1, D=(20, 6), W=(112, 6)),
    "5":  dict(nks=27, nD=4, nW=5, lag=1, D=(20, 7), W=(80, 8)),
}
ORDER = ["1", "2", "3a", "3b", "4", "5"]
RS0, MU0 = 4096, 8192
NM0, CS0, CS1, EX0 = 768, 1536, 2048, 3072
NROT = {'1': 8, '2': 8, '3a': 8, '3b': 8, '4': 32, '5': 12}
SPLIT = {'1': 16, '2': 16, '3a': 16, '3b': 16, '4': 99, '5': 24}
LSCHED = [(("1",7),2), (("1",8),2), (("1",9),2), (("1",10),10), (("1","X"),10)]
CSCHED = [(("1","G"),6), (("2",10),6), (("2","G"),6)] + [(("3a",n),1) for n in range(1,9)]
CA, CB, CC, CD, CE = 0, 16, 48, 80, 112

def _b(x): return x if isinstance(x, tuple) else ("1", x)
WSS = {
  1: ({1: [0,1], 2: [2,3], 3: [4,5], 4: [6,7]}, {6: [0,1], 7: [2,3], 9: [4,5], 10: [6,7]}),
  2: ({2: [0,1], 5: [2,3], 10: [4,5], "G": [6,7]}, {6: [0,1], 9: [2,3], "G": [4,5], ("2",8): [6,7]}),
  3: ({1: [0,1,2,3], 10: [4,5,6,7]}, {6: [0,1], 7: [2,3], "G": [4,5,6,7]}),
  4: ({0: [0,1,2,3,4,5,6,7]}, {6: [0,1], 7: [2,3], 9: [4,5], 10: [6,7]}),
  5: ({1: [0,1], 3: [2,3], 9: [4,5], ("2",9): [6,7]}, {6: [0,1], 7: [2,3], "G": [4,5], ("3a",2): [6], ("3a",3): [7]}),
  6: ({3: [0,1,2,3], 9: [4,5,6,7]}, {7: [0,1], 9: [2,3], "G": [4,5,6,7]}),
  8: ({-1: [0,1,2,3,4,5,6,7]}, {6: [0,1], 7: [2,3], 9: [4,5], 10: [6,7]}),
  9: ({-1: [0,1,2,3,4,5,6,7]}, {4: [0,1], 6: [2,3], 7: [4,5], 9: [6,7]}),
  10: ({-1: [0,1,2,3,4,5,6,7]}, {9: [0,1,2,3], 10: [4,5,6,7]}),
  7: ({6: [0,1,2,3], 7: [4,5,6,7]}, {10: [0,1,2,3], "X": [4,5,6,7]}),
}
OVR = {("4","W",0): 104*KB}
BARS = []; BIDX = {}
ALLOC = {"D": [], "W": []}
def plan():
    BARS.clear(); BIDX.clear(); ALLOC["D"].clear(); ALLOC["W"].clear()
    for q in ORDER:
        ph = PH[q]; ph["nst"] = (ph["nks"] + 1) // 2
        for n in range(ph["nst"] + 1): BARS.append((q, n))
        if q == "1": BARS.append((q, "X"))
        if q in ("1", "2", "4", "5"): BARS.append((q, "G")); BARS.append((q, "F"))
    for i, b in enumerate(BARS): BIDX[b] = i
    NB = len(BARS)
    gate = {"1": -1, "2": BIDX[("1","F")], "3a": BIDX[("2","F")], "4": BIDX[("3b", CFG["G4"])], "5": BIDX[("4","F")]}
    def rel(q, n, kind):
        if q == "3a" and kind == "D": q = "3b"
        return BIDX[(q, min(n + 1 + PH[q]["lag"], PH[q]["nst"]))]
    rot = {(q, k): 0 for q in ORDER for k in "DW"}
    def build():
        al = {"D": [], "W": []}
        for q in ORDER:
            ph = PH[q]
            for k in "DW":
                if ph[k] is None: continue
                base, ns = ph[k]; sz = 2*ph["n"+k]*KB
                for n in range(ph["nst"]):
                    al[k].append(dict(q=q, n=n, k=k, addr=OVR.get((q,k,n), base*KB + sz*((n + rot[(q,k)]) % ns)), size=sz, use=BIDX[(q,n)], rel=rel(q,n,k)))
        allv = al["D"] + al["W"]
        for k in "DW":
            prev = -NB; used = {}
            for x in al[k]:
                e = -NB
                for y in allv:
                    if y is x or not (y["addr"] < x["addr"] + x["size"] and x["addr"] < y["addr"] + y["size"]):
                        if y is x: e = max(e, y["rel"] - NB)
                        continue
                    if y["use"] < x["use"]: e = max(e, y["rel"])
                    else:
                        assert y["use"] > x["use"], (x, y)
                        e = max(e, y["rel"] - NB)
                if k == "D": e = max(e, gate[x["q"]])
                e = max(e, prev)
                def cap(b):
                    if BARS[b % NB] == ("3b", CFG["G4"]) and k == "D": return CFG["P04"]
                    if BARS[b % NB][1] == "F": return (CFG["P0"] if x["q"] == "1" else CFG["P0S"]) if k == "D" else 0
                    if CFG["WG"] and BARS[b % NB] in (("2", 10), ("4", 32), ("5", 14)): return 0
                    if CFG["WG"] and BARS[b % NB][1] == "G" and (CFG["WG"] > 1 or BARS[b % NB][0] != "1"): return CFG["PG"]
                    if BARS[b % NB][1] == "G" or (CFG["HOLD"] and BARS[b % NB] in (("1", 10), ("1", "X"))): return 0
                    return CFG["PER"]
                while used.get(e % NB, 0) >= cap(e): e += 1
                used[e % NB] = used.get(e % NB, 0) + 1
                prev = e
                x["after"] = e
            last = al[k][-1]["after"] - NB
            for x in al[k]: x["after"] = max(x["after"], last)
            for x in al[k]: assert x["after"] < x["use"], x
        return al
    def cost(al): return sum(max(0, CFG["LT"] - (x["use"] - x["after"]))**2 * 1000 + x["after"] for k in "DW" for x in al[k])
    import itertools
    keys = [k for k in rot if PH[k[0]][k[1]] is not None]
    def tryset(ks):
        best = None
        for rs_ in itertools.product(*[range(PH[k[0]][k[1]][1]) for k in ks]):
            for k, r in zip(ks, rs_): rot[k] = r
            try: c = cost(build())
            except AssertionError: continue
            if best is None or c < best[0]: best = (c, rs_)
        for k, r in zip(ks, best[1]): rot[k] = r
        return best[0]
    import os, pickle
    ck = repr((sorted((q, sorted((k, v) for k, v in PH[q].items() if k in ("nks","nD","nW","lag","D","W"))) for q in ORDER), sorted(OVR.items()), [CFG[k] for k in ("LT","P0","P0S","WG","HOLD","PER","PG","P04","G4")]))
    cache = pickle.load(open("plan.pkl", "rb")) if os.path.exists("plan.pkl") else {}
    if ck in cache: rot.update(cache[ck])
    else:
        wk = [k for k in keys if k[1] == "W"]
        for _ in range(2):
            for k in keys: tryset([k])
            for i in range(len(wk)):
                tryset([wk[i], wk[(i+1) % len(wk)]])
                dk = (wk[i][0], "D")
                if dk in keys: tryset([dk, wk[(i+1) % len(wk)]])
        cache[ck] = dict(rot); pickle.dump(cache, open("plan.pkl", "wb"))
    al = build()
    for k in "DW":
        ALLOC[k] += al[k]
        for x in al[k]: PH[x["q"]].setdefault("addr"+k, {})[x["n"]] = x["addr"]
    PH["3b"]["addrD"] = PH["3a"]["addrD"]; PH["3b"]["nD"] = 4
def bname(i):
    NB = len(BARS); return ("prev:" if i < 0 else "") + "%s.%s" % BARS[i % NB]

class LG:
    def __init__(s, a): s.a = a; s.out = []
    def op(s, text, regs=()):
        s.a(text); s.out.append(set(regs))
    def need(s, regs):
        regs = set(regs); idx = -1
        for k, r in enumerate(s.out):
            if r & regs: idx = k
        if idx >= 0:
            n = min(len(s.out) - 1 - idx, 15)
            s.a(f"s_waitcnt lgkmcnt({n})")
            s.out = s.out[len(s.out) - n:] if n else []
    def drain(s):
        if s.out: s.a("s_waitcnt lgkmcnt(0)"); s.out = []

def R(b, n): return range(b, b + n)
def mfma(d, A, B, C=None, ty="bf16"):
    c = vr(d, 4) if C is None else C
    return f"v_mfma_f32_16x16x32_{ty} {vr(d,4)}, {vr(A,4)}, {vr(B,4)}, {c}"
def stamp2(a, q, r=(250, 251)):
    if CFG["PROF"] == 2 and q in PQ[CFG["PQ"]]:
        lab = a.label("ST2")
        a(f"s_cmp_eq_u32 s14, {CFG['PIT']}\ns_cbranch_scc0 {lab}\ns_memtime s[60:61]\ns_mov_b32 m0, s62\ns_waitcnt lgkmcnt(0)\nv_writelane_b32 v{r[0]}, s60, m0\ns_add_u32 s62, s62, 1\n{lab}:")
PQ = {1: ("1", "2"), 3: ("3a", "3b"), 5: ("5", ), 4: ("4",)}
def stamp(a, lg=None, r=(250, 251), force=False):
    if CFG["PROF"] == 1 or (force and CFG["PROF"]):
        if lg: lg.drain()
        a(f"{'s_memrealtime' if CFG['RT'] else 's_memtime'} s[60:61]\nv_cmp_eq_u32 s[64:65], s62, v0\ns_waitcnt lgkmcnt(0)\nv_mov_b32 v{r[1]}, s60\nv_cndmask_b32 v{r[0]}, v{r[0]}, v{r[1]}, s[64:65]\ns_add_u32 s62, s62, 1")
def mkbase(a, regs, lo, hi, src):
    n = (hi - lo + 65535) // 65536
    assert n <= len(regs), (lo, hi, regs)
    for k in range(n): a(f"v_add_u32 v{regs[k]}, {lo + 65536*k}, v{src}")
    def f(addr):
        assert lo <= addr < hi, (lo, hi, addr)
        return regs[(addr - lo) >> 16], (addr - lo) & 0xffff
    return f
def uaddr(q, which, t, unit):
    ph = PH[q]
    return ph["addr" + which][t // 2] + (t % 2)*ph["n" + which]*KB + unit*KB
def rng(q, which):
    ph = PH[q]; ad = ph["addr" + which].values()
    return min(ad), max(ad) + 2*ph["n" + which]*KB

def loader(a, which):
    NB = len(BARS); al = [x for x in ALLOC["D"] + ALLOC["W"] if not x.get("local")]
    L = "LD" + which
    a(f"{L}:")
    if CFG["PROF"]: a("v_mov_b32 v8, v250")
    a("s_and_b32 s19, s13, 1")
    if CFG["PRIO"]: a(f"s_setprio {CFG['PRIO']}")
    gb = {}; st = {}
    defs = {("D","1"): (f"s_lshl_b32 @, s48, 13\ns_add_u32 @, @, {XIN}", 128*KB),
            ("D","2"): (f"s_lshl_b32 @, s50, 12\ns_add_u32 @, @, {OB}", 128*KB),
            ("D","3a"): (f"s_lshl_b32 @, s50, 12\ns_add_u32 @, @, {XMID}", 128*KB),
            ("D","4"): (f"s_mul_i32 @, s51, {7*KB}\ns_add_u32 @, @, {Z2}", 56*KB),
            ("D","5"): (f"s_lshl_b32 @, s50, 12\ns_add_u32 @, @, {UB}", 128*KB),
            ("W","1"): (f"s_mul_i32 @, s49, {160*KB}\ns_add_u32 @, @, {WQ}", 8*KB),
            ("W","2"): (f"s_mul_i32 @, s51, {100*KB}\ns_add_u32 @, @, {WO}", 5*KB),
            ("W","3a"): (f"s_mul_i32 @, s51, {140*KB}\ns_add_u32 @, @, {WI + 8*140*KB}", 7*KB),
            ("W","3b"): (f"s_mul_i32 @, s51, {140*KB}\ns_add_u32 @, @, {WI}", 7*KB),
            ("W","4"): (f"s_lshl_b32 @, s50, 18\ns_add_u32 @, @, {WSP}", 4*KB),
            ("W","5"): (f"s_mul_i32 @, s51, {135*KB}\ns_add_u32 @, @, {WT}", 5*KB)}
    order = [("W","1"), ("D","1")] + [k for k in defs if k[1] != "1"]
    regs = {k: 30 + j for j, k in enumerate(defs)}
    pof = {4: 41, 5: 42, 7: 43, 8: 44, 9: 45}
    for nU, r in pof.items(): a(f"s_mul_i32 s{r}, s19, {nU*KB}")
    a(f"s_cmp_eq_u32 s48, 0\ns_cselect_b32 s56, 0, {KB}")
    a(f"v_and_b32 v9, 0xffffff7f, v3\ns_and_b32 s66, s51, 3\ns_cmp_eq_u32 s66, 3\ns_cselect_b32 s66, {KB}, 0")
    issued = []; emit = [True]; it = [0]
    cap = [None]
    def A(t):
        if cap[0] is not None: cap[0] += [l for l in t.split("\n") if l.strip()]
        elif emit[0]: a(t)
    def setup(keys):
        for key in keys:
            txt, stride = defs[key]; r = regs[key]
            a(txt.replace("@", f"s{r}")); gb[key] = r; st[key] = stride
            a(f"s_mul_i32 s46, s19, {stride}\ns_add_u32 s{r}, s{r}, s46")
            if key[0] == "D": a(f"s_add_u32 s{r}, s{r}, s12")
    for key in defs: gb[key] = regs[key]; st[key] = defs[key][1]
    def share(k, q, n):
        nU = PH[q]["n" + k]
        big = (k == "D") == (which == "A")
        if q in ("3b", "4"): big = (n % 2 == 0) == (which == "A")
        m = (nU + 1) // 2 if big else nU // 2
        return (0, m) if which == "A" else (nU - m, nU)
    def issue(x):
        k, q, n = x["k"], x["q"], x["n"]; nU = PH[q]["n" + k]; tag = (k, q, n); key = (k, q)
        sc = " sc1" if (k == "D" or q == "4") else ""
        g0 = n*2*st[key]; u, u1 = share(k, q, n)
        halo = (k == "D" and q == "1")
        if halo and u == 0:
            A(f"s_add_u32 m0, s{pof[nU]}, {x['addr']}\ns_add_u32 s54, s{gb[key]}, {g0}\ns_sub_u32 s54, s54, s56")
            A(f"buffer_load_dwordx4 v3, s[4:7], s54 offen{sc} lds"); issued.append(tag)
            u = 1
        assert u1 - u <= 4
        gu = u - 1 if halo else u
        A(f"s_add_u32 m0, s{pof[nU]}, {x['addr'] + u*KB}\ns_add_u32 s54, s{gb[key]}, {g0 + gu*KB}")
        if q == "5" and n == 13: A(f"s_mul_i32 s55, s19, {st[key]}\ns_sub_u32 s54, s54, s55")
        for j in range(u1 - u):
            vo = 9 if (key == ("W","1") and u + j == 7) else 3
            if nU == 7 and u + j == 6: A("s_sub_u32 s54, s54, s66")
            A(f"buffer_load_dwordx4 v{vo}, s[4:7], s54 offen offset:{j*KB}{sc} lds"); issued.append(tag)
    def poll(q):
        lab = f"PL{q}"
        A(f"s_cmp_lg_u32 s19, 0\ns_cbranch_scc1 {lab}_done")
        if q == "1": A(f"s_cmp_eq_u32 s14, 1\ns_cbranch_scc1 {lab}_done")
        if emit[0]: stamp(a, r=(8, 19))
        FL = CFG["FLAG"]
        tgt = 1 if FL else {"2": 16}.get(q, 8)
        o = "v56" if q == "2" else "v57"
        ad = f"{o}, s[4:7], s54 offen" if FL else "off, s[4:7], s54"
        if q == "2": A(f"s_lshr_b32 s54, s50, 1\ns_lshl_b32 s54, s54, 7\ns_add_u32 s54, s54, s52")
        elif q in ("3a", "5"): A(f"s_lshl_b32 s54, s50, 7\ns_add_u32 s54, s54, s52\ns_add_u32 s54, s54, {(CB if q == '3a' else CD)*128}")
        elif q == "4": ad = "v20, s[4:7], s52 offen"
        else: ad = "v21, s[4:7], 0 offen"
        A("s_mov_b32 s55, 0")
        if q == "4":
            wait([("p4",)], "p4"); A(f"s_branch {lab}_chk")
        if q == "4" and FL:
            A(f"{lab}:\nbuffer_load_dwordx4 v[60:63], {ad} sc1\ns_waitcnt vmcnt(0)\n{lab}_chk:\nv_and_b32 v60, v60, v61\nv_and_b32 v62, v62, v63\nv_and_b32 v22, v60, v62")
        else: A(f"{lab}:\nbuffer_load_dword v22, {ad} sc1\ns_waitcnt vmcnt(0)\n{lab}_chk:")
        A(f"v_cmp_ne_u32 vcc, {tgt}, v22\ns_cmp_eq_u64 vcc, 0\ns_cbranch_scc1 {lab}_ok")
        A(f"s_sleep {CFG['SLEEP']}\ns_add_u32 s55, s55, 1\ns_cmp_lt_u32 s55, 0x40000\ns_cbranch_scc1 {lab}\n{lab}_ok:")
        if emit[0]: stamp(a, r=(8, 19))
        A(f"{lab}_done:")
    def poll4_issue():
        ld = "buffer_load_dwordx4 v[60:63]" if CFG["FLAG"] else "buffer_load_dword v22"
        A(f"s_cmp_lg_u32 s19, 0\ns_cbranch_scc1 PL4_i\n{ld}, v20, s[4:7], s52 offen sc1\nPL4_i:")
        marks["p4"] = len(issued)
    marks = {}
    def signal(q):
        c, r = {"1": (CA, "s48"), "2": (CB, "s50"), "3a": (CC, "s50"), "4": (CD, "s50"), "5": (CE, "s50")}[q]
        lab = f"SG{q}"
        A(f"s_cmp_lg_u32 s19, 0\ns_cbranch_scc1 {lab}\ns_lshl_b32 s54, {r}, 7\ns_add_u32 s54, s54, s52\ns_add_u32 s54, s54, {c*128}")
        if CFG["FLAG"]: A(f"s_lshl_b32 s55, {'s49' if q == '1' else 's51'}, 2\ns_add_u32 s54, s54, s55")
        A(f"s_mov_b64 exec, 1\n{'buffer_store_dword' if CFG['FLAG'] else 'buffer_atomic_add'} v13, off, s[4:7], s54 sc1\ns_mov_b64 exec, -1\n{lab}:")
    T = 24
    def zsload(js=range(4)):
        for j in js:
            if j: A(f"s_add_u32 s54, s47, {j*4096}")
            A(f"buffer_load_dwordx4 {vr(T+4*j,4)}, v3, s[4:7], s{54 if j else 47} offen sc1"); issued.append(("zs", j))
    waits = {}
    def wait(tags, key):
        nws = 0
        if key == "p4": cnt = min(62, len(issued) - marks["p4"])
        else:
            idx = max([i for i, t in enumerate(issued) if t in tags], default=-1)
            cnt = min(62, len(issued) - 1 - idx) if idx >= 0 else 63
            if key[0] != "ws" and idx >= 0: nws = sum(t[0] == "ws" for t in issued[idx+1:])
        w = waits.setdefault(key, [63, 63])
        w[0] = min(w[0], cnt); w[1] = min(w[1], cnt if cnt > 62 or not nws else min(62, len(issued) - 1 - idx - nws))
        if w[1] < w[0]:
            lab = a.label("WW")
            A(f"s_cmp_eq_u32 s14, 0\ns_cbranch_scc1 {lab}\ns_waitcnt vmcnt({w[1]})\n{lab}:")
        if w[0] < 63: A(f"s_waitcnt vmcnt({w[0]})")
    def tables(js=range(4)):
        for j in js:
            wait([("zs", j)], ("zs", j))
            b = T + 4*j; t = (10, 11, 12) if j & 1 else (14, 15, 23)
            for k in range(4): A(f"v_mul_f32 v{b+k}, {hex(f2u(1.0/FH))}, v{b+k}")
            for v in (b, b+2): A(f"v_fma_f32 v{v+1}, -v{v}, v{v}, v{v+1}")
            for v in (b, b+2): A(f"v_max_f32 v{v+1}, 0, v{v+1}")
            for v in (b, b+2): A(f"v_add_f32 v{v+1}, {hex(f2u(1e-5))}, v{v+1}")
            for v in (b, b+2): A(f"v_rsq_f32 v{v+1}, v{v+1}")
            A(f"v_cvt_pk_f16_f32 v{t[0]}, v{b}, v{b+2}\nv_cvt_pk_f16_f32 v{b+1}, v{b+1}, v{b+3}\nv_cvt_f32_f16 v{t[1]}, v{t[0]}\nv_cvt_f32_f16_sdwa v{t[2]}, v{t[0]} dst_sel:DWORD dst_unused:UNUSED_PAD src0_sel:WORD_1")
            A(f"ds_write_b32 v16, v{b+1} offset:{RS0+1024*j}\nds_write_b32 v17, v{t[0]} offset:{MU0+2048*j}")
            A(f"v_sub_f32 v{t[1]}, v{b}, v{t[1]}\nv_sub_f32 v{t[2]}, v{b+2}, v{t[2]}\nv_cvt_pk_f16_f32 v{t[1]}, v{t[1]}, v{t[2]}")
            A(f"ds_write_b32 v17, v{t[1]} offset:{MU0+2048*j+64}")
        A("s_waitcnt lgkmcnt(0)")
    WR = 64
    def wsp_load(ms=range(8)):
        if CFG["WS2"]:
            lab = f"WL{which}{ms[0]}"
            A(f"s_cmp_eq_u32 s14, 1\ns_cbranch_scc1 {lab}")
            for m in ms: A(f"buffer_load_dwordx4 {vr(WR+4*m,4)}, v4, s[8:11], s57 offen offset:{512*m}"); issued.append(("ws", m))
            A(f"{lab}:")
            return
        lab = f"WL{which}"
        A(f"s_cmp_eq_u32 s14, 1\ns_cbranch_scc1 {lab}")
        for m in range(8): A(f"buffer_load_dwordx4 {vr(WR+4*m,4)}, v4, s[8:11], s57 offen offset:{512*m}")
        A(f"{lab}:")
    def wsp_conv(ms=range(8)):
        lab = f"WC{which}{ms[0]}"
        A(f"s_cmp_eq_u32 s14, 1\ns_cbranch_scc1 {lab}")
        if not CFG["WS2"]: A("s_waitcnt vmcnt(0)")
        for m in ms:
            if CFG["WS2"]: wait([("ws", m)], ("ws", m))
            w = WR + 4*m; t = (96 if CFG["WS2"] else 40) + 8*(m & 1)
            for j in range(4): A(f"v_dot2_f32_bf16 v{t+2*j}, v{w+j}, s67, 0\nv_dot2_f32_bf16 v{t+2*j+1}, v{w+j}, s68, 0")
            for j in range(4): A(f"v_cvt_pk_f16_f32 v{w+j}, v{t+2*j}, v{t+2*j+1}")
            A(f"s_add_u32 s54, s59, {m*32768}")
            for hh in range(2): A(f"buffer_store_dwordx2 {vr(w+2*hh,2)}, v5, s[4:7], s54 offen offset:{256*hh} sc1")
        A(f"{lab}:")
    ev = {}; late = {}; pre = {}
    def at(b, f): ev.setdefault(BIDX[b], []).append(f)
    def lat(b, f): late.setdefault(BIDX[b], []).append(f)
    if which == "B":
        for q in ("1", "2", "4", "5"): at((q, "G"), lambda q=q: signal(q))
        at(("3b", CFG["SIG3"]), lambda: signal("3a"))
    if CFG["WS2"] != 5: pre[BIDX[("2", "G")]] = "s_waitcnt vmcnt(0)"
    if CFG["WS2"]:
        for b, ms in WSS[CFG["WS2"]][1].items(): lat(_b(b), lambda ms=ms: wsp_conv(ms))
        for b, ms in WSS[CFG["WS2"]][0].items():
            if b != -1: lat(_b(b), lambda ms=ms: wsp_load(ms))
        pre[BIDX[("3b", CFG["SIG3"])]] = "s_waitcnt vmcnt(8)"
    else: lat(("1", CFG["WSPL"]), wsp_load); at(("1", "G"), wsp_conv)
    SR = 40
    def stload(q):
        for c in range(3 if q == "1" else 1):
            A(f"s_add_u32 s54, s12, s{(69, 70, 71)[c] if q == '1' else 58}\ns_add_u32 s55, s54, 16384")
            A(f"buffer_load_dwordx2 {vr(SR+4*c,2)}, v6, s[4:7], s54 offen sc1\nbuffer_load_dwordx2 {vr(SR+4*c+2,2)}, v6, s[4:7], s55 offen sc1")
            issued.extend([("st", q)]*2)
    def stcalc(q):
        wait([("st", q)], ("st", q))
        v = SR
        for c in range(3 if q == "1" else 1): A(f"v_pk_add_f32 {vr(v+4*c,2)}, {vr(v+4*c,2)}, {vr(v+4*c+2,2)}")
        if q == "1":
            A(f"v_mov_b32 v{v+6}, v{v+4}\nv_mov_b32 v{v+7}, v{v+5}")
            for k in range(2): A(f"v_permlane32_swap_b32 v{v+k}, v{v+8+k}")
            for k in range(2): A(f"v_permlane32_swap_b32 v{v+4+k}, v{v+6+k}")
            A(f"v_pk_add_f32 {vr(v,2)}, {vr(v,2)}, {vr(v+8,2)}\nv_pk_add_f32 {vr(v+2,2)}, {vr(v+4,2)}, {vr(v+6,2)}")
        else:
            A(f"v_mov_b32 v{v+2}, v{v}\nv_mov_b32 v{v+3}, v{v+1}")
            for k in range(2): A(f"v_permlane32_swap_b32 v{v+k}, v{v+2+k}")
            A(f"v_pk_add_f32 {vr(v,2)}, {vr(v,2)}, {vr(v+2,2)}\nv_mov_b32 v{v+2}, v{v}\nv_mov_b32 v{v+3}, v{v+1}")
        for k in range(2): A(f"v_permlane16_swap_b32 v{v+k}, v{v+2+k}")
        A(f"v_pk_add_f32 {vr(v,2)}, {vr(v,2)}, {vr(v+2,2)}")
        t = v + 2
        A(f"v_mul_f32 v{t}, {hex(f2u(1.0/640))}, v{v}\nv_mul_f32 v{v+1}, {hex(f2u(1.0/640))}, v{v+1}\nv_fma_f32 v{v+1}, -v{t}, v{t}, v{v+1}")
        A(f"v_max_f32 v{v+1}, 0, v{v+1}\nv_add_f32 v{v+1}, {hex(f2u(1e-5))}, v{v+1}\nv_rsq_f32 v{v}, v{v+1}")
        A(f"v_mul_f32 v{v+1}, -v{t}, v{v}")
        A(f"ds_write2_b32 v{7 if q == '1' else 18}, v{v}, v{v+1} offset0:0 offset1:{NM0//4}\ns_waitcnt lgkmcnt(0)")
    for q in ("1", "3a"):
        lat((q, CFG["STL"]), lambda q=q: stload(q)); lat((q, 8), lambda q=q: stcalc(q))
    if which == "A":
        if not CFG["CP"]: lat(("1","G"), lambda: poll("2")); lat(("2","G"), lambda: poll("3a")); lat(("4","G"), lambda: poll("5")); lat(("5","G"), lambda: poll("1"))
        at(("3b", CFG["G4"] - CFG["POLL4"]), poll4_issue); lat(("3b", CFG["G4"] - 1), lambda: poll("4"))
    if CFG["TSP"]:
        g4 = ("3b", CFG["G4"])
        at(g4, lambda: zsload([0])); lat(g4, lambda: zsload([1, 2, 3])); lat(g4, lambda: tables([0]))
        for j in (1, 2, 3): lat(("4", CFG["TSP"]*j), lambda j=j: tables([j]))
    else: at(("3b", CFG["G4"]), zsload); lat(("3b", min(10, CFG["G4"] + CFG["TBL"])), tables)
    def issue_at(bs):
        xs = [x for x in al if x["after"] in bs]
        xs.sort(key=lambda x: (x["use"] - x["after"], x["k"]))
        for x in xs: issue(x)
    def body():
        issue_at((-1,))
        if CFG["WS2"] and -1 in WSS[CFG["WS2"]][0]: wsp_load(WSS[CFG["WS2"]][0][-1])
        for b in range(NB):
            tags = [(x["k"], x["q"], x["n"]) for x in al if x["use"] == b]
            if b in pre: A(pre[b])
            if emit[0] and isinstance(BARS[b][1], int) and BARS[b][1] < 30: stamp2(a, BARS[b][0], (8, 19))
            if tags: wait(tags, ("u", b))
            if emit[0] and isinstance(BARS[b][1], int) and BARS[b][1] < 30: stamp2(a, BARS[b][0], (8, 19))
            A("s_barrier")
            for f in ev.get(b, []): f()
            if b < NB - 1: issue_at((b, b - NB))
            for f in late.get(b, []): f()
    def pro():
        for x in al:
            if x["after"] < -1: issue(x)
    emit[0] = False
    pro(); body(); it[0] = 1; body()
    issued.clear(); emit[0] = True; it[0] = 0
    setup(order[:1]); pro(); setup(order[1:])
    if CFG["FLAG"]:
        a(f"v_lshrrev_b32 v20, 1, v0\nv_lshlrev_b32 v20, 7, v20\nv_and_b32 v13, 1, v0\nv_lshl_add_u32 v20, v13, 4, v20\nv_add_u32 v20, {CC*128}, v20\nv_mov_b32 v13, 1")
        a("v_lshlrev_b32 v56, 2, v2\nv_and_b32 v57, 28, v56")
        a(f"v_min_u32 v21, 2, v1\ns_lshl_b32 s46, s48, 1\nv_add_u32 v21, s46, v21\nv_max_u32 v21, 1, v21\nv_lshl_add_u32 v21, v21, 7, v57\nv_add_u32 v21, {(CE-1)*128 + CNT}, v21")
    else:
        a(f"v_and_b32 v20, 31, v0\nv_lshlrev_b32 v20, 7, v20\nv_add_u32 v20, {CC*128}, v20\nv_mov_b32 v13, 1")
        a(f"v_min_u32 v21, 2, v0\ns_lshl_b32 s46, s48, 1\nv_add_u32 v21, s46, v21\nv_max_u32 v21, 1, v21\nv_lshlrev_b32 v21, 7, v21\nv_add_u32 v21, {(CE-1)*128 + CNT}, v21")
    a("v_bfe_u32 v18, v0, 1, 2\nv_lshlrev_b32 v17, 4, v18\nv_bfe_u32 v18, v0, 3, 1\nv_lshl_add_u32 v17, v18, 3, v17\nv_and_b32 v18, 1, v0\nv_lshl_add_u32 v17, v18, 2, v17")
    a(f"s_sub_u32 s46, s13, 4\ns_lshl_b32 s47, s46, 10\ns_add_u32 s47, s47, {IT0+ZS}\ns_lshl_b32 s54, s46, 2\nv_add_u32 v18, s54, v1\nv_lshl_add_u32 v16, v18, 6, v17\nv_lshl_add_u32 v17, v18, 7, v17")
    a.srd(8, 20, 2048*2048*2)
    a("v_lshrrev_b32 v10, 3, v0\nv_and_b32 v7, 7, v0\nv_lshlrev_b32 v7, 4, v7\nv_lshl_add_u32 v4, v10, 12, v7")
    a("v_lshlrev_b32 v5, 4, v10\nv_and_b32 v11, 1, v0\nv_lshl_add_u32 v5, v11, 9, v5\nv_and_b32 v11, 4, v0\nv_lshl_add_u32 v5, v11, 10, v5\nv_and_b32 v11, 2, v0\nv_lshl_add_u32 v5, v11, 2, v5")
    a(f"s_lshl_b32 s57, s50, 18\ns_lshl_b32 s54, s46, 13\ns_add_u32 s59, s57, s54\ns_lshr_b32 s54, s51, 1\ns_lshl_b32 s54, s54, 10\ns_add_u32 s59, s59, s54\ns_and_b32 s54, s51, 1\ns_lshl_b32 s54, s54, 7\ns_add_u32 s59, s59, s54\ns_add_u32 s59, s59, {WSP}")
    a("s_lshl_b32 s54, s46, 7\ns_add_u32 s57, s57, s54\ns_lshl_b32 s54, s51, 15\ns_add_u32 s57, s57, s54\ns_mov_b32 s67, 0x4280\ns_mov_b32 s68, 0x42800000")
    a("v_lshlrev_b32 v6, 15, v1\nv_lshl_add_u32 v6, v2, 3, v6\ns_lshl_b32 s54, s46, 6\nv_lshlrev_b32 v18, 2, v2\nv_add_u32 v18, s54, v18")
    a("v_and_b32 v7, 1, v1\nv_lshl_add_u32 v7, v7, 8, v18\nv_lshlrev_b32 v10, 2, v2\nv_add_u32 v10, 512, v10\nv_cmp_eq_u32 vcc, 2, v1\nv_cndmask_b32 v7, v7, v10, vcc")
    a(f"s_lshl_b32 s71, s48, 10\ns_lshl_b32 s54, s46, 7\ns_add_u32 s69, s71, s54\ns_add_u32 s70, s69, {STIN+384}\ns_max_u32 s69, s69, 128\ns_add_u32 s69, s69, {STIN-128}\ns_add_u32 s71, s71, {STIN+896}")
    a(f"s_lshl_b32 s58, s50, 9\ns_add_u32 s58, s58, s54\ns_add_u32 s58, s58, {STMID}")
    if CFG["CODEPF"] > 1 and which == "B":
        lab = a.label("CPM")
        a(f"s_getpc_b64 s[60:61]\n{lab}:\ns_sub_u32 s60, s60, {lab}-main_kernel\ns_subb_u32 s61, s61, 0")
        a(f"s_lshl_b32 s54, s53, 1\ns_add_u32 s54, s54, s19\ns_mul_i32 s54, s54, 1536\nv_min_u32 v10, 11, v0\nv_lshlrev_b32 v10, 7, v10\nv_add_u32 v10, s54, v10")
        a(f"v_min_u32 v10, MAIN_END-main_kernel-4, v10\nglobal_load_dword v11, v10, s[60:61]")
    a(f"{L}_loop:")
    body()
    a(f"s_cmp_eq_u32 s14, 1\ns_cbranch_scc1 FINL\ns_mov_b32 s14, 1\ns_add_u32 s47, s47, {ITS}\ns_add_u32 s12, s12, {ITS}\ns_add_u32 s52, s52, 32768")
    for j in range(5): a(f"s_add_u32 s{30+j}, s{30+j}, {ITS}")
    a(f"s_branch {L}_loop")

def cpoll(a, q):
    if not CFG["CP"]: return
    lab = f"CPL{q}"; tgt = {"2": 16}.get(q, 8); D = CFG["PD"]
    a(f"s_cmp_lg_u32 s13, {CFG['CP']-1}\ns_cbranch_scc1 {lab}_ok")
    if q == "1":
        a(f"s_lshl_b32 s72, s48, 8\ns_add_u32 s72, s72, {(CE-1)*128 + CNT}\ns_min_u32 s73, s48, 1\ns_or_b32 exec_lo, s73, 0x10100\ns_mov_b32 exec_hi, 0")
        ad = "v3, s[4:7], s72 offen"
    else:
        a(f"s_lshl_b32 s73, s14, 15\ns_add_u32 s73, s73, {CNT + {'2': CA, '3a': CB, '5': CD}[q]*128}")
        a(("s_lshr_b32 s72, s50, 1\ns_lshl_b32 s72, s72, 7" if q == "2" else "s_lshl_b32 s72, s50, 7") + "\ns_add_u32 s72, s72, s73\ns_mov_b64 exec, 1")
        ad = "off, s[4:7], s72"
    sl = f"s_sleep {CFG['SLEEP']}"
    a("s_mov_b32 s73, 0")
    for k in range(D - 1): a(f"buffer_load_dword v{253+k}, {ad} sc1\ns_sleep {CFG['PS']}")
    a(f"{lab}:")
    for k in range(D):
        a(f"buffer_load_dword v{253+(k+D-1)%D}, {ad} sc1\ns_waitcnt vmcnt({D-1})")
        a(f"v_cmp_ne_u32 vcc, {tgt}, v{253+k}\ns_cmp_eq_u64 vcc, 0\ns_cbranch_scc1 {lab}_x\n{sl}")
    a(f"s_add_u32 s73, s73, 1\ns_cmp_lt_u32 s73, 0x20000\ns_cbranch_scc1 {lab}\n{lab}_x:\ns_mov_b64 exec, -1\n{lab}_ok:")
def weave(a, lg, ms, rd, va=(), rpm=1, vpm=0, vskip=0):
    rd = list(rd); va = list(va); i = j = 0; acc = 0.0
    for mi, (txt, nd) in enumerate(ms):
        lg.need(nd); a(txt)
        acc += rpm
        while acc >= 1 and i < len(rd): lg.op(*rd[i]); i += 1; acc -= 1
        for _ in range(vpm if mi >= vskip else 0):
            if j < len(va):
                if va[j]: lg.need(va[j][1]); a(va[j][0])
                j += 1
    while i < len(rd): lg.op(*rd[i]); i += 1
    while j < len(va): lg.need(va[j][1]); a(va[j][0]); j += 1

def mainloop(a, lg, q, NBUF, reads, mf, hooks=None, last_hook=None, rpm=2, prebar=None, tailf=None, cv=None, roll=None, dz=None):
    ph = PH[q]; nks = ph["nks"]; nst = ph["nst"]
    hooks = hooks or {}; prebar = prebar or {}
    for n in range(nst):
        if roll:
            n0, per, lab, inc = roll
            if n == n0: assert not dz; a(f"s_mov_b32 s37, {(nst - n0)//per}\n{lab}:"); st0 = [set(x) for x in lg.out]
            if n == n0 + per:
                assert st0 == lg.out and (nst - n0) % per == 0
                for k in "DW": assert all(ph["addr"+k][m] == ph["addr"+k][m-per] for m in range(n, nst))
                a(f"{inc}\ns_sub_u32 s37, s37, 1\ns_cmp_lg_u32 s37, 0\ns_cbranch_scc1 {lab}")
                break
        if not ph["lag"] or n == 0: lg.drain()
        if n in prebar: a(prebar[n])
        if n == 0: stamp(a, lg)
        if n == 0 and q in ("2", "3a", "5"): cpoll(a, q); a("s_barrier")
        if n < 30: stamp2(a, q)
        a("s_barrier")
        if n < 30: stamp2(a, q)
        if n == 0: stamp(a, lg)
        if n in hooks: hooks[n]()
        ts = [t for t in (2*n, 2*n+1) if t < nks]
        if NBUF == 2:
            for t in ts:
                weave(a, lg, mf(t-1, (t-1) % 2) if t >= 1 else [], reads(t, t % 2), rpm=rpm)
        elif cv:
            r0, r1 = reads(2*n, (2*n) % 4), reads(2*n+1, (2*n+1) % 4)
            rd = r0[:3] + r1[:3] + r0[3:] + r1[3:]
            if n == 0:
                weave(a, lg, [], rd, cv(0, 0))
            else:
                h = len(rd) // 2
                def mix(c):
                    if not dz: return c, 1
                    o = []
                    for e in c:
                        o.append(e)
                        for _ in range(CFG["DZP"]): o.append((dz.pop(0), []) if dz else None)
                    return o, 1 + CFG["DZP"]
                for tt, rr in ((2*n-2, rd[:h]), (2*n-1, rd[h:])):
                    va, vpm = mix(cv(tt+1, (tt+1) % 4))
                    weave(a, lg, mf(tt, tt % 4), rr, va, rpm=1, vpm=vpm)
        else:
            rd = sum([reads(t, t % 4) for t in ts], [])
            ms = sum([mf(t, t % 4) for t in (2*n-2, 2*n-1) if t >= 0], [])
            weave(a, lg, ms, rd, rpm=rpm)
    tail = [nks-1] if NBUF == 2 else [t for t in (2*nst-2, 2*nst-1) if t < nks]
    extra = last_hook() if last_hook else []
    if tailf: tailf()
    else: weave(a, lg, sum([mf(t, t % NBUF) for t in tail], []), extra, rpm=rpm)
    if q != "4": stamp2(a, q)
    a("s_barrier")
    if q != "4": stamp2(a, q)
    stamp(a, lg)
def poolloop(a, lg, q, regions, spare, frags, mfs, last, L, rpm):
    ph = PH[q]; nks = ph["nks"]; nst = ph["nst"]
    RD = [(t, nm, fn) for t in range(nks) for nm, fn in frags(t)]
    MS = [(t, fn, nms) for t in range(nks) for fn, nms in mfs(t)]
    lastuse = {}
    for i, (t, fn, nms) in enumerate(MS):
        for nm in nms: lastuse[(t, nm)] = i
    per = len(MS) // nst
    free = [list(regions[0]), list(regions[1]), list(spare)]
    home = {r: k for k in range(3) for r in free[k]}
    loc = {}; ri = [0]; last = list(last)
    def rd(tmax, force=False):
        if ri[0] >= len(RD) or RD[ri[0]][0] > tmax: return False
        t, nm, fn = RD[ri[0]]
        for k in (t & 1, 2) + ((1 - (t & 1),) if force else ()):
            if free[k]:
                r = free[k].pop(0); loc[(t, nm)] = r; lg.op(*fn(r)); ri[0] += 1; return True
        assert not force
        return False
    def rdlast():
        busy = {x for r in loc.values() for x in R(r, 4)}
        for k, (txt, regs) in enumerate(last):
            if not busy & set(regs): lg.op(txt, regs); last.pop(k); return True
        return False
    mi = 0
    for n in range(nst):
        lg.drain()
        if n == 0:
            stamp(a, lg)
            if q == "1": a("s_cmp_eq_u32 s14, 0\ns_cbranch_scc1 P1_nof"); cpoll(a, q); a("s_barrier\nP1_nof:")
            elif q != "3b": cpoll(a, q); a("s_barrier")
        stamp2(a, q); a("s_barrier"); stamp2(a, q)
        if n == 0: stamp(a, lg)
        tmax = 2*n + 1; acc_ = 0.0
        end = per*(n+1) - L if n < nst - 1 else len(MS)
        if n == 0:
            for _ in range(len(frags(0))): rd(0)
        while mi < end:
            t, fn, nms = MS[mi]
            while any((t, nm) not in loc for nm in nms): rd(tmax, True)
            lg.need([x for nm in nms for x in R(loc[(t, nm)], 4)])
            a(fn({nm: loc[(t, nm)] for nm in nms}))
            for nm in nms:
                if lastuse[(t, nm)] == mi: r = loc.pop((t, nm)); free[home[r]].append(r)
            mi += 1; acc_ = min(acc_ + rpm, 2*rpm)
            while acc_ >= 1 and (rd(tmax) or (ri[0] >= len(RD) and rdlast())): acc_ -= 1
        while rd(tmax, True): pass
    while rdlast(): pass
    assert not last
    stamp2(a, q); a("s_barrier"); stamp2(a, q)
    stamp(a, lg)
class Cap(Asm):
    def __call__(s, t): s.lines += [l.strip() for l in t.split("\n") if l.strip()]
def gbar(a, nxt, first=False):
    if not first: stamp(a)
    c = Cap(); nxt(c); L = c.lines
    ld = [i for i, l in enumerate(L) if l.startswith("buffer_load")]
    K = max(ld[-1] + 1, CFG["SUK"])
    while K < len(L) and L[K].startswith("s_cselect"): K += 1
    for l in L[:K]: a(l)
    if first: a("s_cmp_eq_u32 s14, 0\ns_cbranch_scc1 P1_nog")
    a(f"s_waitcnt vmcnt({len(ld)})")
    stamp(a)
    a("s_barrier")
    if first: a("P1_nog:")
    for l in L[K:]: a(l)
    a("s_waitcnt vmcnt(0)")

def xreduce(a, op, v, t):
    a(f"v_mov_b32 v{t}, v{v}\nv_permlane32_swap_b32 v{t}, v{v}\n{op} v{v}, v{v}, v{t}")
    a(f"v_mov_b32 v{t}, v{v}\nv_permlane16_swap_b32 v{t}, v{v}\n{op} v{v}, v{v}, v{t}")
def bc2(hi): return "op_sel:[0,1] op_sel_hi:[1,1]" if hi else "op_sel:[0,0] op_sel_hi:[1,0]"
def bc3(hi): return "op_sel:[0,1,0] op_sel_hi:[1,1,1]" if hi else "op_sel:[0,0,0] op_sel_hi:[1,0,1]"
def fix_T(a, acc, cs, st, tmp):
    for h in (0, 2): a(f"v_pk_mul_f32 {vr(tmp+h,2)}, {vr(cs+h,2)}, {vr(st,2)} {bc2(1)}")
    for h in (0, 2): a(f"v_pk_fma_f32 {vr(acc+h,2)}, {vr(acc+h,2)}, {vr(st,2)}, {vr(tmp+h,2)} {bc3(0)}")
def fix_N(a, acc, csreg, rs, nm, tmp):
    cp = csreg & ~1
    for h in (0, 2): a(f"v_pk_mul_f32 {vr(tmp+h,2)}, {vr(nm+h,2)}, {vr(cp,2)} {bc2(csreg & 1)}")
    for h in (0, 2): a(f"v_pk_fma_f32 {vr(acc+h,2)}, {vr(acc+h,2)}, {vr(rs+h,2)}, {vr(tmp+h,2)}")
def cvt2(a, d, acc, ty="bf16"):
    a(f"v_cvt_pk_{ty}_f32 v{d}, v{acc}, v{acc+1}\nv_cvt_pk_{ty}_f32 v{d+1}, v{acc+2}, v{acc+3}")
def rdD(q, t, dst, bD, addr, v8, lo):
    if t < SPLIT[q]: return rd128(dst, bD(addr))
    o = (addr - lo) // 512
    assert (addr - lo) % 512 == 0 and o + 1 < 256
    return (f"ds_read2st64_b64 {vr(dst,4)}, v{v8} offset0:{o} offset1:{o+1}", R(dst,4))
def rd128(dst, ba): return (f"ds_read_b128 {vr(dst,4)}, v{ba[0]} offset:{ba[1]}", R(dst,4))

P1C = dict(ACC=32, FB=104, X=208)
def setup1(a):
    q = "1"; ACC = P1C["ACC"]; X = P1C["X"]
    dlo, dhi = rng(q, "D"); wlo, whi = rng(q, "W")
    a(f"s_lshl_b32 s34, s49, 9\ns_add_u32 s34, s34, {CSQ}\ns_add_u32 s35, s34, 8192\nv_lshlrev_b32 v19, 3, v0")
    a(f"buffer_load_dwordx2 {vr(X,2)}, v19, s[4:7], s34 offen\nbuffer_load_dwordx2 {vr(X+2,2)}, v19, s[4:7], s35 offen")
    a(f"s_lshl_b32 s30, s13, 11\ns_add_u32 s30, s30, {KB}\nv_add_u32 v13, s30, v3")
    P1C["bD"] = mkbase(a, [4, 5], dlo, dhi, 13); P1C["bH"] = mkbase(a, [6, 7], dlo, dhi, 3); P1C["bW"] = mkbase(a, [8], wlo, whi, 3)
    a(f"v_add_u32 v252, {dlo}, v19\nv_add_u32 v11, s30, v252")
    a("s_min_u32 s31, s13, 2\ns_lshl_b32 s32, s31, 1\ns_add_u32 s32, s32, 1\ns_min_u32 s32, s32, 4\ns_add_u32 s33, s31, 5")
    a("s_lshl_b32 s34, s32, 10\nv_add_u32 v9, s34, v8\ns_lshl_b32 s34, s33, 10\nv_add_u32 v10, s34, v8")
    BI = X+26; BIa = X+34; ONES = X+38
    a("s_mov_b32 s40, 0xffff\ns_mov_b32 s41, 0\ns_mov_b32 s42, 0xffff0000\ns_mov_b32 s43, 0")
    a("v_lshlrev_b32 v16, 2, v1\nv_sub_u32 v16, v2, v16\nv_mov_b32 v17, 0xff800000")
    for kt in range(2):
        for r in range(4):
            a(f"v_add_u32 v18, {16 - 16*kt - r}, v16\nv_and_b32 v18, 0xfffffff1, v18\nv_cmp_eq_u32 vcc, 0, v18\nv_cndmask_b32 v{BI+4*kt+r}, v17, 0, vcc")
    a("s_add_u32 s34, s48, s13\ns_cmp_eq_u32 s34, 0\ns_cselect_b64 s[38:39], -1, 0")
    for r in range(4): a(f"v_cndmask_b32 v{BIa+r}, v{BI+r}, v17, s[38:39]\nv_mov_b32 v{ONES+r}, 0x3f803f80")
    c = (DH ** -0.5) * math.log2(math.e)
    a(f"s_mov_b32 s44, {hex(f2u(c))}\ns_mov_b32 s45, {hex(f2u(c))}")
    a(f"s_lshl_b32 s46, s49, 17\ns_lshl_b32 s47, s48, 13\ns_lshl_b32 s37, s13, 11\ns_add_u32 s47, s47, s37\ns_add_u32 s47, s47, s12\ns_add_u32 s47, s47, {OB}\ns_add_u32 s46, s46, s47")
    a(f"s_lshr_b32 s37, s49, 2\ns_add_u32 s37, s37, 16\ns_lshl_b32 s37, s37, 17\ns_add_u32 s47, s47, s37\ns_and_b32 s37, s49, 3\ns_lshl_b32 s37, s37, 8\ns_add_u32 s47, s47, s37")
    a("s_lshl_b32 s36, s13, 7\nv_lshlrev_b32 v18, 2, v2\nv_add_u32 v13, s36, v18\nv_lshlrev_b32 v23, 4, v1\nv_add_u32 v14, s36, v23")
    a("s_lshl_b32 s34, s32, 6\nv_add_u32 v15, s34, v23\ns_lshl_b32 s34, s33, 6\nv_add_u32 v12, s34, v18")
    a("s_lshl_b32 s34, s31, 9\nv_add_u32 v20, s34, v19\ns_mul_i32 s34, s13, 3072\nv_add_u32 v21, s34, v19\nv_or_b32 v22, 256, v21")
def cons1(a):
    q = "1"; lg = LG(a)
    ACC = P1C["ACC"]; FB = P1C["FB"]; X = P1C["X"]; bD, bH, bW = P1C["bD"], P1C["bH"], P1C["bW"]
    def acc(t, x): return ACC + 4*(2*t + x)
    accHT, accHV = ACC + 64, ACC + 68
    dlo, dhi = rng(q, "D")
    BI = X+26; BIa = X+34; ONES = X+38
    a(f"v_pk_add_f32 {vr(X,2)}, {vr(X,2)}, {vr(X+2,2)}")
    lg.op(f"ds_write_b64 v19, {vr(X,2)} offset:{CS0}")
    def frags(t):
        d0 = uaddr(q, "D", t, 0); w0 = uaddr(q, "W", t, 0)
        out = [("Ah", lambda r: rdD(q, t, r, bH, d0, 252, dlo)), ("BT", lambda r: rd128(r, (9, bW(w0)[1]))), ("BV", lambda r: rd128(r, (10, bW(w0)[1])))]
        As = [("A0", lambda r: rdD(q, t, r, bD, d0, 11, dlo)), ("A1", lambda r: rdD(q, t, r, bD, d0+KB, 11, dlo))]
        Bs = [(f"B{u}", lambda r, u=u: rd128(r, bW(w0+u*KB))) for u in range(8)]
        if t == 19: return out + As[1:] + Bs + As[:1]
        return out + [As[0], Bs[0], As[1]] + Bs[1:]
    def mfs(t):
        out = []; C0 = "0" if t == 0 else None
        for u in range(8):
            for x in range(2):
                A, B = f"A{x}", f"B{u}"
                out.append((lambda m, u=u, x=x, A=A, B=B: mfma(acc(u,x), m[B], m[A], C0) if u < 5 else mfma(acc(u,x), m[A], m[B], C0), (A, B)))
        h = [(lambda m: mfma(accHT, m["BT"], m["Ah"], C0), ("BT", "Ah")), (lambda m: mfma(accHV, m["Ah"], m["BV"], C0), ("Ah", "BV"))]
        if t == 19: return h + out[1::2] + out[0::2]
        return h + out
    E = FB
    stT = [E, E+2, E+4]; rsN = [E+8, E+12, E+16]; nmN = [E+20, E+24, E+28]
    csT = [E+32, E+36, E+40, E+44, E+48]; csHT = X
    csV = [X+4, X+5, X+6]; csHV = X+7
    def last_hook():
        out = []
        for x in (2, 1, 0):
            va, vb, o = (18, 23, 0) if x == 2 else (13, 14, 64+64*x)
            out.append((f"ds_read2_b32 {vr(stT[x],2)}, v{va} offset0:{o//4} offset1:{(NM0+o)//4}", R(stT[x],2)))
            out.append(rd128(rsN[x], (vb, o))); out.append(rd128(nmN[x], (vb, NM0+o)))
            if x == 2:
                out.append(rd128(csHT, (15, CS0))); out.append((f"ds_read_b32 v{csHV}, v12 offset:{CS0}", [csHV]))
            if x == 1:
                for t in range(5): out.append(rd128(csT[t], (23, CS0+64*t)))
                for t in range(3): out.append((f"ds_read_b32 v{csV[t]}, v18 offset:{CS0+64*(5+t)}", [csV[t]]))
        return out
    poolloop(a, lg, q, [[FB+52*b+4*k for k in range(13)] for b in range(2)], [X+8, X+12, X+16, X+20, 24, 28], frags, mfs, last_hook(), CFG["L1"], CFG["RPM1"]/4)
    lg.drain()
    G = FB + 52
    QF = {(0,0): G, (1,0): G+4, (0,1): G+8, (1,1): G+12}
    KF = {(0,0): G+16, (1,0): G+20, (0,1): G+24, (1,1): G+28, (0,'p'): G+32, (1,'p'): G+36}
    VF = [X+8, X+14, X+20]
    TMP = G+40; HT, HV = G+44, G+46; T4r = G+48; TM2 = 24
    def prep_kv(x):
        for k, t in enumerate((1, 3, 4)): fix_T(a, acc(t,x), csT[t], stT[x], (TMP, TM2)[k & 1])
        for t in range(3): fix_N(a, acc(5+t,x), csV[t], rsN[x], nmN[x], (TM2, TMP)[t & 1])
        cvt2(a, KF[(0,x)], acc(1,x)); cvt2(a, KF[(1,x)], acc(3,x)); cvt2(a, T4r + 2*x, acc(4,x))
        for t in range(3): cvt2(a, VF[t] + 2 + 2*x, acc(5+t,x))
    def prep_q(x):
        for k, t in enumerate((0, 2)): fix_T(a, acc(t,x), csT[t], stT[x], (TMP, TM2)[k & 1])
        T4 = T4r + 2*x
        for j in range(2):
            a(f"v_mov_b32 v{KF[(0,x)]+2+j}, v{T4+j}\nv_mov_b32 v{KF[(1,x)]+2+j}, v{T4+j}")
        cvt2(a, QF[(0,x)], acc(0,x)); cvt2(a, QF[(1,x)], acc(2,x))
        for j in range(2): a(f"v_permlane32_swap_b32 v{KF[(0,x)]+2+j}, v{KF[(1,x)]+2+j}")
        for j in range(2):
            a(f"v_cndmask_b32 v{QF[(0,x)]+2+j}, 0, v{T4+j}, s[40:41]\nv_cndmask_b32 v{QF[(1,x)]+2+j}, 0, v{T4+j}, s[42:43]")
        for j in range(2): a(f"v_mov_b32 v{KF[(0,x)]+2+j}, v{KF[(1,x)]+2+j}")
    fix_T(a, accHT, csHT, stT[2], TMP); fix_N(a, accHV, csHV, rsN[2], nmN[2], TM2)
    cvt2(a, HT, accHT); cvt2(a, HV, accHV)
    a(f"ds_write_b64 v20, {vr(HT,2)} offset:4096\nds_write_b64 v20, {vr(HV,2)} offset:{4096+1536}")
    prep_kv(1)
    for k, r in enumerate([KF[(0,1)], KF[(1,1)], T4r+2, VF[0]+4, VF[1]+4, VF[2]+4]):
        a(f"ds_write_b64 v21, {vr(r,2)} offset:{4096+3072+512*k}")
    prep_kv(0)
    a("s_waitcnt lgkmcnt(0)\ns_barrier")
    lg.op(f"ds_read_b64 {vr(KF[(0,'p')],2)}, v21 offset:4096", R(KF[(0,'p')],2))
    lg.op(f"ds_read_b64 {vr(KF[(1,'p')],2)}, v21 offset:{4096+512}", R(KF[(1,'p')],2))
    lg.op(f"ds_read_b64 {vr(KF[(0,'p')]+2,2)}, v22 offset:{4096+1024}", R(KF[(0,'p')]+2,2))
    lg.op(f"ds_read_b64 {vr(KF[(1,'p')]+2,2)}, v22 offset:{4096+1024}", R(KF[(1,'p')]+2,2))
    for t in range(3): lg.op(f"ds_read_b64 {vr(VF[t],2)}, v21 offset:{4096+1536+512*t}", R(VF[t],2))
    prep_q(1); prep_q(0)
    lg.drain()
    XS = (1, 0)
    Wb = {1: ACC, 0: ACC + 36}
    Sr = {(x,h): Wb[x] + 8*h for x in XS for h in range(2)}
    M = {(x,h): Wb[x] + 16 + 2*h for x in XS for h in range(2)}
    PF = {(x,h): Wb[x] + 20 + 4*h for x in XS for h in range(2)}
    XH = [(x,h) for x in XS for h in range(2)]
    for (x,h) in XH:
        pk = 'p' if x == 0 else 0
        a(mfma(Sr[x,h], KF[(h,pk)], QF[(h,x)], "0")); a(mfma(Sr[x,h]+4, KF[(h,x)], QF[(h,x)], "0"))
    for (x,h) in XH:
        bp = BIa if x == 0 else BI
        for j in range(4):
            b = (bp + 2*j) if j < 2 else (BI + 2*j)
            a(f"v_pk_fma_f32 {vr(Sr[x,h]+2*j,2)}, {vr(Sr[x,h]+2*j,2)}, s[44:45], {vr(b,2)}")
        s_, m = Sr[x,h], M[x,h]
        a(f"v_max3_f32 v{m}, v{s_}, v{s_+1}, v{s_+2}\nv_max3_f32 v{m+1}, v{s_+3}, v{s_+4}, v{s_+5}\nv_max3_f32 v{m}, v{m}, v{s_+6}, v{s_+7}\nv_max_f32 v{m}, v{m}, v{m+1}")
    for sw in ("v_permlane32_swap_b32", "v_permlane16_swap_b32"):
        for k in XH: a(f"v_mov_b32 v{M[k]+1}, v{M[k]}")
        for k in XH: a(f"{sw} v{M[k]+1}, v{M[k]}")
        for k in XH: a(f"v_max_f32 v{M[k]}, v{M[k]}, v{M[k]+1}")
    for x in XS:
        for h in range(2):
            k = (x,h)
            for j in range(4):
                a(f"v_pk_add_f32 {vr(Sr[k]+2*j,2)}, {vr(Sr[k]+2*j,2)}, {vr(M[k],2)} op_sel:[0,0] op_sel_hi:[1,0] neg_lo:[0,1] neg_hi:[0,1]")
            for j in range(8): a(f"v_exp_f32 v{Sr[k]+j}, v{Sr[k]+j}")
        for h in range(2):
            cvt2(a, PF[x,h], Sr[x,h]); cvt2(a, PF[x,h]+2, Sr[x,h]+4)
        vo = 2*x; W = Wb[x]
        L0, L1, O0, O1a, O1b, O2 = W+28, W+32, W, W+4, W+8, W+12
        a(mfma(L0, ONES, PF[x,0], "0")); a(mfma(L1, ONES, PF[x,1], "0"))
        a(mfma(O0, VF[0]+vo, PF[x,0], "0")); a(mfma(O1a, VF[1]+vo, PF[x,0], "0"))
        a(mfma(O1b, VF[1]+vo, PF[x,1], "0")); a(mfma(O2, VF[2]+vo, PF[x,1], "0"))
    for x in XS:
        W = Wb[x]
        L0, L1, O0, O1a, O1b, O2 = W+28, W+32, W, W+4, W+8, W+12
        a(f"v_rcp_f32 v{L0}, v{L0}\nv_rcp_f32 v{L1}, v{L1}")
        for j in range(4): a(f"v_cndmask_b32 v{O1a+j}, v{O1b+j}, v{O1a+j}, s[40:41]")
        a(f"v_cndmask_b32 v{L0+1}, v{L1}, v{L0}, s[40:41]")
        for j in (0, 2): a(f"v_pk_mul_f32 {vr(O0+j,2)}, {vr(O0+j,2)}, {vr(L0,2)} {bc2(0)}")
        for j in (0, 2): a(f"v_pk_mul_f32 {vr(O1a+j,2)}, {vr(O1a+j,2)}, {vr(L0,2)} {bc2(1)}")
        for j in (0, 2): a(f"v_pk_mul_f32 {vr(O2+j,2)}, {vr(O2+j,2)}, {vr(L1,2)} {bc2(0)}")
        cvt2(a, PF[x,0], O0); cvt2(a, PF[x,0]+2, O1a); cvt2(a, PF[x,1], O2)
        a(f"buffer_store_dwordx4 {vr(PF[x,0],4)}, v3, s[4:7], s46 offen offset:{x*KB} sc1")
        a(f"s_mov_b64 exec, 0xffffffff\nbuffer_store_dwordx2 {vr(PF[x,1],2)}, v19, s[4:7], s47 offen offset:{x*KB} sc1\ns_mov_b64 exec, -1")
    gbar(a, lambda c: setup25(c, "2"))

P25 = {}
def setup25(a, q):
    X = 160
    dlo, dhi = rng(q, "D"); wlo, whi = rng(q, "W")
    a("v_lshlrev_b32 v8, 3, v0")
    a("s_lshl_b32 s33, s50, 2\ns_add_u32 s33, s33, s13\ns_lshl_b32 s34, s33, 10")
    a("s_lshl_b32 s31, s51, 18\ns_add_u32 s31, s31, s34")
    a("s_lshr_b32 s32, s51, 1\ns_add_u32 s32, s32, 16\ns_lshl_b32 s32, s32, 17\ns_add_u32 s32, s32, s34\ns_and_b32 s35, s51, 1\ns_lshl_b32 s35, s35, 9\ns_add_u32 s32, s32, s35")
    src = XIN if q == "2" else XMID
    a(f"s_add_u32 s35, s12, {src}\ns_add_u32 s36, s35, s31\ns_add_u32 s37, s36, {128*KB}\ns_add_u32 s35, s35, s32")
    a(f"buffer_load_dwordx4 {vr(X,4)}, v3, s[4:7], s36 offen sc1\nbuffer_load_dwordx4 {vr(X+4,4)}, v3, s[4:7], s37 offen sc1\nbuffer_load_dwordx2 {vr(X+8,2)}, v8, s[4:7], s35 offen sc1")
    a("s_lshl_b32 s30, s13, 10\nv_add_u32 v13, s30, v3")
    P25[q] = (mkbase(a, [4], dlo, dhi, 13), mkbase(a, [6, 7], wlo, whi, 3))
    a(f"s_add_u32 s30, s30, {dlo}\nv_add_u32 v5, s30, v8")
    dst = XMID if q == "2" else ITS + XIN
    dstst = STMID if q == "2" else ITS + STIN
    a(f"s_add_u32 s35, s12, {dst}\ns_add_u32 s36, s35, s31\ns_add_u32 s37, s36, {128*KB}\ns_add_u32 s35, s35, s32")
    a(f"s_lshl_b32 s39, s51, 14\ns_lshl_b32 s40, s33, 7\ns_add_u32 s39, s39, s40\ns_add_u32 s39, s39, s12\ns_add_u32 s39, s39, {dstst}")
    a(f"v_mov_b32 v{X+12}, 0\nv_mov_b32 v{X+13}, 0\nv_mov_b32 v{X+14}, 0x3f803f80\nv_lshlrev_b32 v{X+17}, 3, v2\nv_mov_b32 v{X+18}, 0\nv_mov_b32 v{X+19}, 0")
    if q == "5":
        a(f"s_mul_i32 s41, s13, 2816\ns_add_u32 s41, s41, 4096\nv_mul_u32_u24 v{X+40}, 176, v2\nv_lshl_add_u32 v{X+40}, v1, 3, v{X+40}\nv_add_u32 v{X+40}, s41, v{X+40}")
        for j in range(3):
            c, row, cc, la, ga = X+41, X+42, X+43, X+20+j, X+24+j
            a(f"v_add_u32 v{c}, {64*j}, v0\nv_mul_u32_u24 v{row}, 205, v{c}\nv_lshrrev_b32 v{row}, 11, v{row}\nv_mul_u32_u24 v{cc}, 10, v{row}\nv_sub_u32 v{cc}, v{c}, v{cc}\nv_lshlrev_b32 v{cc}, 4, v{cc}")
            a(f"v_mul_u32_u24 v{la}, 176, v{row}\nv_add3_u32 v{la}, v{la}, v{cc}, s41\nv_mul_u32_u24 v{ga}, 1280, v{row}\nv_add_u32 v{ga}, v{ga}, v{cc}")
        a(f"s_mul_i32 s42, s33, {16*1280}\ns_mul_i32 s43, s51, 160\ns_add_u32 s42, s42, s43")
        a.srd(8, 24, 2048*640*2)
    a("s_mov_b32 s38, 0xffff0000")
def cons25(a, q):
    lg = LG(a)
    ACC = 32; FB = 64; X = 160
    dlo, dhi = rng(q, "D"); bD, bW = P25[q]
    for j in range(10):
        a(f"v_lshlrev_b32 v{ACC+2*j}, 16, v{X+j}\nv_and_b32 v{ACC+2*j+1}, s38, v{X+j}")
    def fb(buf, k): return FB + 24*buf + 4*k
    def reads(t, buf):
        return [rdD(q, t, fb(buf,0), bD, uaddr(q, "D", t, 0), 5, dlo)] + [rd128(fb(buf,1+u), bW(uaddr(q, "W", t, u))) for u in range(5)]
    def mf(t, buf):
        return [(mfma(ACC+4*u, fb(buf,1+u), fb(buf,0)), list(R(fb(buf,0),4)) + list(R(fb(buf,1+u),4))) for u in range(5)]
    mainloop(a, lg, q, 4, reads, mf, rpm=1.25)
    for u in range(5): cvt2(a, X+2*u, ACC+4*u)
    if q == "5":
        a("s_cmp_eq_u32 s14, 1\ns_cbranch_scc1 P5_final")
    a(f"buffer_store_dwordx4 {vr(X,4)}, v3, s[4:7], s36 offen sc1\nbuffer_store_dwordx4 {vr(X+4,4)}, v3, s[4:7], s37 offen sc1\nbuffer_store_dwordx2 {vr(X+8,2)}, v8, s[4:7], s35 offen sc1")
    for j in range(0, 10, 2):
        a(f"v_dot2_f32_bf16 v{X+12}, v{X+j}, v{X+14}, v{X+12}\nv_dot2_f32_bf16 v{X+13}, v{X+j}, v{X+j}, v{X+13}")
        a(f"v_dot2_f32_bf16 v{X+18}, v{X+j+1}, v{X+14}, v{X+18}\nv_dot2_f32_bf16 v{X+19}, v{X+j+1}, v{X+j+1}, v{X+19}")
    a(f"v_pk_add_f32 {vr(X+12,2)}, {vr(X+12,2)}, {vr(X+18,2)}")
    for sw in ("v_permlane32_swap_b32", "v_permlane16_swap_b32"):
        a(f"v_mov_b32 v{X+18}, v{X+12}\nv_mov_b32 v{X+19}, v{X+13}\n{sw} v{X+18}, v{X+12}\n{sw} v{X+19}, v{X+13}\nv_pk_add_f32 {vr(X+12,2)}, {vr(X+12,2)}, {vr(X+18,2)}")
    a(f"s_mov_b64 exec, 0xffff\nbuffer_store_dwordx2 {vr(X+12,2)}, v{X+17}, s[4:7], s39 offen sc1\ns_mov_b64 exec, -1")
    if q == "2": gbar(a, setup3)
    if q == "5":
        a(f"s_mov_b32 s14, 1\ns_add_u32 s12, s12, {ITS}")
        stamp(a)
        a("s_branch C_loop")
        a("P5_final:")
        a.fence(2)
        for u in range(5): a(f"ds_write_b64 v{X+40}, {vr(X+2*u,2)} offset:{32*u}")
        a("s_waitcnt lgkmcnt(0)")
        for j in range(3): a(f"ds_read_b128 {vr(X+28+4*j,4)}, v{X+20+j}")
        for j in range(3):
            a(f"s_waitcnt lgkmcnt({2-j})")
            if j == 2: a("s_mov_b64 exec, 0xffffffff")
            a(f"buffer_store_dwordx4 {vr(X+28+4*j,4)}, v{X+24+j}, s[8:11], s42 offen")
        a("s_mov_b64 exec, -1")
        stamp(a)
        a("s_barrier\ns_barrier\ns_branch FIN")

GC1 = -2.0 * math.sqrt(2.0/math.pi) * math.log2(math.e)
GC2 = GC1 * 0.044715
def gelu(a, xs, ts):
    P = list(zip(xs, ts))
    for x, t in P:
        for h in (0, 2): a(f"v_pk_mul_f32 {vr(t+h,2)}, {vr(x+h,2)}, {vr(x+h,2)}")
    for x, t in P:
        for h in (0, 2): a(f"v_pk_fma_f32 {vr(t+h,2)}, {vr(t+h,2)}, s[44:45], v[14:15]")
    for x, t in P:
        for h in (0, 2): a(f"v_pk_mul_f32 {vr(t+h,2)}, {vr(t+h,2)}, {vr(x+h,2)}")
    for x, t in P:
        for j in range(4): a(f"v_exp_f32 v{t+j}, v{t+j}")
    for x, t in P:
        for h in (0, 2): a(f"v_pk_add_f32 {vr(t+h,2)}, {vr(t+h,2)}, 1.0 op_sel_hi:[1,0]")
    for x, t in P:
        for j in range(4): a(f"v_rcp_f32 v{t+j}, v{t+j}")
    for x, t in P:
        for h in (0, 2): a(f"v_pk_mul_f32 {vr(x+h,2)}, {vr(x+h,2)}, {vr(t+h,2)}")
ZR = 32
P3C = {}
def setup3(a):
    q = "3a"; X = 192; SM = 32
    dlo, dhi = rng(q, "D"); wlo, whi = rng(q, "W")
    a(f"s_lshl_b32 s34, s51, 9\ns_add_u32 s34, s34, {CSI}\ns_add_u32 s35, s34, 8192\nv_lshlrev_b32 v22, 3, v0")
    a("s_and_b32 s38, s51, 3\ns_cmp_eq_u32 s38, 3\ns_cselect_b32 s38, 47, 55\ns_lshl_b32 s38, s38, 3\nv_min_u32 v7, s38, v22")
    a(f"buffer_load_dwordx2 {vr(X,2)}, v7, s[4:7], s34 offen\nbuffer_load_dwordx2 {vr(X+2,2)}, v7, s[4:7], s35 offen")
    a(f"s_add_u32 s34, s34, 4096\ns_add_u32 s35, s35, 4096\nbuffer_load_dwordx2 {vr(X+4,2)}, v7, s[4:7], s34 offen\nbuffer_load_dwordx2 {vr(X+6,2)}, v7, s[4:7], s35 offen")
    a("s_and_b32 s31, s13, 1\ns_lshr_b32 s32, s13, 1")
    setup4(a)
    a("s_lshl_b32 s30, s31, 11\nv_add_u32 v13, s30, v3")
    P3C["bD"] = mkbase(a, [4, 5], dlo, dhi, 13)
    a(f"s_add_u32 s30, s30, {dlo}\nv_add_u32 v252, s30, v22")
    a("s_lshl_b32 s30, s32, 12\nv_add_u32 v13, s30, v3")
    P3C["bW"] = mkbase(a, [6], wlo, whi, 13)
    for r in range(16): a(f"v_mov_b32 v{SM+r}, 0")
    a(f"s_mov_b32 s44, {hex(f2u(GC2))}\ns_mov_b32 s45, {hex(f2u(GC2))}\nv_mov_b32 v14, {hex(f2u(GC1))}\nv_mov_b32 v15, {hex(f2u(GC1))}")
    a("s_lshl_b32 s34, s32, 8\ns_lshl_b32 s35, s31, 7\nv_lshlrev_b32 v10, 2, v2\nv_add_u32 v8, s34, v10\nv_add_u32 v10, s35, v10")
    a("v_lshlrev_b32 v12, 4, v1\nv_add_u32 v9, s35, v12\nv_add_u32 v12, s34, v12")
    a("s_and_b32 s38, s51, 3\ns_cmp_eq_u32 s38, 3\ns_cselect_b32 s38, 2, 3\ns_cmp_eq_u32 s32, 0\ns_cselect_b32 s38, 4, s38")
    a(f"s_lshl_b32 s36, s33, 8\ns_mul_i32 s39, s33, {56*KB}\ns_mul_i32 s34, s51, {7*KB}\ns_add_u32 s39, s39, s34\ns_lshl_b32 s34, s32, 12\ns_add_u32 s39, s39, s34\ns_add_u32 s39, s39, s12\ns_add_u32 s39, s39, {Z2}")
    a(f"s_add_u32 s36, s36, s12\ns_add_u32 s36, s36, {ZS}")
    a("s_mov_b32 s40, 0xaaaaaaaa\ns_mov_b32 s41, 0xaaaaaaaa\ns_mov_b32 s42, 0xcccccccc\ns_mov_b32 s43, 0xcccccccc")
    a("v_and_b32 v11, 3, v2\nv_lshl_add_u32 v11, v1, 2, v11\nv_bfe_u32 v13, v2, 2, 1\nv_lshl_add_u32 v11, v13, 4, v11\nv_lshlrev_b32 v11, 3, v11\nv_lshrrev_b32 v13, 3, v2\nv_lshl_add_u32 v11, v13, 2, v11")
def cons3(a):
    q = "3a"; lg = LG(a)
    ACC = 64; FB = 96; X = 192; SM = 32
    def acc(t, x): return ACC + 4*(2*t + x)
    dlo, dhi = rng(q, "D"); wlo, whi = rng(q, "W"); bD, bW = P3C["bD"], P3C["bW"]
    a(f"v_pk_add_f32 {vr(X,2)}, {vr(X,2)}, {vr(X+2,2)}\nv_pk_add_f32 {vr(X+4,2)}, {vr(X+4,2)}, {vr(X+6,2)}")
    lg.op(f"ds_write_b64 v22, {vr(X,2)} offset:{CS0}"); lg.op(f"ds_write_b64 v22, {vr(X+4,2)} offset:{CS1}")
    a(f"v_lshlrev_b32 v{P4R['BI']}, 16, v{P4R['BI']}\nv_lshlrev_b32 v{P4R['BI']+1}, 16, v{P4R['BI']+1}")
    def fb(buf, k): return FB + 24*buf + 4*k
    def reads(t, buf):
        d0 = uaddr(q, "D", t, 0); w0 = uaddr(q, "W", t, 0)
        return [rdD(q, t, fb(buf,0), bD, d0, 252, dlo), rd128(fb(buf,2), bW(w0)), rdD(q, t, fb(buf,1), bD, d0+KB, 252, dlo)] + [rd128(fb(buf,2+u), bW(w0+u*KB)) for u in range(1, 4)]
    def mf(t, buf):
        return [(mfma(acc(u,x), fb(buf,x), fb(buf,2+u), "0" if t == 0 else None), list(R(fb(buf,x),4)) + list(R(fb(buf,2+u),4))) for u in range(4) for x in range(2)]
    rsN = [X, X+4]; nmN = [X+8, X+12]; csV = [X+16+t for t in range(4)]
    def last_hook():
        out = []
        for x in range(2): out += [rd128(rsN[x], (9, 64*x)), rd128(nmN[x], (9, NM0+64*x))]
        return out + [(f"ds_read_b32 v{csV[t]}, v8 offset:{CS1+64*t}", [csV[t]]) for t in range(4)]
    mainloop(a, lg, q, 4, reads, mf, last_hook=last_hook, rpm=CFG["RPM3"]/4)
    lg.drain()
    TMP = X+40; PK = X+24
    for u in range(4):
        if u >= 2: a(f"s_cmp_eq_u32 s38, {u}\ns_cbranch_scc1 P3_red")
        for x in range(2): fix_N(a, acc(u,x), csV[u], rsN[x], nmN[x], TMP+4*x)
        gelu(a, [acc(u,0), acc(u,1)], [TMP, TMP+4])
        for x in range(2): cvt2(a, PK + 4*u + 2*x, acc(u,x), "f16")
        a(f"buffer_store_dwordx4 {vr(PK+4*u,4)}, v3, s[4:7], s39 offen offset:{u*KB} sc1")
        for x in range(2):
            for h in (0, 2):
                a(f"v_pk_add_f32 {vr(SM+4*x+h,2)}, {vr(SM+4*x+h,2)}, {vr(acc(u,x)+h,2)}")
                a(f"v_pk_fma_f32 {vr(SM+8+4*x+h,2)}, {vr(acc(u,x)+h,2)}, {vr(acc(u,x)+h,2)}, {vr(SM+8+4*x+h,2)}")
    a("P3_red:"); a.fence(2)
    RA = ACC
    for j in range(8):
        a(f"v_add_f32_dpp v{RA+j}, v{SM+j}, v{SM+j} row_ror:8 row_mask:0xf bank_mask:0x3")
    for j in range(8):
        a(f"v_add_f32_dpp v{RA+j}, v{SM+8+j}, v{SM+8+j} row_ror:8 row_mask:0xf bank_mask:0xc")
    for j in range(4): a(f"v_add_f32_dpp v{RA+8+j}, v{RA+j}, v{RA+j} row_half_mirror row_mask:0xf bank_mask:0x5")
    for j in range(4): a(f"v_add_f32_dpp v{RA+8+j}, v{RA+4+j}, v{RA+4+j} row_half_mirror row_mask:0xf bank_mask:0xa")
    for j in range(4): a(f"v_add_f32_dpp v{RA+8+j}, v{RA+8+j}, v{RA+8+j} quad_perm:[1,0,3,2] row_mask:0xf bank_mask:0xf")
    for j in range(4): a(f"v_add_f32_dpp v{RA+8+j}, v{RA+8+j}, v{RA+8+j} quad_perm:[2,3,0,1] row_mask:0xf bank_mask:0xf")
    a(f"v_cndmask_b32 v{RA}, v{RA+8}, v{RA+9}, s[40:41]\nv_cndmask_b32 v{RA+1}, v{RA+10}, v{RA+11}, s[40:41]\nv_cndmask_b32 v{RA}, v{RA}, v{RA+1}, s[42:43]")
    a(f"buffer_atomic_add_f32 v{RA}, v11, s[4:7], s36 offen")
    q = "3b"; lg = LG(a)
    assert rng(q, "W") == (wlo, whi)
    DEF = CFG["DEF"]
    if DEF: ACC = ZR; X = 212
    def mf(t, buf):
        return [(mfma(acc(u,x), fb(buf,2+u), fb(buf,x), "0" if t == 0 else None), list(R(fb(buf,x),4)) + list(R(fb(buf,2+u),4))) for u in range(4) for x in range(2)]
    stT = [X, X+2]; csT = [X+4+4*t for t in range(4)]
    def last_hook():
        return [(f"ds_read2_b32 {vr(stT[x],2)}, v10 offset0:{16*x} offset1:{NM0//4+16*x}", R(stT[x],2)) for x in range(2)] + [rd128(csT[t], (12, CS0+64*t)) for t in range(4)]
    mainloop(a, lg, q, 4, reads, mf, last_hook=last_hook, rpm=CFG["RPM3"]/4, prebar={CFG["SIG3"]: "s_waitcnt vmcnt(0)"})
    lg.drain()
    if DEF:
        TMP = 232
        def dzl(ch):
            c = Cap()
            for us in ((0, 1), (2, 3) if not ch else (2,)):
                tl = [(u, x) for u in us for x in range(2)]
                for k, (u, x) in enumerate(tl): fix_T(c, acc(u,x), csT[u], stT[x], TMP+4*k)
                gelu(c, [acc(u,x) for u, x in tl], [TMP+4*k for k in range(len(tl))])
                for k, (u, x) in enumerate(tl): cvt2(c, TMP+4*k, acc(u,x))
                for k, (u, x) in enumerate(tl):
                    for h in range(2): c(f"v_lshlrev_b32 v{acc(u,x)+2*h}, 16, v{TMP+4*k+h}\nv_and_b32 v{acc(u,x)+2*h+1}, s57, v{TMP+4*k+h}")
            return c.lines
        a("s_cmp_eq_u32 s32, 1\ns_cbranch_scc1 P3b_done1")
        cons4(a, 0, dzl(0))
    else:
        TMP = X+40
        for x in range(2):
            for u in range(2): fix_T(a, acc(u,x), csT[u], stT[x], TMP+4*(2*x+u))
        gelu(a, [acc(u,x) for x in range(2) for u in range(2)], [TMP+4*k for k in range(4)])
        for u in range(2):
            for x in range(2): cvt2(a, ZR+2*(2*u+x), acc(u,x))
        for u in (2, 3):
            a(f"s_cmp_eq_u32 s38, {u}\ns_cbranch_scc1 P3b_done1")
            for x in range(2): fix_T(a, acc(u,x), csT[u], stT[x], TMP+4*x)
            gelu(a, [acc(u,0), acc(u,1)], [TMP, TMP+4])
            for x in range(2): cvt2(a, ZR+2*(2*u+x), acc(u,x))
        cons4(a, 0)
    a("s_branch P4_done")
    a("P3b_done1:"); a.fence(2)
    cons4(a, 1, dzl(1) if DEF else None)
    a("P4_done:"); a.fence(2)
    gbar(a, lambda c: setup25(c, "5"))

P4R = dict(bD=[16, 17], W=[18, 19], MU=20, EX=21, L8=22, BI=24)
def setup4(a):
    q = "4"; r = P4R
    dlo, dhi = rng(q, "D"); wlo, whi = rng(q, "W")
    P4R["f"] = mkbase(a, r["bD"], dlo, dhi, 3)
    w0, rs = r["W"]; mu = r["MU"]
    a(f"s_lshl_b32 s34, s31, 11\ns_add_u32 s34, s34, {wlo}\nv_add_u32 v{w0}, s34, v3\nv_lshlrev_b32 v{rs}, 4, v1")
    a(f"v_and_b32 v{mu}, 1, v2\nv_lshlrev_b32 v{mu}, 6, v{mu}\nv_lshl_add_u32 v{mu}, v1, 4, v{mu}")
    a(f"s_lshl_b32 s34, s31, 9\nv_add_u32 v{r['EX']}, s34, v{r['L8']}")
    a(f"s_lshl_b32 s33, s50, 1\ns_add_u32 s33, s33, s31\nv_lshlrev_b32 v{r['BI']}, 1, v2")
    a(f"s_lshl_b32 s34, s33, 6\ns_add_u32 s34, s34, {BSP}\nbuffer_load_ushort v{r['BI']+1}, v{r['BI']}, s[4:7], s34 offen offset:32\nbuffer_load_ushort v{r['BI']}, v{r['BI']}, s[4:7], s34 offen")
    a(f"s_lshl_b32 s46, s33, 11\ns_add_u32 s46, s46, s12\ns_add_u32 s46, s46, {UB}\ns_mul_i32 s47, s51, 3\ns_lshl_b32 s34, s32, 1\ns_add_u32 s47, s47, s34\ns_lshl_b32 s47, s47, 17\ns_add_u32 s47, s47, s46")
    a(f"s_lshr_b32 s34, s51, 2\ns_sub_u32 s34, s51, s34\ns_lshr_b32 s56, s34, 1\ns_add_u32 s56, s56, 24\ns_lshl_b32 s56, s56, 17\ns_add_u32 s46, s46, s56\ns_and_b32 s34, s34, 1\ns_lshl_b32 s34, s34, 9\ns_add_u32 s46, s46, s34")
    a(f"s_add_u32 s56, s47, {128*KB}\ns_mov_b32 s57, 0xffff0000\ns_mov_b32 s58, {hex(f2u(1.0/WSCALE))}\ns_mov_b32 s59, {hex(f2u(1.0/WSCALE))}")
def cons4(a, ch, dz=None):
    q = "4"; lg = LG(a); r = P4R
    ACC = 64; FB = 96; X = 208
    wlo = rng(q, "W")[0]; bD = r["f"]
    def acc(t, x): return ACC + 4*(2*t + x)
    def fb(buf, k): return FB + 28*buf + 4*k
    def reads(t, buf):
        w = [rd128(fb(buf,x), (r["W"][0], uaddr(q, "W", t, x) - wlo)) for x in range(2)]
        z = [rd128(fb(buf,2+u), bD(uaddr(q, "D", t, 4*ch+u))) for u in range(4-ch)]
        if ch: z.append(rd128(fb(buf,5), (r["MU"], MU0 + t*128)))
        return [rd128(fb(buf,6), (r["W"][1], RS0 + t*64))] + w + z
    def cv(t, buf):
        rs = fb(buf,6)
        return [(f"v_pk_mul_f16 v{fb(buf,x)+j}, v{fb(buf,x)+j}, v{rs+j}", [fb(buf,x)+j, rs+j]) for x in range(2) for j in range(4)]
    def mf(t, buf):
        return [(mfma(acc(u,x), fb(buf,2+u), fb(buf,x), "0" if t == 0 else None, ty="f16"), list(R(fb(buf,2+u),4))) for x in range(2) for u in range(4)]
    B = r["BI"]
    def tail():
        m0, m1 = mf(62, 2), mf(63, 3)
        weave(a, lg, m0, [], cv(63, 3), vpm=2)
        if not ch: weave(a, lg, m1, []); return
        weave(a, lg, [m1[3], m1[7]] + m1[:3], [])
        for x in range(2): a(f"v_add_f32 v{X+x}, v{acc(3,x)}, v{acc(3,x)+1}")
        for x in range(2): a(f"v_fma_f32 v{B+x}, -v{X+x}, s58, v{B+x}")
        lg.op(f"ds_write_b64 v{r['EX']}, {vr(B,2)} offset:{EX0}")
        weave(a, lg, m1[4:7], [])
        lg.drain()
    inc = f"v_add_u32 v{r['W'][1]}, {12*64}, v{r['W'][1]}" + (f"\nv_add_u32 v{r['MU']}, {12*128}, v{r['MU']}" if ch else "")
    mainloop(a, lg, q, 4, reads, mf, cv=cv, tailf=tail, roll=(8 if dz else 2, 6, f"P4_loop{ch}", inc) if CFG["ROLL"] else None, dz=dz)
    if not ch: lg.op(f"ds_read_b64 {vr(B,2)}, v{r['EX']} offset:{EX0}", R(B,2))
    PK = FB; T2 = FB + 16 if dz is None else ZR
    for u0 in (0, 2):
        us = (u0, u0+1) if not (ch and u0) else (2,)
        if ch and u0: a("s_cmp_eq_u32 s38, 2\ns_cbranch_scc1 P4_done")
        for u in us if dz is None else ():
            for x in range(2):
                for h in range(2):
                    z = ZR + 2*(2*u+x) + h; t = T2 + 4*(2*u+x) + 2*h
                    a(f"v_lshlrev_b32 v{t}, 16, v{z}\nv_and_b32 v{t+1}, s57, v{z}")
        lg.drain()
        for x in range(2):
            for u in us:
                for h in (0, 2): a(f"v_pk_fma_f32 {vr(acc(u,x)+h,2)}, {vr(acc(u,x)+h,2)}, s[58:59], {vr(B,2)} op_sel:[0,0,{x}] op_sel_hi:[1,1,{x}]")
            for u in us:
                for h in (0, 2): a(f"v_pk_mul_f32 {vr(acc(u,x)+h,2)}, {vr(acc(u,x)+h,2)}, {vr(T2+4*(2*u+x)+h,2)}")
            pk = PK + 4*(u0 + x)
            for u in us: cvt2(a, pk + 2*(u & 1), acc(u,x))
            if len(us) == 2: a(f"buffer_store_dwordx4 {vr(pk,4)}, v3, s[4:7], s{56 if u0 else 47} offen offset:{x*KB} sc1")
            else: a(f"buffer_store_dwordx2 {vr(pk,2)}, v{r['L8']}, s[4:7], s46 offen offset:{x*KB} sc1")

def code_prefetch(a, va, vd):
    if not CFG["CODEPF"]: return
    lab = a.label("CPF")
    a(f"s_getpc_b64 s[56:57]\n{lab}:\ns_add_u32 s56, s56, main_kernel-{lab}\ns_addc_u32 s57, s57, 0")
    a(f"s_lshr_b32 s58, s2, 3\ns_lshl_b32 s58, s58, 2\ns_add_u32 s58, s58, s13\ns_mul_i32 s58, s58, 1024\nv_and_b32 v{va}, 7, v0\nv_lshlrev_b32 v{va}, 7, v{va}\nv_add_u32 v{va}, s58, v{va}")
    a(f"v_min_u32 v{va}, MAIN_END-main_kernel-4, v{va}\nglobal_load_dword v{vd}, v{va}, s[56:57]")

def build():
    plan()
    a = Asm()
    a.launch("k0_kernel", (488 if CFG["TOUCH"] else NJOBS,1,1), (256,1,1), lds=40960)
    a.launch("main_kernel", (256,1,1), (512,1,1), lds=LDS_TOTAL)
    emit_k0(a, code_prefetch=code_prefetch, touch=CFG["TOUCH"])
    a.begin_kernel("main_kernel")
    a("s_cmp_ge_u32 s2, 256\ns_cbranch_scc1 END")
    a("s_load_dwordx4 s[20:23], s[0:1], 40\ns_load_dwordx2 s[24:25], s[0:1], 64\ns_load_dwordx2 s[26:27], s[0:1], 80")
    a("v_lshrrev_b32 v1, 6, v0\nv_and_b32 v0, 63, v0\nv_readfirstlane_b32 s13, v1")
    a("v_lshrrev_b32 v1, 4, v0\nv_and_b32 v2, 15, v0\nv_lshlrev_b32 v3, 4, v0")
    a(f"s_mov_b32 s12, {IT0}\ns_mov_b32 s14, 0\ns_mov_b32 s52, {CNT}\ns_mov_b32 s62, 0")
    a("s_and_b32 s15, s2, 7\ns_lshr_b32 s53, s2, 3\ns_lshr_b32 s16, s15, 1\ns_and_b32 s17, s15, 1")
    a("s_lshl_b32 s48, s16, 2\ns_lshr_b32 s18, s53, 3\ns_add_u32 s48, s48, s18\ns_lshl_b32 s49, s17, 3\ns_and_b32 s18, s53, 7\ns_add_u32 s49, s49, s18")
    a("s_lshl_b32 s50, s16, 3\ns_lshr_b32 s18, s53, 2\ns_add_u32 s50, s50, s18\ns_lshl_b32 s51, s17, 2\ns_and_b32 s18, s53, 3\ns_add_u32 s51, s51, s18")
    a("s_waitcnt lgkmcnt(0)")
    a.srd(4, 26, 0x10000000)
    if CFG["PROF"]: a("s_memrealtime s[60:61]\ns_waitcnt lgkmcnt(0)\nv_writelane_b32 v250, s60, 62")
    stamp(a, force=True)
    a("s_cmp_ge_u32 s13, 6\ns_cbranch_scc1 LDB\ns_cmp_ge_u32 s13, 4\ns_cbranch_scc1 LDA")
    a("C_loop:"); a.fence(2)
    gbar(a, setup1, True)
    cons1(a); cons25(a, "2"); cons3(a); cons25(a, "5")
    a.hist = []; loader(a, "A"); a.hist = []; loader(a, "B")
    a("FINL:")
    if CFG["PROF"]: a("v_mov_b32 v250, v8")
    a("FIN:"); a.fence(4)
    a("s_waitcnt vmcnt(0)")
    if CFG["PROF"]:
        stamp(a)
        a("s_memrealtime s[60:61]\ns_waitcnt lgkmcnt(0)\nv_writelane_b32 v250, s60, 63")
        a(f"s_lshl_b32 s60, s2, 3\ns_add_u32 s60, s60, s13\ns_lshl_b32 s60, s60, 8\ns_add_u32 s60, s60, {PROFB}")
        a("v_lshlrev_b32 v251, 2, v0\nbuffer_store_dword v250, v251, s[4:7], s60 offen")
    a("END:\ns_endpgm\nMAIN_END:")
    a.end_kernel("main_kernel", 256, sgpr=80)
    return a

if __name__ == "__main__":
    out = sys.argv[1] if len(sys.argv) > 1 else "mega.s"
    for kv in sys.argv[2:]:
        k, v = kv.split("="); CFG[k] = int(v)
    a = build()
    open(out, "w").write(a.text())
    print("lines", len(a.lines), "nops", a.nops_added, "bars", len(BARS))
    if CFG.get("SHOW"):
        for k in "DW":
            for x in ALLOC[k]: print(k, x["q"], x["n"], x["addr"]//KB, "after", bname(x["after"]), "rel", bname(x["rel"]))
```

```python
from asmlib import *
from layout import *

NJOBS = 230
import struct
def emit_k0(a, name="k0_kernel", code_prefetch=None, touch=0):
    a.begin_kernel(name)
    a(f"s_cmp_ge_u32 s2, {488 if touch else NJOBS}\ns_cbranch_scc1 K0_end")
    a("s_load_dwordx16 s[16:31], s[0:1], 0\ns_load_dwordx2 s[32:33], s[0:1], 80")
    a("v_lshrrev_b32 v1, 6, v0\nv_and_b32 v0, 63, v0")
    a("v_readfirstlane_b32 s13, v1")
    a("v_lshrrev_b32 v2, 4, v0\nv_and_b32 v3, 15, v0")
    a("v_lshlrev_b32 v4, 4, v0")
    a("s_waitcnt lgkmcnt(0)")
    a.srd(4, 32, 0x10000000)
    a("s_mov_b32 s11, 0x00020000")
    if touch: a("s_cmp_ge_u32 s2, 230\ns_cbranch_scc1 K0_touch")
    a("s_cmp_ge_u32 s2, 228\ns_cbranch_scc1 K0_zero")
    a("s_cmp_ge_u32 s2, 164\ns_cbranch_scc1 K0_x")
    a("v_lshrrev_b32 v5, 3, v0\nv_and_b32 v6, 7, v0\nv_lshrrev_b32 v7, 1, v5\nv_and_b32 v7, 3, v7\nv_lshlrev_b32 v7, 1, v7\nv_xor_b32 v6, v6, v7\nv_lshlrev_b32 v6, 4, v6")
    a("s_cmp_ge_u32 s2, 134\ns_cbranch_scc1 K0_wout")
    a("s_cmp_ge_u32 s2, 114\ns_cbranch_scc1 K0_wo")
    a("s_cmp_ge_u32 s2, 60\ns_cbranch_scc1 K0_win")

    def rowmap(kind):
        if kind == "x":
            a("s_lshr_b32 s44, s42, 4\ns_lshr_b32 s45, s44, 2\ns_add_u32 s45, s45, s44")
            a("s_mul_i32 s46, s44, 5\ns_sub_u32 s46, s46, 156\ns_cmp_lt_u32 s44, 32\ns_cselect_b32 s45, s45, s46")
            a("s_lshl_b32 s45, s45, 4\ns_and_b32 s46, s42, 8\ns_add_u32 s43, s45, s46")
        elif kind == "o":
            a("s_lshr_b32 s44, s42, 5\ns_lshl_b32 s44, s44, 3\ns_add_u32 s44, s44, s42")
            a(f"s_mul_i32 s45, s42, 5\ns_sub_u32 s45, s45, {5*512-32}\ns_cmp_lt_u32 s42, 512\ns_cselect_b32 s43, s44, s45")
        elif kind == "u":
            a("s_lshr_b32 s44, s42, 4\ns_mul_i32 s45, s44, 43\ns_lshr_b32 s45, s45, 8")
            a("s_add_u32 s46, s44, s45\ns_lshr_b32 s45, s45, 2\ns_sub_u32 s46, s46, s45")
            a("s_sub_u32 s47, s44, 48\ns_cmp_ge_u32 s44, 51\ns_cselect_b32 s45, 1, 0\ns_add_u32 s47, s47, s45")
            a("s_mul_i32 s47, s47, 7\ns_sub_u32 s47, s47, s45\ns_add_u32 s47, s47, 6")
            a("s_cmp_lt_u32 s44, 48\ns_cselect_b32 s45, s46, s47")
            a("s_lshl_b32 s45, s45, 4\ns_and_b32 s46, s42, 8\ns_add_u32 s43, s45, s46")
    def dma(kind, pitch, nper):
        a(f"s_mov_b32 s34, {pitch}\nv_mul_lo_u32 v8, v5, s34\nv_add_u32 v8, v8, v6")
        a("s_lshl_b32 s48, s13, 3\ns_add_u32 s48, s48, s36\ns_lshl_b32 s49, s13, 10")
        for m in range(nper):
            a(f"s_add_u32 s42, s48, {32*m}")
            rowmap(kind)
            a(f"s_mul_i32 s43, s43, {pitch}\ns_add_u32 s43, s43, s35\ns_add_u32 m0, s49, {4096*m}")
            a("buffer_load_dwordx4 v8, s[8:11], s43 offen lds")
    def src(b, nbytes):
        a(f"s_mov_b32 s8, s{b}\ns_and_b32 s9, s{b+1}, 0xffff\ns_mov_b32 s10, {nbytes}")

    src(18, 640*1920*2)
    a("s_lshr_b32 s50, s2, 1\ns_and_b32 s51, s2, 1")
    a("s_lshl_b32 s35, s50, 7\ns_mul_i32 s36, s51, 320")
    dma("x", 3840, 10)
    a("s_mul_i32 s52, s50, 26\ns_lshr_b32 s52, s52, 8")
    a("s_mul_i32 s53, s52, 640\ns_lshl_b32 s54, s50, 6\ns_sub_u32 s54, s54, s53\ns_lshl_b32 s53, s13, 4\ns_add_u32 s54, s54, s53")
    a("v_add_u32 v10, s54, v3")
    a("v_mul_u32_u24 v11, 1639, v10\nv_lshrrev_b32 v11, 16, v11")
    a("v_mul_u32_u24 v12, 40, v11\nv_sub_u32 v12, v10, v12")
    a("v_add_u32 v13, 80, v12")
    a("v_cmp_le_u32 vcc, 20, v12\nv_cndmask_b32 v14, 0, 1, vcc")
    a("v_mul_u32_u24 v15, 20, v14\nv_sub_u32 v15, v12, v15")
    a("s_lshl_b32 s53, s52, 4\nv_lshl_add_u32 v16, v14, 5, v15\nv_add_u32 v16, s53, v16")
    a("s_lshl_b32 s53, s52, 3\ns_add_u32 s53, s53, 48\nv_lshl_add_u32 v17, v14, 2, v15\nv_add_u32 v17, s53, v17")
    a("v_cmp_gt_u32 vcc, 16, v15\nv_cndmask_b32 v16, v17, v16, vcc")
    a("s_cmp_eq_u32 s52, 2\ns_cselect_b64 vcc, -1, 0\nv_cndmask_b32 v16, v16, v13, vcc")
    a("v_lshrrev_b32 v13, 4, v16\nv_and_b32 v14, 15, v16\nv_lshlrev_b32 v13, 10, v13\nv_lshl_add_u32 v13, v14, 4, v13\nv_lshl_add_u32 v13, v2, 8, v13")
    a(f"s_mov_b32 s53, {160*KB}\nv_mul_lo_u32 v9, v11, s53\nv_add_u32 v9, v9, v13")
    a("v_lshl_add_u32 v18, v11, 7, v16\nv_lshlrev_b32 v18, 2, v18")
    a(f"s_mul_i32 s38, s51, {80*KB}\ns_add_u32 s38, s38, {WQ}\ns_mov_b32 s39, {8*KB}\ns_mov_b32 s40, 10")
    a(f"s_lshl_b32 s41, s51, 13\ns_add_u32 s41, s41, {CSQ}")
    a("s_branch K0_common")
    a("K0_win:")
    src(24, 640*1728*2)
    a("s_sub_u32 s50, s2, 60\ns_and_b32 s51, s50, 1\ns_lshr_b32 s50, s50, 1")
    a("s_lshl_b32 s35, s50, 7\ns_mul_i32 s36, s51, 320")
    dma("x", 3456, 10)
    a("s_lshl_b32 s52, s50, 2\ns_add_u32 s52, s52, s13")
    a("s_cmp_ge_u32 s52, 54\ns_cselect_b32 s53, 54, 0\ns_cselect_b32 s54, 8, 0\ns_sub_u32 s52, s52, s53")
    a("s_cmp_ge_u32 s52, 27\ns_cselect_b32 s53, 27, 0\ns_cselect_b32 s55, 4, 0\ns_sub_u32 s52, s52, s53\ns_add_u32 s54, s54, s55")
    a("s_mul_i32 s53, s52, 37\ns_lshr_b32 s53, s53, 8\ns_add_u32 s54, s54, s53\ns_mul_i32 s53, s53, 7\ns_sub_u32 s52, s52, s53")
    a(f"s_mul_i32 s38, s54, {140*KB}\ns_lshl_b32 s53, s52, 10\ns_add_u32 s38, s38, s53\ns_mul_i32 s53, s51, {70*KB}\ns_add_u32 s38, s38, s53\ns_add_u32 s38, s38, {WI}")
    a(f"s_mov_b32 s39, {7*KB}\ns_mov_b32 s40, 10\nv_mov_b32 v9, v4\nv_lshlrev_b32 v18, 2, v3")
    a(f"s_lshl_b32 s41, s51, 13\ns_lshl_b32 s53, s54, 9\ns_add_u32 s41, s41, s53\ns_lshl_b32 s53, s52, 6\ns_add_u32 s41, s41, s53\ns_add_u32 s41, s41, {CSI}")
    a("s_branch K0_common")
    a("K0_wo:")
    src(20, 640*640*2)
    a("s_sub_u32 s50, s2, 114\ns_and_b32 s51, s50, 1\ns_lshr_b32 s50, s50, 1")
    a("s_lshl_b32 s35, s50, 7\ns_mul_i32 s36, s51, 320")
    dma("o", 1280, 10)
    a("s_lshl_b32 s52, s50, 2\ns_add_u32 s52, s52, s13\ns_mul_i32 s54, s52, 52\ns_lshr_b32 s54, s54, 8\ns_mul_i32 s53, s54, 5\ns_sub_u32 s52, s52, s53")
    a(f"s_mul_i32 s38, s54, {100*KB}\ns_lshl_b32 s53, s52, 10\ns_add_u32 s38, s38, s53\ns_mul_i32 s53, s51, {50*KB}\ns_add_u32 s38, s38, s53\ns_add_u32 s38, s38, {WO}")
    a(f"s_mov_b32 s39, {5*KB}\ns_mov_b32 s40, 10\nv_mov_b32 v9, v4\nv_mov_b32 v18, 0\ns_mov_b32 s41, -1")
    a("s_branch K0_common")
    a("K0_wout:")
    src(30, 864*640*2)
    a("s_sub_u32 s51, s2, 134\ns_mul_i32 s50, s51, 86\ns_lshr_b32 s50, s50, 8\ns_mul_i32 s53, s50, 3\ns_sub_u32 s51, s51, s53")
    a("s_lshl_b32 s35, s50, 7\ns_mul_i32 s36, s51, 288")
    dma("u", 1280, 9)
    a("s_lshl_b32 s52, s50, 2\ns_add_u32 s52, s52, s13\ns_mul_i32 s54, s52, 52\ns_lshr_b32 s54, s54, 8\ns_mul_i32 s53, s54, 5\ns_sub_u32 s52, s52, s53")
    a(f"s_mul_i32 s38, s54, {135*KB}\ns_lshl_b32 s53, s52, 10\ns_add_u32 s38, s38, s53\ns_mul_i32 s53, s51, {45*KB}\ns_add_u32 s38, s38, s53\ns_add_u32 s38, s38, {WT}")
    a(f"s_mov_b32 s39, {5*KB}\ns_mov_b32 s40, 9\nv_mov_b32 v9, v4\nv_mov_b32 v18, 0\ns_mov_b32 s41, -1")
    a("K0_common:")
    a.fence(4)
    a("v_lshrrev_b32 v21, 2, v3\nv_lshl_add_u32 v21, v2, 2, v21")
    a("v_lshrrev_b32 v22, 1, v21\nv_and_b32 v22, 3, v22\nv_lshlrev_b32 v22, 1, v22")
    a("v_bfe_u32 v23, v3, 1, 1\ns_lshl_b32 s53, s13, 1\nv_add_u32 v23, s53, v23\nv_xor_b32 v23, v23, v22")
    a("v_lshlrev_b32 v20, 7, v21\nv_lshl_add_u32 v20, v23, 4, v20\nv_and_b32 v23, 1, v3\nv_lshl_add_u32 v20, v23, 3, v20")
    a("v_mov_b32 v19, 0\nv_mov_b32 v24, 0x3f803f80")
    if code_prefetch: code_prefetch(a, 25, 26)
    a("s_waitcnt vmcnt(0)\ns_barrier")
    for ks in range(10):
        a(f"ds_read_b64_tr_b16 v[{32+4*ks}:{33+4*ks}], v20 offset:{ks*4096}")
        a(f"ds_read_b64_tr_b16 v[{34+4*ks}:{35+4*ks}], v20 offset:{ks*4096+2048}")
    for ks in range(10):
        if ks == 9:
            a("s_cmp_lt_u32 s40, 10\ns_cbranch_scc1 K0_end")
        a(f"s_waitcnt lgkmcnt({min(15, 18-2*ks)})")
        a(f"buffer_store_dwordx4 v[{32+4*ks}:{35+4*ks}], v9, s[4:7], s38 offen\ns_add_u32 s38, s38, s39")
        for j in range(4):
            a(f"v_dot2_f32_bf16 v19, v{32+4*ks+j}, v24, v19")
    a("s_cmp_eq_u32 s41, -1\ns_cbranch_scc1 K0_end")
    a("v_mov_b32 v21, v19\nv_permlane32_swap_b32 v21, v19\nv_add_f32 v19, v19, v21")
    a("v_mov_b32 v21, v19\nv_permlane16_swap_b32 v21, v19\nv_add_f32 v19, v19, v21")
    a("s_mov_b64 exec, 0xffff\nbuffer_store_dword v19, v18, s[4:7], s41 offen")
    a("s_endpgm")
    a("K0_x:")
    src(16, 2048*640*2)
    a(f"s_sub_u32 s50, s2, 164\ns_mul_i32 s35, s50, {32*1280}\ns_lshl_b32 s49, s13, 10\ns_lshl_b32 s48, s13, 6")
    a("v_add_u32 v5, s48, v0")
    for m in range(10):
        a(f"v_add_u32 v6, {256*m}, v5\nv_mul_u32_u24 v7, 52429, v6\nv_lshrrev_b32 v7, 22, v7")
        a("v_and_b32 v8, 15, v7\nv_xor_b32 v8, v8, v6\nv_lshlrev_b32 v8, 4, v8")
        a(f"s_add_u32 m0, s49, {4096*m}")
        a("buffer_load_dwordx4 v8, s[8:11], s35 offen lds")
    a("s_and_b32 s51, s13, 1\ns_lshr_b32 s52, s13, 1")
    a("s_lshl_b32 s53, s51, 4\nv_add_u32 v9, s53, v3\nv_mul_u32_u24 v10, 1280, v9\nv_and_b32 v11, 1, v2\nv_lshl_add_u32 v10, v11, 3, v10")
    a("v_lshrrev_b32 v11, 1, v2\nv_xor_b32 v11, v11, v3\nv_lshlrev_b32 v11, 4, v11")
    a("v_mov_b32 v18, 0\nv_mov_b32 v19, 0\nv_mov_b32 v24, 0x3f803f80")
    a(f"s_mul_i32 s38, s52, {10*128*KB}\ns_lshl_b32 s53, s50, 11\ns_add_u32 s38, s38, s53\ns_lshl_b32 s53, s51, 10\ns_add_u32 s38, s38, s53\ns_add_u32 s38, s38, {IT0+XIN}")
    a("s_mul_i32 s54, s52, 20")
    a("s_sub_u32 s53, 4, s52\nv_lshlrev_b32 v13, s53, v0\ns_mul_i32 s53, s52, 504\ns_add_u32 s53, s53, 8\nv_add_u32 v14, s53, v13")
    if code_prefetch: code_prefetch(a, 25, 26)
    a("s_waitcnt vmcnt(0)\ns_barrier")
    for j in range(20):
        a(f"s_add_u32 s44, s54, {j}\ns_lshr_b32 s45, s44, 2\ns_add_u32 s45, s45, s44\ns_mul_i32 s46, s44, 5\ns_sub_u32 s46, s46, 156\ns_cmp_lt_u32 s44, 32\ns_cselect_b32 s45, s45, s46")
        a("s_lshl_b32 s45, s45, 5\ns_and_b32 s46, s45, 0xff\ns_andn2_b32 s45, s45, 0xff")
        a(f"v_xor_b32 v12, s46, v11\nv_add3_u32 v12, v12, v10, s45\nds_read_b64 v[{32+2*j}:{33+2*j}], v12")
    for ks in range(10):
        a(f"s_waitcnt lgkmcnt({min(15, 18-2*ks)})")
        if ks < 6: a(f"buffer_store_dwordx4 v[{32+4*ks}:{35+4*ks}], v4, s[4:7], s38 offen")
        else: a(f"buffer_store_dwordx2 v[{32+4*ks}:{33+4*ks}], v13, s[4:7], s38 offen\nbuffer_store_dwordx2 v[{34+4*ks}:{35+4*ks}], v14, s[4:7], s38 offen")
        a(f"s_add_u32 s38, s38, {128*KB}")
        for j in range(4):
            a(f"v_dot2_f32_bf16 v18, v{32+4*ks+j}, v24, v18")
            a(f"v_dot2_f32_bf16 v19, v{32+4*ks+j}, v{32+4*ks+j}, v19")
    a("v_lshlrev_b32 v12, 14, v2\nv_lshl_add_u32 v12, v9, 3, v12")
    a(f"s_lshl_b32 s38, s52, 16\ns_lshl_b32 s53, s50, 8\ns_add_u32 s38, s38, s53\ns_add_u32 s38, s38, {IT0+STIN}")
    a("buffer_store_dwordx2 v[18:19], v12, s[4:7], s38 offen")
    a("s_endpgm")
    a("K0_zero:")
    src(28, 4096)
    a("s_lshl_b32 s41, s13, 10\nbuffer_load_dwordx4 v[12:15], v4, s[8:11], s41 offen")
    a("v_mov_b32 v8, 0\nv_mov_b32 v9, 0\nv_mov_b32 v10, 0\nv_mov_b32 v11, 0")
    a(f"s_sub_u32 s50, s2, 228\ns_mul_i32 s38, s50, {ITS}\ns_add_u32 s38, s38, {IT0+ZS}\ns_lshl_b32 s53, s13, 12\ns_add_u32 s38, s38, s53")
    a(f"s_lshl_b32 s39, s50, 15\ns_add_u32 s39, s39, {CNT}\ns_lshl_b32 s53, s13, 13\ns_add_u32 s39, s39, s53\ns_add_u32 s40, s39, 4096")
    for j in range(4):
        a(f"buffer_store_dwordx4 v[8:11], v4, s[4:7], s38 offen offset:{j*1024}")
        a(f"buffer_store_dwordx4 v[8:11], v4, s[4:7], s39 offen offset:{j*1024}")
        a(f"buffer_store_dwordx4 v[8:11], v4, s[4:7], s40 offen offset:{j*1024}")
    a(f"s_add_u32 s41, s41, {BSP}\ns_waitcnt vmcnt(12)\nbuffer_store_dwordx4 v[12:15], v4, s[4:7], s41 offen")
    if touch:
        a("s_endpgm\nK0_touch:\ns_cmp_lt_u32 s2, 232\ns_cbranch_scc1 K0_end")
        src(26, 2048*2048*2)
        a("s_sub_u32 s40, s2, 232\ns_and_b32 s41, s40, 7\ns_lshr_b32 s42, s40, 3\ns_lshr_b32 s43, s41, 1\ns_lshl_b32 s43, s43, 3\ns_lshr_b32 s44, s42, 2\ns_add_u32 s43, s43, s44")
        a("s_and_b32 s41, s41, 1\ns_lshl_b32 s41, s41, 2\ns_and_b32 s42, s42, 3\ns_add_u32 s41, s41, s42\ns_lshl_b32 s43, s43, 18\ns_lshl_b32 s41, s41, 15\ns_add_u32 s43, s43, s41\ns_lshl_b32 s41, s13, 13\ns_add_u32 s43, s43, s41\ns_add_u32 s44, s43, 4096")
        if touch > 2: a(f"s_sleep {touch}")
        for j in range(8): a(f"buffer_load_dwordx4 v[{8+4*j}:{11+4*j}], v4, s[8:11], s{43 + j//4} offen offset:{(j%4)*1024}")
        if touch != 2: a("s_waitcnt vmcnt(0)")
    a("K0_end:\ns_endpgm")
    a.end_kernel(name, 72, sgpr=64)

if __name__ == "__main__":
    a = Asm()
    a.launch("k0_kernel", (NJOBS,1,1), (256,1,1), lds=40960)
    emit_k0(a)
    open("k0.s","w").write(a.text())
```

```python
from asmlib import *
from layout import *

NJOBS = 230
import struct
def emit_k0(a, name="k0_kernel", code_prefetch=None, touch=0, dbg=0, nt="", st="", st2=""):
    a.begin_kernel(name)
    a(f"s_cmp_ge_u32 s2, {488 if touch else NJOBS}\ns_cbranch_scc1 K0_end")
    if dbg: a("s_memrealtime s[60:61]")
    a("s_load_dwordx16 s[16:31], s[0:1], 0\ns_load_dwordx2 s[32:33], s[0:1], 80")
    a("v_lshrrev_b32 v1, 6, v0\nv_and_b32 v0, 63, v0")
    a("v_readfirstlane_b32 s13, v1")
    a("v_lshrrev_b32 v2, 4, v0\nv_and_b32 v3, 15, v0")
    a("v_lshlrev_b32 v4, 4, v0")
    a("s_waitcnt lgkmcnt(0)")
    a.srd(4, 32, 0x10000000)
    a("s_mov_b32 s11, 0x00020000")
    if touch: a("s_cmp_ge_u32 s2, 230\ns_cbranch_scc1 K0_touch")
    a("s_cmp_ge_u32 s2, 228\ns_cbranch_scc1 K0_zero")
    a("s_cmp_ge_u32 s2, 164\ns_cbranch_scc1 K0_x")
    a("v_lshrrev_b32 v5, 3, v0\nv_and_b32 v6, 7, v0\nv_lshrrev_b32 v7, 1, v5\nv_and_b32 v7, 3, v7\nv_lshlrev_b32 v7, 1, v7\nv_xor_b32 v6, v6, v7\nv_lshlrev_b32 v6, 4, v6")
    a("s_cmp_ge_u32 s2, 134\ns_cbranch_scc1 K0_wout")
    a("s_cmp_ge_u32 s2, 114\ns_cbranch_scc1 K0_wo")
    a("s_cmp_ge_u32 s2, 60\ns_cbranch_scc1 K0_win")

    def rowmap(kind):
        if kind == "x":
            a("s_lshr_b32 s44, s42, 4\ns_lshr_b32 s45, s44, 2\ns_add_u32 s45, s45, s44")
            a("s_mul_i32 s46, s44, 5\ns_sub_u32 s46, s46, 156\ns_cmp_lt_u32 s44, 32\ns_cselect_b32 s45, s45, s46")
            a("s_lshl_b32 s45, s45, 4\ns_and_b32 s46, s42, 8\ns_add_u32 s43, s45, s46")
        elif kind == "o":
            a("s_lshr_b32 s44, s42, 5\ns_lshl_b32 s44, s44, 3\ns_add_u32 s44, s44, s42")
            a(f"s_mul_i32 s45, s42, 5\ns_sub_u32 s45, s45, {5*512-32}\ns_cmp_lt_u32 s42, 512\ns_cselect_b32 s43, s44, s45")
        elif kind == "u":
            a("s_lshr_b32 s44, s42, 4\ns_mul_i32 s45, s44, 43\ns_lshr_b32 s45, s45, 8")
            a("s_add_u32 s46, s44, s45\ns_lshr_b32 s45, s45, 2\ns_sub_u32 s46, s46, s45")
            a("s_sub_u32 s47, s44, 48\ns_cmp_ge_u32 s44, 51\ns_cselect_b32 s45, 1, 0\ns_add_u32 s47, s47, s45")
            a("s_mul_i32 s47, s47, 7\ns_sub_u32 s47, s47, s45\ns_add_u32 s47, s47, 6")
            a("s_cmp_lt_u32 s44, 48\ns_cselect_b32 s45, s46, s47")
            a("s_lshl_b32 s45, s45, 4\ns_and_b32 s46, s42, 8\ns_add_u32 s43, s45, s46")
    def dma(kind, pitch, nper):
        a(f"s_mov_b32 s34, {pitch}\nv_mul_lo_u32 v8, v5, s34\nv_add_u32 v8, v8, v6")
        a("s_lshl_b32 s48, s13, 3\ns_add_u32 s48, s48, s36\ns_lshl_b32 s49, s13, 10")
        for m in range(nper):
            a(f"s_add_u32 s42, s48, {32*m}")
            rowmap(kind)
            a(f"s_mul_i32 s43, s43, {pitch}\ns_add_u32 s43, s43, s35\ns_add_u32 m0, s49, {4096*m}")
            a(f"buffer_load_dwordx4 v8, s[8:11], s43 offen{nt} lds")
    def src(b, nbytes):
        a(f"s_mov_b32 s8, s{b}\ns_and_b32 s9, s{b+1}, 0xffff\ns_mov_b32 s10, {nbytes}")

    src(18, 640*1920*2)
    a("s_lshr_b32 s50, s2, 1\ns_and_b32 s51, s2, 1")
    a("s_lshl_b32 s35, s50, 7\ns_mul_i32 s36, s51, 320")
    dma("x", 3840, 10)
    a("s_mul_i32 s52, s50, 26\ns_lshr_b32 s52, s52, 8")
    a("s_mul_i32 s53, s52, 640\ns_lshl_b32 s54, s50, 6\ns_sub_u32 s54, s54, s53\ns_lshl_b32 s53, s13, 4\ns_add_u32 s54, s54, s53")
    a("v_add_u32 v10, s54, v3")
    a("v_mul_u32_u24 v11, 1639, v10\nv_lshrrev_b32 v11, 16, v11")
    a("v_mul_u32_u24 v12, 40, v11\nv_sub_u32 v12, v10, v12")
    a("v_add_u32 v13, 80, v12")
    a("v_cmp_le_u32 vcc, 20, v12\nv_cndmask_b32 v14, 0, 1, vcc")
    a("v_mul_u32_u24 v15, 20, v14\nv_sub_u32 v15, v12, v15")
    a("s_lshl_b32 s53, s52, 4\nv_lshl_add_u32 v16, v14, 5, v15\nv_add_u32 v16, s53, v16")
    a("s_lshl_b32 s53, s52, 3\ns_add_u32 s53, s53, 48\nv_lshl_add_u32 v17, v14, 2, v15\nv_add_u32 v17, s53, v17")
    a("v_cmp_gt_u32 vcc, 16, v15\nv_cndmask_b32 v16, v17, v16, vcc")
    a("s_cmp_eq_u32 s52, 2\ns_cselect_b64 vcc, -1, 0\nv_cndmask_b32 v16, v16, v13, vcc")
    a("v_lshrrev_b32 v13, 4, v16\nv_and_b32 v14, 15, v16\nv_lshlrev_b32 v13, 10, v13\nv_lshl_add_u32 v13, v14, 4, v13\nv_lshl_add_u32 v13, v2, 8, v13")
    a(f"s_mov_b32 s53, {160*KB}\nv_mul_lo_u32 v9, v11, s53\nv_add_u32 v9, v9, v13")
    a("v_lshl_add_u32 v18, v11, 7, v16\nv_lshlrev_b32 v18, 2, v18")
    a(f"s_mul_i32 s38, s51, {80*KB}\ns_add_u32 s38, s38, {WQ}\ns_mov_b32 s39, {8*KB}\ns_mov_b32 s40, 10")
    a(f"s_lshl_b32 s41, s51, 13\ns_add_u32 s41, s41, {CSQ}")
    a("s_branch K0_common")
    a("K0_win:")
    src(24, 640*1728*2)
    a("s_sub_u32 s50, s2, 60\ns_and_b32 s51, s50, 1\ns_lshr_b32 s50, s50, 1")
    a("s_lshl_b32 s35, s50, 7\ns_mul_i32 s36, s51, 320")
    dma("x", 3456, 10)
    a("s_lshl_b32 s52, s50, 2\ns_add_u32 s52, s52, s13")
    a("s_cmp_ge_u32 s52, 54\ns_cselect_b32 s53, 54, 0\ns_cselect_b32 s54, 8, 0\ns_sub_u32 s52, s52, s53")
    a("s_cmp_ge_u32 s52, 27\ns_cselect_b32 s53, 27, 0\ns_cselect_b32 s55, 4, 0\ns_sub_u32 s52, s52, s53\ns_add_u32 s54, s54, s55")
    a("s_mul_i32 s53, s52, 37\ns_lshr_b32 s53, s53, 8\ns_add_u32 s54, s54, s53\ns_mul_i32 s53, s53, 7\ns_sub_u32 s52, s52, s53")
    a(f"s_mul_i32 s38, s54, {140*KB}\ns_lshl_b32 s53, s52, 10\ns_add_u32 s38, s38, s53\ns_mul_i32 s53, s51, {70*KB}\ns_add_u32 s38, s38, s53\ns_add_u32 s38, s38, {WI}")
    a(f"s_mov_b32 s39, {7*KB}\ns_mov_b32 s40, 10\nv_mov_b32 v9, v4\nv_lshlrev_b32 v18, 2, v3")
    a(f"s_lshl_b32 s41, s51, 13\ns_lshl_b32 s53, s54, 9\ns_add_u32 s41, s41, s53\ns_lshl_b32 s53, s52, 6\ns_add_u32 s41, s41, s53\ns_add_u32 s41, s41, {CSI}")
    a("s_branch K0_common")
    a("K0_wo:")
    src(20, 640*640*2)
    a("s_sub_u32 s50, s2, 114\ns_and_b32 s51, s50, 1\ns_lshr_b32 s50, s50, 1")
    a("s_lshl_b32 s35, s50, 7\ns_mul_i32 s36, s51, 320")
    dma("o", 1280, 10)
    a("s_lshl_b32 s52, s50, 2\ns_add_u32 s52, s52, s13\ns_mul_i32 s54, s52, 52\ns_lshr_b32 s54, s54, 8\ns_mul_i32 s53, s54, 5\ns_sub_u32 s52, s52, s53")
    a(f"s_mul_i32 s38, s54, {100*KB}\ns_lshl_b32 s53, s52, 10\ns_add_u32 s38, s38, s53\ns_mul_i32 s53, s51, {50*KB}\ns_add_u32 s38, s38, s53\ns_add_u32 s38, s38, {WO}")
    a(f"s_mov_b32 s39, {5*KB}\ns_mov_b32 s40, 10\nv_mov_b32 v9, v4\nv_mov_b32 v18, 0\ns_mov_b32 s41, -1")
    a("s_branch K0_common")
    a("K0_wout:")
    src(30, 864*640*2)
    a("s_sub_u32 s51, s2, 134\ns_mul_i32 s50, s51, 86\ns_lshr_b32 s50, s50, 8\ns_mul_i32 s53, s50, 3\ns_sub_u32 s51, s51, s53")
    a("s_lshl_b32 s35, s50, 7\ns_mul_i32 s36, s51, 288")
    dma("u", 1280, 9)
    a("s_lshl_b32 s52, s50, 2\ns_add_u32 s52, s52, s13\ns_mul_i32 s54, s52, 52\ns_lshr_b32 s54, s54, 8\ns_mul_i32 s53, s54, 5\ns_sub_u32 s52, s52, s53")
    a(f"s_mul_i32 s38, s54, {135*KB}\ns_lshl_b32 s53, s52, 10\ns_add_u32 s38, s38, s53\ns_mul_i32 s53, s51, {45*KB}\ns_add_u32 s38, s38, s53\ns_add_u32 s38, s38, {WT}")
    a(f"s_mov_b32 s39, {5*KB}\ns_mov_b32 s40, 9\nv_mov_b32 v9, v4\nv_mov_b32 v18, 0\ns_mov_b32 s41, -1")
    a("K0_common:")
    a.fence(4)
    a("v_lshrrev_b32 v21, 2, v3\nv_lshl_add_u32 v21, v2, 2, v21")
    a("v_lshrrev_b32 v22, 1, v21\nv_and_b32 v22, 3, v22\nv_lshlrev_b32 v22, 1, v22")
    a("v_bfe_u32 v23, v3, 1, 1\ns_lshl_b32 s53, s13, 1\nv_add_u32 v23, s53, v23\nv_xor_b32 v23, v23, v22")
    a("v_lshlrev_b32 v20, 7, v21\nv_lshl_add_u32 v20, v23, 4, v20\nv_and_b32 v23, 1, v3\nv_lshl_add_u32 v20, v23, 3, v20")
    a("v_mov_b32 v19, 0\nv_mov_b32 v24, 0x3f803f80")
    if code_prefetch: code_prefetch(a, 25, 26)
    a("s_waitcnt vmcnt(0)\ns_barrier")
    for ks in range(10):
        a(f"ds_read_b64_tr_b16 v[{32+4*ks}:{33+4*ks}], v20 offset:{ks*4096}")
        a(f"ds_read_b64_tr_b16 v[{34+4*ks}:{35+4*ks}], v20 offset:{ks*4096+2048}")
    for ks in range(10):
        if ks == 9:
            a("s_cmp_lt_u32 s40, 10\ns_cbranch_scc1 K0_end")
        a(f"s_waitcnt lgkmcnt({min(15, 18-2*ks)})")
        a(f"buffer_store_dwordx4 v[{32+4*ks}:{35+4*ks}], v9, s[4:7], s38 offen{st}\ns_add_u32 s38, s38, s39")
        for j in range(4):
            a(f"v_dot2_f32_bf16 v19, v{32+4*ks+j}, v24, v19")
    a("s_cmp_eq_u32 s41, -1\ns_cbranch_scc1 K0_end")
    a("v_mov_b32 v21, v19\nv_permlane32_swap_b32 v21, v19\nv_add_f32 v19, v19, v21")
    a("v_mov_b32 v21, v19\nv_permlane16_swap_b32 v21, v19\nv_add_f32 v19, v19, v21")
    a(f"s_mov_b64 exec, 0xffff\nbuffer_store_dword v19, v18, s[4:7], s41 offen{st2}")
    a("s_endpgm")
    a("K0_x:")
    src(16, 2048*640*2)
    a(f"s_sub_u32 s50, s2, 164\ns_mul_i32 s35, s50, {32*1280}\ns_lshl_b32 s49, s13, 10\ns_lshl_b32 s48, s13, 6")
    a("v_add_u32 v5, s48, v0")
    for m in range(10):
        a(f"v_add_u32 v6, {256*m}, v5\nv_mul_u32_u24 v7, 52429, v6\nv_lshrrev_b32 v7, 22, v7")
        a("v_and_b32 v8, 15, v7\nv_xor_b32 v8, v8, v6\nv_lshlrev_b32 v8, 4, v8")
        a(f"s_add_u32 m0, s49, {4096*m}")
        a(f"buffer_load_dwordx4 v8, s[8:11], s35 offen{nt} lds")
    a("s_and_b32 s51, s13, 1\ns_lshr_b32 s52, s13, 1")
    a("s_lshl_b32 s53, s51, 4\nv_add_u32 v9, s53, v3\nv_mul_u32_u24 v10, 1280, v9\nv_and_b32 v11, 1, v2\nv_lshl_add_u32 v10, v11, 3, v10")
    a("v_lshrrev_b32 v11, 1, v2\nv_xor_b32 v11, v11, v3\nv_lshlrev_b32 v11, 4, v11")
    a("v_mov_b32 v18, 0\nv_mov_b32 v19, 0\nv_mov_b32 v24, 0x3f803f80")
    a(f"s_mul_i32 s38, s52, {10*128*KB}\ns_lshl_b32 s53, s50, 11\ns_add_u32 s38, s38, s53\ns_lshl_b32 s53, s51, 10\ns_add_u32 s38, s38, s53\ns_add_u32 s38, s38, {IT0+XIN}")
    a("s_mul_i32 s54, s52, 20")
    a("s_sub_u32 s53, 4, s52\nv_lshlrev_b32 v13, s53, v0\ns_mul_i32 s53, s52, 504\ns_add_u32 s53, s53, 8\nv_add_u32 v14, s53, v13")
    if code_prefetch: code_prefetch(a, 25, 26)
    a("s_waitcnt vmcnt(0)\ns_barrier")
    for j in range(20):
        a(f"s_add_u32 s44, s54, {j}\ns_lshr_b32 s45, s44, 2\ns_add_u32 s45, s45, s44\ns_mul_i32 s46, s44, 5\ns_sub_u32 s46, s46, 156\ns_cmp_lt_u32 s44, 32\ns_cselect_b32 s45, s45, s46")
        a("s_lshl_b32 s45, s45, 5\ns_and_b32 s46, s45, 0xff\ns_andn2_b32 s45, s45, 0xff")
        a(f"v_xor_b32 v12, s46, v11\nv_add3_u32 v12, v12, v10, s45\nds_read_b64 v[{32+2*j}:{33+2*j}], v12")
    for ks in range(10):
        a(f"s_waitcnt lgkmcnt({min(15, 18-2*ks)})")
        if ks < 6: a(f"buffer_store_dwordx4 v[{32+4*ks}:{35+4*ks}], v4, s[4:7], s38 offen{st}")
        else: a(f"buffer_store_dwordx2 v[{32+4*ks}:{33+4*ks}], v13, s[4:7], s38 offen{st2}\nbuffer_store_dwordx2 v[{34+4*ks}:{35+4*ks}], v14, s[4:7], s38 offen{st2}")
        a(f"s_add_u32 s38, s38, {128*KB}")
        for j in range(4):
            a(f"v_dot2_f32_bf16 v18, v{32+4*ks+j}, v24, v18")
            a(f"v_dot2_f32_bf16 v19, v{32+4*ks+j}, v{32+4*ks+j}, v19")
    a("v_lshlrev_b32 v12, 14, v2\nv_lshl_add_u32 v12, v9, 3, v12")
    a(f"s_lshl_b32 s38, s52, 16\ns_lshl_b32 s53, s50, 8\ns_add_u32 s38, s38, s53\ns_add_u32 s38, s38, {IT0+STIN}")
    a(f"buffer_store_dwordx2 v[18:19], v12, s[4:7], s38 offen{st2}")
    a("s_endpgm")
    a("K0_zero:")
    if dbg: a(f"v_mov_b32 v8, s60\nv_mov_b32 v9, {dbg}\nbuffer_store_dword v8, v9, s[4:7], 0 offen")
    src(28, 4096)
    a("s_lshl_b32 s41, s13, 10\nbuffer_load_dwordx4 v[12:15], v4, s[8:11], s41 offen")
    a("v_mov_b32 v8, 0\nv_mov_b32 v9, 0\nv_mov_b32 v10, 0\nv_mov_b32 v11, 0")
    a(f"s_sub_u32 s50, s2, 228\ns_mul_i32 s38, s50, {ITS}\ns_add_u32 s38, s38, {IT0+ZS}\ns_lshl_b32 s53, s13, 12\ns_add_u32 s38, s38, s53")
    a(f"s_lshl_b32 s39, s50, 15\ns_add_u32 s39, s39, {CNT}\ns_lshl_b32 s53, s13, 13\ns_add_u32 s39, s39, s53\ns_add_u32 s40, s39, 4096")
    for j in range(4):
        a(f"buffer_store_dwordx4 v[8:11], v4, s[4:7], s38 offen offset:{j*1024}{st2}")
        a(f"buffer_store_dwordx4 v[8:11], v4, s[4:7], s39 offen offset:{j*1024}{st2}")
        a(f"buffer_store_dwordx4 v[8:11], v4, s[4:7], s40 offen offset:{j*1024}{st2}")
    a(f"s_add_u32 s41, s41, {BSP}\ns_waitcnt vmcnt(12)\nbuffer_store_dwordx4 v[12:15], v4, s[4:7], s41 offen{st2}")
    if touch:
        a("s_endpgm\nK0_touch:\ns_cmp_lt_u32 s2, 232\ns_cbranch_scc1 K0_end")
        src(26, 2048*2048*2)
        a("s_sub_u32 s40, s2, 232\ns_and_b32 s41, s40, 7\ns_lshr_b32 s42, s40, 3\ns_lshr_b32 s43, s41, 1\ns_lshl_b32 s43, s43, 3\ns_lshr_b32 s44, s42, 2\ns_add_u32 s43, s43, s44")
        a("s_and_b32 s41, s41, 1\ns_lshl_b32 s41, s41, 2\ns_and_b32 s42, s42, 3\ns_add_u32 s41, s41, s42\ns_lshl_b32 s43, s43, 18\ns_lshl_b32 s41, s41, 15\ns_add_u32 s43, s43, s41\ns_lshl_b32 s41, s13, 13\ns_add_u32 s43, s43, s41\ns_add_u32 s44, s43, 4096")
        if touch > 2: a(f"s_sleep {touch}")
        for j in range(8): a(f"buffer_load_dwordx4 v[{8+4*j}:{11+4*j}], v4, s[8:11], s{43 + j//4} offen offset:{(j%4)*1024}{nt if touch == 2 else str()}")
        a("s_waitcnt vmcnt(0)")
    a("K0_end:\ns_endpgm")
    a.end_kernel(name, 72, sgpr=64)

if __name__ == "__main__":
    a = Asm()
    a.launch("k0_kernel", (NJOBS,1,1), (256,1,1), lds=40960)
    emit_k0(a)
    open("k0.s","w").write(a.text())
```

```python
import sys, math, struct
from asmlib import *
from layout import *
from k0 import emit_k0, NJOBS

LDS_TOTAL = 163840
CFG = dict(ES=0, DW=1, NT=15, TSP=2, DEF=0, DZP=2, G4=10, TBL=0, PD=3, PS=2, P04=4, WS2=4, WS3=1, CP=4, PG=6, LT=6, ROLL=1, RT=0, WG=2, FLAG=0, L1=27, RPM1=4, RPM3=4, SUK=40, STL=5, PQ=1, PIT=1, ST=0, HOLD=1, ILV=0, PRIO=0, XA=0, XB=0, XC=0, XD=0, RPM4=4, NOWSP=0, PROF=0, TOUCH=0, ROT=1, POLL4=2, SLEEP=1, WSPL=9, SIG3=2, PKMUL=1, CODEPF=1, DSC1=1, PER=2, P0=4, P0S=7, DT=0)
PROFB = 200*1024*1024
def f2u(x): return struct.unpack("<I", struct.pack("<f", x))[0]

PH = {
    "1":  dict(nks=20, nD=9, nW=8, lag=0, D=(20, 4), W=(96, 4)),
    "2":  dict(nks=20, nD=4, nW=5, lag=1, D=(20, 7), W=(80, 8)),
    "3a": dict(nks=20, nD=4, nW=7, lag=0, D=(20, 10), W=(104, 4)),
    "3b": dict(nks=20, nD=0, nW=7, lag=0, D=None, W=(104, 4)),
    "4":  dict(nks=64, nD=7, nW=4, lag=1, D=(20, 6), W=(112, 6)),
    "5":  dict(nks=27, nD=4, nW=5, lag=1, D=(20, 7), W=(80, 8)),
}
ORDER = ["1", "2", "3a", "3b", "4", "5"]
RS0, MU0 = 4096, 8192
NM0, CS0, CS1, EX0 = 768, 1536, 2048, 3072
NROT = {'1': 8, '2': 8, '3a': 8, '3b': 8, '4': 32, '5': 12}
SPLIT = {'1': 16, '2': 16, '3a': 16, '3b': 16, '4': 99, '5': 24}
LSCHED = [(("1",7),2), (("1",8),2), (("1",9),2), (("1",10),10), (("1","X"),10)]
CSCHED = [(("1","G"),6), (("2",10),6), (("2","G"),6)] + [(("3a",n),1) for n in range(1,9)]
CA, CB, CC, CD, CE = 0, 16, 48, 80, 112

def _b(x): return x if isinstance(x, tuple) else ("1", x)
WSS = {
  1: ({1: [0,1], 2: [2,3], 3: [4,5], 4: [6,7]}, {6: [0,1], 7: [2,3], 9: [4,5], 10: [6,7]}),
  2: ({2: [0,1], 5: [2,3], 10: [4,5], "G": [6,7]}, {6: [0,1], 9: [2,3], "G": [4,5], ("2",8): [6,7]}),
  3: ({1: [0,1,2,3], 10: [4,5,6,7]}, {6: [0,1], 7: [2,3], "G": [4,5,6,7]}),
  4: ({0: [0,1,2,3,4,5,6,7]}, {6: [0,1], 7: [2,3], 9: [4,5], 10: [6,7]}),
  5: ({1: [0,1], 3: [2,3], 9: [4,5], ("2",9): [6,7]}, {6: [0,1], 7: [2,3], "G": [4,5], ("3a",2): [6], ("3a",3): [7]}),
  6: ({3: [0,1,2,3], 9: [4,5,6,7]}, {7: [0,1], 9: [2,3], "G": [4,5,6,7]}),
  8: ({-1: [0,1,2,3,4,5,6,7]}, {6: [0,1], 7: [2,3], 9: [4,5], 10: [6,7]}),
  9: ({-1: [0,1,2,3,4,5,6,7]}, {4: [0,1], 6: [2,3], 7: [4,5], 9: [6,7]}),
  10: ({-1: [0,1,2,3,4,5,6,7]}, {9: [0,1,2,3], 10: [4,5,6,7]}),
  7: ({6: [0,1,2,3], 7: [4,5,6,7]}, {10: [0,1,2,3], "X": [4,5,6,7]}),
}
OVR = {("4","W",0): 104*KB}
BARS = []; BIDX = {}
ALLOC = {"D": [], "W": []}
def plan():
    BARS.clear(); BIDX.clear(); ALLOC["D"].clear(); ALLOC["W"].clear()
    for q in ORDER:
        ph = PH[q]; ph["nst"] = (ph["nks"] + 1) // 2
        for n in range(ph["nst"] + 1): BARS.append((q, n))
        if q == "1": BARS.append((q, "X"))
        if q in ("1", "2", "4", "5"): BARS.append((q, "G")); BARS.append((q, "F"))
    for i, b in enumerate(BARS): BIDX[b] = i
    NB = len(BARS)
    gate = {"1": -1, "2": BIDX[("1","F")], "3a": BIDX[("2","F")], "4": BIDX[("3b", CFG["G4"])], "5": BIDX[("4","F")]}
    def rel(q, n, kind):
        if q == "3a" and kind == "D": q = "3b"
        return BIDX[(q, min(n + 1 + PH[q]["lag"], PH[q]["nst"]))]
    rot = {(q, k): 0 for q in ORDER for k in "DW"}
    def build():
        al = {"D": [], "W": []}
        for q in ORDER:
            ph = PH[q]
            for k in "DW":
                if ph[k] is None: continue
                base, ns = ph[k]; sz = 2*ph["n"+k]*KB
                for n in range(ph["nst"]):
                    al[k].append(dict(q=q, n=n, k=k, addr=OVR.get((q,k,n), base*KB + sz*((n + rot[(q,k)]) % ns)), size=sz, use=BIDX[(q,n)], rel=rel(q,n,k)))
        allv = al["D"] + al["W"]
        for k in "DW":
            prev = -NB; used = {}
            for x in al[k]:
                e = -NB
                for y in allv:
                    if y is x or not (y["addr"] < x["addr"] + x["size"] and x["addr"] < y["addr"] + y["size"]):
                        if y is x: e = max(e, y["rel"] - NB)
                        continue
                    if y["use"] < x["use"]: e = max(e, y["rel"])
                    else:
                        assert y["use"] > x["use"], (x, y)
                        e = max(e, y["rel"] - NB)
                if k == "D": e = max(e, gate[x["q"]])
                e = max(e, prev)
                def cap(b):
                    if BARS[b % NB] == ("3b", CFG["G4"]) and k == "D": return CFG["P04"]
                    if BARS[b % NB][1] == "F": return (CFG["P0"] if x["q"] == "1" else CFG["P0S"]) if k == "D" else 0
                    if CFG["WG"] and BARS[b % NB] in (("2", 10), ("4", 32), ("5", 14)): return 0
                    if CFG["WG"] and BARS[b % NB][1] == "G" and (CFG["WG"] > 1 or BARS[b % NB][0] != "1"): return CFG["PG"]
                    if BARS[b % NB][1] == "G" or (CFG["HOLD"] and BARS[b % NB] in (("1", 10), ("1", "X"))): return 0
                    return CFG["PER"]
                while used.get(e % NB, 0) >= cap(e): e += 1
                used[e % NB] = used.get(e % NB, 0) + 1
                prev = e
                x["after"] = e
            last = al[k][-1]["after"] - NB
            for x in al[k]: x["after"] = max(x["after"], last)
            for x in al[k]: assert x["after"] < x["use"], x
        return al
    def cost(al): return sum(max(0, CFG["LT"] - (x["use"] - x["after"]))**2 * 1000 + x["after"] for k in "DW" for x in al[k])
    import itertools
    keys = [k for k in rot if PH[k[0]][k[1]] is not None]
    def tryset(ks):
        best = None
        for rs_ in itertools.product(*[range(PH[k[0]][k[1]][1]) for k in ks]):
            for k, r in zip(ks, rs_): rot[k] = r
            try: c = cost(build())
            except AssertionError: continue
            if best is None or c < best[0]: best = (c, rs_)
        for k, r in zip(ks, best[1]): rot[k] = r
        return best[0]
    import os, pickle
    ck = repr((sorted((q, sorted((k, v) for k, v in PH[q].items() if k in ("nks","nD","nW","lag","D","W"))) for q in ORDER), sorted(OVR.items()), [CFG[k] for k in ("LT","P0","P0S","WG","HOLD","PER","PG","P04","G4")]))
    cache = pickle.load(open("plan.pkl", "rb")) if os.path.exists("plan.pkl") else {}
    if ck in cache: rot.update(cache[ck])
    else:
        wk = [k for k in keys if k[1] == "W"]
        for _ in range(2):
            for k in keys: tryset([k])
            for i in range(len(wk)):
                tryset([wk[i], wk[(i+1) % len(wk)]])
                dk = (wk[i][0], "D")
                if dk in keys: tryset([dk, wk[(i+1) % len(wk)]])
        cache[ck] = dict(rot); pickle.dump(cache, open("plan.pkl", "wb"))
    al = build()
    for k in "DW":
        ALLOC[k] += al[k]
        for x in al[k]: PH[x["q"]].setdefault("addr"+k, {})[x["n"]] = x["addr"]
    PH["3b"]["addrD"] = PH["3a"]["addrD"]; PH["3b"]["nD"] = 4
def bname(i):
    NB = len(BARS); return ("prev:" if i < 0 else "") + "%s.%s" % BARS[i % NB]

class LG:
    def __init__(s, a): s.a = a; s.out = []
    def op(s, text, regs=()):
        s.a(text); s.out.append(set(regs))
    def need(s, regs):
        regs = set(regs); idx = -1
        for k, r in enumerate(s.out):
            if r & regs: idx = k
        if idx >= 0:
            n = min(len(s.out) - 1 - idx, 15)
            s.a(f"s_waitcnt lgkmcnt({n})")
            s.out = s.out[len(s.out) - n:] if n else []
    def drain(s):
        if s.out: s.a("s_waitcnt lgkmcnt(0)"); s.out = []

def R(b, n): return range(b, b + n)
def mfma(d, A, B, C=None, ty="bf16"):
    c = vr(d, 4) if C is None else C
    return f"v_mfma_f32_16x16x32_{ty} {vr(d,4)}, {vr(A,4)}, {vr(B,4)}, {c}"
def stamp2(a, q, r=(250, 251)):
    if CFG["PROF"] == 2 and q in PQ[CFG["PQ"]]:
        lab = a.label("ST2")
        a(f"s_cmp_eq_u32 s14, {CFG['PIT']}\ns_cbranch_scc0 {lab}\ns_memtime s[60:61]\ns_mov_b32 m0, s62\ns_waitcnt lgkmcnt(0)\nv_writelane_b32 v{r[0]}, s60, m0\ns_add_u32 s62, s62, 1\n{lab}:")
PQ = {1: ("1", "2"), 3: ("3a", "3b"), 5: ("5", ), 4: ("4",)}
def stamp(a, lg=None, r=(250, 251), force=False):
    if CFG["PROF"] == 1 or (force and CFG["PROF"]):
        if lg: lg.drain()
        a(f"{'s_memrealtime' if CFG['RT'] else 's_memtime'} s[60:61]\nv_cmp_eq_u32 s[64:65], s62, v0\ns_waitcnt lgkmcnt(0)\nv_mov_b32 v{r[1]}, s60\nv_cndmask_b32 v{r[0]}, v{r[0]}, v{r[1]}, s[64:65]\ns_add_u32 s62, s62, 1")
def mkbase(a, regs, lo, hi, src):
    n = (hi - lo + 65535) // 65536
    assert n <= len(regs), (lo, hi, regs)
    for k in range(n): a(f"v_add_u32 v{regs[k]}, {lo + 65536*k}, v{src}")
    def f(addr):
        assert lo <= addr < hi, (lo, hi, addr)
        return regs[(addr - lo) >> 16], (addr - lo) & 0xffff
    return f
def uaddr(q, which, t, unit):
    ph = PH[q]
    return ph["addr" + which][t // 2] + (t % 2)*ph["n" + which]*KB + unit*KB
def rng(q, which):
    ph = PH[q]; ad = ph["addr" + which].values()
    return min(ad), max(ad) + 2*ph["n" + which]*KB

def loader(a, which):
    NB = len(BARS); al = [x for x in ALLOC["D"] + ALLOC["W"] if not x.get("local")]
    L = "LD" + which
    a(f"{L}:")
    if CFG["PROF"]: a("v_mov_b32 v8, v250")
    a("s_and_b32 s19, s13, 1")
    if CFG["PRIO"]: a(f"s_setprio {CFG['PRIO']}")
    gb = {}; st = {}
    defs = {("D","1"): (f"s_lshl_b32 @, s48, 13\ns_add_u32 @, @, {XIN}", 128*KB),
            ("D","2"): (f"s_lshl_b32 @, s50, 12\ns_add_u32 @, @, {OB}", 128*KB),
            ("D","3a"): (f"s_lshl_b32 @, s50, 12\ns_add_u32 @, @, {XMID}", 128*KB),
            ("D","4"): (f"s_mul_i32 @, s51, {7*KB}\ns_add_u32 @, @, {Z2}", 56*KB),
            ("D","5"): (f"s_lshl_b32 @, s50, 12\ns_add_u32 @, @, {UB}", 128*KB),
            ("W","1"): (f"s_mul_i32 @, s49, {160*KB}\ns_add_u32 @, @, {WQ}", 8*KB),
            ("W","2"): (f"s_mul_i32 @, s51, {100*KB}\ns_add_u32 @, @, {WO}", 5*KB),
            ("W","3a"): (f"s_mul_i32 @, s51, {140*KB}\ns_add_u32 @, @, {WI + 8*140*KB}", 7*KB),
            ("W","3b"): (f"s_mul_i32 @, s51, {140*KB}\ns_add_u32 @, @, {WI}", 7*KB),
            ("W","4"): (f"s_lshl_b32 @, s50, 18\ns_add_u32 @, @, {WSP}", 4*KB),
            ("W","5"): (f"s_mul_i32 @, s51, {135*KB}\ns_add_u32 @, @, {WT}", 5*KB)}
    order = [("W","1"), ("D","1")] + [k for k in defs if k[1] != "1"]
    regs = {k: 30 + j for j, k in enumerate(defs)}
    pof = {4: 41, 5: 42, 7: 43, 8: 44, 9: 45}
    for nU, r in pof.items(): a(f"s_mul_i32 s{r}, s19, {nU*KB}")
    a(f"s_cmp_eq_u32 s48, 0\ns_cselect_b32 s56, 0, {KB}")
    a(f"v_and_b32 v9, 0xffffff7f, v3\ns_and_b32 s66, s51, 3\ns_cmp_eq_u32 s66, 3\ns_cselect_b32 s66, {KB}, 0")
    issued = []; emit = [True]; it = [0]
    cap = [None]
    def A(t):
        if cap[0] is not None: cap[0] += [l for l in t.split("\n") if l.strip()]
        elif emit[0]: a(t)
    def setup(keys):
        for key in keys:
            txt, stride = defs[key]; r = regs[key]
            a(txt.replace("@", f"s{r}")); gb[key] = r; st[key] = stride
            a(f"s_mul_i32 s46, s19, {stride}\ns_add_u32 s{r}, s{r}, s46")
            if key[0] == "D": a(f"s_add_u32 s{r}, s{r}, s12")
    for key in defs: gb[key] = regs[key]; st[key] = defs[key][1]
    def share(k, q, n):
        nU = PH[q]["n" + k]
        big = (k == "D") == (which == "A")
        if q in ("3b", "4"): big = (n % 2 == 0) == (which == "A")
        m = (nU + 1) // 2 if big else nU // 2
        return (0, m) if which == "A" else (nU - m, nU)
    def issue(x):
        k, q, n = x["k"], x["q"], x["n"]; nU = PH[q]["n" + k]; tag = (k, q, n); key = (k, q)
        sc = " sc1" if (k == "D" or q == "4") else ""
        g0 = n*2*st[key]; u, u1 = share(k, q, n)
        halo = (k == "D" and q == "1")
        if halo and u == 0:
            A(f"s_add_u32 m0, s{pof[nU]}, {x['addr']}\ns_add_u32 s54, s{gb[key]}, {g0}\ns_sub_u32 s54, s54, s56")
            A(f"buffer_load_dwordx4 v3, s[4:7], s54 offen{sc} lds"); issued.append(tag)
            u = 1
        assert u1 - u <= 4
        gu = u - 1 if halo else u
        A(f"s_add_u32 m0, s{pof[nU]}, {x['addr'] + u*KB}\ns_add_u32 s54, s{gb[key]}, {g0 + gu*KB}")
        if q == "5" and n == 13: A(f"s_mul_i32 s55, s19, {st[key]}\ns_sub_u32 s54, s54, s55")
        for j in range(u1 - u):
            vo = 9 if (key == ("W","1") and u + j == 7) else 3
            if nU == 7 and u + j == 6: A("s_sub_u32 s54, s54, s66")
            A(f"buffer_load_dwordx4 v{vo}, s[4:7], s54 offen offset:{j*KB}{sc} lds"); issued.append(tag)
    def poll(q):
        lab = f"PL{q}"
        A(f"s_cmp_lg_u32 s19, 0\ns_cbranch_scc1 {lab}_done")
        if q == "1": A(f"s_cmp_eq_u32 s14, 1\ns_cbranch_scc1 {lab}_done")
        if emit[0]: stamp(a, r=(8, 19))
        FL = CFG["FLAG"]
        tgt = 1 if FL else {"2": 16}.get(q, 8)
        o = "v56" if q == "2" else "v57"
        ad = f"{o}, s[4:7], s54 offen" if FL else "off, s[4:7], s54"
        if q == "2": A(f"s_lshr_b32 s54, s50, 1\ns_lshl_b32 s54, s54, 7\ns_add_u32 s54, s54, s52")
        elif q in ("3a", "5"): A(f"s_lshl_b32 s54, s50, 7\ns_add_u32 s54, s54, s52\ns_add_u32 s54, s54, {(CB if q == '3a' else CD)*128}")
        elif q == "4": ad = "v20, s[4:7], s52 offen"
        else: ad = "v21, s[4:7], 0 offen"
        A("s_mov_b32 s55, 0")
        if q == "4":
            wait([("p4",)], "p4"); A(f"s_branch {lab}_chk")
        if q == "4" and FL:
            A(f"{lab}:\nbuffer_load_dwordx4 v[60:63], {ad} sc1\ns_waitcnt vmcnt(0)\n{lab}_chk:\nv_and_b32 v60, v60, v61\nv_and_b32 v62, v62, v63\nv_and_b32 v22, v60, v62")
        else: A(f"{lab}:\nbuffer_load_dword v22, {ad} sc1\ns_waitcnt vmcnt(0)\n{lab}_chk:")
        A(f"v_cmp_ne_u32 vcc, {tgt}, v22\ns_cmp_eq_u64 vcc, 0\ns_cbranch_scc1 {lab}_ok")
        A(f"s_sleep {CFG['SLEEP']}\ns_add_u32 s55, s55, 1\ns_cmp_lt_u32 s55, 0x40000\ns_cbranch_scc1 {lab}\n{lab}_ok:")
        if emit[0]: stamp(a, r=(8, 19))
        A(f"{lab}_done:")
    def poll4_issue():
        ld = "buffer_load_dwordx4 v[60:63]" if CFG["FLAG"] else "buffer_load_dword v22"
        A(f"s_cmp_lg_u32 s19, 0\ns_cbranch_scc1 PL4_i\n{ld}, v20, s[4:7], s52 offen sc1\nPL4_i:")
        marks["p4"] = len(issued)
    marks = {}
    def signal(q):
        c, r = {"1": (CA, "s48"), "2": (CB, "s50"), "3a": (CC, "s50"), "4": (CD, "s50"), "5": (CE, "s50")}[q]
        lab = f"SG{q}"
        A(f"s_cmp_lg_u32 s19, 0\ns_cbranch_scc1 {lab}\ns_lshl_b32 s54, {r}, 7\ns_add_u32 s54, s54, s52\ns_add_u32 s54, s54, {c*128}")
        if CFG["FLAG"]: A(f"s_lshl_b32 s55, {'s49' if q == '1' else 's51'}, 2\ns_add_u32 s54, s54, s55")
        A(f"s_mov_b64 exec, 1\n{'buffer_store_dword' if CFG['FLAG'] else 'buffer_atomic_add'} v13, off, s[4:7], s54 sc1\ns_mov_b64 exec, -1\n{lab}:")
    T = 24
    def zsload(js=range(4)):
        for j in js:
            if j: A(f"s_add_u32 s54, s47, {j*4096}")
            A(f"buffer_load_dwordx4 {vr(T+4*j,4)}, v3, s[4:7], s{54 if j else 47} offen sc1"); issued.append(("zs", j))
    waits = {}
    def wait(tags, key):
        if not emit[0]:
            if key == "p4": cnt = min(62, len(issued) - marks["p4"])
            else:
                idx = max([i for i, t in enumerate(issued) if t in tags], default=-1)
                cnt = min(62, len(issued) - 1 - idx) if idx >= 0 else 63
            waits.setdefault(key, {})[it[0]] = cnt
            return
        w0, w1 = waits[key][0], waits[key][0 if key[0] == "ws" else 1]
        if min(w0, w1) >= 40 or not CFG["DW"] and w0 < w1: w0 = w1 = min(w0, w1)
        if w0 != w1:
            lab = a.label("WW")
            A(f"s_cmp_eq_u32 s14, {int(w0 < w1)}\ns_cbranch_scc1 {lab}\ns_waitcnt vmcnt({min(w0, w1)})\n{lab}:")
        if max(w0, w1) < 63: A(f"s_waitcnt vmcnt({max(w0, w1)})")
    def tables(js=range(4)):
        for j in js:
            wait([("zs", j)], ("zs", j))
            b = T + 4*j; t = (10, 11, 12) if j & 1 else (14, 15, 23)
            for k in range(4): A(f"v_mul_f32 v{b+k}, {hex(f2u(1.0/FH))}, v{b+k}")
            for v in (b, b+2): A(f"v_fma_f32 v{v+1}, -v{v}, v{v}, v{v+1}")
            for v in (b, b+2): A(f"v_max_f32 v{v+1}, 0, v{v+1}")
            for v in (b, b+2): A(f"v_add_f32 v{v+1}, {hex(f2u(1e-5))}, v{v+1}")
            for v in (b, b+2): A(f"v_rsq_f32 v{v+1}, v{v+1}")
            A(f"v_cvt_pk_f16_f32 v{t[0]}, v{b}, v{b+2}\nv_cvt_pk_f16_f32 v{b+1}, v{b+1}, v{b+3}\nv_cvt_f32_f16 v{t[1]}, v{t[0]}\nv_cvt_f32_f16_sdwa v{t[2]}, v{t[0]} dst_sel:DWORD dst_unused:UNUSED_PAD src0_sel:WORD_1")
            A(f"ds_write_b32 v16, v{b+1} offset:{RS0+1024*j}\nds_write_b32 v17, v{t[0]} offset:{MU0+2048*j}")
            A(f"v_sub_f32 v{t[1]}, v{b}, v{t[1]}\nv_sub_f32 v{t[2]}, v{b+2}, v{t[2]}\nv_cvt_pk_f16_f32 v{t[1]}, v{t[1]}, v{t[2]}")
            A(f"ds_write_b32 v17, v{t[1]} offset:{MU0+2048*j+64}")
        A("s_waitcnt lgkmcnt(0)")
    WR = 64
    def wsp_load(ms=range(8)):
        if CFG["WS2"]:
            lab = f"WL{which}{ms[0]}"
            A(f"s_cmp_eq_u32 s14, 1\ns_cbranch_scc1 {lab}")
            for m in ms: A(f"buffer_load_dwordx4 {vr(WR+4*m,4)}, v4, s[8:11], s57 offen offset:{512*m}{' nt' if CFG['NT'] & 1 else ''}"); issued.extend([("ws", m)] * (it[0] == 0))
            A(f"{lab}:")
            return
        lab = f"WL{which}"
        A(f"s_cmp_eq_u32 s14, 1\ns_cbranch_scc1 {lab}")
        for m in range(8): A(f"buffer_load_dwordx4 {vr(WR+4*m,4)}, v4, s[8:11], s57 offen offset:{512*m}{' nt' if CFG['NT'] & 1 else ''}")
        A(f"{lab}:")
    def wsp_conv(ms=range(8)):
        lab = f"WC{which}{ms[0]}"
        A(f"s_cmp_eq_u32 s14, 1\ns_cbranch_scc1 {lab}")
        if not CFG["WS2"]: A("s_waitcnt vmcnt(0)")
        for m in ms:
            if CFG["WS2"]: wait([("ws", m)], ("ws", m))
            w = WR + 4*m; t = (96 if CFG["WS2"] else 40) + 8*(m & 1)
            for j in range(4): A(f"v_dot2_f32_bf16 v{t+2*j}, v{w+j}, s67, 0\nv_dot2_f32_bf16 v{t+2*j+1}, v{w+j}, s68, 0")
            for j in range(4): A(f"v_cvt_pk_f16_f32 v{w+j}, v{t+2*j}, v{t+2*j+1}")
            A(f"s_add_u32 s54, s59, {m*32768}")
            for hh in range(2): A(f"buffer_store_dwordx2 {vr(w+2*hh,2)}, v5, s[4:7], s54 offen offset:{256*hh} sc1")
        A(f"{lab}:")
    ev = {}; late = {}; pre = {}
    def at(b, f): ev.setdefault(BIDX[b], []).append(f)
    def lat(b, f): late.setdefault(BIDX[b], []).append(f)
    if which == "B":
        for q in ("1", "2", "4", "5"): at((q, "G"), lambda q=q: signal(q))
        at(("3b", CFG["SIG3"]), lambda: signal("3a"))
    if CFG["WS2"] != 5: pre[BIDX[("2", "G")]] = "s_waitcnt vmcnt(0)"
    if CFG["WS2"]:
        for b, ms in WSS[CFG["WS2"]][1].items(): lat(_b(b), lambda ms=ms: wsp_conv(ms))
        for b, ms in WSS[CFG["WS2"]][0].items():
            if b != -1: lat(_b(b), lambda ms=ms: wsp_load(ms))
        pre[BIDX[("3b", CFG["SIG3"])]] = "s_waitcnt vmcnt(8)"
    else: lat(("1", CFG["WSPL"]), wsp_load); at(("1", "G"), wsp_conv)
    SR = 40
    def stload(q):
        for c in range(3 if q == "1" else 1):
            A(f"s_add_u32 s54, s12, s{(69, 70, 71)[c] if q == '1' else 58}\ns_add_u32 s55, s54, 16384")
            A(f"buffer_load_dwordx2 {vr(SR+4*c,2)}, v6, s[4:7], s54 offen sc1\nbuffer_load_dwordx2 {vr(SR+4*c+2,2)}, v6, s[4:7], s55 offen sc1")
            issued.extend([("st", q)]*2)
    def stcalc(q):
        wait([("st", q)], ("st", q))
        v = SR
        for c in range(3 if q == "1" else 1): A(f"v_pk_add_f32 {vr(v+4*c,2)}, {vr(v+4*c,2)}, {vr(v+4*c+2,2)}")
        if q == "1":
            A(f"v_mov_b32 v{v+6}, v{v+4}\nv_mov_b32 v{v+7}, v{v+5}")
            for k in range(2): A(f"v_permlane32_swap_b32 v{v+k}, v{v+8+k}")
            for k in range(2): A(f"v_permlane32_swap_b32 v{v+4+k}, v{v+6+k}")
            A(f"v_pk_add_f32 {vr(v,2)}, {vr(v,2)}, {vr(v+8,2)}\nv_pk_add_f32 {vr(v+2,2)}, {vr(v+4,2)}, {vr(v+6,2)}")
        else:
            A(f"v_mov_b32 v{v+2}, v{v}\nv_mov_b32 v{v+3}, v{v+1}")
            for k in range(2): A(f"v_permlane32_swap_b32 v{v+k}, v{v+2+k}")
            A(f"v_pk_add_f32 {vr(v,2)}, {vr(v,2)}, {vr(v+2,2)}\nv_mov_b32 v{v+2}, v{v}\nv_mov_b32 v{v+3}, v{v+1}")
        for k in range(2): A(f"v_permlane16_swap_b32 v{v+k}, v{v+2+k}")
        A(f"v_pk_add_f32 {vr(v,2)}, {vr(v,2)}, {vr(v+2,2)}")
        t = v + 2
        A(f"v_mul_f32 v{t}, {hex(f2u(1.0/640))}, v{v}\nv_mul_f32 v{v+1}, {hex(f2u(1.0/640))}, v{v+1}\nv_fma_f32 v{v+1}, -v{t}, v{t}, v{v+1}")
        A(f"v_max_f32 v{v+1}, 0, v{v+1}\nv_add_f32 v{v+1}, {hex(f2u(1e-5))}, v{v+1}\nv_rsq_f32 v{v}, v{v+1}")
        A(f"v_mul_f32 v{v+1}, -v{t}, v{v}")
        A(f"ds_write2_b32 v{7 if q == '1' else 18}, v{v}, v{v+1} offset0:0 offset1:{NM0//4}\ns_waitcnt lgkmcnt(0)")
    for q in ("1", "3a"):
        lat((q, CFG["STL"]), lambda q=q: stload(q)); lat((q, 8), lambda q=q: stcalc(q))
    if which == "A":
        if not CFG["CP"]: lat(("1","G"), lambda: poll("2")); lat(("2","G"), lambda: poll("3a")); lat(("4","G"), lambda: poll("5")); lat(("5","G"), lambda: poll("1"))
        at(("3b", CFG["G4"] - CFG["POLL4"]), poll4_issue); lat(("3b", CFG["G4"] - 1), lambda: poll("4"))
    if CFG["TSP"]:
        g4 = ("3b", CFG["G4"])
        at(g4, lambda: zsload([0])); lat(g4, lambda: zsload([1, 2, 3])); lat(g4, lambda: tables([0]))
        for j in (1, 2, 3): lat(("4", CFG["TSP"]*j), lambda j=j: tables([j]))
    else: at(("3b", CFG["G4"]), zsload); lat(("3b", min(10, CFG["G4"] + CFG["TBL"])), tables)
    def issue_at(bs):
        xs = [x for x in al if x["after"] in bs]
        xs.sort(key=lambda x: (x["use"] - x["after"], x["k"]))
        for x in xs: issue(x)
    def body():
        if not (CFG["ES"] and it[0] == 0 and not emit[0]): issue_at((-1,))
        if CFG["ES"]: A(f"{L}_in:")
        if CFG["WS2"] and -1 in WSS[CFG["WS2"]][0]: wsp_load(WSS[CFG["WS2"]][0][-1])
        for b in range(NB):
            tags = [(x["k"], x["q"], x["n"]) for x in al if x["use"] == b]
            if b in pre: A(pre[b])
            if emit[0] and isinstance(BARS[b][1], int) and BARS[b][1] < 30: stamp2(a, BARS[b][0], (8, 19))
            if tags: wait(tags, ("u", b))
            if emit[0] and isinstance(BARS[b][1], int) and BARS[b][1] < 30: stamp2(a, BARS[b][0], (8, 19))
            A("s_barrier")
            for f in ev.get(b, []): f()
            if b < NB - 1: issue_at((b, b - NB))
            for f in late.get(b, []): f()
    def pro():
        for x in sorted(al, key=lambda x: (x["use"], x["k"] == "W")) if CFG["ES"] else al:
            if x["after"] < (0 if CFG["ES"] else -1): issue(x)
    emit[0] = False
    pro(); body(); it[0] = 1; body()
    issued.clear(); emit[0] = True; it[0] = 0
    es = 2 if CFG["ES"] else 1
    setup(order[:es]); pro(); setup(order[es:])
    if CFG["FLAG"]:
        a(f"v_lshrrev_b32 v20, 1, v0\nv_lshlrev_b32 v20, 7, v20\nv_and_b32 v13, 1, v0\nv_lshl_add_u32 v20, v13, 4, v20\nv_add_u32 v20, {CC*128}, v20\nv_mov_b32 v13, 1")
        a("v_lshlrev_b32 v56, 2, v2\nv_and_b32 v57, 28, v56")
        a(f"v_min_u32 v21, 2, v1\ns_lshl_b32 s46, s48, 1\nv_add_u32 v21, s46, v21\nv_max_u32 v21, 1, v21\nv_lshl_add_u32 v21, v21, 7, v57\nv_add_u32 v21, {(CE-1)*128 + CNT}, v21")
    else:
        a(f"v_and_b32 v20, 31, v0\nv_lshlrev_b32 v20, 7, v20\nv_add_u32 v20, {CC*128}, v20\nv_mov_b32 v13, 1")
        a(f"v_min_u32 v21, 2, v0\ns_lshl_b32 s46, s48, 1\nv_add_u32 v21, s46, v21\nv_max_u32 v21, 1, v21\nv_lshlrev_b32 v21, 7, v21\nv_add_u32 v21, {(CE-1)*128 + CNT}, v21")
    a("v_bfe_u32 v18, v0, 1, 2\nv_lshlrev_b32 v17, 4, v18\nv_bfe_u32 v18, v0, 3, 1\nv_lshl_add_u32 v17, v18, 3, v17\nv_and_b32 v18, 1, v0\nv_lshl_add_u32 v17, v18, 2, v17")
    a(f"s_sub_u32 s46, s13, 4\ns_lshl_b32 s47, s46, 10\ns_add_u32 s47, s47, {IT0+ZS}\ns_lshl_b32 s54, s46, 2\nv_add_u32 v18, s54, v1\nv_lshl_add_u32 v16, v18, 6, v17\nv_lshl_add_u32 v17, v18, 7, v17")
    a.srd(8, 20, 2048*2048*2)
    a("v_lshrrev_b32 v10, 3, v0\nv_and_b32 v7, 7, v0\nv_lshlrev_b32 v7, 4, v7\nv_lshl_add_u32 v4, v10, 12, v7")
    a("v_lshlrev_b32 v5, 4, v10\nv_and_b32 v11, 1, v0\nv_lshl_add_u32 v5, v11, 9, v5\nv_and_b32 v11, 4, v0\nv_lshl_add_u32 v5, v11, 10, v5\nv_and_b32 v11, 2, v0\nv_lshl_add_u32 v5, v11, 2, v5")
    a(f"s_lshl_b32 s57, s50, 18\ns_lshl_b32 s54, s46, 13\ns_add_u32 s59, s57, s54\ns_lshr_b32 s54, s51, 1\ns_lshl_b32 s54, s54, 10\ns_add_u32 s59, s59, s54\ns_and_b32 s54, s51, 1\ns_lshl_b32 s54, s54, 7\ns_add_u32 s59, s59, s54\ns_add_u32 s59, s59, {WSP}")
    a("s_lshl_b32 s54, s46, 7\ns_add_u32 s57, s57, s54\ns_lshl_b32 s54, s51, 15\ns_add_u32 s57, s57, s54\ns_mov_b32 s67, 0x4280\ns_mov_b32 s68, 0x42800000")
    a("v_lshlrev_b32 v6, 15, v1\nv_lshl_add_u32 v6, v2, 3, v6\ns_lshl_b32 s54, s46, 6\nv_lshlrev_b32 v18, 2, v2\nv_add_u32 v18, s54, v18")
    a("v_and_b32 v7, 1, v1\nv_lshl_add_u32 v7, v7, 8, v18\nv_lshlrev_b32 v10, 2, v2\nv_add_u32 v10, 512, v10\nv_cmp_eq_u32 vcc, 2, v1\nv_cndmask_b32 v7, v7, v10, vcc")
    a(f"s_lshl_b32 s71, s48, 10\ns_lshl_b32 s54, s46, 7\ns_add_u32 s69, s71, s54\ns_add_u32 s70, s69, {STIN+384}\ns_max_u32 s69, s69, 128\ns_add_u32 s69, s69, {STIN-128}\ns_add_u32 s71, s71, {STIN+896}")
    a(f"s_lshl_b32 s58, s50, 9\ns_add_u32 s58, s58, s54\ns_add_u32 s58, s58, {STMID}")
    if CFG["CODEPF"] > 1 and which == "B":
        lab = a.label("CPM")
        a(f"s_getpc_b64 s[60:61]\n{lab}:\ns_sub_u32 s60, s60, {lab}-main_kernel\ns_subb_u32 s61, s61, 0")
        a(f"s_lshl_b32 s54, s53, 1\ns_add_u32 s54, s54, s19\ns_mul_i32 s54, s54, 1536\nv_min_u32 v10, 11, v0\nv_lshlrev_b32 v10, 7, v10\nv_add_u32 v10, s54, v10")
        a(f"v_min_u32 v10, MAIN_END-main_kernel-4, v10\nglobal_load_dword v11, v10, s[60:61]")
    if CFG["ES"]: a(f"s_branch {L}_in")
    a(f"{L}_loop:")
    body()
    a(f"s_cmp_eq_u32 s14, 1\ns_cbranch_scc1 FINL\ns_mov_b32 s14, 1\ns_add_u32 s47, s47, {ITS}\ns_add_u32 s12, s12, {ITS}\ns_add_u32 s52, s52, 32768")
    for j in range(5): a(f"s_add_u32 s{30+j}, s{30+j}, {ITS}")
    a(f"s_branch {L}_loop")

def cpoll(a, q):
    if not CFG["CP"]: return
    lab = f"CPL{q}"; tgt = {"2": 16}.get(q, 8); D = CFG["PD"]
    a(f"s_cmp_lg_u32 s13, {CFG['CP']-1}\ns_cbranch_scc1 {lab}_ok")
    if q == "1":
        a(f"s_lshl_b32 s72, s48, 8\ns_add_u32 s72, s72, {(CE-1)*128 + CNT}\ns_min_u32 s73, s48, 1\ns_or_b32 exec_lo, s73, 0x10100\ns_mov_b32 exec_hi, 0")
        ad = "v3, s[4:7], s72 offen"
    else:
        a(f"s_lshl_b32 s73, s14, 15\ns_add_u32 s73, s73, {CNT + {'2': CA, '3a': CB, '5': CD}[q]*128}")
        a(("s_lshr_b32 s72, s50, 1\ns_lshl_b32 s72, s72, 7" if q == "2" else "s_lshl_b32 s72, s50, 7") + "\ns_add_u32 s72, s72, s73\ns_mov_b64 exec, 1")
        ad = "off, s[4:7], s72"
    sl = f"s_sleep {CFG['SLEEP']}"
    a("s_mov_b32 s73, 0")
    for k in range(D - 1): a(f"buffer_load_dword v{253+k}, {ad} sc1\ns_sleep {CFG['PS']}")
    a(f"{lab}:")
    for k in range(D):
        a(f"buffer_load_dword v{253+(k+D-1)%D}, {ad} sc1\ns_waitcnt vmcnt({D-1})")
        a(f"v_cmp_ne_u32 vcc, {tgt}, v{253+k}\ns_cmp_eq_u64 vcc, 0\ns_cbranch_scc1 {lab}_x\n{sl}")
    a(f"s_add_u32 s73, s73, 1\ns_cmp_lt_u32 s73, 0x20000\ns_cbranch_scc1 {lab}\n{lab}_x:\ns_mov_b64 exec, -1\n{lab}_ok:")
def weave(a, lg, ms, rd, va=(), rpm=1, vpm=0, vskip=0):
    rd = list(rd); va = list(va); i = j = 0; acc = 0.0
    for mi, (txt, nd) in enumerate(ms):
        lg.need(nd); a(txt)
        acc += rpm
        while acc >= 1 and i < len(rd): lg.op(*rd[i]); i += 1; acc -= 1
        for _ in range(vpm if mi >= vskip else 0):
            if j < len(va):
                if va[j]: lg.need(va[j][1]); a(va[j][0])
                j += 1
    while i < len(rd): lg.op(*rd[i]); i += 1
    while j < len(va): lg.need(va[j][1]); a(va[j][0]); j += 1

def mainloop(a, lg, q, NBUF, reads, mf, hooks=None, last_hook=None, rpm=2, prebar=None, tailf=None, cv=None, roll=None, dz=None):
    ph = PH[q]; nks = ph["nks"]; nst = ph["nst"]
    hooks = hooks or {}; prebar = prebar or {}
    for n in range(nst):
        if roll:
            n0, per, lab, inc = roll
            if n == n0: assert not dz; a(f"s_mov_b32 s37, {(nst - n0)//per}\n{lab}:"); st0 = [set(x) for x in lg.out]
            if n == n0 + per:
                assert st0 == lg.out and (nst - n0) % per == 0
                for k in "DW": assert all(ph["addr"+k][m] == ph["addr"+k][m-per] for m in range(n, nst))
                a(f"{inc}\ns_sub_u32 s37, s37, 1\ns_cmp_lg_u32 s37, 0\ns_cbranch_scc1 {lab}")
                break
        if not ph["lag"] or n == 0: lg.drain()
        if n in prebar: a(prebar[n])
        if n == 0: stamp(a, lg)
        if n == 0 and q in ("2", "3a", "5"): cpoll(a, q); a("s_barrier")
        if n < 30: stamp2(a, q)
        a("s_barrier")
        if n < 30: stamp2(a, q)
        if n == 0: stamp(a, lg)
        if n in hooks: hooks[n]()
        ts = [t for t in (2*n, 2*n+1) if t < nks]
        if NBUF == 2:
            for t in ts:
                weave(a, lg, mf(t-1, (t-1) % 2) if t >= 1 else [], reads(t, t % 2), rpm=rpm)
        elif cv:
            r0, r1 = reads(2*n, (2*n) % 4), reads(2*n+1, (2*n+1) % 4)
            rd = r0[:3] + r1[:3] + r0[3:] + r1[3:]
            if n == 0:
                weave(a, lg, [], rd, cv(0, 0))
            else:
                h = len(rd) // 2
                def mix(c):
                    if not dz: return c, 1
                    o = []
                    for e in c:
                        o.append(e)
                        for _ in range(CFG["DZP"]): o.append((dz.pop(0), []) if dz else None)
                    return o, 1 + CFG["DZP"]
                for tt, rr in ((2*n-2, rd[:h]), (2*n-1, rd[h:])):
                    va, vpm = mix(cv(tt+1, (tt+1) % 4))
                    weave(a, lg, mf(tt, tt % 4), rr, va, rpm=1, vpm=vpm)
        else:
            rd = sum([reads(t, t % 4) for t in ts], [])
            ms = sum([mf(t, t % 4) for t in (2*n-2, 2*n-1) if t >= 0], [])
            weave(a, lg, ms, rd, rpm=rpm)
    tail = [nks-1] if NBUF == 2 else [t for t in (2*nst-2, 2*nst-1) if t < nks]
    extra = last_hook() if last_hook else []
    if tailf: tailf()
    else: weave(a, lg, sum([mf(t, t % NBUF) for t in tail], []), extra, rpm=rpm)
    if q != "4": stamp2(a, q)
    a("s_barrier")
    if q != "4": stamp2(a, q)
    stamp(a, lg)
def poolloop(a, lg, q, regions, spare, frags, mfs, last, L, rpm):
    ph = PH[q]; nks = ph["nks"]; nst = ph["nst"]
    RD = [(t, nm, fn) for t in range(nks) for nm, fn in frags(t)]
    MS = [(t, fn, nms) for t in range(nks) for fn, nms in mfs(t)]
    lastuse = {}
    for i, (t, fn, nms) in enumerate(MS):
        for nm in nms: lastuse[(t, nm)] = i
    per = len(MS) // nst
    free = [list(regions[0]), list(regions[1]), list(spare)]
    home = {r: k for k in range(3) for r in free[k]}
    loc = {}; ri = [0]; last = list(last)
    def rd(tmax, force=False):
        if ri[0] >= len(RD) or RD[ri[0]][0] > tmax: return False
        t, nm, fn = RD[ri[0]]
        for k in (t & 1, 2) + ((1 - (t & 1),) if force else ()):
            if free[k]:
                r = free[k].pop(0); loc[(t, nm)] = r; lg.op(*fn(r)); ri[0] += 1; return True
        assert not force
        return False
    def rdlast():
        busy = {x for r in loc.values() for x in R(r, 4)}
        for k, (txt, regs) in enumerate(last):
            if not busy & set(regs): lg.op(txt, regs); last.pop(k); return True
        return False
    mi = 0
    for n in range(nst):
        lg.drain()
        if n == 0:
            stamp(a, lg)
            if q == "1": a("s_cmp_eq_u32 s14, 0\ns_cbranch_scc1 P1_nof"); cpoll(a, q); a("s_barrier\nP1_nof:")
            elif q != "3b": cpoll(a, q); a("s_barrier")
        stamp2(a, q); a("s_barrier"); stamp2(a, q)
        if n == 0: stamp(a, lg)
        tmax = 2*n + 1; acc_ = 0.0
        end = per*(n+1) - L if n < nst - 1 else len(MS)
        if n == 0:
            for _ in range(len(frags(0))): rd(0)
        while mi < end:
            t, fn, nms = MS[mi]
            while any((t, nm) not in loc for nm in nms): rd(tmax, True)
            lg.need([x for nm in nms for x in R(loc[(t, nm)], 4)])
            a(fn({nm: loc[(t, nm)] for nm in nms}))
            for nm in nms:
                if lastuse[(t, nm)] == mi: r = loc.pop((t, nm)); free[home[r]].append(r)
            mi += 1; acc_ = min(acc_ + rpm, 2*rpm)
            while acc_ >= 1 and (rd(tmax) or (ri[0] >= len(RD) and rdlast())): acc_ -= 1
        while rd(tmax, True): pass
    while rdlast(): pass
    assert not last
    stamp2(a, q); a("s_barrier"); stamp2(a, q)
    stamp(a, lg)
class Cap(Asm):
    def __call__(s, t): s.lines += [l.strip() for l in t.split("\n") if l.strip()]
def gbar(a, nxt, first=False):
    if not first: stamp(a)
    c = Cap(); nxt(c); L = c.lines
    ld = [i for i, l in enumerate(L) if l.startswith("buffer_load")]
    K = max(ld[-1] + 1, CFG["SUK"])
    while K < len(L) and L[K].startswith("s_cselect"): K += 1
    for l in L[:K]: a(l)
    if first: a("s_cmp_eq_u32 s14, 0\ns_cbranch_scc1 P1_nog")
    a(f"s_waitcnt vmcnt({len(ld)})")
    stamp(a)
    a("s_barrier")
    if first: a("P1_nog:")
    for l in L[K:]: a(l)
    a("s_waitcnt vmcnt(0)")

def xreduce(a, op, v, t):
    a(f"v_mov_b32 v{t}, v{v}\nv_permlane32_swap_b32 v{t}, v{v}\n{op} v{v}, v{v}, v{t}")
    a(f"v_mov_b32 v{t}, v{v}\nv_permlane16_swap_b32 v{t}, v{v}\n{op} v{v}, v{v}, v{t}")
def bc2(hi): return "op_sel:[0,1] op_sel_hi:[1,1]" if hi else "op_sel:[0,0] op_sel_hi:[1,0]"
def bc3(hi): return "op_sel:[0,1,0] op_sel_hi:[1,1,1]" if hi else "op_sel:[0,0,0] op_sel_hi:[1,0,1]"
def fix_T(a, acc, cs, st, tmp):
    for h in (0, 2): a(f"v_pk_mul_f32 {vr(tmp+h,2)}, {vr(cs+h,2)}, {vr(st,2)} {bc2(1)}")
    for h in (0, 2): a(f"v_pk_fma_f32 {vr(acc+h,2)}, {vr(acc+h,2)}, {vr(st,2)}, {vr(tmp+h,2)} {bc3(0)}")
def fix_N(a, acc, csreg, rs, nm, tmp):
    cp = csreg & ~1
    for h in (0, 2): a(f"v_pk_mul_f32 {vr(tmp+h,2)}, {vr(nm+h,2)}, {vr(cp,2)} {bc2(csreg & 1)}")
    for h in (0, 2): a(f"v_pk_fma_f32 {vr(acc+h,2)}, {vr(acc+h,2)}, {vr(rs+h,2)}, {vr(tmp+h,2)}")
def cvt2(a, d, acc, ty="bf16"):
    a(f"v_cvt_pk_{ty}_f32 v{d}, v{acc}, v{acc+1}\nv_cvt_pk_{ty}_f32 v{d+1}, v{acc+2}, v{acc+3}")
def rdD(q, t, dst, bD, addr, v8, lo):
    if t < SPLIT[q]: return rd128(dst, bD(addr))
    o = (addr - lo) // 512
    assert (addr - lo) % 512 == 0 and o + 1 < 256
    return (f"ds_read2st64_b64 {vr(dst,4)}, v{v8} offset0:{o} offset1:{o+1}", R(dst,4))
def rd128(dst, ba): return (f"ds_read_b128 {vr(dst,4)}, v{ba[0]} offset:{ba[1]}", R(dst,4))

P1C = dict(ACC=32, FB=104, X=208)
def setup1(a):
    q = "1"; ACC = P1C["ACC"]; X = P1C["X"]
    dlo, dhi = rng(q, "D"); wlo, whi = rng(q, "W")
    a(f"s_lshl_b32 s34, s49, 9\ns_add_u32 s34, s34, {CSQ}\ns_add_u32 s35, s34, 8192\nv_lshlrev_b32 v19, 3, v0")
    a(f"buffer_load_dwordx2 {vr(X,2)}, v19, s[4:7], s34 offen\nbuffer_load_dwordx2 {vr(X+2,2)}, v19, s[4:7], s35 offen")
    a(f"s_lshl_b32 s30, s13, 11\ns_add_u32 s30, s30, {KB}\nv_add_u32 v13, s30, v3")
    P1C["bD"] = mkbase(a, [4, 5], dlo, dhi, 13); P1C["bH"] = mkbase(a, [6, 7], dlo, dhi, 3); P1C["bW"] = mkbase(a, [8], wlo, whi, 3)
    a(f"v_add_u32 v252, {dlo}, v19\nv_add_u32 v11, s30, v252")
    a("s_min_u32 s31, s13, 2\ns_lshl_b32 s32, s31, 1\ns_add_u32 s32, s32, 1\ns_min_u32 s32, s32, 4\ns_add_u32 s33, s31, 5")
    a("s_lshl_b32 s34, s32, 10\nv_add_u32 v9, s34, v8\ns_lshl_b32 s34, s33, 10\nv_add_u32 v10, s34, v8")
    BI = X+26; BIa = X+34; ONES = X+38
    a("s_mov_b32 s40, 0xffff\ns_mov_b32 s41, 0\ns_mov_b32 s42, 0xffff0000\ns_mov_b32 s43, 0")
    a("v_lshlrev_b32 v16, 2, v1\nv_sub_u32 v16, v2, v16\nv_mov_b32 v17, 0xff800000")
    for kt in range(2):
        for r in range(4):
            a(f"v_add_u32 v18, {16 - 16*kt - r}, v16\nv_and_b32 v18, 0xfffffff1, v18\nv_cmp_eq_u32 vcc, 0, v18\nv_cndmask_b32 v{BI+4*kt+r}, v17, 0, vcc")
    a("s_add_u32 s34, s48, s13\ns_cmp_eq_u32 s34, 0\ns_cselect_b64 s[38:39], -1, 0")
    for r in range(4): a(f"v_cndmask_b32 v{BIa+r}, v{BI+r}, v17, s[38:39]\nv_mov_b32 v{ONES+r}, 0x3f803f80")
    c = (DH ** -0.5) * math.log2(math.e)
    a(f"s_mov_b32 s44, {hex(f2u(c))}\ns_mov_b32 s45, {hex(f2u(c))}")
    a(f"s_lshl_b32 s46, s49, 17\ns_lshl_b32 s47, s48, 13\ns_lshl_b32 s37, s13, 11\ns_add_u32 s47, s47, s37\ns_add_u32 s47, s47, s12\ns_add_u32 s47, s47, {OB}\ns_add_u32 s46, s46, s47")
    a(f"s_lshr_b32 s37, s49, 2\ns_add_u32 s37, s37, 16\ns_lshl_b32 s37, s37, 17\ns_add_u32 s47, s47, s37\ns_and_b32 s37, s49, 3\ns_lshl_b32 s37, s37, 8\ns_add_u32 s47, s47, s37")
    a("s_lshl_b32 s36, s13, 7\nv_lshlrev_b32 v18, 2, v2\nv_add_u32 v13, s36, v18\nv_lshlrev_b32 v23, 4, v1\nv_add_u32 v14, s36, v23")
    a("s_lshl_b32 s34, s32, 6\nv_add_u32 v15, s34, v23\ns_lshl_b32 s34, s33, 6\nv_add_u32 v12, s34, v18")
    a("s_lshl_b32 s34, s31, 9\nv_add_u32 v20, s34, v19\ns_mul_i32 s34, s13, 3072\nv_add_u32 v21, s34, v19\nv_or_b32 v22, 256, v21")
def cons1(a):
    q = "1"; lg = LG(a)
    ACC = P1C["ACC"]; FB = P1C["FB"]; X = P1C["X"]; bD, bH, bW = P1C["bD"], P1C["bH"], P1C["bW"]
    def acc(t, x): return ACC + 4*(2*t + x)
    accHT, accHV = ACC + 64, ACC + 68
    dlo, dhi = rng(q, "D")
    BI = X+26; BIa = X+34; ONES = X+38
    a(f"v_pk_add_f32 {vr(X,2)}, {vr(X,2)}, {vr(X+2,2)}")
    lg.op(f"ds_write_b64 v19, {vr(X,2)} offset:{CS0}")
    def frags(t):
        d0 = uaddr(q, "D", t, 0); w0 = uaddr(q, "W", t, 0)
        out = [("Ah", lambda r: rdD(q, t, r, bH, d0, 252, dlo)), ("BT", lambda r: rd128(r, (9, bW(w0)[1]))), ("BV", lambda r: rd128(r, (10, bW(w0)[1])))]
        As = [("A0", lambda r: rdD(q, t, r, bD, d0, 11, dlo)), ("A1", lambda r: rdD(q, t, r, bD, d0+KB, 11, dlo))]
        Bs = [(f"B{u}", lambda r, u=u: rd128(r, bW(w0+u*KB))) for u in range(8)]
        if t == 19: return out + As[1:] + Bs + As[:1]
        return out + [As[0], Bs[0], As[1]] + Bs[1:]
    def mfs(t):
        out = []; C0 = "0" if t == 0 else None
        for u in range(8):
            for x in range(2):
                A, B = f"A{x}", f"B{u}"
                out.append((lambda m, u=u, x=x, A=A, B=B: mfma(acc(u,x), m[B], m[A], C0) if u < 5 else mfma(acc(u,x), m[A], m[B], C0), (A, B)))
        h = [(lambda m: mfma(accHT, m["BT"], m["Ah"], C0), ("BT", "Ah")), (lambda m: mfma(accHV, m["Ah"], m["BV"], C0), ("Ah", "BV"))]
        if t == 19: return h + out[1::2] + out[0::2]
        return h + out
    E = FB
    stT = [E, E+2, E+4]; rsN = [E+8, E+12, E+16]; nmN = [E+20, E+24, E+28]
    csT = [E+32, E+36, E+40, E+44, E+48]; csHT = X
    csV = [X+4, X+5, X+6]; csHV = X+7
    def last_hook():
        out = []
        for x in (2, 1, 0):
            va, vb, o = (18, 23, 0) if x == 2 else (13, 14, 64+64*x)
            out.append((f"ds_read2_b32 {vr(stT[x],2)}, v{va} offset0:{o//4} offset1:{(NM0+o)//4}", R(stT[x],2)))
            out.append(rd128(rsN[x], (vb, o))); out.append(rd128(nmN[x], (vb, NM0+o)))
            if x == 2:
                out.append(rd128(csHT, (15, CS0))); out.append((f"ds_read_b32 v{csHV}, v12 offset:{CS0}", [csHV]))
            if x == 1:
                for t in range(5): out.append(rd128(csT[t], (23, CS0+64*t)))
                for t in range(3): out.append((f"ds_read_b32 v{csV[t]}, v18 offset:{CS0+64*(5+t)}", [csV[t]]))
        return out
    poolloop(a, lg, q, [[FB+52*b+4*k for k in range(13)] for b in range(2)], [X+8, X+12, X+16, X+20, 24, 28], frags, mfs, last_hook(), CFG["L1"], CFG["RPM1"]/4)
    lg.drain()
    G = FB + 52
    QF = {(0,0): G, (1,0): G+4, (0,1): G+8, (1,1): G+12}
    KF = {(0,0): G+16, (1,0): G+20, (0,1): G+24, (1,1): G+28, (0,'p'): G+32, (1,'p'): G+36}
    VF = [X+8, X+14, X+20]
    TMP = G+40; HT, HV = G+44, G+46; T4r = G+48; TM2 = 24
    def prep_kv(x):
        for k, t in enumerate((1, 3, 4)): fix_T(a, acc(t,x), csT[t], stT[x], (TMP, TM2)[k & 1])
        for t in range(3): fix_N(a, acc(5+t,x), csV[t], rsN[x], nmN[x], (TM2, TMP)[t & 1])
        cvt2(a, KF[(0,x)], acc(1,x)); cvt2(a, KF[(1,x)], acc(3,x)); cvt2(a, T4r + 2*x, acc(4,x))
        for t in range(3): cvt2(a, VF[t] + 2 + 2*x, acc(5+t,x))
    def prep_q(x):
        for k, t in enumerate((0, 2)): fix_T(a, acc(t,x), csT[t], stT[x], (TMP, TM2)[k & 1])
        T4 = T4r + 2*x
        for j in range(2):
            a(f"v_mov_b32 v{KF[(0,x)]+2+j}, v{T4+j}\nv_mov_b32 v{KF[(1,x)]+2+j}, v{T4+j}")
        cvt2(a, QF[(0,x)], acc(0,x)); cvt2(a, QF[(1,x)], acc(2,x))
        for j in range(2): a(f"v_permlane32_swap_b32 v{KF[(0,x)]+2+j}, v{KF[(1,x)]+2+j}")
        for j in range(2):
            a(f"v_cndmask_b32 v{QF[(0,x)]+2+j}, 0, v{T4+j}, s[40:41]\nv_cndmask_b32 v{QF[(1,x)]+2+j}, 0, v{T4+j}, s[42:43]")
        for j in range(2): a(f"v_mov_b32 v{KF[(0,x)]+2+j}, v{KF[(1,x)]+2+j}")
    fix_T(a, accHT, csHT, stT[2], TMP); fix_N(a, accHV, csHV, rsN[2], nmN[2], TM2)
    cvt2(a, HT, accHT); cvt2(a, HV, accHV)
    a(f"ds_write_b64 v20, {vr(HT,2)} offset:4096\nds_write_b64 v20, {vr(HV,2)} offset:{4096+1536}")
    prep_kv(1)
    for k, r in enumerate([KF[(0,1)], KF[(1,1)], T4r+2, VF[0]+4, VF[1]+4, VF[2]+4]):
        a(f"ds_write_b64 v21, {vr(r,2)} offset:{4096+3072+512*k}")
    prep_kv(0)
    a("s_waitcnt lgkmcnt(0)\ns_barrier")
    lg.op(f"ds_read_b64 {vr(KF[(0,'p')],2)}, v21 offset:4096", R(KF[(0,'p')],2))
    lg.op(f"ds_read_b64 {vr(KF[(1,'p')],2)}, v21 offset:{4096+512}", R(KF[(1,'p')],2))
    lg.op(f"ds_read_b64 {vr(KF[(0,'p')]+2,2)}, v22 offset:{4096+1024}", R(KF[(0,'p')]+2,2))
    lg.op(f"ds_read_b64 {vr(KF[(1,'p')]+2,2)}, v22 offset:{4096+1024}", R(KF[(1,'p')]+2,2))
    for t in range(3): lg.op(f"ds_read_b64 {vr(VF[t],2)}, v21 offset:{4096+1536+512*t}", R(VF[t],2))
    prep_q(1); prep_q(0)
    lg.drain()
    XS = (1, 0)
    Wb = {1: ACC, 0: ACC + 36}
    Sr = {(x,h): Wb[x] + 8*h for x in XS for h in range(2)}
    M = {(x,h): Wb[x] + 16 + 2*h for x in XS for h in range(2)}
    PF = {(x,h): Wb[x] + 20 + 4*h for x in XS for h in range(2)}
    XH = [(x,h) for x in XS for h in range(2)]
    for (x,h) in XH:
        pk = 'p' if x == 0 else 0
        a(mfma(Sr[x,h], KF[(h,pk)], QF[(h,x)], "0")); a(mfma(Sr[x,h]+4, KF[(h,x)], QF[(h,x)], "0"))
    for (x,h) in XH:
        bp = BIa if x == 0 else BI
        for j in range(4):
            b = (bp + 2*j) if j < 2 else (BI + 2*j)
            a(f"v_pk_fma_f32 {vr(Sr[x,h]+2*j,2)}, {vr(Sr[x,h]+2*j,2)}, s[44:45], {vr(b,2)}")
        s_, m = Sr[x,h], M[x,h]
        a(f"v_max3_f32 v{m}, v{s_}, v{s_+1}, v{s_+2}\nv_max3_f32 v{m+1}, v{s_+3}, v{s_+4}, v{s_+5}\nv_max3_f32 v{m}, v{m}, v{s_+6}, v{s_+7}\nv_max_f32 v{m}, v{m}, v{m+1}")
    for sw in ("v_permlane32_swap_b32", "v_permlane16_swap_b32"):
        for k in XH: a(f"v_mov_b32 v{M[k]+1}, v{M[k]}")
        for k in XH: a(f"{sw} v{M[k]+1}, v{M[k]}")
        for k in XH: a(f"v_max_f32 v{M[k]}, v{M[k]}, v{M[k]+1}")
    for x in XS:
        for h in range(2):
            k = (x,h)
            for j in range(4):
                a(f"v_pk_add_f32 {vr(Sr[k]+2*j,2)}, {vr(Sr[k]+2*j,2)}, {vr(M[k],2)} op_sel:[0,0] op_sel_hi:[1,0] neg_lo:[0,1] neg_hi:[0,1]")
            for j in range(8): a(f"v_exp_f32 v{Sr[k]+j}, v{Sr[k]+j}")
        for h in range(2):
            cvt2(a, PF[x,h], Sr[x,h]); cvt2(a, PF[x,h]+2, Sr[x,h]+4)
        vo = 2*x; W = Wb[x]
        L0, L1, O0, O1a, O1b, O2 = W+28, W+32, W, W+4, W+8, W+12
        a(mfma(L0, ONES, PF[x,0], "0")); a(mfma(L1, ONES, PF[x,1], "0"))
        a(mfma(O0, VF[0]+vo, PF[x,0], "0")); a(mfma(O1a, VF[1]+vo, PF[x,0], "0"))
        a(mfma(O1b, VF[1]+vo, PF[x,1], "0")); a(mfma(O2, VF[2]+vo, PF[x,1], "0"))
    for x in XS:
        W = Wb[x]
        L0, L1, O0, O1a, O1b, O2 = W+28, W+32, W, W+4, W+8, W+12
        a(f"v_rcp_f32 v{L0}, v{L0}\nv_rcp_f32 v{L1}, v{L1}")
        for j in range(4): a(f"v_cndmask_b32 v{O1a+j}, v{O1b+j}, v{O1a+j}, s[40:41]")
        a(f"v_cndmask_b32 v{L0+1}, v{L1}, v{L0}, s[40:41]")
        for j in (0, 2): a(f"v_pk_mul_f32 {vr(O0+j,2)}, {vr(O0+j,2)}, {vr(L0,2)} {bc2(0)}")
        for j in (0, 2): a(f"v_pk_mul_f32 {vr(O1a+j,2)}, {vr(O1a+j,2)}, {vr(L0,2)} {bc2(1)}")
        for j in (0, 2): a(f"v_pk_mul_f32 {vr(O2+j,2)}, {vr(O2+j,2)}, {vr(L1,2)} {bc2(0)}")
        cvt2(a, PF[x,0], O0); cvt2(a, PF[x,0]+2, O1a); cvt2(a, PF[x,1], O2)
        a(f"buffer_store_dwordx4 {vr(PF[x,0],4)}, v3, s[4:7], s46 offen offset:{x*KB} sc1")
        a(f"s_mov_b64 exec, 0xffffffff\nbuffer_store_dwordx2 {vr(PF[x,1],2)}, v19, s[4:7], s47 offen offset:{x*KB} sc1\ns_mov_b64 exec, -1")
    gbar(a, lambda c: setup25(c, "2"))

P25 = {}
def setup25(a, q):
    X = 160
    dlo, dhi = rng(q, "D"); wlo, whi = rng(q, "W")
    a("v_lshlrev_b32 v8, 3, v0")
    a("s_lshl_b32 s33, s50, 2\ns_add_u32 s33, s33, s13\ns_lshl_b32 s34, s33, 10")
    a("s_lshl_b32 s31, s51, 18\ns_add_u32 s31, s31, s34")
    a("s_lshr_b32 s32, s51, 1\ns_add_u32 s32, s32, 16\ns_lshl_b32 s32, s32, 17\ns_add_u32 s32, s32, s34\ns_and_b32 s35, s51, 1\ns_lshl_b32 s35, s35, 9\ns_add_u32 s32, s32, s35")
    src = XIN if q == "2" else XMID
    a(f"s_add_u32 s35, s12, {src}\ns_add_u32 s36, s35, s31\ns_add_u32 s37, s36, {128*KB}\ns_add_u32 s35, s35, s32")
    a(f"buffer_load_dwordx4 {vr(X,4)}, v3, s[4:7], s36 offen sc1\nbuffer_load_dwordx4 {vr(X+4,4)}, v3, s[4:7], s37 offen sc1\nbuffer_load_dwordx2 {vr(X+8,2)}, v8, s[4:7], s35 offen sc1")
    a("s_lshl_b32 s30, s13, 10\nv_add_u32 v13, s30, v3")
    P25[q] = (mkbase(a, [4], dlo, dhi, 13), mkbase(a, [6, 7], wlo, whi, 3))
    a(f"s_add_u32 s30, s30, {dlo}\nv_add_u32 v5, s30, v8")
    dst = XMID if q == "2" else ITS + XIN
    dstst = STMID if q == "2" else ITS + STIN
    a(f"s_add_u32 s35, s12, {dst}\ns_add_u32 s36, s35, s31\ns_add_u32 s37, s36, {128*KB}\ns_add_u32 s35, s35, s32")
    a(f"s_lshl_b32 s39, s51, 14\ns_lshl_b32 s40, s33, 7\ns_add_u32 s39, s39, s40\ns_add_u32 s39, s39, s12\ns_add_u32 s39, s39, {dstst}")
    a(f"v_mov_b32 v{X+12}, 0\nv_mov_b32 v{X+13}, 0\nv_mov_b32 v{X+14}, 0x3f803f80\nv_lshlrev_b32 v{X+17}, 3, v2\nv_mov_b32 v{X+18}, 0\nv_mov_b32 v{X+19}, 0")
    if q == "5":
        a(f"s_mul_i32 s41, s13, 2816\ns_add_u32 s41, s41, 4096\nv_mul_u32_u24 v{X+40}, 176, v2\nv_lshl_add_u32 v{X+40}, v1, 3, v{X+40}\nv_add_u32 v{X+40}, s41, v{X+40}")
        for j in range(3):
            c, row, cc, la, ga = X+41, X+42, X+43, X+20+j, X+24+j
            a(f"v_add_u32 v{c}, {64*j}, v0\nv_mul_u32_u24 v{row}, 205, v{c}\nv_lshrrev_b32 v{row}, 11, v{row}\nv_mul_u32_u24 v{cc}, 10, v{row}\nv_sub_u32 v{cc}, v{c}, v{cc}\nv_lshlrev_b32 v{cc}, 4, v{cc}")
            a(f"v_mul_u32_u24 v{la}, 176, v{row}\nv_add3_u32 v{la}, v{la}, v{cc}, s41\nv_mul_u32_u24 v{ga}, 1280, v{row}\nv_add_u32 v{ga}, v{ga}, v{cc}")
        a(f"s_mul_i32 s42, s33, {16*1280}\ns_mul_i32 s43, s51, 160\ns_add_u32 s42, s42, s43")
        a.srd(8, 24, 2048*640*2)
    a("s_mov_b32 s38, 0xffff0000")
def cons25(a, q):
    lg = LG(a)
    ACC = 32; FB = 64; X = 160
    dlo, dhi = rng(q, "D"); bD, bW = P25[q]
    for j in range(10):
        a(f"v_lshlrev_b32 v{ACC+2*j}, 16, v{X+j}\nv_and_b32 v{ACC+2*j+1}, s38, v{X+j}")
    def fb(buf, k): return FB + 24*buf + 4*k
    def reads(t, buf):
        return [rdD(q, t, fb(buf,0), bD, uaddr(q, "D", t, 0), 5, dlo)] + [rd128(fb(buf,1+u), bW(uaddr(q, "W", t, u))) for u in range(5)]
    def mf(t, buf):
        return [(mfma(ACC+4*u, fb(buf,1+u), fb(buf,0)), list(R(fb(buf,0),4)) + list(R(fb(buf,1+u),4))) for u in range(5)]
    mainloop(a, lg, q, 4, reads, mf, rpm=1.25)
    for u in range(5): cvt2(a, X+2*u, ACC+4*u)
    if q == "5":
        a("s_cmp_eq_u32 s14, 1\ns_cbranch_scc1 P5_final")
    a(f"buffer_store_dwordx4 {vr(X,4)}, v3, s[4:7], s36 offen sc1\nbuffer_store_dwordx4 {vr(X+4,4)}, v3, s[4:7], s37 offen sc1\nbuffer_store_dwordx2 {vr(X+8,2)}, v8, s[4:7], s35 offen sc1")
    for j in range(0, 10, 2):
        a(f"v_dot2_f32_bf16 v{X+12}, v{X+j}, v{X+14}, v{X+12}\nv_dot2_f32_bf16 v{X+13}, v{X+j}, v{X+j}, v{X+13}")
        a(f"v_dot2_f32_bf16 v{X+18}, v{X+j+1}, v{X+14}, v{X+18}\nv_dot2_f32_bf16 v{X+19}, v{X+j+1}, v{X+j+1}, v{X+19}")
    a(f"v_pk_add_f32 {vr(X+12,2)}, {vr(X+12,2)}, {vr(X+18,2)}")
    for sw in ("v_permlane32_swap_b32", "v_permlane16_swap_b32"):
        a(f"v_mov_b32 v{X+18}, v{X+12}\nv_mov_b32 v{X+19}, v{X+13}\n{sw} v{X+18}, v{X+12}\n{sw} v{X+19}, v{X+13}\nv_pk_add_f32 {vr(X+12,2)}, {vr(X+12,2)}, {vr(X+18,2)}")
    a(f"s_mov_b64 exec, 0xffff\nbuffer_store_dwordx2 {vr(X+12,2)}, v{X+17}, s[4:7], s39 offen sc1\ns_mov_b64 exec, -1")
    if q == "2": gbar(a, setup3)
    if q == "5":
        a(f"s_mov_b32 s14, 1\ns_add_u32 s12, s12, {ITS}")
        stamp(a)
        a("s_branch C_loop")
        a("P5_final:")
        a.fence(2)
        for u in range(5): a(f"ds_write_b64 v{X+40}, {vr(X+2*u,2)} offset:{32*u}")
        a("s_waitcnt lgkmcnt(0)")
        for j in range(3): a(f"ds_read_b128 {vr(X+28+4*j,4)}, v{X+20+j}")
        for j in range(3):
            a(f"s_waitcnt lgkmcnt({2-j})")
            if j == 2: a("s_mov_b64 exec, 0xffffffff")
            a(f"buffer_store_dwordx4 {vr(X+28+4*j,4)}, v{X+24+j}, s[8:11], s42 offen{' sc1' if CFG['NT'] & 16 else ' nt' if CFG['NT'] & 32 else ''}")
        a("s_mov_b64 exec, -1")
        stamp(a)
        a("s_barrier\ns_barrier\ns_branch FIN")

GC1 = -2.0 * math.sqrt(2.0/math.pi) * math.log2(math.e)
GC2 = GC1 * 0.044715
def gelu(a, xs, ts):
    P = list(zip(xs, ts))
    for x, t in P:
        for h in (0, 2): a(f"v_pk_mul_f32 {vr(t+h,2)}, {vr(x+h,2)}, {vr(x+h,2)}")
    for x, t in P:
        for h in (0, 2): a(f"v_pk_fma_f32 {vr(t+h,2)}, {vr(t+h,2)}, s[44:45], v[14:15]")
    for x, t in P:
        for h in (0, 2): a(f"v_pk_mul_f32 {vr(t+h,2)}, {vr(t+h,2)}, {vr(x+h,2)}")
    for x, t in P:
        for j in range(4): a(f"v_exp_f32 v{t+j}, v{t+j}")
    for x, t in P:
        for h in (0, 2): a(f"v_pk_add_f32 {vr(t+h,2)}, {vr(t+h,2)}, 1.0 op_sel_hi:[1,0]")
    for x, t in P:
        for j in range(4): a(f"v_rcp_f32 v{t+j}, v{t+j}")
    for x, t in P:
        for h in (0, 2): a(f"v_pk_mul_f32 {vr(x+h,2)}, {vr(x+h,2)}, {vr(t+h,2)}")
ZR = 32
P3C = {}
def setup3(a):
    q = "3a"; X = 192; SM = 32
    dlo, dhi = rng(q, "D"); wlo, whi = rng(q, "W")
    a(f"s_lshl_b32 s34, s51, 9\ns_add_u32 s34, s34, {CSI}\ns_add_u32 s35, s34, 8192\nv_lshlrev_b32 v22, 3, v0")
    a("s_and_b32 s38, s51, 3\ns_cmp_eq_u32 s38, 3\ns_cselect_b32 s38, 47, 55\ns_lshl_b32 s38, s38, 3\nv_min_u32 v7, s38, v22")
    a(f"buffer_load_dwordx2 {vr(X,2)}, v7, s[4:7], s34 offen\nbuffer_load_dwordx2 {vr(X+2,2)}, v7, s[4:7], s35 offen")
    a(f"s_add_u32 s34, s34, 4096\ns_add_u32 s35, s35, 4096\nbuffer_load_dwordx2 {vr(X+4,2)}, v7, s[4:7], s34 offen\nbuffer_load_dwordx2 {vr(X+6,2)}, v7, s[4:7], s35 offen")
    a("s_and_b32 s31, s13, 1\ns_lshr_b32 s32, s13, 1")
    setup4(a)
    a("s_lshl_b32 s30, s31, 11\nv_add_u32 v13, s30, v3")
    P3C["bD"] = mkbase(a, [4, 5], dlo, dhi, 13)
    a(f"s_add_u32 s30, s30, {dlo}\nv_add_u32 v252, s30, v22")
    a("s_lshl_b32 s30, s32, 12\nv_add_u32 v13, s30, v3")
    P3C["bW"] = mkbase(a, [6], wlo, whi, 13)
    for r in range(16): a(f"v_mov_b32 v{SM+r}, 0")
    a(f"s_mov_b32 s44, {hex(f2u(GC2))}\ns_mov_b32 s45, {hex(f2u(GC2))}\nv_mov_b32 v14, {hex(f2u(GC1))}\nv_mov_b32 v15, {hex(f2u(GC1))}")
    a("s_lshl_b32 s34, s32, 8\ns_lshl_b32 s35, s31, 7\nv_lshlrev_b32 v10, 2, v2\nv_add_u32 v8, s34, v10\nv_add_u32 v10, s35, v10")
    a("v_lshlrev_b32 v12, 4, v1\nv_add_u32 v9, s35, v12\nv_add_u32 v12, s34, v12")
    a("s_and_b32 s38, s51, 3\ns_cmp_eq_u32 s38, 3\ns_cselect_b32 s38, 2, 3\ns_cmp_eq_u32 s32, 0\ns_cselect_b32 s38, 4, s38")
    a(f"s_lshl_b32 s36, s33, 8\ns_mul_i32 s39, s33, {56*KB}\ns_mul_i32 s34, s51, {7*KB}\ns_add_u32 s39, s39, s34\ns_lshl_b32 s34, s32, 12\ns_add_u32 s39, s39, s34\ns_add_u32 s39, s39, s12\ns_add_u32 s39, s39, {Z2}")
    a(f"s_add_u32 s36, s36, s12\ns_add_u32 s36, s36, {ZS}")
    a("s_mov_b32 s40, 0xaaaaaaaa\ns_mov_b32 s41, 0xaaaaaaaa\ns_mov_b32 s42, 0xcccccccc\ns_mov_b32 s43, 0xcccccccc")
    a("v_and_b32 v11, 3, v2\nv_lshl_add_u32 v11, v1, 2, v11\nv_bfe_u32 v13, v2, 2, 1\nv_lshl_add_u32 v11, v13, 4, v11\nv_lshlrev_b32 v11, 3, v11\nv_lshrrev_b32 v13, 3, v2\nv_lshl_add_u32 v11, v13, 2, v11")
def cons3(a):
    q = "3a"; lg = LG(a)
    ACC = 64; FB = 96; X = 192; SM = 32
    def acc(t, x): return ACC + 4*(2*t + x)
    dlo, dhi = rng(q, "D"); wlo, whi = rng(q, "W"); bD, bW = P3C["bD"], P3C["bW"]
    a(f"v_pk_add_f32 {vr(X,2)}, {vr(X,2)}, {vr(X+2,2)}\nv_pk_add_f32 {vr(X+4,2)}, {vr(X+4,2)}, {vr(X+6,2)}")
    lg.op(f"ds_write_b64 v22, {vr(X,2)} offset:{CS0}"); lg.op(f"ds_write_b64 v22, {vr(X+4,2)} offset:{CS1}")
    a(f"v_lshlrev_b32 v{P4R['BI']}, 16, v{P4R['BI']}\nv_lshlrev_b32 v{P4R['BI']+1}, 16, v{P4R['BI']+1}")
    def fb(buf, k): return FB + 24*buf + 4*k
    def reads(t, buf):
        d0 = uaddr(q, "D", t, 0); w0 = uaddr(q, "W", t, 0)
        return [rdD(q, t, fb(buf,0), bD, d0, 252, dlo), rd128(fb(buf,2), bW(w0)), rdD(q, t, fb(buf,1), bD, d0+KB, 252, dlo)] + [rd128(fb(buf,2+u), bW(w0+u*KB)) for u in range(1, 4)]
    def mf(t, buf):
        return [(mfma(acc(u,x), fb(buf,x), fb(buf,2+u), "0" if t == 0 else None), list(R(fb(buf,x),4)) + list(R(fb(buf,2+u),4))) for u in range(4) for x in range(2)]
    rsN = [X, X+4]; nmN = [X+8, X+12]; csV = [X+16+t for t in range(4)]
    def last_hook():
        out = []
        for x in range(2): out += [rd128(rsN[x], (9, 64*x)), rd128(nmN[x], (9, NM0+64*x))]
        return out + [(f"ds_read_b32 v{csV[t]}, v8 offset:{CS1+64*t}", [csV[t]]) for t in range(4)]
    mainloop(a, lg, q, 4, reads, mf, last_hook=last_hook, rpm=CFG["RPM3"]/4)
    lg.drain()
    TMP = X+40; PK = X+24
    for u in range(4):
        if u >= 2: a(f"s_cmp_eq_u32 s38, {u}\ns_cbranch_scc1 P3_red")
        for x in range(2): fix_N(a, acc(u,x), csV[u], rsN[x], nmN[x], TMP+4*x)
        gelu(a, [acc(u,0), acc(u,1)], [TMP, TMP+4])
        for x in range(2): cvt2(a, PK + 4*u + 2*x, acc(u,x), "f16")
        a(f"buffer_store_dwordx4 {vr(PK+4*u,4)}, v3, s[4:7], s39 offen offset:{u*KB} sc1")
        for x in range(2):
            for h in (0, 2):
                a(f"v_pk_add_f32 {vr(SM+4*x+h,2)}, {vr(SM+4*x+h,2)}, {vr(acc(u,x)+h,2)}")
                a(f"v_pk_fma_f32 {vr(SM+8+4*x+h,2)}, {vr(acc(u,x)+h,2)}, {vr(acc(u,x)+h,2)}, {vr(SM+8+4*x+h,2)}")
    a("P3_red:"); a.fence(2)
    RA = ACC
    for j in range(8):
        a(f"v_add_f32_dpp v{RA+j}, v{SM+j}, v{SM+j} row_ror:8 row_mask:0xf bank_mask:0x3")
    for j in range(8):
        a(f"v_add_f32_dpp v{RA+j}, v{SM+8+j}, v{SM+8+j} row_ror:8 row_mask:0xf bank_mask:0xc")
    for j in range(4): a(f"v_add_f32_dpp v{RA+8+j}, v{RA+j}, v{RA+j} row_half_mirror row_mask:0xf bank_mask:0x5")
    for j in range(4): a(f"v_add_f32_dpp v{RA+8+j}, v{RA+4+j}, v{RA+4+j} row_half_mirror row_mask:0xf bank_mask:0xa")
    for j in range(4): a(f"v_add_f32_dpp v{RA+8+j}, v{RA+8+j}, v{RA+8+j} quad_perm:[1,0,3,2] row_mask:0xf bank_mask:0xf")
    for j in range(4): a(f"v_add_f32_dpp v{RA+8+j}, v{RA+8+j}, v{RA+8+j} quad_perm:[2,3,0,1] row_mask:0xf bank_mask:0xf")
    a(f"v_cndmask_b32 v{RA}, v{RA+8}, v{RA+9}, s[40:41]\nv_cndmask_b32 v{RA+1}, v{RA+10}, v{RA+11}, s[40:41]\nv_cndmask_b32 v{RA}, v{RA}, v{RA+1}, s[42:43]")
    a(f"buffer_atomic_add_f32 v{RA}, v11, s[4:7], s36 offen")
    q = "3b"; lg = LG(a)
    assert rng(q, "W") == (wlo, whi)
    DEF = CFG["DEF"]
    if DEF: ACC = ZR; X = 212
    def mf(t, buf):
        return [(mfma(acc(u,x), fb(buf,2+u), fb(buf,x), "0" if t == 0 else None), list(R(fb(buf,x),4)) + list(R(fb(buf,2+u),4))) for u in range(4) for x in range(2)]
    stT = [X, X+2]; csT = [X+4+4*t for t in range(4)]
    def last_hook():
        return [(f"ds_read2_b32 {vr(stT[x],2)}, v10 offset0:{16*x} offset1:{NM0//4+16*x}", R(stT[x],2)) for x in range(2)] + [rd128(csT[t], (12, CS0+64*t)) for t in range(4)]
    mainloop(a, lg, q, 4, reads, mf, last_hook=last_hook, rpm=CFG["RPM3"]/4, prebar={CFG["SIG3"]: "s_waitcnt vmcnt(0)"})
    lg.drain()
    if DEF:
        TMP = 232
        def dzl(ch):
            c = Cap()
            for us in ((0, 1), (2, 3) if not ch else (2,)):
                tl = [(u, x) for u in us for x in range(2)]
                for k, (u, x) in enumerate(tl): fix_T(c, acc(u,x), csT[u], stT[x], TMP+4*k)
                gelu(c, [acc(u,x) for u, x in tl], [TMP+4*k for k in range(len(tl))])
                for k, (u, x) in enumerate(tl): cvt2(c, TMP+4*k, acc(u,x))
                for k, (u, x) in enumerate(tl):
                    for h in range(2): c(f"v_lshlrev_b32 v{acc(u,x)+2*h}, 16, v{TMP+4*k+h}\nv_and_b32 v{acc(u,x)+2*h+1}, s57, v{TMP+4*k+h}")
            return c.lines
        a("s_cmp_eq_u32 s32, 1\ns_cbranch_scc1 P3b_done1")
        cons4(a, 0, dzl(0))
    else:
        TMP = X+40
        for x in range(2):
            for u in range(2): fix_T(a, acc(u,x), csT[u], stT[x], TMP+4*(2*x+u))
        gelu(a, [acc(u,x) for x in range(2) for u in range(2)], [TMP+4*k for k in range(4)])
        for u in range(2):
            for x in range(2): cvt2(a, ZR+2*(2*u+x), acc(u,x))
        for u in (2, 3):
            a(f"s_cmp_eq_u32 s38, {u}\ns_cbranch_scc1 P3b_done1")
            for x in range(2): fix_T(a, acc(u,x), csT[u], stT[x], TMP+4*x)
            gelu(a, [acc(u,0), acc(u,1)], [TMP, TMP+4])
            for x in range(2): cvt2(a, ZR+2*(2*u+x), acc(u,x))
        cons4(a, 0)
    a("s_branch P4_done")
    a("P3b_done1:"); a.fence(2)
    cons4(a, 1, dzl(1) if DEF else None)
    a("P4_done:"); a.fence(2)
    gbar(a, lambda c: setup25(c, "5"))

P4R = dict(bD=[16, 17], W=[18, 19], MU=20, EX=21, L8=22, BI=24)
def setup4(a):
    q = "4"; r = P4R
    dlo, dhi = rng(q, "D"); wlo, whi = rng(q, "W")
    P4R["f"] = mkbase(a, r["bD"], dlo, dhi, 3)
    w0, rs = r["W"]; mu = r["MU"]
    a(f"s_lshl_b32 s34, s31, 11\ns_add_u32 s34, s34, {wlo}\nv_add_u32 v{w0}, s34, v3\nv_lshlrev_b32 v{rs}, 4, v1")
    a(f"v_and_b32 v{mu}, 1, v2\nv_lshlrev_b32 v{mu}, 6, v{mu}\nv_lshl_add_u32 v{mu}, v1, 4, v{mu}")
    a(f"s_lshl_b32 s34, s31, 9\nv_add_u32 v{r['EX']}, s34, v{r['L8']}")
    a(f"s_lshl_b32 s33, s50, 1\ns_add_u32 s33, s33, s31\nv_lshlrev_b32 v{r['BI']}, 1, v2")
    a(f"s_lshl_b32 s34, s33, 6\ns_add_u32 s34, s34, {BSP}\nbuffer_load_ushort v{r['BI']+1}, v{r['BI']}, s[4:7], s34 offen offset:32\nbuffer_load_ushort v{r['BI']}, v{r['BI']}, s[4:7], s34 offen")
    a(f"s_lshl_b32 s46, s33, 11\ns_add_u32 s46, s46, s12\ns_add_u32 s46, s46, {UB}\ns_mul_i32 s47, s51, 3\ns_lshl_b32 s34, s32, 1\ns_add_u32 s47, s47, s34\ns_lshl_b32 s47, s47, 17\ns_add_u32 s47, s47, s46")
    a(f"s_lshr_b32 s34, s51, 2\ns_sub_u32 s34, s51, s34\ns_lshr_b32 s56, s34, 1\ns_add_u32 s56, s56, 24\ns_lshl_b32 s56, s56, 17\ns_add_u32 s46, s46, s56\ns_and_b32 s34, s34, 1\ns_lshl_b32 s34, s34, 9\ns_add_u32 s46, s46, s34")
    a(f"s_add_u32 s56, s47, {128*KB}\ns_mov_b32 s57, 0xffff0000\ns_mov_b32 s58, {hex(f2u(1.0/WSCALE))}\ns_mov_b32 s59, {hex(f2u(1.0/WSCALE))}")
def cons4(a, ch, dz=None):
    q = "4"; lg = LG(a); r = P4R
    ACC = 64; FB = 96; X = 208
    wlo = rng(q, "W")[0]; bD = r["f"]
    def acc(t, x): return ACC + 4*(2*t + x)
    def fb(buf, k): return FB + 28*buf + 4*k
    def reads(t, buf):
        w = [rd128(fb(buf,x), (r["W"][0], uaddr(q, "W", t, x) - wlo)) for x in range(2)]
        z = [rd128(fb(buf,2+u), bD(uaddr(q, "D", t, 4*ch+u))) for u in range(4-ch)]
        if ch: z.append(rd128(fb(buf,5), (r["MU"], MU0 + t*128)))
        return [rd128(fb(buf,6), (r["W"][1], RS0 + t*64))] + w + z
    def cv(t, buf):
        rs = fb(buf,6)
        return [(f"v_pk_mul_f16 v{fb(buf,x)+j}, v{fb(buf,x)+j}, v{rs+j}", [fb(buf,x)+j, rs+j]) for x in range(2) for j in range(4)]
    def mf(t, buf):
        return [(mfma(acc(u,x), fb(buf,2+u), fb(buf,x), "0" if t == 0 else None, ty="f16"), list(R(fb(buf,2+u),4))) for x in range(2) for u in range(4)]
    B = r["BI"]
    def tail():
        m0, m1 = mf(62, 2), mf(63, 3)
        weave(a, lg, m0, [], cv(63, 3), vpm=2)
        if not ch: weave(a, lg, m1, []); return
        weave(a, lg, [m1[3], m1[7]] + m1[:3], [])
        for x in range(2): a(f"v_add_f32 v{X+x}, v{acc(3,x)}, v{acc(3,x)+1}")
        for x in range(2): a(f"v_fma_f32 v{B+x}, -v{X+x}, s58, v{B+x}")
        lg.op(f"ds_write_b64 v{r['EX']}, {vr(B,2)} offset:{EX0}")
        weave(a, lg, m1[4:7], [])
        lg.drain()
    inc = f"v_add_u32 v{r['W'][1]}, {12*64}, v{r['W'][1]}" + (f"\nv_add_u32 v{r['MU']}, {12*128}, v{r['MU']}" if ch else "")
    mainloop(a, lg, q, 4, reads, mf, cv=cv, tailf=tail, roll=(8 if dz else 2, 6, f"P4_loop{ch}", inc) if CFG["ROLL"] else None, dz=dz)
    if not ch: lg.op(f"ds_read_b64 {vr(B,2)}, v{r['EX']} offset:{EX0}", R(B,2))
    PK = FB; T2 = FB + 16 if dz is None else ZR
    for u0 in (0, 2):
        us = (u0, u0+1) if not (ch and u0) else (2,)
        if ch and u0: a("s_cmp_eq_u32 s38, 2\ns_cbranch_scc1 P4_done")
        for u in us if dz is None else ():
            for x in range(2):
                for h in range(2):
                    z = ZR + 2*(2*u+x) + h; t = T2 + 4*(2*u+x) + 2*h
                    a(f"v_lshlrev_b32 v{t}, 16, v{z}\nv_and_b32 v{t+1}, s57, v{z}")
        lg.drain()
        for x in range(2):
            for u in us:
                for h in (0, 2): a(f"v_pk_fma_f32 {vr(acc(u,x)+h,2)}, {vr(acc(u,x)+h,2)}, s[58:59], {vr(B,2)} op_sel:[0,0,{x}] op_sel_hi:[1,1,{x}]")
            for u in us:
                for h in (0, 2): a(f"v_pk_mul_f32 {vr(acc(u,x)+h,2)}, {vr(acc(u,x)+h,2)}, {vr(T2+4*(2*u+x)+h,2)}")
            pk = PK + 4*(u0 + x)
            for u in us: cvt2(a, pk + 2*(u & 1), acc(u,x))
            if len(us) == 2: a(f"buffer_store_dwordx4 {vr(pk,4)}, v3, s[4:7], s{56 if u0 else 47} offen offset:{x*KB} sc1")
            else: a(f"buffer_store_dwordx2 {vr(pk,2)}, v{r['L8']}, s[4:7], s46 offen offset:{x*KB} sc1")

def code_prefetch(a, va, vd):
    if not CFG["CODEPF"]: return
    lab = a.label("CPF")
    a(f"s_getpc_b64 s[56:57]\n{lab}:\ns_add_u32 s56, s56, main_kernel-{lab}\ns_addc_u32 s57, s57, 0")
    a(f"s_lshr_b32 s58, s2, 3\ns_lshl_b32 s58, s58, 2\ns_add_u32 s58, s58, s13\ns_mul_i32 s58, s58, 1024\nv_and_b32 v{va}, 7, v0\nv_lshlrev_b32 v{va}, 7, v{va}\nv_add_u32 v{va}, s58, v{va}")
    a(f"v_min_u32 v{va}, MAIN_END-main_kernel-4, v{va}\nglobal_load_dword v{vd}, v{va}, s[56:57]")

def build():
    plan()
    a = Asm()
    a.launch("k0_kernel", (488 if CFG["TOUCH"] else NJOBS,1,1), (256,1,1), lds=40960)
    a.launch("main_kernel", (256,1,1), (512,1,1), lds=LDS_TOTAL)
    emit_k0(a, code_prefetch=code_prefetch, touch=CFG["TOUCH"], nt=" nt" if CFG["NT"] & 2 else "", st=" sc1" if CFG["NT"] & 4 else "", st2=" sc1" if CFG["NT"] & 8 else "")
    a.begin_kernel("main_kernel")
    a("s_cmp_ge_u32 s2, 256\ns_cbranch_scc1 END")
    a("s_load_dwordx4 s[20:23], s[0:1], 40\ns_load_dwordx2 s[24:25], s[0:1], 64\ns_load_dwordx2 s[26:27], s[0:1], 80")
    a("v_lshrrev_b32 v1, 6, v0\nv_and_b32 v0, 63, v0\nv_readfirstlane_b32 s13, v1")
    a("v_lshrrev_b32 v1, 4, v0\nv_and_b32 v2, 15, v0\nv_lshlrev_b32 v3, 4, v0")
    a(f"s_mov_b32 s12, {IT0}\ns_mov_b32 s14, 0\ns_mov_b32 s52, {CNT}\ns_mov_b32 s62, 0")
    a("s_and_b32 s15, s2, 7\ns_lshr_b32 s53, s2, 3\ns_lshr_b32 s16, s15, 1\ns_and_b32 s17, s15, 1")
    a("s_lshl_b32 s48, s16, 2\ns_lshr_b32 s18, s53, 3\ns_add_u32 s48, s48, s18\ns_lshl_b32 s49, s17, 3\ns_and_b32 s18, s53, 7\ns_add_u32 s49, s49, s18")
    a("s_lshl_b32 s50, s16, 3\ns_lshr_b32 s18, s53, 2\ns_add_u32 s50, s50, s18\ns_lshl_b32 s51, s17, 2\ns_and_b32 s18, s53, 3\ns_add_u32 s51, s51, s18")
    a("s_waitcnt lgkmcnt(0)")
    a.srd(4, 26, 0x10000000)
    if CFG["PROF"]: a("s_memrealtime s[60:61]\ns_waitcnt lgkmcnt(0)\nv_writelane_b32 v250, s60, 62")
    stamp(a, force=True)
    a("s_cmp_ge_u32 s13, 6\ns_cbranch_scc1 LDB\ns_cmp_ge_u32 s13, 4\ns_cbranch_scc1 LDA")
    a("C_loop:"); a.fence(2)
    gbar(a, setup1, True)
    cons1(a); cons25(a, "2"); cons3(a); cons25(a, "5")
    a.hist = []; loader(a, "A"); a.hist = []; loader(a, "B")
    a("FINL:")
    if CFG["PROF"]: a("v_mov_b32 v250, v8")
    a("FIN:"); a.fence(4)
    a("s_waitcnt vmcnt(0)")
    if CFG["PROF"]:
        stamp(a)
        a("s_memrealtime s[60:61]\ns_waitcnt lgkmcnt(0)\nv_writelane_b32 v250, s60, 63")
        a(f"s_lshl_b32 s60, s2, 3\ns_add_u32 s60, s60, s13\ns_lshl_b32 s60, s60, 8\ns_add_u32 s60, s60, {PROFB}")
        a("v_lshlrev_b32 v251, 2, v0\nbuffer_store_dword v250, v251, s[4:7], s60 offen")
    a("END:\ns_endpgm\nMAIN_END:")
    a.end_kernel("main_kernel", 256, sgpr=80)
    return a

if __name__ == "__main__":
    out = sys.argv[1] if len(sys.argv) > 1 else "mega.s"
    for kv in sys.argv[2:]:
        k, v = kv.split("="); CFG[k] = int(v)
    a = build()
    open(out, "w").write(a.text())
    print("lines", len(a.lines), "nops", a.nops_added, "bars", len(BARS))
    if CFG.get("SHOW"):
        for k in "DW":
            for x in ALLOC[k]: print(k, x["q"], x["n"], x["addr"]//KB, "after", bname(x["after"]), "rel", bname(x["rel"]))
```

```python
import sys, math, struct
from asmlib import *
from layout import *
from k0 import emit_k0, NJOBS

LDS_TOTAL = 163840
CFG = dict(DBG=0, ES=0, DW=1, NT=0, TSP=2, DEF=0, DZP=2, G4=10, TBL=0, PD=3, PS=2, P04=4, WS2=4, WS3=1, CP=4, PG=6, LT=6, ROLL=1, RT=0, WG=2, FLAG=0, L1=27, RPM1=4, RPM3=4, SUK=40, STL=5, PQ=1, PIT=1, ST=0, HOLD=1, ILV=0, PRIO=0, XA=0, XB=0, XC=0, XD=0, RPM4=4, NOWSP=0, PROF=0, TOUCH=0, ROT=1, POLL4=2, SLEEP=1, WSPL=9, SIG3=2, PKMUL=1, CODEPF=1, DSC1=1, PER=2, P0=4, P0S=7, DT=0)
PROFB = 200*1024*1024
def f2u(x): return struct.unpack("<I", struct.pack("<f", x))[0]

PH = {
    "1":  dict(nks=20, nD=9, nW=8, lag=0, D=(20, 4), W=(96, 4)),
    "2":  dict(nks=20, nD=4, nW=5, lag=1, D=(20, 7), W=(80, 8)),
    "3a": dict(nks=20, nD=4, nW=7, lag=0, D=(20, 10), W=(104, 4)),
    "3b": dict(nks=20, nD=0, nW=7, lag=0, D=None, W=(104, 4)),
    "4":  dict(nks=64, nD=7, nW=4, lag=1, D=(20, 6), W=(112, 6)),
    "5":  dict(nks=27, nD=4, nW=5, lag=1, D=(20, 7), W=(80, 8)),
}
ORDER = ["1", "2", "3a", "3b", "4", "5"]
RS0, MU0 = 4096, 8192
NM0, CS0, CS1, EX0 = 768, 1536, 2048, 3072
NROT = {'1': 8, '2': 8, '3a': 8, '3b': 8, '4': 32, '5': 12}
SPLIT = {'1': 16, '2': 16, '3a': 16, '3b': 16, '4': 99, '5': 24}
LSCHED = [(("1",7),2), (("1",8),2), (("1",9),2), (("1",10),10), (("1","X"),10)]
CSCHED = [(("1","G"),6), (("2",10),6), (("2","G"),6)] + [(("3a",n),1) for n in range(1,9)]
CA, CB, CC, CD, CE = 0, 16, 48, 80, 112

def _b(x): return x if isinstance(x, tuple) else ("1", x)
WSS = {
  1: ({1: [0,1], 2: [2,3], 3: [4,5], 4: [6,7]}, {6: [0,1], 7: [2,3], 9: [4,5], 10: [6,7]}),
  2: ({2: [0,1], 5: [2,3], 10: [4,5], "G": [6,7]}, {6: [0,1], 9: [2,3], "G": [4,5], ("2",8): [6,7]}),
  3: ({1: [0,1,2,3], 10: [4,5,6,7]}, {6: [0,1], 7: [2,3], "G": [4,5,6,7]}),
  4: ({0: [0,1,2,3,4,5,6,7]}, {6: [0,1], 7: [2,3], 9: [4,5], 10: [6,7]}),
  5: ({1: [0,1], 3: [2,3], 9: [4,5], ("2",9): [6,7]}, {6: [0,1], 7: [2,3], "G": [4,5], ("3a",2): [6], ("3a",3): [7]}),
  6: ({3: [0,1,2,3], 9: [4,5,6,7]}, {7: [0,1], 9: [2,3], "G": [4,5,6,7]}),
  8: ({-1: [0,1,2,3,4,5,6,7]}, {6: [0,1], 7: [2,3], 9: [4,5], 10: [6,7]}),
  9: ({-1: [0,1,2,3,4,5,6,7]}, {4: [0,1], 6: [2,3], 7: [4,5], 9: [6,7]}),
  10: ({-1: [0,1,2,3,4,5,6,7]}, {9: [0,1,2,3], 10: [4,5,6,7]}),
  7: ({6: [0,1,2,3], 7: [4,5,6,7]}, {10: [0,1,2,3], "X": [4,5,6,7]}),
}
OVR = {("4","W",0): 104*KB}
BARS = []; BIDX = {}
ALLOC = {"D": [], "W": []}
def plan():
    BARS.clear(); BIDX.clear(); ALLOC["D"].clear(); ALLOC["W"].clear()
    for q in ORDER:
        ph = PH[q]; ph["nst"] = (ph["nks"] + 1) // 2
        for n in range(ph["nst"] + 1): BARS.append((q, n))
        if q == "1": BARS.append((q, "X"))
        if q in ("1", "2", "4", "5"): BARS.append((q, "G")); BARS.append((q, "F"))
    for i, b in enumerate(BARS): BIDX[b] = i
    NB = len(BARS)
    gate = {"1": -1, "2": BIDX[("1","F")], "3a": BIDX[("2","F")], "4": BIDX[("3b", CFG["G4"])], "5": BIDX[("4","F")]}
    def rel(q, n, kind):
        if q == "3a" and kind == "D": q = "3b"
        return BIDX[(q, min(n + 1 + PH[q]["lag"], PH[q]["nst"]))]
    rot = {(q, k): 0 for q in ORDER for k in "DW"}
    def build():
        al = {"D": [], "W": []}
        for q in ORDER:
            ph = PH[q]
            for k in "DW":
                if ph[k] is None: continue
                base, ns = ph[k]; sz = 2*ph["n"+k]*KB
                for n in range(ph["nst"]):
                    al[k].append(dict(q=q, n=n, k=k, addr=OVR.get((q,k,n), base*KB + sz*((n + rot[(q,k)]) % ns)), size=sz, use=BIDX[(q,n)], rel=rel(q,n,k)))
        allv = al["D"] + al["W"]
        for k in "DW":
            prev = -NB; used = {}
            for x in al[k]:
                e = -NB
                for y in allv:
                    if y is x or not (y["addr"] < x["addr"] + x["size"] and x["addr"] < y["addr"] + y["size"]):
                        if y is x: e = max(e, y["rel"] - NB)
                        continue
                    if y["use"] < x["use"]: e = max(e, y["rel"])
                    else:
                        assert y["use"] > x["use"], (x, y)
                        e = max(e, y["rel"] - NB)
                if k == "D": e = max(e, gate[x["q"]])
                e = max(e, prev)
                def cap(b):
                    if BARS[b % NB] == ("3b", CFG["G4"]) and k == "D": return CFG["P04"]
                    if BARS[b % NB][1] == "F": return (CFG["P0"] if x["q"] == "1" else CFG["P0S"]) if k == "D" else 0
                    if CFG["WG"] and BARS[b % NB] in (("2", 10), ("4", 32), ("5", 14)): return 0
                    if CFG["WG"] and BARS[b % NB][1] == "G" and (CFG["WG"] > 1 or BARS[b % NB][0] != "1"): return CFG["PG"]
                    if BARS[b % NB][1] == "G" or (CFG["HOLD"] and BARS[b % NB] in (("1", 10), ("1", "X"))): return 0
                    return CFG["PER"]
                while used.get(e % NB, 0) >= cap(e): e += 1
                used[e % NB] = used.get(e % NB, 0) + 1
                prev = e
                x["after"] = e
            last = al[k][-1]["after"] - NB
            for x in al[k]: x["after"] = max(x["after"], last)
            for x in al[k]: assert x["after"] < x["use"], x
        return al
    def cost(al): return sum(max(0, CFG["LT"] - (x["use"] - x["after"]))**2 * 1000 + x["after"] for k in "DW" for x in al[k])
    import itertools
    keys = [k for k in rot if PH[k[0]][k[1]] is not None]
    def tryset(ks):
        best = None
        for rs_ in itertools.product(*[range(PH[k[0]][k[1]][1]) for k in ks]):
            for k, r in zip(ks, rs_): rot[k] = r
            try: c = cost(build())
            except AssertionError: continue
            if best is None or c < best[0]: best = (c, rs_)
        for k, r in zip(ks, best[1]): rot[k] = r
        return best[0]
    import os, pickle
    ck = repr((sorted((q, sorted((k, v) for k, v in PH[q].items() if k in ("nks","nD","nW","lag","D","W"))) for q in ORDER), sorted(OVR.items()), [CFG[k] for k in ("LT","P0","P0S","WG","HOLD","PER","PG","P04","G4")]))
    cache = pickle.load(open("plan.pkl", "rb")) if os.path.exists("plan.pkl") else {}
    if ck in cache: rot.update(cache[ck])
    else:
        wk = [k for k in keys if k[1] == "W"]
        for _ in range(2):
            for k in keys: tryset([k])
            for i in range(len(wk)):
                tryset([wk[i], wk[(i+1) % len(wk)]])
                dk = (wk[i][0], "D")
                if dk in keys: tryset([dk, wk[(i+1) % len(wk)]])
        cache[ck] = dict(rot); pickle.dump(cache, open("plan.pkl", "wb"))
    al = build()
    for k in "DW":
        ALLOC[k] += al[k]
        for x in al[k]: PH[x["q"]].setdefault("addr"+k, {})[x["n"]] = x["addr"]
    PH["3b"]["addrD"] = PH["3a"]["addrD"]; PH["3b"]["nD"] = 4
def bname(i):
    NB = len(BARS); return ("prev:" if i < 0 else "") + "%s.%s" % BARS[i % NB]

class LG:
    def __init__(s, a): s.a = a; s.out = []
    def op(s, text, regs=()):
        s.a(text); s.out.append(set(regs))
    def need(s, regs):
        regs = set(regs); idx = -1
        for k, r in enumerate(s.out):
            if r & regs: idx = k
        if idx >= 0:
            n = min(len(s.out) - 1 - idx, 15)
            s.a(f"s_waitcnt lgkmcnt({n})")
            s.out = s.out[len(s.out) - n:] if n else []
    def drain(s):
        if s.out: s.a("s_waitcnt lgkmcnt(0)"); s.out = []

def R(b, n): return range(b, b + n)
def mfma(d, A, B, C=None, ty="bf16"):
    c = vr(d, 4) if C is None else C
    return f"v_mfma_f32_16x16x32_{ty} {vr(d,4)}, {vr(A,4)}, {vr(B,4)}, {c}"
def stamp2(a, q, r=(250, 251)):
    if CFG["PROF"] == 2 and q in PQ[CFG["PQ"]]:
        lab = a.label("ST2")
        a(f"s_cmp_eq_u32 s14, {CFG['PIT']}\ns_cbranch_scc0 {lab}\ns_memtime s[60:61]\ns_mov_b32 m0, s62\ns_waitcnt lgkmcnt(0)\nv_writelane_b32 v{r[0]}, s60, m0\ns_add_u32 s62, s62, 1\n{lab}:")
PQ = {1: ("1", "2"), 3: ("3a", "3b"), 5: ("5", ), 4: ("4",)}
def stamp(a, lg=None, r=(250, 251), force=False):
    if CFG["PROF"] == 1 or (force and CFG["PROF"]):
        if lg: lg.drain()
        a(f"{'s_memrealtime' if CFG['RT'] else 's_memtime'} s[60:61]\nv_cmp_eq_u32 s[64:65], s62, v0\ns_waitcnt lgkmcnt(0)\nv_mov_b32 v{r[1]}, s60\nv_cndmask_b32 v{r[0]}, v{r[0]}, v{r[1]}, s[64:65]\ns_add_u32 s62, s62, 1")
def mkbase(a, regs, lo, hi, src):
    n = (hi - lo + 65535) // 65536
    assert n <= len(regs), (lo, hi, regs)
    for k in range(n): a(f"v_add_u32 v{regs[k]}, {lo + 65536*k}, v{src}")
    def f(addr):
        assert lo <= addr < hi, (lo, hi, addr)
        return regs[(addr - lo) >> 16], (addr - lo) & 0xffff
    return f
def uaddr(q, which, t, unit):
    ph = PH[q]
    return ph["addr" + which][t // 2] + (t % 2)*ph["n" + which]*KB + unit*KB
def rng(q, which):
    ph = PH[q]; ad = ph["addr" + which].values()
    return min(ad), max(ad) + 2*ph["n" + which]*KB

def loader(a, which):
    NB = len(BARS); al = [x for x in ALLOC["D"] + ALLOC["W"] if not x.get("local")]
    L = "LD" + which
    a(f"{L}:")
    if CFG["PROF"]: a("v_mov_b32 v8, v250")
    a("s_and_b32 s19, s13, 1")
    if CFG["PRIO"]: a(f"s_setprio {CFG['PRIO']}")
    gb = {}; st = {}
    defs = {("D","1"): (f"s_lshl_b32 @, s48, 13\ns_add_u32 @, @, {XIN}", 128*KB),
            ("D","2"): (f"s_lshl_b32 @, s50, 12\ns_add_u32 @, @, {OB}", 128*KB),
            ("D","3a"): (f"s_lshl_b32 @, s50, 12\ns_add_u32 @, @, {XMID}", 128*KB),
            ("D","4"): (f"s_mul_i32 @, s51, {7*KB}\ns_add_u32 @, @, {Z2}", 56*KB),
            ("D","5"): (f"s_lshl_b32 @, s50, 12\ns_add_u32 @, @, {UB}", 128*KB),
            ("W","1"): (f"s_mul_i32 @, s49, {160*KB}\ns_add_u32 @, @, {WQ}", 8*KB),
            ("W","2"): (f"s_mul_i32 @, s51, {100*KB}\ns_add_u32 @, @, {WO}", 5*KB),
            ("W","3a"): (f"s_mul_i32 @, s51, {140*KB}\ns_add_u32 @, @, {WI + 8*140*KB}", 7*KB),
            ("W","3b"): (f"s_mul_i32 @, s51, {140*KB}\ns_add_u32 @, @, {WI}", 7*KB),
            ("W","4"): (f"s_lshl_b32 @, s50, 18\ns_add_u32 @, @, {WSP}", 4*KB),
            ("W","5"): (f"s_mul_i32 @, s51, {135*KB}\ns_add_u32 @, @, {WT}", 5*KB)}
    order = [("W","1"), ("D","1")] + [k for k in defs if k[1] != "1"]
    regs = {k: 30 + j for j, k in enumerate(defs)}
    pof = {4: 41, 5: 42, 7: 43, 8: 44, 9: 45}
    for nU, r in pof.items(): a(f"s_mul_i32 s{r}, s19, {nU*KB}")
    a(f"s_cmp_eq_u32 s48, 0\ns_cselect_b32 s56, 0, {KB}")
    a(f"v_and_b32 v9, 0xffffff7f, v3\ns_and_b32 s66, s51, 3\ns_cmp_eq_u32 s66, 3\ns_cselect_b32 s66, {KB}, 0")
    issued = []; emit = [True]; it = [0]
    cap = [None]
    def A(t):
        if cap[0] is not None: cap[0] += [l for l in t.split("\n") if l.strip()]
        elif emit[0]: a(t)
    def setup(keys):
        for key in keys:
            txt, stride = defs[key]; r = regs[key]
            a(txt.replace("@", f"s{r}")); gb[key] = r; st[key] = stride
            a(f"s_mul_i32 s46, s19, {stride}\ns_add_u32 s{r}, s{r}, s46")
            if key[0] == "D": a(f"s_add_u32 s{r}, s{r}, s12")
    for key in defs: gb[key] = regs[key]; st[key] = defs[key][1]
    def share(k, q, n):
        nU = PH[q]["n" + k]
        big = (k == "D") == (which == "A")
        if q in ("3b", "4"): big = (n % 2 == 0) == (which == "A")
        m = (nU + 1) // 2 if big else nU // 2
        return (0, m) if which == "A" else (nU - m, nU)
    def issue(x):
        k, q, n = x["k"], x["q"], x["n"]; nU = PH[q]["n" + k]; tag = (k, q, n); key = (k, q)
        sc = " sc1" if (k == "D" or q == "4") else ""
        g0 = n*2*st[key]; u, u1 = share(k, q, n)
        halo = (k == "D" and q == "1")
        if halo and u == 0:
            A(f"s_add_u32 m0, s{pof[nU]}, {x['addr']}\ns_add_u32 s54, s{gb[key]}, {g0}\ns_sub_u32 s54, s54, s56")
            A(f"buffer_load_dwordx4 v3, s[4:7], s54 offen{sc} lds"); issued.append(tag)
            u = 1
        assert u1 - u <= 4
        gu = u - 1 if halo else u
        A(f"s_add_u32 m0, s{pof[nU]}, {x['addr'] + u*KB}\ns_add_u32 s54, s{gb[key]}, {g0 + gu*KB}")
        if q == "5" and n == 13: A(f"s_mul_i32 s55, s19, {st[key]}\ns_sub_u32 s54, s54, s55")
        for j in range(u1 - u):
            vo = 9 if (key == ("W","1") and u + j == 7) else 3
            if nU == 7 and u + j == 6: A("s_sub_u32 s54, s54, s66")
            A(f"buffer_load_dwordx4 v{vo}, s[4:7], s54 offen offset:{j*KB}{sc} lds"); issued.append(tag)
    def poll(q):
        lab = f"PL{q}"
        A(f"s_cmp_lg_u32 s19, 0\ns_cbranch_scc1 {lab}_done")
        if q == "1": A(f"s_cmp_eq_u32 s14, 1\ns_cbranch_scc1 {lab}_done")
        if emit[0]: stamp(a, r=(8, 19))
        FL = CFG["FLAG"]
        tgt = 1 if FL else {"2": 16}.get(q, 8)
        o = "v56" if q == "2" else "v57"
        ad = f"{o}, s[4:7], s54 offen" if FL else "off, s[4:7], s54"
        if q == "2": A(f"s_lshr_b32 s54, s50, 1\ns_lshl_b32 s54, s54, 7\ns_add_u32 s54, s54, s52")
        elif q in ("3a", "5"): A(f"s_lshl_b32 s54, s50, 7\ns_add_u32 s54, s54, s52\ns_add_u32 s54, s54, {(CB if q == '3a' else CD)*128}")
        elif q == "4": ad = "v20, s[4:7], s52 offen"
        else: ad = "v21, s[4:7], 0 offen"
        A("s_mov_b32 s55, 0")
        if q == "4":
            wait([("p4",)], "p4"); A(f"s_branch {lab}_chk")
        if q == "4" and FL:
            A(f"{lab}:\nbuffer_load_dwordx4 v[60:63], {ad} sc1\ns_waitcnt vmcnt(0)\n{lab}_chk:\nv_and_b32 v60, v60, v61\nv_and_b32 v62, v62, v63\nv_and_b32 v22, v60, v62")
        else: A(f"{lab}:\nbuffer_load_dword v22, {ad} sc1\ns_waitcnt vmcnt(0)\n{lab}_chk:")
        A(f"v_cmp_ne_u32 vcc, {tgt}, v22\ns_cmp_eq_u64 vcc, 0\ns_cbranch_scc1 {lab}_ok")
        A(f"s_sleep {CFG['SLEEP']}\ns_add_u32 s55, s55, 1\ns_cmp_lt_u32 s55, 0x40000\ns_cbranch_scc1 {lab}\n{lab}_ok:")
        if emit[0]: stamp(a, r=(8, 19))
        A(f"{lab}_done:")
    def poll4_issue():
        ld = "buffer_load_dwordx4 v[60:63]" if CFG["FLAG"] else "buffer_load_dword v22"
        A(f"s_cmp_lg_u32 s19, 0\ns_cbranch_scc1 PL4_i\n{ld}, v20, s[4:7], s52 offen sc1\nPL4_i:")
        marks["p4"] = len(issued)
    marks = {}
    def signal(q):
        c, r = {"1": (CA, "s48"), "2": (CB, "s50"), "3a": (CC, "s50"), "4": (CD, "s50"), "5": (CE, "s50")}[q]
        lab = f"SG{q}"
        A(f"s_cmp_lg_u32 s19, 0\ns_cbranch_scc1 {lab}\ns_lshl_b32 s54, {r}, 7\ns_add_u32 s54, s54, s52\ns_add_u32 s54, s54, {c*128}")
        if CFG["FLAG"]: A(f"s_lshl_b32 s55, {'s49' if q == '1' else 's51'}, 2\ns_add_u32 s54, s54, s55")
        A(f"s_mov_b64 exec, 1\n{'buffer_store_dword' if CFG['FLAG'] else 'buffer_atomic_add'} v13, off, s[4:7], s54 sc1\ns_mov_b64 exec, -1\n{lab}:")
    T = 24
    def zsload(js=range(4)):
        for j in js:
            if j: A(f"s_add_u32 s54, s47, {j*4096}")
            A(f"buffer_load_dwordx4 {vr(T+4*j,4)}, v3, s[4:7], s{54 if j else 47} offen sc1"); issued.append(("zs", j))
    waits = {}
    def wait(tags, key):
        if not emit[0]:
            if key == "p4": cnt = min(62, len(issued) - marks["p4"])
            else:
                idx = max([i for i, t in enumerate(issued) if t in tags], default=-1)
                cnt = min(62, len(issued) - 1 - idx) if idx >= 0 else 63
            waits.setdefault(key, {})[it[0]] = cnt
            return
        w0, w1 = waits[key][0], waits[key][0 if key[0] == "ws" else 1]
        if min(w0, w1) >= 40 or not CFG["DW"] and w0 < w1: w0 = w1 = min(w0, w1)
        if w0 != w1:
            lab = a.label("WW")
            A(f"s_cmp_eq_u32 s14, {int(w0 < w1)}\ns_cbranch_scc1 {lab}\ns_waitcnt vmcnt({min(w0, w1)})\n{lab}:")
        if max(w0, w1) < 63: A(f"s_waitcnt vmcnt({max(w0, w1)})")
    def tables(js=range(4)):
        for j in js:
            wait([("zs", j)], ("zs", j))
            b = T + 4*j; t = (10, 11, 12) if j & 1 else (14, 15, 23)
            for k in range(4): A(f"v_mul_f32 v{b+k}, {hex(f2u(1.0/FH))}, v{b+k}")
            for v in (b, b+2): A(f"v_fma_f32 v{v+1}, -v{v}, v{v}, v{v+1}")
            for v in (b, b+2): A(f"v_max_f32 v{v+1}, 0, v{v+1}")
            for v in (b, b+2): A(f"v_add_f32 v{v+1}, {hex(f2u(1e-5))}, v{v+1}")
            for v in (b, b+2): A(f"v_rsq_f32 v{v+1}, v{v+1}")
            A(f"v_cvt_pk_f16_f32 v{t[0]}, v{b}, v{b+2}\nv_cvt_pk_f16_f32 v{b+1}, v{b+1}, v{b+3}\nv_cvt_f32_f16 v{t[1]}, v{t[0]}\nv_cvt_f32_f16_sdwa v{t[2]}, v{t[0]} dst_sel:DWORD dst_unused:UNUSED_PAD src0_sel:WORD_1")
            A(f"ds_write_b32 v16, v{b+1} offset:{RS0+1024*j}\nds_write_b32 v17, v{t[0]} offset:{MU0+2048*j}")
            A(f"v_sub_f32 v{t[1]}, v{b}, v{t[1]}\nv_sub_f32 v{t[2]}, v{b+2}, v{t[2]}\nv_cvt_pk_f16_f32 v{t[1]}, v{t[1]}, v{t[2]}")
            A(f"ds_write_b32 v17, v{t[1]} offset:{MU0+2048*j+64}")
        A("s_waitcnt lgkmcnt(0)")
    WR = 64
    def wsp_load(ms=range(8)):
        if CFG["WS2"]:
            lab = f"WL{which}{ms[0]}"
            A(f"s_cmp_eq_u32 s14, 1\ns_cbranch_scc1 {lab}")
            for m in ms: A(f"buffer_load_dwordx4 {vr(WR+4*m,4)}, v4, s[8:11], s57 offen offset:{512*m}{' nt' if CFG['NT'] & 1 else ''}"); issued.extend([("ws", m)] * (it[0] == 0))
            A(f"{lab}:")
            return
        lab = f"WL{which}"
        A(f"s_cmp_eq_u32 s14, 1\ns_cbranch_scc1 {lab}")
        for m in range(8): A(f"buffer_load_dwordx4 {vr(WR+4*m,4)}, v4, s[8:11], s57 offen offset:{512*m}{' nt' if CFG['NT'] & 1 else ''}")
        A(f"{lab}:")
    def wsp_conv(ms=range(8)):
        lab = f"WC{which}{ms[0]}"
        A(f"s_cmp_eq_u32 s14, 1\ns_cbranch_scc1 {lab}")
        if not CFG["WS2"]: A("s_waitcnt vmcnt(0)")
        for m in ms:
            if CFG["WS2"]: wait([("ws", m)], ("ws", m))
            w = WR + 4*m; t = (96 if CFG["WS2"] else 40) + 8*(m & 1)
            for j in range(4): A(f"v_dot2_f32_bf16 v{t+2*j}, v{w+j}, s67, 0\nv_dot2_f32_bf16 v{t+2*j+1}, v{w+j}, s68, 0")
            for j in range(4): A(f"v_cvt_pk_f16_f32 v{w+j}, v{t+2*j}, v{t+2*j+1}")
            A(f"s_add_u32 s54, s59, {m*32768}")
            for hh in range(2): A(f"buffer_store_dwordx2 {vr(w+2*hh,2)}, v5, s[4:7], s54 offen offset:{256*hh} sc1")
        A(f"{lab}:")
    ev = {}; late = {}; pre = {}
    def at(b, f): ev.setdefault(BIDX[b], []).append(f)
    def lat(b, f): late.setdefault(BIDX[b], []).append(f)
    if which == "B":
        for q in ("1", "2", "4", "5"): at((q, "G"), lambda q=q: signal(q))
        at(("3b", CFG["SIG3"]), lambda: signal("3a"))
    if CFG["WS2"] != 5: pre[BIDX[("2", "G")]] = "s_waitcnt vmcnt(0)"
    if CFG["WS2"]:
        for b, ms in WSS[CFG["WS2"]][1].items(): lat(_b(b), lambda ms=ms: wsp_conv(ms))
        for b, ms in WSS[CFG["WS2"]][0].items():
            if b != -1: lat(_b(b), lambda ms=ms: wsp_load(ms))
        pre[BIDX[("3b", CFG["SIG3"])]] = "s_waitcnt vmcnt(8)"
    else: lat(("1", CFG["WSPL"]), wsp_load); at(("1", "G"), wsp_conv)
    SR = 40
    def stload(q):
        for c in range(3 if q == "1" else 1):
            A(f"s_add_u32 s54, s12, s{(69, 70, 71)[c] if q == '1' else 58}\ns_add_u32 s55, s54, 16384")
            A(f"buffer_load_dwordx2 {vr(SR+4*c,2)}, v6, s[4:7], s54 offen sc1\nbuffer_load_dwordx2 {vr(SR+4*c+2,2)}, v6, s[4:7], s55 offen sc1")
            issued.extend([("st", q)]*2)
    def stcalc(q):
        wait([("st", q)], ("st", q))
        v = SR
        for c in range(3 if q == "1" else 1): A(f"v_pk_add_f32 {vr(v+4*c,2)}, {vr(v+4*c,2)}, {vr(v+4*c+2,2)}")
        if q == "1":
            A(f"v_mov_b32 v{v+6}, v{v+4}\nv_mov_b32 v{v+7}, v{v+5}")
            for k in range(2): A(f"v_permlane32_swap_b32 v{v+k}, v{v+8+k}")
            for k in range(2): A(f"v_permlane32_swap_b32 v{v+4+k}, v{v+6+k}")
            A(f"v_pk_add_f32 {vr(v,2)}, {vr(v,2)}, {vr(v+8,2)}\nv_pk_add_f32 {vr(v+2,2)}, {vr(v+4,2)}, {vr(v+6,2)}")
        else:
            A(f"v_mov_b32 v{v+2}, v{v}\nv_mov_b32 v{v+3}, v{v+1}")
            for k in range(2): A(f"v_permlane32_swap_b32 v{v+k}, v{v+2+k}")
            A(f"v_pk_add_f32 {vr(v,2)}, {vr(v,2)}, {vr(v+2,2)}\nv_mov_b32 v{v+2}, v{v}\nv_mov_b32 v{v+3}, v{v+1}")
        for k in range(2): A(f"v_permlane16_swap_b32 v{v+k}, v{v+2+k}")
        A(f"v_pk_add_f32 {vr(v,2)}, {vr(v,2)}, {vr(v+2,2)}")
        t = v + 2
        A(f"v_mul_f32 v{t}, {hex(f2u(1.0/640))}, v{v}\nv_mul_f32 v{v+1}, {hex(f2u(1.0/640))}, v{v+1}\nv_fma_f32 v{v+1}, -v{t}, v{t}, v{v+1}")
        A(f"v_max_f32 v{v+1}, 0, v{v+1}\nv_add_f32 v{v+1}, {hex(f2u(1e-5))}, v{v+1}\nv_rsq_f32 v{v}, v{v+1}")
        A(f"v_mul_f32 v{v+1}, -v{t}, v{v}")
        A(f"ds_write2_b32 v{7 if q == '1' else 18}, v{v}, v{v+1} offset0:0 offset1:{NM0//4}\ns_waitcnt lgkmcnt(0)")
    for q in ("1", "3a"):
        lat((q, CFG["STL"]), lambda q=q: stload(q)); lat((q, 8), lambda q=q: stcalc(q))
    if which == "A":
        if not CFG["CP"]: lat(("1","G"), lambda: poll("2")); lat(("2","G"), lambda: poll("3a")); lat(("4","G"), lambda: poll("5")); lat(("5","G"), lambda: poll("1"))
        at(("3b", CFG["G4"] - CFG["POLL4"]), poll4_issue); lat(("3b", CFG["G4"] - 1), lambda: poll("4"))
    if CFG["TSP"]:
        g4 = ("3b", CFG["G4"])
        at(g4, lambda: zsload([0])); lat(g4, lambda: zsload([1, 2, 3])); lat(g4, lambda: tables([0]))
        for j in (1, 2, 3): lat(("4", CFG["TSP"]*j), lambda j=j: tables([j]))
    else: at(("3b", CFG["G4"]), zsload); lat(("3b", min(10, CFG["G4"] + CFG["TBL"])), tables)
    def issue_at(bs):
        xs = [x for x in al if x["after"] in bs]
        xs.sort(key=lambda x: (x["use"] - x["after"], x["k"]))
        for x in xs: issue(x)
    def body():
        if not (CFG["ES"] and it[0] == 0 and not emit[0]): issue_at((-1,))
        if CFG["ES"]: A(f"{L}_in:")
        if CFG["WS2"] and -1 in WSS[CFG["WS2"]][0]: wsp_load(WSS[CFG["WS2"]][0][-1])
        for b in range(NB):
            tags = [(x["k"], x["q"], x["n"]) for x in al if x["use"] == b]
            if b in pre: A(pre[b])
            if emit[0] and isinstance(BARS[b][1], int) and BARS[b][1] < 30: stamp2(a, BARS[b][0], (8, 19))
            if tags: wait(tags, ("u", b))
            if emit[0] and isinstance(BARS[b][1], int) and BARS[b][1] < 30: stamp2(a, BARS[b][0], (8, 19))
            A("s_barrier")
            for f in ev.get(b, []): f()
            if b < NB - 1: issue_at((b, b - NB))
            for f in late.get(b, []): f()
    def pro():
        for x in sorted(al, key=lambda x: (x["use"], x["k"] == "W")) if CFG["ES"] else al:
            if x["after"] < (0 if CFG["ES"] else -1): issue(x)
    emit[0] = False
    pro(); body(); it[0] = 1; body()
    issued.clear(); emit[0] = True; it[0] = 0
    es = 2 if CFG["ES"] else 1
    setup(order[:es]); pro(); setup(order[es:])
    if CFG["FLAG"]:
        a(f"v_lshrrev_b32 v20, 1, v0\nv_lshlrev_b32 v20, 7, v20\nv_and_b32 v13, 1, v0\nv_lshl_add_u32 v20, v13, 4, v20\nv_add_u32 v20, {CC*128}, v20\nv_mov_b32 v13, 1")
        a("v_lshlrev_b32 v56, 2, v2\nv_and_b32 v57, 28, v56")
        a(f"v_min_u32 v21, 2, v1\ns_lshl_b32 s46, s48, 1\nv_add_u32 v21, s46, v21\nv_max_u32 v21, 1, v21\nv_lshl_add_u32 v21, v21, 7, v57\nv_add_u32 v21, {(CE-1)*128 + CNT}, v21")
    else:
        a(f"v_and_b32 v20, 31, v0\nv_lshlrev_b32 v20, 7, v20\nv_add_u32 v20, {CC*128}, v20\nv_mov_b32 v13, 1")
        a(f"v_min_u32 v21, 2, v0\ns_lshl_b32 s46, s48, 1\nv_add_u32 v21, s46, v21\nv_max_u32 v21, 1, v21\nv_lshlrev_b32 v21, 7, v21\nv_add_u32 v21, {(CE-1)*128 + CNT}, v21")
    a("v_bfe_u32 v18, v0, 1, 2\nv_lshlrev_b32 v17, 4, v18\nv_bfe_u32 v18, v0, 3, 1\nv_lshl_add_u32 v17, v18, 3, v17\nv_and_b32 v18, 1, v0\nv_lshl_add_u32 v17, v18, 2, v17")
    a(f"s_sub_u32 s46, s13, 4\ns_lshl_b32 s47, s46, 10\ns_add_u32 s47, s47, {IT0+ZS}\ns_lshl_b32 s54, s46, 2\nv_add_u32 v18, s54, v1\nv_lshl_add_u32 v16, v18, 6, v17\nv_lshl_add_u32 v17, v18, 7, v17")
    a.srd(8, 20, 2048*2048*2)
    a("v_lshrrev_b32 v10, 3, v0\nv_and_b32 v7, 7, v0\nv_lshlrev_b32 v7, 4, v7\nv_lshl_add_u32 v4, v10, 12, v7")
    a("v_lshlrev_b32 v5, 4, v10\nv_and_b32 v11, 1, v0\nv_lshl_add_u32 v5, v11, 9, v5\nv_and_b32 v11, 4, v0\nv_lshl_add_u32 v5, v11, 10, v5\nv_and_b32 v11, 2, v0\nv_lshl_add_u32 v5, v11, 2, v5")
    a(f"s_lshl_b32 s57, s50, 18\ns_lshl_b32 s54, s46, 13\ns_add_u32 s59, s57, s54\ns_lshr_b32 s54, s51, 1\ns_lshl_b32 s54, s54, 10\ns_add_u32 s59, s59, s54\ns_and_b32 s54, s51, 1\ns_lshl_b32 s54, s54, 7\ns_add_u32 s59, s59, s54\ns_add_u32 s59, s59, {WSP}")
    a("s_lshl_b32 s54, s46, 7\ns_add_u32 s57, s57, s54\ns_lshl_b32 s54, s51, 15\ns_add_u32 s57, s57, s54\ns_mov_b32 s67, 0x4280\ns_mov_b32 s68, 0x42800000")
    a("v_lshlrev_b32 v6, 15, v1\nv_lshl_add_u32 v6, v2, 3, v6\ns_lshl_b32 s54, s46, 6\nv_lshlrev_b32 v18, 2, v2\nv_add_u32 v18, s54, v18")
    a("v_and_b32 v7, 1, v1\nv_lshl_add_u32 v7, v7, 8, v18\nv_lshlrev_b32 v10, 2, v2\nv_add_u32 v10, 512, v10\nv_cmp_eq_u32 vcc, 2, v1\nv_cndmask_b32 v7, v7, v10, vcc")
    a(f"s_lshl_b32 s71, s48, 10\ns_lshl_b32 s54, s46, 7\ns_add_u32 s69, s71, s54\ns_add_u32 s70, s69, {STIN+384}\ns_max_u32 s69, s69, 128\ns_add_u32 s69, s69, {STIN-128}\ns_add_u32 s71, s71, {STIN+896}")
    a(f"s_lshl_b32 s58, s50, 9\ns_add_u32 s58, s58, s54\ns_add_u32 s58, s58, {STMID}")
    if CFG["CODEPF"] > 1 and which == "B":
        lab = a.label("CPM")
        a(f"s_getpc_b64 s[60:61]\n{lab}:\ns_sub_u32 s60, s60, {lab}-main_kernel\ns_subb_u32 s61, s61, 0")
        a(f"s_lshl_b32 s54, s53, 1\ns_add_u32 s54, s54, s19\ns_mul_i32 s54, s54, 1536\nv_min_u32 v10, 11, v0\nv_lshlrev_b32 v10, 7, v10\nv_add_u32 v10, s54, v10")
        a(f"v_min_u32 v10, MAIN_END-main_kernel-4, v10\nglobal_load_dword v11, v10, s[60:61]")
    if CFG["ES"]: a(f"s_branch {L}_in")
    a(f"{L}_loop:")
    body()
    a(f"s_cmp_eq_u32 s14, 1\ns_cbranch_scc1 FINL\ns_mov_b32 s14, 1\ns_add_u32 s47, s47, {ITS}\ns_add_u32 s12, s12, {ITS}\ns_add_u32 s52, s52, 32768")
    for j in range(5): a(f"s_add_u32 s{30+j}, s{30+j}, {ITS}")
    a(f"s_branch {L}_loop")

def cpoll(a, q):
    if not CFG["CP"]: return
    lab = f"CPL{q}"; tgt = {"2": 16}.get(q, 8); D = CFG["PD"]
    a(f"s_cmp_lg_u32 s13, {CFG['CP']-1}\ns_cbranch_scc1 {lab}_ok")
    if q == "1":
        a(f"s_lshl_b32 s72, s48, 8\ns_add_u32 s72, s72, {(CE-1)*128 + CNT}\ns_min_u32 s73, s48, 1\ns_or_b32 exec_lo, s73, 0x10100\ns_mov_b32 exec_hi, 0")
        ad = "v3, s[4:7], s72 offen"
    else:
        a(f"s_lshl_b32 s73, s14, 15\ns_add_u32 s73, s73, {CNT + {'2': CA, '3a': CB, '5': CD}[q]*128}")
        a(("s_lshr_b32 s72, s50, 1\ns_lshl_b32 s72, s72, 7" if q == "2" else "s_lshl_b32 s72, s50, 7") + "\ns_add_u32 s72, s72, s73\ns_mov_b64 exec, 1")
        ad = "off, s[4:7], s72"
    sl = f"s_sleep {CFG['SLEEP']}"
    a("s_mov_b32 s73, 0")
    for k in range(D - 1): a(f"buffer_load_dword v{253+k}, {ad} sc1\ns_sleep {CFG['PS']}")
    a(f"{lab}:")
    for k in range(D):
        a(f"buffer_load_dword v{253+(k+D-1)%D}, {ad} sc1\ns_waitcnt vmcnt({D-1})")
        a(f"v_cmp_ne_u32 vcc, {tgt}, v{253+k}\ns_cmp_eq_u64 vcc, 0\ns_cbranch_scc1 {lab}_x\n{sl}")
    a(f"s_add_u32 s73, s73, 1\ns_cmp_lt_u32 s73, 0x20000\ns_cbranch_scc1 {lab}\n{lab}_x:\ns_mov_b64 exec, -1\n{lab}_ok:")
def weave(a, lg, ms, rd, va=(), rpm=1, vpm=0, vskip=0):
    rd = list(rd); va = list(va); i = j = 0; acc = 0.0
    for mi, (txt, nd) in enumerate(ms):
        lg.need(nd); a(txt)
        acc += rpm
        while acc >= 1 and i < len(rd): lg.op(*rd[i]); i += 1; acc -= 1
        for _ in range(vpm if mi >= vskip else 0):
            if j < len(va):
                if va[j]: lg.need(va[j][1]); a(va[j][0])
                j += 1
    while i < len(rd): lg.op(*rd[i]); i += 1
    while j < len(va): lg.need(va[j][1]); a(va[j][0]); j += 1

def mainloop(a, lg, q, NBUF, reads, mf, hooks=None, last_hook=None, rpm=2, prebar=None, tailf=None, cv=None, roll=None, dz=None):
    ph = PH[q]; nks = ph["nks"]; nst = ph["nst"]
    hooks = hooks or {}; prebar = prebar or {}
    for n in range(nst):
        if roll:
            n0, per, lab, inc = roll
            if n == n0: assert not dz; a(f"s_mov_b32 s37, {(nst - n0)//per}\n{lab}:"); st0 = [set(x) for x in lg.out]
            if n == n0 + per:
                assert st0 == lg.out and (nst - n0) % per == 0
                for k in "DW": assert all(ph["addr"+k][m] == ph["addr"+k][m-per] for m in range(n, nst))
                a(f"{inc}\ns_sub_u32 s37, s37, 1\ns_cmp_lg_u32 s37, 0\ns_cbranch_scc1 {lab}")
                break
        if not ph["lag"] or n == 0: lg.drain()
        if n in prebar: a(prebar[n])
        if n == 0: stamp(a, lg)
        if n == 0 and q in ("2", "3a", "5"): cpoll(a, q); a("s_barrier")
        if n < 30: stamp2(a, q)
        a("s_barrier")
        if n < 30: stamp2(a, q)
        if n == 0: stamp(a, lg)
        if n in hooks: hooks[n]()
        ts = [t for t in (2*n, 2*n+1) if t < nks]
        if NBUF == 2:
            for t in ts:
                weave(a, lg, mf(t-1, (t-1) % 2) if t >= 1 else [], reads(t, t % 2), rpm=rpm)
        elif cv:
            r0, r1 = reads(2*n, (2*n) % 4), reads(2*n+1, (2*n+1) % 4)
            rd = r0[:3] + r1[:3] + r0[3:] + r1[3:]
            if n == 0:
                weave(a, lg, [], rd, cv(0, 0))
            else:
                h = len(rd) // 2
                def mix(c):
                    if not dz: return c, 1
                    o = []
                    for e in c:
                        o.append(e)
                        for _ in range(CFG["DZP"]): o.append((dz.pop(0), []) if dz else None)
                    return o, 1 + CFG["DZP"]
                for tt, rr in ((2*n-2, rd[:h]), (2*n-1, rd[h:])):
                    va, vpm = mix(cv(tt+1, (tt+1) % 4))
                    weave(a, lg, mf(tt, tt % 4), rr, va, rpm=1, vpm=vpm)
        else:
            rd = sum([reads(t, t % 4) for t in ts], [])
            ms = sum([mf(t, t % 4) for t in (2*n-2, 2*n-1) if t >= 0], [])
            weave(a, lg, ms, rd, rpm=rpm)
    tail = [nks-1] if NBUF == 2 else [t for t in (2*nst-2, 2*nst-1) if t < nks]
    extra = last_hook() if last_hook else []
    if tailf: tailf()
    else: weave(a, lg, sum([mf(t, t % NBUF) for t in tail], []), extra, rpm=rpm)
    if q != "4": stamp2(a, q)
    a("s_barrier")
    if q != "4": stamp2(a, q)
    stamp(a, lg)
def poolloop(a, lg, q, regions, spare, frags, mfs, last, L, rpm):
    ph = PH[q]; nks = ph["nks"]; nst = ph["nst"]
    RD = [(t, nm, fn) for t in range(nks) for nm, fn in frags(t)]
    MS = [(t, fn, nms) for t in range(nks) for fn, nms in mfs(t)]
    lastuse = {}
    for i, (t, fn, nms) in enumerate(MS):
        for nm in nms: lastuse[(t, nm)] = i
    per = len(MS) // nst
    free = [list(regions[0]), list(regions[1]), list(spare)]
    home = {r: k for k in range(3) for r in free[k]}
    loc = {}; ri = [0]; last = list(last)
    def rd(tmax, force=False):
        if ri[0] >= len(RD) or RD[ri[0]][0] > tmax: return False
        t, nm, fn = RD[ri[0]]
        for k in (t & 1, 2) + ((1 - (t & 1),) if force else ()):
            if free[k]:
                r = free[k].pop(0); loc[(t, nm)] = r; lg.op(*fn(r)); ri[0] += 1; return True
        assert not force
        return False
    def rdlast():
        busy = {x for r in loc.values() for x in R(r, 4)}
        for k, (txt, regs) in enumerate(last):
            if not busy & set(regs): lg.op(txt, regs); last.pop(k); return True
        return False
    mi = 0
    for n in range(nst):
        lg.drain()
        if n == 0:
            stamp(a, lg)
            if q == "1": a("s_cmp_eq_u32 s14, 0\ns_cbranch_scc1 P1_nof"); cpoll(a, q); a("s_barrier\nP1_nof:")
            elif q != "3b": cpoll(a, q); a("s_barrier")
        stamp2(a, q); a("s_barrier"); stamp2(a, q)
        if n == 0: stamp(a, lg)
        tmax = 2*n + 1; acc_ = 0.0
        end = per*(n+1) - L if n < nst - 1 else len(MS)
        if n == 0:
            for _ in range(len(frags(0))): rd(0)
        while mi < end:
            t, fn, nms = MS[mi]
            while any((t, nm) not in loc for nm in nms): rd(tmax, True)
            lg.need([x for nm in nms for x in R(loc[(t, nm)], 4)])
            a(fn({nm: loc[(t, nm)] for nm in nms}))
            for nm in nms:
                if lastuse[(t, nm)] == mi: r = loc.pop((t, nm)); free[home[r]].append(r)
            mi += 1; acc_ = min(acc_ + rpm, 2*rpm)
            while acc_ >= 1 and (rd(tmax) or (ri[0] >= len(RD) and rdlast())): acc_ -= 1
        while rd(tmax, True): pass
    while rdlast(): pass
    assert not last
    stamp2(a, q); a("s_barrier"); stamp2(a, q)
    stamp(a, lg)
class Cap(Asm):
    def __call__(s, t): s.lines += [l.strip() for l in t.split("\n") if l.strip()]
def gbar(a, nxt, first=False):
    if not first: stamp(a)
    c = Cap(); nxt(c); L = c.lines
    ld = [i for i, l in enumerate(L) if l.startswith("buffer_load")]
    K = max(ld[-1] + 1, CFG["SUK"])
    while K < len(L) and L[K].startswith("s_cselect"): K += 1
    for l in L[:K]: a(l)
    if first: a("s_cmp_eq_u32 s14, 0\ns_cbranch_scc1 P1_nog")
    a(f"s_waitcnt vmcnt({len(ld)})")
    stamp(a)
    a("s_barrier")
    if first: a("P1_nog:")
    for l in L[K:]: a(l)
    a("s_waitcnt vmcnt(0)")

def xreduce(a, op, v, t):
    a(f"v_mov_b32 v{t}, v{v}\nv_permlane32_swap_b32 v{t}, v{v}\n{op} v{v}, v{v}, v{t}")
    a(f"v_mov_b32 v{t}, v{v}\nv_permlane16_swap_b32 v{t}, v{v}\n{op} v{v}, v{v}, v{t}")
def bc2(hi): return "op_sel:[0,1] op_sel_hi:[1,1]" if hi else "op_sel:[0,0] op_sel_hi:[1,0]"
def bc3(hi): return "op_sel:[0,1,0] op_sel_hi:[1,1,1]" if hi else "op_sel:[0,0,0] op_sel_hi:[1,0,1]"
def fix_T(a, acc, cs, st, tmp):
    for h in (0, 2): a(f"v_pk_mul_f32 {vr(tmp+h,2)}, {vr(cs+h,2)}, {vr(st,2)} {bc2(1)}")
    for h in (0, 2): a(f"v_pk_fma_f32 {vr(acc+h,2)}, {vr(acc+h,2)}, {vr(st,2)}, {vr(tmp+h,2)} {bc3(0)}")
def fix_N(a, acc, csreg, rs, nm, tmp):
    cp = csreg & ~1
    for h in (0, 2): a(f"v_pk_mul_f32 {vr(tmp+h,2)}, {vr(nm+h,2)}, {vr(cp,2)} {bc2(csreg & 1)}")
    for h in (0, 2): a(f"v_pk_fma_f32 {vr(acc+h,2)}, {vr(acc+h,2)}, {vr(rs+h,2)}, {vr(tmp+h,2)}")
def cvt2(a, d, acc, ty="bf16"):
    a(f"v_cvt_pk_{ty}_f32 v{d}, v{acc}, v{acc+1}\nv_cvt_pk_{ty}_f32 v{d+1}, v{acc+2}, v{acc+3}")
def rdD(q, t, dst, bD, addr, v8, lo):
    if t < SPLIT[q]: return rd128(dst, bD(addr))
    o = (addr - lo) // 512
    assert (addr - lo) % 512 == 0 and o + 1 < 256
    return (f"ds_read2st64_b64 {vr(dst,4)}, v{v8} offset0:{o} offset1:{o+1}", R(dst,4))
def rd128(dst, ba): return (f"ds_read_b128 {vr(dst,4)}, v{ba[0]} offset:{ba[1]}", R(dst,4))

P1C = dict(ACC=32, FB=104, X=208)
def setup1(a):
    q = "1"; ACC = P1C["ACC"]; X = P1C["X"]
    dlo, dhi = rng(q, "D"); wlo, whi = rng(q, "W")
    a(f"s_lshl_b32 s34, s49, 9\ns_add_u32 s34, s34, {CSQ}\ns_add_u32 s35, s34, 8192\nv_lshlrev_b32 v19, 3, v0")
    a(f"buffer_load_dwordx2 {vr(X,2)}, v19, s[4:7], s34 offen\nbuffer_load_dwordx2 {vr(X+2,2)}, v19, s[4:7], s35 offen")
    a(f"s_lshl_b32 s30, s13, 11\ns_add_u32 s30, s30, {KB}\nv_add_u32 v13, s30, v3")
    P1C["bD"] = mkbase(a, [4, 5], dlo, dhi, 13); P1C["bH"] = mkbase(a, [6, 7], dlo, dhi, 3); P1C["bW"] = mkbase(a, [8], wlo, whi, 3)
    a(f"v_add_u32 v252, {dlo}, v19\nv_add_u32 v11, s30, v252")
    a("s_min_u32 s31, s13, 2\ns_lshl_b32 s32, s31, 1\ns_add_u32 s32, s32, 1\ns_min_u32 s32, s32, 4\ns_add_u32 s33, s31, 5")
    a("s_lshl_b32 s34, s32, 10\nv_add_u32 v9, s34, v8\ns_lshl_b32 s34, s33, 10\nv_add_u32 v10, s34, v8")
    BI = X+26; BIa = X+34; ONES = X+38
    a("s_mov_b32 s40, 0xffff\ns_mov_b32 s41, 0\ns_mov_b32 s42, 0xffff0000\ns_mov_b32 s43, 0")
    a("v_lshlrev_b32 v16, 2, v1\nv_sub_u32 v16, v2, v16\nv_mov_b32 v17, 0xff800000")
    for kt in range(2):
        for r in range(4):
            a(f"v_add_u32 v18, {16 - 16*kt - r}, v16\nv_and_b32 v18, 0xfffffff1, v18\nv_cmp_eq_u32 vcc, 0, v18\nv_cndmask_b32 v{BI+4*kt+r}, v17, 0, vcc")
    a("s_add_u32 s34, s48, s13\ns_cmp_eq_u32 s34, 0\ns_cselect_b64 s[38:39], -1, 0")
    for r in range(4): a(f"v_cndmask_b32 v{BIa+r}, v{BI+r}, v17, s[38:39]\nv_mov_b32 v{ONES+r}, 0x3f803f80")
    c = (DH ** -0.5) * math.log2(math.e)
    a(f"s_mov_b32 s44, {hex(f2u(c))}\ns_mov_b32 s45, {hex(f2u(c))}")
    a(f"s_lshl_b32 s46, s49, 17\ns_lshl_b32 s47, s48, 13\ns_lshl_b32 s37, s13, 11\ns_add_u32 s47, s47, s37\ns_add_u32 s47, s47, s12\ns_add_u32 s47, s47, {OB}\ns_add_u32 s46, s46, s47")
    a(f"s_lshr_b32 s37, s49, 2\ns_add_u32 s37, s37, 16\ns_lshl_b32 s37, s37, 17\ns_add_u32 s47, s47, s37\ns_and_b32 s37, s49, 3\ns_lshl_b32 s37, s37, 8\ns_add_u32 s47, s47, s37")
    a("s_lshl_b32 s36, s13, 7\nv_lshlrev_b32 v18, 2, v2\nv_add_u32 v13, s36, v18\nv_lshlrev_b32 v23, 4, v1\nv_add_u32 v14, s36, v23")
    a("s_lshl_b32 s34, s32, 6\nv_add_u32 v15, s34, v23\ns_lshl_b32 s34, s33, 6\nv_add_u32 v12, s34, v18")
    a("s_lshl_b32 s34, s31, 9\nv_add_u32 v20, s34, v19\ns_mul_i32 s34, s13, 3072\nv_add_u32 v21, s34, v19\nv_or_b32 v22, 256, v21")
def cons1(a):
    q = "1"; lg = LG(a)
    ACC = P1C["ACC"]; FB = P1C["FB"]; X = P1C["X"]; bD, bH, bW = P1C["bD"], P1C["bH"], P1C["bW"]
    def acc(t, x): return ACC + 4*(2*t + x)
    accHT, accHV = ACC + 64, ACC + 68
    dlo, dhi = rng(q, "D")
    BI = X+26; BIa = X+34; ONES = X+38
    a(f"v_pk_add_f32 {vr(X,2)}, {vr(X,2)}, {vr(X+2,2)}")
    lg.op(f"ds_write_b64 v19, {vr(X,2)} offset:{CS0}")
    def frags(t):
        d0 = uaddr(q, "D", t, 0); w0 = uaddr(q, "W", t, 0)
        out = [("Ah", lambda r: rdD(q, t, r, bH, d0, 252, dlo)), ("BT", lambda r: rd128(r, (9, bW(w0)[1]))), ("BV", lambda r: rd128(r, (10, bW(w0)[1])))]
        As = [("A0", lambda r: rdD(q, t, r, bD, d0, 11, dlo)), ("A1", lambda r: rdD(q, t, r, bD, d0+KB, 11, dlo))]
        Bs = [(f"B{u}", lambda r, u=u: rd128(r, bW(w0+u*KB))) for u in range(8)]
        if t == 19: return out + As[1:] + Bs + As[:1]
        return out + [As[0], Bs[0], As[1]] + Bs[1:]
    def mfs(t):
        out = []; C0 = "0" if t == 0 else None
        for u in range(8):
            for x in range(2):
                A, B = f"A{x}", f"B{u}"
                out.append((lambda m, u=u, x=x, A=A, B=B: mfma(acc(u,x), m[B], m[A], C0) if u < 5 else mfma(acc(u,x), m[A], m[B], C0), (A, B)))
        h = [(lambda m: mfma(accHT, m["BT"], m["Ah"], C0), ("BT", "Ah")), (lambda m: mfma(accHV, m["Ah"], m["BV"], C0), ("Ah", "BV"))]
        if t == 19: return h + out[1::2] + out[0::2]
        return h + out
    E = FB
    stT = [E, E+2, E+4]; rsN = [E+8, E+12, E+16]; nmN = [E+20, E+24, E+28]
    csT = [E+32, E+36, E+40, E+44, E+48]; csHT = X
    csV = [X+4, X+5, X+6]; csHV = X+7
    def last_hook():
        out = []
        for x in (2, 1, 0):
            va, vb, o = (18, 23, 0) if x == 2 else (13, 14, 64+64*x)
            out.append((f"ds_read2_b32 {vr(stT[x],2)}, v{va} offset0:{o//4} offset1:{(NM0+o)//4}", R(stT[x],2)))
            out.append(rd128(rsN[x], (vb, o))); out.append(rd128(nmN[x], (vb, NM0+o)))
            if x == 2:
                out.append(rd128(csHT, (15, CS0))); out.append((f"ds_read_b32 v{csHV}, v12 offset:{CS0}", [csHV]))
            if x == 1:
                for t in range(5): out.append(rd128(csT[t], (23, CS0+64*t)))
                for t in range(3): out.append((f"ds_read_b32 v{csV[t]}, v18 offset:{CS0+64*(5+t)}", [csV[t]]))
        return out
    poolloop(a, lg, q, [[FB+52*b+4*k for k in range(13)] for b in range(2)], [X+8, X+12, X+16, X+20, 24, 28], frags, mfs, last_hook(), CFG["L1"], CFG["RPM1"]/4)
    lg.drain()
    G = FB + 52
    QF = {(0,0): G, (1,0): G+4, (0,1): G+8, (1,1): G+12}
    KF = {(0,0): G+16, (1,0): G+20, (0,1): G+24, (1,1): G+28, (0,'p'): G+32, (1,'p'): G+36}
    VF = [X+8, X+14, X+20]
    TMP = G+40; HT, HV = G+44, G+46; T4r = G+48; TM2 = 24
    def prep_kv(x):
        for k, t in enumerate((1, 3, 4)): fix_T(a, acc(t,x), csT[t], stT[x], (TMP, TM2)[k & 1])
        for t in range(3): fix_N(a, acc(5+t,x), csV[t], rsN[x], nmN[x], (TM2, TMP)[t & 1])
        cvt2(a, KF[(0,x)], acc(1,x)); cvt2(a, KF[(1,x)], acc(3,x)); cvt2(a, T4r + 2*x, acc(4,x))
        for t in range(3): cvt2(a, VF[t] + 2 + 2*x, acc(5+t,x))
    def prep_q(x):
        for k, t in enumerate((0, 2)): fix_T(a, acc(t,x), csT[t], stT[x], (TMP, TM2)[k & 1])
        T4 = T4r + 2*x
        for j in range(2):
            a(f"v_mov_b32 v{KF[(0,x)]+2+j}, v{T4+j}\nv_mov_b32 v{KF[(1,x)]+2+j}, v{T4+j}")
        cvt2(a, QF[(0,x)], acc(0,x)); cvt2(a, QF[(1,x)], acc(2,x))
        for j in range(2): a(f"v_permlane32_swap_b32 v{KF[(0,x)]+2+j}, v{KF[(1,x)]+2+j}")
        for j in range(2):
            a(f"v_cndmask_b32 v{QF[(0,x)]+2+j}, 0, v{T4+j}, s[40:41]\nv_cndmask_b32 v{QF[(1,x)]+2+j}, 0, v{T4+j}, s[42:43]")
        for j in range(2): a(f"v_mov_b32 v{KF[(0,x)]+2+j}, v{KF[(1,x)]+2+j}")
    fix_T(a, accHT, csHT, stT[2], TMP); fix_N(a, accHV, csHV, rsN[2], nmN[2], TM2)
    cvt2(a, HT, accHT); cvt2(a, HV, accHV)
    a(f"ds_write_b64 v20, {vr(HT,2)} offset:4096\nds_write_b64 v20, {vr(HV,2)} offset:{4096+1536}")
    prep_kv(1)
    for k, r in enumerate([KF[(0,1)], KF[(1,1)], T4r+2, VF[0]+4, VF[1]+4, VF[2]+4]):
        a(f"ds_write_b64 v21, {vr(r,2)} offset:{4096+3072+512*k}")
    prep_kv(0)
    a("s_waitcnt lgkmcnt(0)\ns_barrier")
    lg.op(f"ds_read_b64 {vr(KF[(0,'p')],2)}, v21 offset:4096", R(KF[(0,'p')],2))
    lg.op(f"ds_read_b64 {vr(KF[(1,'p')],2)}, v21 offset:{4096+512}", R(KF[(1,'p')],2))
    lg.op(f"ds_read_b64 {vr(KF[(0,'p')]+2,2)}, v22 offset:{4096+1024}", R(KF[(0,'p')]+2,2))
    lg.op(f"ds_read_b64 {vr(KF[(1,'p')]+2,2)}, v22 offset:{4096+1024}", R(KF[(1,'p')]+2,2))
    for t in range(3): lg.op(f"ds_read_b64 {vr(VF[t],2)}, v21 offset:{4096+1536+512*t}", R(VF[t],2))
    prep_q(1); prep_q(0)
    lg.drain()
    XS = (1, 0)
    Wb = {1: ACC, 0: ACC + 36}
    Sr = {(x,h): Wb[x] + 8*h for x in XS for h in range(2)}
    M = {(x,h): Wb[x] + 16 + 2*h for x in XS for h in range(2)}
    PF = {(x,h): Wb[x] + 20 + 4*h for x in XS for h in range(2)}
    XH = [(x,h) for x in XS for h in range(2)]
    for (x,h) in XH:
        pk = 'p' if x == 0 else 0
        a(mfma(Sr[x,h], KF[(h,pk)], QF[(h,x)], "0")); a(mfma(Sr[x,h]+4, KF[(h,x)], QF[(h,x)], "0"))
    for (x,h) in XH:
        bp = BIa if x == 0 else BI
        for j in range(4):
            b = (bp + 2*j) if j < 2 else (BI + 2*j)
            a(f"v_pk_fma_f32 {vr(Sr[x,h]+2*j,2)}, {vr(Sr[x,h]+2*j,2)}, s[44:45], {vr(b,2)}")
        s_, m = Sr[x,h], M[x,h]
        a(f"v_max3_f32 v{m}, v{s_}, v{s_+1}, v{s_+2}\nv_max3_f32 v{m+1}, v{s_+3}, v{s_+4}, v{s_+5}\nv_max3_f32 v{m}, v{m}, v{s_+6}, v{s_+7}\nv_max_f32 v{m}, v{m}, v{m+1}")
    for sw in ("v_permlane32_swap_b32", "v_permlane16_swap_b32"):
        for k in XH: a(f"v_mov_b32 v{M[k]+1}, v{M[k]}")
        for k in XH: a(f"{sw} v{M[k]+1}, v{M[k]}")
        for k in XH: a(f"v_max_f32 v{M[k]}, v{M[k]}, v{M[k]+1}")
    for x in XS:
        for h in range(2):
            k = (x,h)
            for j in range(4):
                a(f"v_pk_add_f32 {vr(Sr[k]+2*j,2)}, {vr(Sr[k]+2*j,2)}, {vr(M[k],2)} op_sel:[0,0] op_sel_hi:[1,0] neg_lo:[0,1] neg_hi:[0,1]")
            for j in range(8): a(f"v_exp_f32 v{Sr[k]+j}, v{Sr[k]+j}")
        for h in range(2):
            cvt2(a, PF[x,h], Sr[x,h]); cvt2(a, PF[x,h]+2, Sr[x,h]+4)
        vo = 2*x; W = Wb[x]
        L0, L1, O0, O1a, O1b, O2 = W+28, W+32, W, W+4, W+8, W+12
        a(mfma(L0, ONES, PF[x,0], "0")); a(mfma(L1, ONES, PF[x,1], "0"))
        a(mfma(O0, VF[0]+vo, PF[x,0], "0")); a(mfma(O1a, VF[1]+vo, PF[x,0], "0"))
        a(mfma(O1b, VF[1]+vo, PF[x,1], "0")); a(mfma(O2, VF[2]+vo, PF[x,1], "0"))
    for x in XS:
        W = Wb[x]
        L0, L1, O0, O1a, O1b, O2 = W+28, W+32, W, W+4, W+8, W+12
        a(f"v_rcp_f32 v{L0}, v{L0}\nv_rcp_f32 v{L1}, v{L1}")
        for j in range(4): a(f"v_cndmask_b32 v{O1a+j}, v{O1b+j}, v{O1a+j}, s[40:41]")
        a(f"v_cndmask_b32 v{L0+1}, v{L1}, v{L0}, s[40:41]")
        for j in (0, 2): a(f"v_pk_mul_f32 {vr(O0+j,2)}, {vr(O0+j,2)}, {vr(L0,2)} {bc2(0)}")
        for j in (0, 2): a(f"v_pk_mul_f32 {vr(O1a+j,2)}, {vr(O1a+j,2)}, {vr(L0,2)} {bc2(1)}")
        for j in (0, 2): a(f"v_pk_mul_f32 {vr(O2+j,2)}, {vr(O2+j,2)}, {vr(L1,2)} {bc2(0)}")
        cvt2(a, PF[x,0], O0); cvt2(a, PF[x,0]+2, O1a); cvt2(a, PF[x,1], O2)
        a(f"buffer_store_dwordx4 {vr(PF[x,0],4)}, v3, s[4:7], s46 offen offset:{x*KB} sc1")
        a(f"s_mov_b64 exec, 0xffffffff\nbuffer_store_dwordx2 {vr(PF[x,1],2)}, v19, s[4:7], s47 offen offset:{x*KB} sc1\ns_mov_b64 exec, -1")
    gbar(a, lambda c: setup25(c, "2"))

P25 = {}
def setup25(a, q):
    X = 160
    dlo, dhi = rng(q, "D"); wlo, whi = rng(q, "W")
    a("v_lshlrev_b32 v8, 3, v0")
    a("s_lshl_b32 s33, s50, 2\ns_add_u32 s33, s33, s13\ns_lshl_b32 s34, s33, 10")
    a("s_lshl_b32 s31, s51, 18\ns_add_u32 s31, s31, s34")
    a("s_lshr_b32 s32, s51, 1\ns_add_u32 s32, s32, 16\ns_lshl_b32 s32, s32, 17\ns_add_u32 s32, s32, s34\ns_and_b32 s35, s51, 1\ns_lshl_b32 s35, s35, 9\ns_add_u32 s32, s32, s35")
    src = XIN if q == "2" else XMID
    a(f"s_add_u32 s35, s12, {src}\ns_add_u32 s36, s35, s31\ns_add_u32 s37, s36, {128*KB}\ns_add_u32 s35, s35, s32")
    a(f"buffer_load_dwordx4 {vr(X,4)}, v3, s[4:7], s36 offen sc1\nbuffer_load_dwordx4 {vr(X+4,4)}, v3, s[4:7], s37 offen sc1\nbuffer_load_dwordx2 {vr(X+8,2)}, v8, s[4:7], s35 offen sc1")
    a("s_lshl_b32 s30, s13, 10\nv_add_u32 v13, s30, v3")
    P25[q] = (mkbase(a, [4], dlo, dhi, 13), mkbase(a, [6, 7], wlo, whi, 3))
    a(f"s_add_u32 s30, s30, {dlo}\nv_add_u32 v5, s30, v8")
    dst = XMID if q == "2" else ITS + XIN
    dstst = STMID if q == "2" else ITS + STIN
    a(f"s_add_u32 s35, s12, {dst}\ns_add_u32 s36, s35, s31\ns_add_u32 s37, s36, {128*KB}\ns_add_u32 s35, s35, s32")
    a(f"s_lshl_b32 s39, s51, 14\ns_lshl_b32 s40, s33, 7\ns_add_u32 s39, s39, s40\ns_add_u32 s39, s39, s12\ns_add_u32 s39, s39, {dstst}")
    a(f"v_mov_b32 v{X+12}, 0\nv_mov_b32 v{X+13}, 0\nv_mov_b32 v{X+14}, 0x3f803f80\nv_lshlrev_b32 v{X+17}, 3, v2\nv_mov_b32 v{X+18}, 0\nv_mov_b32 v{X+19}, 0")
    if q == "5":
        a(f"s_mul_i32 s41, s13, 2816\ns_add_u32 s41, s41, 4096\nv_mul_u32_u24 v{X+40}, 176, v2\nv_lshl_add_u32 v{X+40}, v1, 3, v{X+40}\nv_add_u32 v{X+40}, s41, v{X+40}")
        for j in range(3):
            c, row, cc, la, ga = X+41, X+42, X+43, X+20+j, X+24+j
            a(f"v_add_u32 v{c}, {64*j}, v0\nv_mul_u32_u24 v{row}, 205, v{c}\nv_lshrrev_b32 v{row}, 11, v{row}\nv_mul_u32_u24 v{cc}, 10, v{row}\nv_sub_u32 v{cc}, v{c}, v{cc}\nv_lshlrev_b32 v{cc}, 4, v{cc}")
            a(f"v_mul_u32_u24 v{la}, 176, v{row}\nv_add3_u32 v{la}, v{la}, v{cc}, s41\nv_mul_u32_u24 v{ga}, 1280, v{row}\nv_add_u32 v{ga}, v{ga}, v{cc}")
        a(f"s_mul_i32 s42, s33, {16*1280}\ns_mul_i32 s43, s51, 160\ns_add_u32 s42, s42, s43")
        a.srd(8, 24, 2048*640*2)
    a("s_mov_b32 s38, 0xffff0000")
def cons25(a, q):
    lg = LG(a)
    ACC = 32; FB = 64; X = 160
    dlo, dhi = rng(q, "D"); bD, bW = P25[q]
    for j in range(10):
        a(f"v_lshlrev_b32 v{ACC+2*j}, 16, v{X+j}\nv_and_b32 v{ACC+2*j+1}, s38, v{X+j}")
    def fb(buf, k): return FB + 24*buf + 4*k
    def reads(t, buf):
        return [rdD(q, t, fb(buf,0), bD, uaddr(q, "D", t, 0), 5, dlo)] + [rd128(fb(buf,1+u), bW(uaddr(q, "W", t, u))) for u in range(5)]
    def mf(t, buf):
        return [(mfma(ACC+4*u, fb(buf,1+u), fb(buf,0)), list(R(fb(buf,0),4)) + list(R(fb(buf,1+u),4))) for u in range(5)]
    mainloop(a, lg, q, 4, reads, mf, rpm=1.25)
    for u in range(5): cvt2(a, X+2*u, ACC+4*u)
    if q == "5":
        a("s_cmp_eq_u32 s14, 1\ns_cbranch_scc1 P5_final")
    a(f"buffer_store_dwordx4 {vr(X,4)}, v3, s[4:7], s36 offen sc1\nbuffer_store_dwordx4 {vr(X+4,4)}, v3, s[4:7], s37 offen sc1\nbuffer_store_dwordx2 {vr(X+8,2)}, v8, s[4:7], s35 offen sc1")
    for j in range(0, 10, 2):
        a(f"v_dot2_f32_bf16 v{X+12}, v{X+j}, v{X+14}, v{X+12}\nv_dot2_f32_bf16 v{X+13}, v{X+j}, v{X+j}, v{X+13}")
        a(f"v_dot2_f32_bf16 v{X+18}, v{X+j+1}, v{X+14}, v{X+18}\nv_dot2_f32_bf16 v{X+19}, v{X+j+1}, v{X+j+1}, v{X+19}")
    a(f"v_pk_add_f32 {vr(X+12,2)}, {vr(X+12,2)}, {vr(X+18,2)}")
    for sw in ("v_permlane32_swap_b32", "v_permlane16_swap_b32"):
        a(f"v_mov_b32 v{X+18}, v{X+12}\nv_mov_b32 v{X+19}, v{X+13}\n{sw} v{X+18}, v{X+12}\n{sw} v{X+19}, v{X+13}\nv_pk_add_f32 {vr(X+12,2)}, {vr(X+12,2)}, {vr(X+18,2)}")
    a(f"s_mov_b64 exec, 0xffff\nbuffer_store_dwordx2 {vr(X+12,2)}, v{X+17}, s[4:7], s39 offen sc1\ns_mov_b64 exec, -1")
    if q == "2": gbar(a, setup3)
    if q == "5":
        a(f"s_mov_b32 s14, 1\ns_add_u32 s12, s12, {ITS}")
        stamp(a)
        a("s_branch C_loop")
        a("P5_final:")
        a.fence(2)
        for u in range(5): a(f"ds_write_b64 v{X+40}, {vr(X+2*u,2)} offset:{32*u}")
        a("s_waitcnt lgkmcnt(0)")
        for j in range(3): a(f"ds_read_b128 {vr(X+28+4*j,4)}, v{X+20+j}")
        for j in range(3):
            a(f"s_waitcnt lgkmcnt({2-j})")
            if j == 2: a("s_mov_b64 exec, 0xffffffff")
            a(f"buffer_store_dwordx4 {vr(X+28+4*j,4)}, v{X+24+j}, s[8:11], s42 offen{' sc1' if CFG['NT'] & 16 else ' nt' if CFG['NT'] & 32 else ''}")
        a("s_mov_b64 exec, -1")
        stamp(a)
        a("s_barrier\ns_barrier\ns_branch FIN")

GC1 = -2.0 * math.sqrt(2.0/math.pi) * math.log2(math.e)
GC2 = GC1 * 0.044715
def gelu(a, xs, ts):
    P = list(zip(xs, ts))
    for x, t in P:
        for h in (0, 2): a(f"v_pk_mul_f32 {vr(t+h,2)}, {vr(x+h,2)}, {vr(x+h,2)}")
    for x, t in P:
        for h in (0, 2): a(f"v_pk_fma_f32 {vr(t+h,2)}, {vr(t+h,2)}, s[44:45], v[14:15]")
    for x, t in P:
        for h in (0, 2): a(f"v_pk_mul_f32 {vr(t+h,2)}, {vr(t+h,2)}, {vr(x+h,2)}")
    for x, t in P:
        for j in range(4): a(f"v_exp_f32 v{t+j}, v{t+j}")
    for x, t in P:
        for h in (0, 2): a(f"v_pk_add_f32 {vr(t+h,2)}, {vr(t+h,2)}, 1.0 op_sel_hi:[1,0]")
    for x, t in P:
        for j in range(4): a(f"v_rcp_f32 v{t+j}, v{t+j}")
    for x, t in P:
        for h in (0, 2): a(f"v_pk_mul_f32 {vr(x+h,2)}, {vr(x+h,2)}, {vr(t+h,2)}")
ZR = 32
P3C = {}
def setup3(a):
    q = "3a"; X = 192; SM = 32
    dlo, dhi = rng(q, "D"); wlo, whi = rng(q, "W")
    a(f"s_lshl_b32 s34, s51, 9\ns_add_u32 s34, s34, {CSI}\ns_add_u32 s35, s34, 8192\nv_lshlrev_b32 v22, 3, v0")
    a("s_and_b32 s38, s51, 3\ns_cmp_eq_u32 s38, 3\ns_cselect_b32 s38, 47, 55\ns_lshl_b32 s38, s38, 3\nv_min_u32 v7, s38, v22")
    a(f"buffer_load_dwordx2 {vr(X,2)}, v7, s[4:7], s34 offen\nbuffer_load_dwordx2 {vr(X+2,2)}, v7, s[4:7], s35 offen")
    a(f"s_add_u32 s34, s34, 4096\ns_add_u32 s35, s35, 4096\nbuffer_load_dwordx2 {vr(X+4,2)}, v7, s[4:7], s34 offen\nbuffer_load_dwordx2 {vr(X+6,2)}, v7, s[4:7], s35 offen")
    a("s_and_b32 s31, s13, 1\ns_lshr_b32 s32, s13, 1")
    setup4(a)
    a("s_lshl_b32 s30, s31, 11\nv_add_u32 v13, s30, v3")
    P3C["bD"] = mkbase(a, [4, 5], dlo, dhi, 13)
    a(f"s_add_u32 s30, s30, {dlo}\nv_add_u32 v252, s30, v22")
    a("s_lshl_b32 s30, s32, 12\nv_add_u32 v13, s30, v3")
    P3C["bW"] = mkbase(a, [6], wlo, whi, 13)
    for r in range(16): a(f"v_mov_b32 v{SM+r}, 0")
    a(f"s_mov_b32 s44, {hex(f2u(GC2))}\ns_mov_b32 s45, {hex(f2u(GC2))}\nv_mov_b32 v14, {hex(f2u(GC1))}\nv_mov_b32 v15, {hex(f2u(GC1))}")
    a("s_lshl_b32 s34, s32, 8\ns_lshl_b32 s35, s31, 7\nv_lshlrev_b32 v10, 2, v2\nv_add_u32 v8, s34, v10\nv_add_u32 v10, s35, v10")
    a("v_lshlrev_b32 v12, 4, v1\nv_add_u32 v9, s35, v12\nv_add_u32 v12, s34, v12")
    a("s_and_b32 s38, s51, 3\ns_cmp_eq_u32 s38, 3\ns_cselect_b32 s38, 2, 3\ns_cmp_eq_u32 s32, 0\ns_cselect_b32 s38, 4, s38")
    a(f"s_lshl_b32 s36, s33, 8\ns_mul_i32 s39, s33, {56*KB}\ns_mul_i32 s34, s51, {7*KB}\ns_add_u32 s39, s39, s34\ns_lshl_b32 s34, s32, 12\ns_add_u32 s39, s39, s34\ns_add_u32 s39, s39, s12\ns_add_u32 s39, s39, {Z2}")
    a(f"s_add_u32 s36, s36, s12\ns_add_u32 s36, s36, {ZS}")
    a("s_mov_b32 s40, 0xaaaaaaaa\ns_mov_b32 s41, 0xaaaaaaaa\ns_mov_b32 s42, 0xcccccccc\ns_mov_b32 s43, 0xcccccccc")
    a("v_and_b32 v11, 3, v2\nv_lshl_add_u32 v11, v1, 2, v11\nv_bfe_u32 v13, v2, 2, 1\nv_lshl_add_u32 v11, v13, 4, v11\nv_lshlrev_b32 v11, 3, v11\nv_lshrrev_b32 v13, 3, v2\nv_lshl_add_u32 v11, v13, 2, v11")
def cons3(a):
    q = "3a"; lg = LG(a)
    ACC = 64; FB = 96; X = 192; SM = 32
    def acc(t, x): return ACC + 4*(2*t + x)
    dlo, dhi = rng(q, "D"); wlo, whi = rng(q, "W"); bD, bW = P3C["bD"], P3C["bW"]
    a(f"v_pk_add_f32 {vr(X,2)}, {vr(X,2)}, {vr(X+2,2)}\nv_pk_add_f32 {vr(X+4,2)}, {vr(X+4,2)}, {vr(X+6,2)}")
    lg.op(f"ds_write_b64 v22, {vr(X,2)} offset:{CS0}"); lg.op(f"ds_write_b64 v22, {vr(X+4,2)} offset:{CS1}")
    a(f"v_lshlrev_b32 v{P4R['BI']}, 16, v{P4R['BI']}\nv_lshlrev_b32 v{P4R['BI']+1}, 16, v{P4R['BI']+1}")
    def fb(buf, k): return FB + 24*buf + 4*k
    def reads(t, buf):
        d0 = uaddr(q, "D", t, 0); w0 = uaddr(q, "W", t, 0)
        return [rdD(q, t, fb(buf,0), bD, d0, 252, dlo), rd128(fb(buf,2), bW(w0)), rdD(q, t, fb(buf,1), bD, d0+KB, 252, dlo)] + [rd128(fb(buf,2+u), bW(w0+u*KB)) for u in range(1, 4)]
    def mf(t, buf):
        return [(mfma(acc(u,x), fb(buf,x), fb(buf,2+u), "0" if t == 0 else None), list(R(fb(buf,x),4)) + list(R(fb(buf,2+u),4))) for u in range(4) for x in range(2)]
    rsN = [X, X+4]; nmN = [X+8, X+12]; csV = [X+16+t for t in range(4)]
    def last_hook():
        out = []
        for x in range(2): out += [rd128(rsN[x], (9, 64*x)), rd128(nmN[x], (9, NM0+64*x))]
        return out + [(f"ds_read_b32 v{csV[t]}, v8 offset:{CS1+64*t}", [csV[t]]) for t in range(4)]
    mainloop(a, lg, q, 4, reads, mf, last_hook=last_hook, rpm=CFG["RPM3"]/4)
    lg.drain()
    TMP = X+40; PK = X+24
    for u in range(4):
        if u >= 2: a(f"s_cmp_eq_u32 s38, {u}\ns_cbranch_scc1 P3_red")
        for x in range(2): fix_N(a, acc(u,x), csV[u], rsN[x], nmN[x], TMP+4*x)
        gelu(a, [acc(u,0), acc(u,1)], [TMP, TMP+4])
        for x in range(2): cvt2(a, PK + 4*u + 2*x, acc(u,x), "f16")
        a(f"buffer_store_dwordx4 {vr(PK+4*u,4)}, v3, s[4:7], s39 offen offset:{u*KB} sc1")
        for x in range(2):
            for h in (0, 2):
                a(f"v_pk_add_f32 {vr(SM+4*x+h,2)}, {vr(SM+4*x+h,2)}, {vr(acc(u,x)+h,2)}")
                a(f"v_pk_fma_f32 {vr(SM+8+4*x+h,2)}, {vr(acc(u,x)+h,2)}, {vr(acc(u,x)+h,2)}, {vr(SM+8+4*x+h,2)}")
    a("P3_red:"); a.fence(2)
    RA = ACC
    for j in range(8):
        a(f"v_add_f32_dpp v{RA+j}, v{SM+j}, v{SM+j} row_ror:8 row_mask:0xf bank_mask:0x3")
    for j in range(8):
        a(f"v_add_f32_dpp v{RA+j}, v{SM+8+j}, v{SM+8+j} row_ror:8 row_mask:0xf bank_mask:0xc")
    for j in range(4): a(f"v_add_f32_dpp v{RA+8+j}, v{RA+j}, v{RA+j} row_half_mirror row_mask:0xf bank_mask:0x5")
    for j in range(4): a(f"v_add_f32_dpp v{RA+8+j}, v{RA+4+j}, v{RA+4+j} row_half_mirror row_mask:0xf bank_mask:0xa")
    for j in range(4): a(f"v_add_f32_dpp v{RA+8+j}, v{RA+8+j}, v{RA+8+j} quad_perm:[1,0,3,2] row_mask:0xf bank_mask:0xf")
    for j in range(4): a(f"v_add_f32_dpp v{RA+8+j}, v{RA+8+j}, v{RA+8+j} quad_perm:[2,3,0,1] row_mask:0xf bank_mask:0xf")
    a(f"v_cndmask_b32 v{RA}, v{RA+8}, v{RA+9}, s[40:41]\nv_cndmask_b32 v{RA+1}, v{RA+10}, v{RA+11}, s[40:41]\nv_cndmask_b32 v{RA}, v{RA}, v{RA+1}, s[42:43]")
    a(f"buffer_atomic_add_f32 v{RA}, v11, s[4:7], s36 offen")
    q = "3b"; lg = LG(a)
    assert rng(q, "W") == (wlo, whi)
    DEF = CFG["DEF"]
    if DEF: ACC = ZR; X = 212
    def mf(t, buf):
        return [(mfma(acc(u,x), fb(buf,2+u), fb(buf,x), "0" if t == 0 else None), list(R(fb(buf,x),4)) + list(R(fb(buf,2+u),4))) for u in range(4) for x in range(2)]
    stT = [X, X+2]; csT = [X+4+4*t for t in range(4)]
    def last_hook():
        return [(f"ds_read2_b32 {vr(stT[x],2)}, v10 offset0:{16*x} offset1:{NM0//4+16*x}", R(stT[x],2)) for x in range(2)] + [rd128(csT[t], (12, CS0+64*t)) for t in range(4)]
    mainloop(a, lg, q, 4, reads, mf, last_hook=last_hook, rpm=CFG["RPM3"]/4, prebar={CFG["SIG3"]: "s_waitcnt vmcnt(0)"})
    lg.drain()
    if DEF:
        TMP = 232
        def dzl(ch):
            c = Cap()
            for us in ((0, 1), (2, 3) if not ch else (2,)):
                tl = [(u, x) for u in us for x in range(2)]
                for k, (u, x) in enumerate(tl): fix_T(c, acc(u,x), csT[u], stT[x], TMP+4*k)
                gelu(c, [acc(u,x) for u, x in tl], [TMP+4*k for k in range(len(tl))])
                for k, (u, x) in enumerate(tl): cvt2(c, TMP+4*k, acc(u,x))
                for k, (u, x) in enumerate(tl):
                    for h in range(2): c(f"v_lshlrev_b32 v{acc(u,x)+2*h}, 16, v{TMP+4*k+h}\nv_and_b32 v{acc(u,x)+2*h+1}, s57, v{TMP+4*k+h}")
            return c.lines
        a("s_cmp_eq_u32 s32, 1\ns_cbranch_scc1 P3b_done1")
        cons4(a, 0, dzl(0))
    else:
        TMP = X+40
        for x in range(2):
            for u in range(2): fix_T(a, acc(u,x), csT[u], stT[x], TMP+4*(2*x+u))
        gelu(a, [acc(u,x) for x in range(2) for u in range(2)], [TMP+4*k for k in range(4)])
        for u in range(2):
            for x in range(2): cvt2(a, ZR+2*(2*u+x), acc(u,x))
        for u in (2, 3):
            a(f"s_cmp_eq_u32 s38, {u}\ns_cbranch_scc1 P3b_done1")
            for x in range(2): fix_T(a, acc(u,x), csT[u], stT[x], TMP+4*x)
            gelu(a, [acc(u,0), acc(u,1)], [TMP, TMP+4])
            for x in range(2): cvt2(a, ZR+2*(2*u+x), acc(u,x))
        cons4(a, 0)
    a("s_branch P4_done")
    a("P3b_done1:"); a.fence(2)
    cons4(a, 1, dzl(1) if DEF else None)
    a("P4_done:"); a.fence(2)
    gbar(a, lambda c: setup25(c, "5"))

P4R = dict(bD=[16, 17], W=[18, 19], MU=20, EX=21, L8=22, BI=24)
def setup4(a):
    q = "4"; r = P4R
    dlo, dhi = rng(q, "D"); wlo, whi = rng(q, "W")
    P4R["f"] = mkbase(a, r["bD"], dlo, dhi, 3)
    w0, rs = r["W"]; mu = r["MU"]
    a(f"s_lshl_b32 s34, s31, 11\ns_add_u32 s34, s34, {wlo}\nv_add_u32 v{w0}, s34, v3\nv_lshlrev_b32 v{rs}, 4, v1")
    a(f"v_and_b32 v{mu}, 1, v2\nv_lshlrev_b32 v{mu}, 6, v{mu}\nv_lshl_add_u32 v{mu}, v1, 4, v{mu}")
    a(f"s_lshl_b32 s34, s31, 9\nv_add_u32 v{r['EX']}, s34, v{r['L8']}")
    a(f"s_lshl_b32 s33, s50, 1\ns_add_u32 s33, s33, s31\nv_lshlrev_b32 v{r['BI']}, 1, v2")
    a(f"s_lshl_b32 s34, s33, 6\ns_add_u32 s34, s34, {BSP}\nbuffer_load_ushort v{r['BI']+1}, v{r['BI']}, s[4:7], s34 offen offset:32\nbuffer_load_ushort v{r['BI']}, v{r['BI']}, s[4:7], s34 offen")
    a(f"s_lshl_b32 s46, s33, 11\ns_add_u32 s46, s46, s12\ns_add_u32 s46, s46, {UB}\ns_mul_i32 s47, s51, 3\ns_lshl_b32 s34, s32, 1\ns_add_u32 s47, s47, s34\ns_lshl_b32 s47, s47, 17\ns_add_u32 s47, s47, s46")
    a(f"s_lshr_b32 s34, s51, 2\ns_sub_u32 s34, s51, s34\ns_lshr_b32 s56, s34, 1\ns_add_u32 s56, s56, 24\ns_lshl_b32 s56, s56, 17\ns_add_u32 s46, s46, s56\ns_and_b32 s34, s34, 1\ns_lshl_b32 s34, s34, 9\ns_add_u32 s46, s46, s34")
    a(f"s_add_u32 s56, s47, {128*KB}\ns_mov_b32 s57, 0xffff0000\ns_mov_b32 s58, {hex(f2u(1.0/WSCALE))}\ns_mov_b32 s59, {hex(f2u(1.0/WSCALE))}")
def cons4(a, ch, dz=None):
    q = "4"; lg = LG(a); r = P4R
    ACC = 64; FB = 96; X = 208
    wlo = rng(q, "W")[0]; bD = r["f"]
    def acc(t, x): return ACC + 4*(2*t + x)
    def fb(buf, k): return FB + 28*buf + 4*k
    def reads(t, buf):
        w = [rd128(fb(buf,x), (r["W"][0], uaddr(q, "W", t, x) - wlo)) for x in range(2)]
        z = [rd128(fb(buf,2+u), bD(uaddr(q, "D", t, 4*ch+u))) for u in range(4-ch)]
        if ch: z.append(rd128(fb(buf,5), (r["MU"], MU0 + t*128)))
        return [rd128(fb(buf,6), (r["W"][1], RS0 + t*64))] + w + z
    def cv(t, buf):
        rs = fb(buf,6)
        return [(f"v_pk_mul_f16 v{fb(buf,x)+j}, v{fb(buf,x)+j}, v{rs+j}", [fb(buf,x)+j, rs+j]) for x in range(2) for j in range(4)]
    def mf(t, buf):
        return [(mfma(acc(u,x), fb(buf,2+u), fb(buf,x), "0" if t == 0 else None, ty="f16"), list(R(fb(buf,2+u),4))) for x in range(2) for u in range(4)]
    B = r["BI"]
    def tail():
        m0, m1 = mf(62, 2), mf(63, 3)
        weave(a, lg, m0, [], cv(63, 3), vpm=2)
        if not ch: weave(a, lg, m1, []); return
        weave(a, lg, [m1[3], m1[7]] + m1[:3], [])
        for x in range(2): a(f"v_add_f32 v{X+x}, v{acc(3,x)}, v{acc(3,x)+1}")
        for x in range(2): a(f"v_fma_f32 v{B+x}, -v{X+x}, s58, v{B+x}")
        lg.op(f"ds_write_b64 v{r['EX']}, {vr(B,2)} offset:{EX0}")
        weave(a, lg, m1[4:7], [])
        lg.drain()
    inc = f"v_add_u32 v{r['W'][1]}, {12*64}, v{r['W'][1]}" + (f"\nv_add_u32 v{r['MU']}, {12*128}, v{r['MU']}" if ch else "")
    mainloop(a, lg, q, 4, reads, mf, cv=cv, tailf=tail, roll=(8 if dz else 2, 6, f"P4_loop{ch}", inc) if CFG["ROLL"] else None, dz=dz)
    if not ch: lg.op(f"ds_read_b64 {vr(B,2)}, v{r['EX']} offset:{EX0}", R(B,2))
    PK = FB; T2 = FB + 16 if dz is None else ZR
    for u0 in (0, 2):
        us = (u0, u0+1) if not (ch and u0) else (2,)
        if ch and u0: a("s_cmp_eq_u32 s38, 2\ns_cbranch_scc1 P4_done")
        for u in us if dz is None else ():
            for x in range(2):
                for h in range(2):
                    z = ZR + 2*(2*u+x) + h; t = T2 + 4*(2*u+x) + 2*h
                    a(f"v_lshlrev_b32 v{t}, 16, v{z}\nv_and_b32 v{t+1}, s57, v{z}")
        lg.drain()
        for x in range(2):
            for u in us:
                for h in (0, 2): a(f"v_pk_fma_f32 {vr(acc(u,x)+h,2)}, {vr(acc(u,x)+h,2)}, s[58:59], {vr(B,2)} op_sel:[0,0,{x}] op_sel_hi:[1,1,{x}]")
            for u in us:
                for h in (0, 2): a(f"v_pk_mul_f32 {vr(acc(u,x)+h,2)}, {vr(acc(u,x)+h,2)}, {vr(T2+4*(2*u+x)+h,2)}")
            pk = PK + 4*(u0 + x)
            for u in us: cvt2(a, pk + 2*(u & 1), acc(u,x))
            if len(us) == 2: a(f"buffer_store_dwordx4 {vr(pk,4)}, v3, s[4:7], s{56 if u0 else 47} offen offset:{x*KB} sc1")
            else: a(f"buffer_store_dwordx2 {vr(pk,2)}, v{r['L8']}, s[4:7], s46 offen offset:{x*KB} sc1")

def code_prefetch(a, va, vd):
    if not CFG["CODEPF"]: return
    lab = a.label("CPF")
    a(f"s_getpc_b64 s[56:57]\n{lab}:\ns_add_u32 s56, s56, main_kernel-{lab}\ns_addc_u32 s57, s57, 0")
    a(f"s_lshr_b32 s58, s2, 3\ns_lshl_b32 s58, s58, 2\ns_add_u32 s58, s58, s13\ns_mul_i32 s58, s58, 1024\nv_and_b32 v{va}, 7, v0\nv_lshlrev_b32 v{va}, 7, v{va}\nv_add_u32 v{va}, s58, v{va}")
    a(f"v_min_u32 v{va}, MAIN_END-main_kernel-4, v{va}\nglobal_load_dword v{vd}, v{va}, s[56:57]")

def build():
    plan()
    a = Asm()
    a.launch("k0_kernel", (488 if CFG["TOUCH"] else NJOBS,1,1), (256,1,1), lds=40960)
    a.launch("main_kernel", (256,1,1), (512,1,1), lds=LDS_TOTAL)
    emit_k0(a, code_prefetch=code_prefetch, touch=CFG["TOUCH"], dbg=(PROFB + 0x100000) * CFG["DBG"], nt=" nt" if CFG["NT"] & 2 else "", st=" sc1" if CFG["NT"] & 4 else "", st2=" sc1" if CFG["NT"] & 8 else "")
    a.begin_kernel("main_kernel")
    a("s_cmp_ge_u32 s2, 256\ns_cbranch_scc1 END")
    a("s_load_dwordx4 s[20:23], s[0:1], 40\ns_load_dwordx2 s[24:25], s[0:1], 64\ns_load_dwordx2 s[26:27], s[0:1], 80")
    a("v_lshrrev_b32 v1, 6, v0\nv_and_b32 v0, 63, v0\nv_readfirstlane_b32 s13, v1")
    a("v_lshrrev_b32 v1, 4, v0\nv_and_b32 v2, 15, v0\nv_lshlrev_b32 v3, 4, v0")
    a(f"s_mov_b32 s12, {IT0}\ns_mov_b32 s14, 0\ns_mov_b32 s52, {CNT}\ns_mov_b32 s62, 0")
    a("s_and_b32 s15, s2, 7\ns_lshr_b32 s53, s2, 3\ns_lshr_b32 s16, s15, 1\ns_and_b32 s17, s15, 1")
    a("s_lshl_b32 s48, s16, 2\ns_lshr_b32 s18, s53, 3\ns_add_u32 s48, s48, s18\ns_lshl_b32 s49, s17, 3\ns_and_b32 s18, s53, 7\ns_add_u32 s49, s49, s18")
    a("s_lshl_b32 s50, s16, 3\ns_lshr_b32 s18, s53, 2\ns_add_u32 s50, s50, s18\ns_lshl_b32 s51, s17, 2\ns_and_b32 s18, s53, 3\ns_add_u32 s51, s51, s18")
    a("s_waitcnt lgkmcnt(0)")
    a.srd(4, 26, 0x10000000)
    if CFG["PROF"]: a("s_memrealtime s[60:61]\ns_waitcnt lgkmcnt(0)\nv_writelane_b32 v250, s60, 62")
    stamp(a, force=True)
    a("s_cmp_ge_u32 s13, 6\ns_cbranch_scc1 LDB\ns_cmp_ge_u32 s13, 4\ns_cbranch_scc1 LDA")
    a("C_loop:"); a.fence(2)
    gbar(a, setup1, True)
    cons1(a); cons25(a, "2"); cons3(a); cons25(a, "5")
    a.hist = []; loader(a, "A"); a.hist = []; loader(a, "B")
    a("FINL:")
    if CFG["PROF"]: a("v_mov_b32 v250, v8")
    a("FIN:"); a.fence(4)
    a("s_waitcnt vmcnt(0)")
    if CFG["PROF"]:
        stamp(a)
        a("s_memrealtime s[60:61]\ns_waitcnt lgkmcnt(0)\nv_writelane_b32 v250, s60, 63")
        a(f"s_lshl_b32 s60, s2, 3\ns_add_u32 s60, s60, s13\ns_lshl_b32 s60, s60, 8\ns_add_u32 s60, s60, {PROFB}")
        a("v_lshlrev_b32 v251, 2, v0\nbuffer_store_dword v250, v251, s[4:7], s60 offen")
    if CFG["DBG"]:
        a("s_cmp_lg_u32 s2, 77\ns_cbranch_scc1 END\ns_cmp_lg_u32 s13, 0\ns_cbranch_scc1 END\ns_load_dwordx2 s[20:21], s[0:1], 72\ns_waitcnt lgkmcnt(0)")
        a.srd(8, 20, 256)
        a(f"buffer_load_dword v10, off, s[4:7], 0 offset:0 sc1\nv_mov_b32 v11, {PROFB + 0x100000}\nbuffer_load_dword v10, v11, s[4:7], 0 offen sc1\nv_readlane_b32 s30, v250, 0\ns_waitcnt vmcnt(0)\nv_readfirstlane_b32 s31, v10\ns_sub_u32 s31, s30, s31\nv_writelane_b32 v251, s31, 0")
        a(f"v_lshrrev_b32 v12, 2, v0\nv_mul_u32_u24 v12, {37*16}, v12\nv_and_b32 v13, 3, v0\nv_lshl_add_u32 v12, v13, 2, v12\nv_add_u32 v12, {PROFB + 0x100000 + 64 - 37*16 + 16}, v12\nv_max_u32 v12, {PROFB}, v12\nbuffer_load_dword v12, v12, s[4:7], 0 offen sc1\ns_waitcnt vmcnt(0)\nv_sub_u32 v12, s30, v12\nv_cmp_lt_u32 vcc, 3, v0\nv_cndmask_b32 v251, v251, v12, vcc")
        for k, idx in enumerate([2, 3, 51]):
            a(f"v_readlane_b32 s31, v250, {idx}\ns_sub_u32 s31, s31, s30\nv_writelane_b32 v251, s31, {k+1}")
        a("v_lshlrev_b32 v11, 2, v0\ns_mov_b64 exec, 0xffff\nbuffer_store_dword v251, v11, s[8:11], 0 offen")
    a("END:\ns_endpgm\nMAIN_END:")
    a.end_kernel("main_kernel", 256, sgpr=80)
    return a

if __name__ == "__main__":
    out = sys.argv[1] if len(sys.argv) > 1 else "mega.s"
    for kv in sys.argv[2:]:
        k, v = kv.split("="); CFG[k] = int(v)
    a = build()
    open(out, "w").write(a.text())
    print("lines", len(a.lines), "nops", a.nops_added, "bars", len(BARS))
    if CFG.get("SHOW"):
        for k in "DW":
            for x in ALLOC[k]: print(k, x["q"], x["n"], x["addr"]//KB, "after", bname(x["after"]), "rel", bname(x["rel"]))
```

```python
from asmlib import *
from layout import *

NJOBS = 230
import struct
def emit_k0(a, name="k0_kernel", code_prefetch=None, touch=0, dbg=0, nt="", st="", st2=""):
    a.begin_kernel(name)
    a(f"s_cmp_ge_u32 s2, {488 if touch else NJOBS}\ns_cbranch_scc1 K0_end")
    if dbg: a("s_memrealtime s[60:61]")
    a("s_load_dwordx16 s[16:31], s[0:1], 0\ns_load_dwordx2 s[32:33], s[0:1], 80")
    a("v_lshrrev_b32 v1, 6, v0\nv_and_b32 v0, 63, v0")
    a("v_readfirstlane_b32 s13, v1")
    a("v_lshrrev_b32 v2, 4, v0\nv_and_b32 v3, 15, v0")
    a("v_lshlrev_b32 v4, 4, v0")
    a("s_waitcnt lgkmcnt(0)")
    a.srd(4, 32, 0x10000000)
    a("s_mov_b32 s11, 0x00020000")
    if touch: a("s_cmp_ge_u32 s2, 230\ns_cbranch_scc1 K0_touch")
    a("s_cmp_ge_u32 s2, 228\ns_cbranch_scc1 K0_zero")
    a("s_cmp_ge_u32 s2, 164\ns_cbranch_scc1 K0_x")
    a("v_lshrrev_b32 v5, 3, v0\nv_and_b32 v6, 7, v0\nv_lshrrev_b32 v7, 1, v5\nv_and_b32 v7, 3, v7\nv_lshlrev_b32 v7, 1, v7\nv_xor_b32 v6, v6, v7\nv_lshlrev_b32 v6, 4, v6")
    a("s_cmp_ge_u32 s2, 134\ns_cbranch_scc1 K0_wout")
    a("s_cmp_ge_u32 s2, 114\ns_cbranch_scc1 K0_wo")
    a("s_cmp_ge_u32 s2, 60\ns_cbranch_scc1 K0_win")

    def rowmap(kind):
        if kind == "x":
            a("s_lshr_b32 s44, s42, 4\ns_lshr_b32 s45, s44, 2\ns_add_u32 s45, s45, s44")
            a("s_mul_i32 s46, s44, 5\ns_sub_u32 s46, s46, 156\ns_cmp_lt_u32 s44, 32\ns_cselect_b32 s45, s45, s46")
            a("s_lshl_b32 s45, s45, 4\ns_and_b32 s46, s42, 8\ns_add_u32 s43, s45, s46")
        elif kind == "o":
            a("s_lshr_b32 s44, s42, 5\ns_lshl_b32 s44, s44, 3\ns_add_u32 s44, s44, s42")
            a(f"s_mul_i32 s45, s42, 5\ns_sub_u32 s45, s45, {5*512-32}\ns_cmp_lt_u32 s42, 512\ns_cselect_b32 s43, s44, s45")
        elif kind == "u":
            a("s_lshr_b32 s44, s42, 4\ns_mul_i32 s45, s44, 43\ns_lshr_b32 s45, s45, 8")
            a("s_add_u32 s46, s44, s45\ns_lshr_b32 s45, s45, 2\ns_sub_u32 s46, s46, s45")
            a("s_sub_u32 s47, s44, 48\ns_cmp_ge_u32 s44, 51\ns_cselect_b32 s45, 1, 0\ns_add_u32 s47, s47, s45")
            a("s_mul_i32 s47, s47, 7\ns_sub_u32 s47, s47, s45\ns_add_u32 s47, s47, 6")
            a("s_cmp_lt_u32 s44, 48\ns_cselect_b32 s45, s46, s47")
            a("s_lshl_b32 s45, s45, 4\ns_and_b32 s46, s42, 8\ns_add_u32 s43, s45, s46")
    def dma(kind, pitch, nper):
        a(f"s_mov_b32 s34, {pitch}\nv_mul_lo_u32 v8, v5, s34\nv_add_u32 v8, v8, v6")
        a("s_lshl_b32 s48, s13, 3\ns_add_u32 s48, s48, s36\ns_lshl_b32 s49, s13, 10")
        for m in range(nper):
            a(f"s_add_u32 s42, s48, {32*m}")
            rowmap(kind)
            a(f"s_mul_i32 s43, s43, {pitch}\ns_add_u32 s43, s43, s35\ns_add_u32 m0, s49, {4096*m}")
            a(f"buffer_load_dwordx4 v8, s[8:11], s43 offen{nt} lds")
    def src(b, nbytes):
        a(f"s_mov_b32 s8, s{b}\ns_and_b32 s9, s{b+1}, 0xffff\ns_mov_b32 s10, {nbytes}")

    src(18, 640*1920*2)
    a("s_lshr_b32 s50, s2, 1\ns_and_b32 s51, s2, 1")
    a("s_lshl_b32 s35, s50, 7\ns_mul_i32 s36, s51, 320")
    dma("x", 3840, 10)
    a("s_mul_i32 s52, s50, 26\ns_lshr_b32 s52, s52, 8")
    a("s_mul_i32 s53, s52, 640\ns_lshl_b32 s54, s50, 6\ns_sub_u32 s54, s54, s53\ns_lshl_b32 s53, s13, 4\ns_add_u32 s54, s54, s53")
    a("v_add_u32 v10, s54, v3")
    a("v_mul_u32_u24 v11, 1639, v10\nv_lshrrev_b32 v11, 16, v11")
    a("v_mul_u32_u24 v12, 40, v11\nv_sub_u32 v12, v10, v12")
    a("v_add_u32 v13, 80, v12")
    a("v_cmp_le_u32 vcc, 20, v12\nv_cndmask_b32 v14, 0, 1, vcc")
    a("v_mul_u32_u24 v15, 20, v14\nv_sub_u32 v15, v12, v15")
    a("s_lshl_b32 s53, s52, 4\nv_lshl_add_u32 v16, v14, 5, v15\nv_add_u32 v16, s53, v16")
    a("s_lshl_b32 s53, s52, 3\ns_add_u32 s53, s53, 48\nv_lshl_add_u32 v17, v14, 2, v15\nv_add_u32 v17, s53, v17")
    a("v_cmp_gt_u32 vcc, 16, v15\nv_cndmask_b32 v16, v17, v16, vcc")
    a("s_cmp_eq_u32 s52, 2\ns_cselect_b64 vcc, -1, 0\nv_cndmask_b32 v16, v16, v13, vcc")
    a("v_lshrrev_b32 v13, 4, v16\nv_and_b32 v14, 15, v16\nv_lshlrev_b32 v13, 10, v13\nv_lshl_add_u32 v13, v14, 4, v13\nv_lshl_add_u32 v13, v2, 8, v13")
    a(f"s_mov_b32 s53, {160*KB}\nv_mul_lo_u32 v9, v11, s53\nv_add_u32 v9, v9, v13")
    a("v_lshl_add_u32 v18, v11, 7, v16\nv_lshlrev_b32 v18, 2, v18")
    a(f"s_mul_i32 s38, s51, {80*KB}\ns_add_u32 s38, s38, {WQ}\ns_mov_b32 s39, {8*KB}\ns_mov_b32 s40, 10")
    a(f"s_lshl_b32 s41, s51, 13\ns_add_u32 s41, s41, {CSQ}")
    a("s_branch K0_common")
    a("K0_win:")
    src(24, 640*1728*2)
    a("s_sub_u32 s50, s2, 60\ns_and_b32 s51, s50, 1\ns_lshr_b32 s50, s50, 1")
    a("s_lshl_b32 s35, s50, 7\ns_mul_i32 s36, s51, 320")
    dma("x", 3456, 10)
    a("s_lshl_b32 s52, s50, 2\ns_add_u32 s52, s52, s13")
    a("s_cmp_ge_u32 s52, 54\ns_cselect_b32 s53, 54, 0\ns_cselect_b32 s54, 8, 0\ns_sub_u32 s52, s52, s53")
    a("s_cmp_ge_u32 s52, 27\ns_cselect_b32 s53, 27, 0\ns_cselect_b32 s55, 4, 0\ns_sub_u32 s52, s52, s53\ns_add_u32 s54, s54, s55")
    a("s_mul_i32 s53, s52, 37\ns_lshr_b32 s53, s53, 8\ns_add_u32 s54, s54, s53\ns_mul_i32 s53, s53, 7\ns_sub_u32 s52, s52, s53")
    a(f"s_mul_i32 s38, s54, {140*KB}\ns_lshl_b32 s53, s52, 10\ns_add_u32 s38, s38, s53\ns_mul_i32 s53, s51, {70*KB}\ns_add_u32 s38, s38, s53\ns_add_u32 s38, s38, {WI}")
    a(f"s_mov_b32 s39, {7*KB}\ns_mov_b32 s40, 10\nv_mov_b32 v9, v4\nv_lshlrev_b32 v18, 2, v3")
    a(f"s_lshl_b32 s41, s51, 13\ns_lshl_b32 s53, s54, 9\ns_add_u32 s41, s41, s53\ns_lshl_b32 s53, s52, 6\ns_add_u32 s41, s41, s53\ns_add_u32 s41, s41, {CSI}")
    a("s_branch K0_common")
    a("K0_wo:")
    src(20, 640*640*2)
    a("s_sub_u32 s50, s2, 114\ns_and_b32 s51, s50, 1\ns_lshr_b32 s50, s50, 1")
    a("s_lshl_b32 s35, s50, 7\ns_mul_i32 s36, s51, 320")
    dma("o", 1280, 10)
    a("s_lshl_b32 s52, s50, 2\ns_add_u32 s52, s52, s13\ns_mul_i32 s54, s52, 52\ns_lshr_b32 s54, s54, 8\ns_mul_i32 s53, s54, 5\ns_sub_u32 s52, s52, s53")
    a(f"s_mul_i32 s38, s54, {100*KB}\ns_lshl_b32 s53, s52, 10\ns_add_u32 s38, s38, s53\ns_mul_i32 s53, s51, {50*KB}\ns_add_u32 s38, s38, s53\ns_add_u32 s38, s38, {WO}")
    a(f"s_mov_b32 s39, {5*KB}\ns_mov_b32 s40, 10\nv_mov_b32 v9, v4\nv_mov_b32 v18, 0\ns_mov_b32 s41, -1")
    a("s_branch K0_common")
    a("K0_wout:")
    src(30, 864*640*2)
    a("s_sub_u32 s51, s2, 134\ns_mul_i32 s50, s51, 86\ns_lshr_b32 s50, s50, 8\ns_mul_i32 s53, s50, 3\ns_sub_u32 s51, s51, s53")
    a("s_lshl_b32 s35, s50, 7\ns_mul_i32 s36, s51, 288")
    dma("u", 1280, 9)
    a("s_lshl_b32 s52, s50, 2\ns_add_u32 s52, s52, s13\ns_mul_i32 s54, s52, 52\ns_lshr_b32 s54, s54, 8\ns_mul_i32 s53, s54, 5\ns_sub_u32 s52, s52, s53")
    a(f"s_mul_i32 s38, s54, {135*KB}\ns_lshl_b32 s53, s52, 10\ns_add_u32 s38, s38, s53\ns_mul_i32 s53, s51, {45*KB}\ns_add_u32 s38, s38, s53\ns_add_u32 s38, s38, {WT}")
    a(f"s_mov_b32 s39, {5*KB}\ns_mov_b32 s40, 9\nv_mov_b32 v9, v4\nv_mov_b32 v18, 0\ns_mov_b32 s41, -1")
    a("K0_common:")
    a.fence(4)
    a("v_lshrrev_b32 v21, 2, v3\nv_lshl_add_u32 v21, v2, 2, v21")
    a("v_lshrrev_b32 v22, 1, v21\nv_and_b32 v22, 3, v22\nv_lshlrev_b32 v22, 1, v22")
    a("v_bfe_u32 v23, v3, 1, 1\ns_lshl_b32 s53, s13, 1\nv_add_u32 v23, s53, v23\nv_xor_b32 v23, v23, v22")
    a("v_lshlrev_b32 v20, 7, v21\nv_lshl_add_u32 v20, v23, 4, v20\nv_and_b32 v23, 1, v3\nv_lshl_add_u32 v20, v23, 3, v20")
    a("v_mov_b32 v19, 0\nv_mov_b32 v24, 0x3f803f80")
    if code_prefetch: code_prefetch(a, 25, 26)
    if dbg: a("s_memrealtime s[56:57]")
    a("s_waitcnt vmcnt(0)\ns_barrier")
    if dbg: a("s_memrealtime s[58:59]\ns_waitcnt lgkmcnt(0)")
    for ks in range(10):
        a(f"ds_read_b64_tr_b16 v[{32+4*ks}:{33+4*ks}], v20 offset:{ks*4096}")
        a(f"ds_read_b64_tr_b16 v[{34+4*ks}:{35+4*ks}], v20 offset:{ks*4096+2048}")
    for ks in range(10):
        if ks == 9:
            a("s_cmp_lt_u32 s40, 10\ns_cbranch_scc1 K0_end")
        a(f"s_waitcnt lgkmcnt({min(15, 18-2*ks)})")
        a(f"buffer_store_dwordx4 v[{32+4*ks}:{35+4*ks}], v9, s[4:7], s38 offen{st}\ns_add_u32 s38, s38, s39")
        for j in range(4):
            a(f"v_dot2_f32_bf16 v19, v{32+4*ks+j}, v24, v19")
    a("s_cmp_eq_u32 s41, -1\ns_cbranch_scc1 K0_end")
    a("v_mov_b32 v21, v19\nv_permlane32_swap_b32 v21, v19\nv_add_f32 v19, v19, v21")
    a("v_mov_b32 v21, v19\nv_permlane16_swap_b32 v21, v19\nv_add_f32 v19, v19, v21")
    a(f"s_mov_b64 exec, 0xffff\nbuffer_store_dword v19, v18, s[4:7], s41 offen{st2}")
    if dbg: a(f"s_waitcnt vmcnt(0)\ns_memrealtime s[62:63]\ns_waitcnt lgkmcnt(0)\nv_mov_b32 v8, s60\nv_mov_b32 v9, s56\nv_mov_b32 v10, s58\nv_mov_b32 v11, s62\ns_lshl_b32 s38, s2, 4\nv_mov_b32 v12, {dbg+64}\ns_mov_b64 exec, 1\nbuffer_store_dwordx4 v[8:11], v12, s[4:7], s38 offen")
    a("s_endpgm")
    a("K0_x:")
    src(16, 2048*640*2)
    a(f"s_sub_u32 s50, s2, 164\ns_mul_i32 s35, s50, {32*1280}\ns_lshl_b32 s49, s13, 10\ns_lshl_b32 s48, s13, 6")
    a("v_add_u32 v5, s48, v0")
    for m in range(10):
        a(f"v_add_u32 v6, {256*m}, v5\nv_mul_u32_u24 v7, 52429, v6\nv_lshrrev_b32 v7, 22, v7")
        a("v_and_b32 v8, 15, v7\nv_xor_b32 v8, v8, v6\nv_lshlrev_b32 v8, 4, v8")
        a(f"s_add_u32 m0, s49, {4096*m}")
        a(f"buffer_load_dwordx4 v8, s[8:11], s35 offen{nt} lds")
    a("s_and_b32 s51, s13, 1\ns_lshr_b32 s52, s13, 1")
    a("s_lshl_b32 s53, s51, 4\nv_add_u32 v9, s53, v3\nv_mul_u32_u24 v10, 1280, v9\nv_and_b32 v11, 1, v2\nv_lshl_add_u32 v10, v11, 3, v10")
    a("v_lshrrev_b32 v11, 1, v2\nv_xor_b32 v11, v11, v3\nv_lshlrev_b32 v11, 4, v11")
    a("v_mov_b32 v18, 0\nv_mov_b32 v19, 0\nv_mov_b32 v24, 0x3f803f80")
    a(f"s_mul_i32 s38, s52, {10*128*KB}\ns_lshl_b32 s53, s50, 11\ns_add_u32 s38, s38, s53\ns_lshl_b32 s53, s51, 10\ns_add_u32 s38, s38, s53\ns_add_u32 s38, s38, {IT0+XIN}")
    a("s_mul_i32 s54, s52, 20")
    a("s_sub_u32 s53, 4, s52\nv_lshlrev_b32 v13, s53, v0\ns_mul_i32 s53, s52, 504\ns_add_u32 s53, s53, 8\nv_add_u32 v14, s53, v13")
    if code_prefetch: code_prefetch(a, 25, 26)
    a("s_waitcnt vmcnt(0)\ns_barrier")
    for j in range(20):
        a(f"s_add_u32 s44, s54, {j}\ns_lshr_b32 s45, s44, 2\ns_add_u32 s45, s45, s44\ns_mul_i32 s46, s44, 5\ns_sub_u32 s46, s46, 156\ns_cmp_lt_u32 s44, 32\ns_cselect_b32 s45, s45, s46")
        a("s_lshl_b32 s45, s45, 5\ns_and_b32 s46, s45, 0xff\ns_andn2_b32 s45, s45, 0xff")
        a(f"v_xor_b32 v12, s46, v11\nv_add3_u32 v12, v12, v10, s45\nds_read_b64 v[{32+2*j}:{33+2*j}], v12")
    for ks in range(10):
        a(f"s_waitcnt lgkmcnt({min(15, 18-2*ks)})")
        if ks < 6: a(f"buffer_store_dwordx4 v[{32+4*ks}:{35+4*ks}], v4, s[4:7], s38 offen{st}")
        else: a(f"buffer_store_dwordx2 v[{32+4*ks}:{33+4*ks}], v13, s[4:7], s38 offen{st2}\nbuffer_store_dwordx2 v[{34+4*ks}:{35+4*ks}], v14, s[4:7], s38 offen{st2}")
        a(f"s_add_u32 s38, s38, {128*KB}")
        for j in range(4):
            a(f"v_dot2_f32_bf16 v18, v{32+4*ks+j}, v24, v18")
            a(f"v_dot2_f32_bf16 v19, v{32+4*ks+j}, v{32+4*ks+j}, v19")
    a("v_lshlrev_b32 v12, 14, v2\nv_lshl_add_u32 v12, v9, 3, v12")
    a(f"s_lshl_b32 s38, s52, 16\ns_lshl_b32 s53, s50, 8\ns_add_u32 s38, s38, s53\ns_add_u32 s38, s38, {IT0+STIN}")
    a(f"buffer_store_dwordx2 v[18:19], v12, s[4:7], s38 offen{st2}")
    a("s_endpgm")
    a("K0_zero:")
    if dbg: a(f"v_mov_b32 v8, s60\nv_mov_b32 v9, {dbg}\nbuffer_store_dword v8, v9, s[4:7], 0 offen")
    src(28, 4096)
    a("s_lshl_b32 s41, s13, 10\nbuffer_load_dwordx4 v[12:15], v4, s[8:11], s41 offen")
    a("v_mov_b32 v8, 0\nv_mov_b32 v9, 0\nv_mov_b32 v10, 0\nv_mov_b32 v11, 0")
    a(f"s_sub_u32 s50, s2, 228\ns_mul_i32 s38, s50, {ITS}\ns_add_u32 s38, s38, {IT0+ZS}\ns_lshl_b32 s53, s13, 12\ns_add_u32 s38, s38, s53")
    a(f"s_lshl_b32 s39, s50, 15\ns_add_u32 s39, s39, {CNT}\ns_lshl_b32 s53, s13, 13\ns_add_u32 s39, s39, s53\ns_add_u32 s40, s39, 4096")
    for j in range(4):
        a(f"buffer_store_dwordx4 v[8:11], v4, s[4:7], s38 offen offset:{j*1024}{st2}")
        a(f"buffer_store_dwordx4 v[8:11], v4, s[4:7], s39 offen offset:{j*1024}{st2}")
        a(f"buffer_store_dwordx4 v[8:11], v4, s[4:7], s40 offen offset:{j*1024}{st2}")
    a(f"s_add_u32 s41, s41, {BSP}\ns_waitcnt vmcnt(12)\nbuffer_store_dwordx4 v[12:15], v4, s[4:7], s41 offen{st2}")
    if touch:
        a("s_endpgm\nK0_touch:\ns_cmp_lt_u32 s2, 232\ns_cbranch_scc1 K0_end")
        src(26, 2048*2048*2)
        a("s_sub_u32 s40, s2, 232\ns_and_b32 s41, s40, 7\ns_lshr_b32 s42, s40, 3\ns_lshr_b32 s43, s41, 1\ns_lshl_b32 s43, s43, 3\ns_lshr_b32 s44, s42, 2\ns_add_u32 s43, s43, s44")
        a("s_and_b32 s41, s41, 1\ns_lshl_b32 s41, s41, 2\ns_and_b32 s42, s42, 3\ns_add_u32 s41, s41, s42\ns_lshl_b32 s43, s43, 18\ns_lshl_b32 s41, s41, 15\ns_add_u32 s43, s43, s41\ns_lshl_b32 s41, s13, 13\ns_add_u32 s43, s43, s41\ns_add_u32 s44, s43, 4096")
        if touch > 2: a(f"s_sleep {touch}")
        for j in range(8): a(f"buffer_load_dwordx4 v[{8+4*j}:{11+4*j}], v4, s[8:11], s{43 + j//4} offen offset:{(j%4)*1024}{nt if touch == 2 else str()}")
        a("s_waitcnt vmcnt(0)")
    a("K0_end:\ns_endpgm")
    a.end_kernel(name, 72, sgpr=64)

if __name__ == "__main__":
    a = Asm()
    a.launch("k0_kernel", (NJOBS,1,1), (256,1,1), lds=40960)
    emit_k0(a)
    open("k0.s","w").write(a.text())
```

```python
import sys, math, struct
from asmlib import *
from layout import *
from k0 import emit_k0, NJOBS

LDS_TOTAL = 163840
CFG = dict(PX=1, SL4=1, SP=0, STC=8, DBG=0, ES=0, DW=1, NT=0, TSP=2, DEF=0, DZP=2, G4=10, TBL=0, PD=3, PS=2, P04=4, WS2=4, WS3=1, CP=4, PG=6, LT=6, ROLL=1, RT=0, WG=2, FLAG=0, L1=27, RPM1=4, RPM3=4, SUK=40, STL=5, PQ=1, PIT=1, ST=0, HOLD=1, ILV=0, PRIO=0, XA=0, XB=0, XC=0, XD=0, RPM4=4, NOWSP=0, PROF=0, TOUCH=0, ROT=1, POLL4=2, SLEEP=1, WSPL=9, SIG3=2, PKMUL=1, CODEPF=1, DSC1=1, PER=2, P0=4, P0S=7, DT=0)
PROFB = 200*1024*1024
def f2u(x): return struct.unpack("<I", struct.pack("<f", x))[0]

PH = {
    "1":  dict(nks=20, nD=9, nW=8, lag=0, D=(20, 4), W=(96, 4)),
    "2":  dict(nks=20, nD=4, nW=5, lag=1, D=(20, 7), W=(80, 8)),
    "3a": dict(nks=20, nD=4, nW=7, lag=0, D=(20, 10), W=(104, 4)),
    "3b": dict(nks=20, nD=0, nW=7, lag=0, D=None, W=(104, 4)),
    "4":  dict(nks=64, nD=7, nW=4, lag=1, D=(20, 6), W=(112, 6)),
    "5":  dict(nks=27, nD=4, nW=5, lag=1, D=(20, 7), W=(80, 8)),
}
ORDER = ["1", "2", "3a", "3b", "4", "5"]
RS0, MU0 = 4096, 8192
NM0, CS0, CS1, EX0 = 768, 1536, 2048, 3072
NROT = {'1': 8, '2': 8, '3a': 8, '3b': 8, '4': 32, '5': 12}
SPLIT = {'1': 16, '2': 16, '3a': 16, '3b': 16, '4': 99, '5': 24}
LSCHED = [(("1",7),2), (("1",8),2), (("1",9),2), (("1",10),10), (("1","X"),10)]
CSCHED = [(("1","G"),6), (("2",10),6), (("2","G"),6)] + [(("3a",n),1) for n in range(1,9)]
CA, CB, CC, CD, CE = 0, 16, 48, 80, 112

def _b(x): return x if isinstance(x, tuple) else ("1", x)
WSS = {
  1: ({1: [0,1], 2: [2,3], 3: [4,5], 4: [6,7]}, {6: [0,1], 7: [2,3], 9: [4,5], 10: [6,7]}),
  2: ({2: [0,1], 5: [2,3], 10: [4,5], "G": [6,7]}, {6: [0,1], 9: [2,3], "G": [4,5], ("2",8): [6,7]}),
  3: ({1: [0,1,2,3], 10: [4,5,6,7]}, {6: [0,1], 7: [2,3], "G": [4,5,6,7]}),
  4: ({0: [0,1,2,3,4,5,6,7]}, {6: [0,1], 7: [2,3], 9: [4,5], 10: [6,7]}),
  5: ({1: [0,1], 3: [2,3], 9: [4,5], ("2",9): [6,7]}, {6: [0,1], 7: [2,3], "G": [4,5], ("3a",2): [6], ("3a",3): [7]}),
  6: ({3: [0,1,2,3], 9: [4,5,6,7]}, {7: [0,1], 9: [2,3], "G": [4,5,6,7]}),
  8: ({-1: [0,1,2,3,4,5,6,7]}, {6: [0,1], 7: [2,3], 9: [4,5], 10: [6,7]}),
  9: ({-1: [0,1,2,3,4,5,6,7]}, {4: [0,1], 6: [2,3], 7: [4,5], 9: [6,7]}),
  10: ({-1: [0,1,2,3,4,5,6,7]}, {9: [0,1,2,3], 10: [4,5,6,7]}),
  7: ({6: [0,1,2,3], 7: [4,5,6,7]}, {10: [0,1,2,3], "X": [4,5,6,7]}),
}
OVR = {("4","W",0): 104*KB}
BARS = []; BIDX = {}
ALLOC = {"D": [], "W": []}
def plan():
    BARS.clear(); BIDX.clear(); ALLOC["D"].clear(); ALLOC["W"].clear()
    for q in ORDER:
        ph = PH[q]; ph["nst"] = (ph["nks"] + 1) // 2
        for n in range(ph["nst"] + 1): BARS.append((q, n))
        if q == "1": BARS.append((q, "X"))
        if q in ("1", "2", "4", "5"): BARS.append((q, "G")); BARS.append((q, "F"))
    for i, b in enumerate(BARS): BIDX[b] = i
    NB = len(BARS)
    gate = {"1": -1, "2": BIDX[("1","F")], "3a": BIDX[("2","F")], "4": BIDX[("3b", CFG["G4"])], "5": BIDX[("4","F")]}
    def rel(q, n, kind):
        if q == "3a" and kind == "D": q = "3b"
        return BIDX[(q, min(n + 1 + PH[q]["lag"], PH[q]["nst"]))]
    rot = {(q, k): 0 for q in ORDER for k in "DW"}
    def build():
        al = {"D": [], "W": []}
        for q in ORDER:
            ph = PH[q]
            for k in "DW":
                if ph[k] is None: continue
                base, ns = ph[k]; sz = 2*ph["n"+k]*KB
                for n in range(ph["nst"]):
                    al[k].append(dict(q=q, n=n, k=k, addr=OVR.get((q,k,n), base*KB + sz*((n + rot[(q,k)]) % ns)), size=sz, use=BIDX[(q,n)], rel=rel(q,n,k)))
        allv = al["D"] + al["W"]
        for k in "DW":
            prev = -NB; used = {}
            for x in al[k]:
                e = -NB
                for y in allv:
                    if y is x or not (y["addr"] < x["addr"] + x["size"] and x["addr"] < y["addr"] + y["size"]):
                        if y is x: e = max(e, y["rel"] - NB)
                        continue
                    if y["use"] < x["use"]: e = max(e, y["rel"])
                    else:
                        assert y["use"] > x["use"], (x, y)
                        e = max(e, y["rel"] - NB)
                if k == "D": e = max(e, gate[x["q"]])
                e = max(e, prev)
                def cap(b):
                    if BARS[b % NB] == ("3b", CFG["G4"]) and k == "D": return CFG["P04"]
                    if BARS[b % NB][1] == "F": return (CFG["P0"] if x["q"] == "1" else CFG["P0S"]) if k == "D" else 0
                    if CFG["WG"] and BARS[b % NB] in (("2", 10), ("4", 32), ("5", 14)): return 0
                    if CFG["WG"] and BARS[b % NB][1] == "G" and (CFG["WG"] > 1 or BARS[b % NB][0] != "1"): return CFG["PG"]
                    if BARS[b % NB][1] == "G" or (CFG["HOLD"] and BARS[b % NB] in (("1", 10), ("1", "X"))): return 0
                    return CFG["PER"]
                while used.get(e % NB, 0) >= cap(e): e += 1
                used[e % NB] = used.get(e % NB, 0) + 1
                prev = e
                x["after"] = e
            last = al[k][-1]["after"] - NB
            for x in al[k]: x["after"] = max(x["after"], last)
            for x in al[k]: assert x["after"] < x["use"], x
        return al
    def cost(al): return sum(max(0, CFG["LT"] - (x["use"] - x["after"]))**2 * 1000 + x["after"] for k in "DW" for x in al[k])
    import itertools
    keys = [k for k in rot if PH[k[0]][k[1]] is not None]
    def tryset(ks):
        best = None
        for rs_ in itertools.product(*[range(PH[k[0]][k[1]][1]) for k in ks]):
            for k, r in zip(ks, rs_): rot[k] = r
            try: c = cost(build())
            except AssertionError: continue
            if best is None or c < best[0]: best = (c, rs_)
        for k, r in zip(ks, best[1]): rot[k] = r
        return best[0]
    import os, pickle
    ck = repr((sorted((q, sorted((k, v) for k, v in PH[q].items() if k in ("nks","nD","nW","lag","D","W"))) for q in ORDER), sorted(OVR.items()), [CFG[k] for k in ("LT","P0","P0S","WG","HOLD","PER","PG","P04","G4")]))
    cache = pickle.load(open("plan.pkl", "rb")) if os.path.exists("plan.pkl") else {}
    if ck in cache: rot.update(cache[ck])
    else:
        wk = [k for k in keys if k[1] == "W"]
        for _ in range(2):
            for k in keys: tryset([k])
            for i in range(len(wk)):
                tryset([wk[i], wk[(i+1) % len(wk)]])
                dk = (wk[i][0], "D")
                if dk in keys: tryset([dk, wk[(i+1) % len(wk)]])
        cache[ck] = dict(rot); pickle.dump(cache, open("plan.pkl", "wb"))
    al = build()
    for k in "DW":
        ALLOC[k] += al[k]
        for x in al[k]: PH[x["q"]].setdefault("addr"+k, {})[x["n"]] = x["addr"]
    PH["3b"]["addrD"] = PH["3a"]["addrD"]; PH["3b"]["nD"] = 4
def bname(i):
    NB = len(BARS); return ("prev:" if i < 0 else "") + "%s.%s" % BARS[i % NB]

class LG:
    def __init__(s, a): s.a = a; s.out = []
    def op(s, text, regs=()):
        s.a(text); s.out.append(set(regs))
    def need(s, regs):
        regs = set(regs); idx = -1
        for k, r in enumerate(s.out):
            if r & regs: idx = k
        if idx >= 0:
            n = min(len(s.out) - 1 - idx, 15)
            s.a(f"s_waitcnt lgkmcnt({n})")
            s.out = s.out[len(s.out) - n:] if n else []
    def drain(s):
        if s.out: s.a("s_waitcnt lgkmcnt(0)"); s.out = []

def R(b, n): return range(b, b + n)
def mfma(d, A, B, C=None, ty="bf16"):
    c = vr(d, 4) if C is None else C
    return f"v_mfma_f32_16x16x32_{ty} {vr(d,4)}, {vr(A,4)}, {vr(B,4)}, {c}"
def stamp2(a, q, r=(250, 251)):
    if CFG["PROF"] == 2 and q in PQ[CFG["PQ"]]:
        lab = a.label("ST2")
        a(f"s_cmp_eq_u32 s14, {CFG['PIT']}\ns_cbranch_scc0 {lab}\ns_memtime s[60:61]\ns_mov_b32 m0, s62\ns_waitcnt lgkmcnt(0)\nv_writelane_b32 v{r[0]}, s60, m0\ns_add_u32 s62, s62, 1\n{lab}:")
PQ = {1: ("1", "2"), 3: ("3a", "3b"), 5: ("5", ), 4: ("4",)}
def stamp(a, lg=None, r=(250, 251), force=False):
    if CFG["PROF"] == 1 or (force and CFG["PROF"]):
        if lg: lg.drain()
        a(f"{'s_memrealtime' if CFG['RT'] else 's_memtime'} s[60:61]\nv_cmp_eq_u32 s[64:65], s62, v0\ns_waitcnt lgkmcnt(0)\nv_mov_b32 v{r[1]}, s60\nv_cndmask_b32 v{r[0]}, v{r[0]}, v{r[1]}, s[64:65]\ns_add_u32 s62, s62, 1")
def mkbase(a, regs, lo, hi, src):
    n = (hi - lo + 65535) // 65536
    assert n <= len(regs), (lo, hi, regs)
    for k in range(n): a(f"v_add_u32 v{regs[k]}, {lo + 65536*k}, v{src}")
    def f(addr):
        assert lo <= addr < hi, (lo, hi, addr)
        return regs[(addr - lo) >> 16], (addr - lo) & 0xffff
    return f
def uaddr(q, which, t, unit):
    ph = PH[q]
    return ph["addr" + which][t // 2] + (t % 2)*ph["n" + which]*KB + unit*KB
def rng(q, which):
    ph = PH[q]; ad = ph["addr" + which].values()
    return min(ad), max(ad) + 2*ph["n" + which]*KB

def loader(a, which):
    NB = len(BARS); al = [x for x in ALLOC["D"] + ALLOC["W"] if not x.get("local")]
    L = "LD" + which
    a(f"{L}:")
    if CFG["PROF"]: a("v_mov_b32 v8, v250")
    a("s_and_b32 s19, s13, 1")
    if CFG["PRIO"]: a(f"s_setprio {CFG['PRIO']}")
    gb = {}; st = {}
    defs = {("D","1"): (f"s_lshl_b32 @, s48, 13\ns_add_u32 @, @, {XIN}", 128*KB),
            ("D","2"): (f"s_lshl_b32 @, s50, 12\ns_add_u32 @, @, {OB}", 128*KB),
            ("D","3a"): (f"s_lshl_b32 @, s50, 12\ns_add_u32 @, @, {XMID}", 128*KB),
            ("D","4"): (f"s_mul_i32 @, s51, {7*KB}\ns_add_u32 @, @, {Z2}", 56*KB),
            ("D","5"): (f"s_lshl_b32 @, s50, 12\ns_add_u32 @, @, {UB}", 128*KB),
            ("W","1"): (f"s_mul_i32 @, s49, {160*KB}\ns_add_u32 @, @, {WQ}", 8*KB),
            ("W","2"): (f"s_mul_i32 @, s51, {100*KB}\ns_add_u32 @, @, {WO}", 5*KB),
            ("W","3a"): (f"s_mul_i32 @, s51, {140*KB}\ns_add_u32 @, @, {WI + 8*140*KB}", 7*KB),
            ("W","3b"): (f"s_mul_i32 @, s51, {140*KB}\ns_add_u32 @, @, {WI}", 7*KB),
            ("W","4"): (f"s_lshl_b32 @, s50, 18\ns_add_u32 @, @, {WSP}", 4*KB),
            ("W","5"): (f"s_mul_i32 @, s51, {135*KB}\ns_add_u32 @, @, {WT}", 5*KB)}
    order = [("W","1"), ("D","1")] + [k for k in defs if k[1] != "1"]
    regs = {k: 30 + j for j, k in enumerate(defs)}
    pof = {4: 41, 5: 42, 7: 43, 8: 44, 9: 45}
    for nU, r in pof.items(): a(f"s_mul_i32 s{r}, s19, {nU*KB}")
    a(f"s_cmp_eq_u32 s48, 0\ns_cselect_b32 s56, 0, {KB}")
    a(f"v_and_b32 v9, 0xffffff7f, v3\ns_and_b32 s66, s51, 3\ns_cmp_eq_u32 s66, 3\ns_cselect_b32 s66, {KB}, 0")
    issued = []; emit = [True]; it = [0]
    cap = [None]
    def A(t):
        if cap[0] is not None: cap[0] += [l for l in t.split("\n") if l.strip()]
        elif emit[0]: a(t)
    def setup(keys):
        for key in keys:
            txt, stride = defs[key]; r = regs[key]
            a(txt.replace("@", f"s{r}")); gb[key] = r; st[key] = stride
            a(f"s_mul_i32 s46, s19, {stride}\ns_add_u32 s{r}, s{r}, s46")
            if key[0] == "D": a(f"s_add_u32 s{r}, s{r}, s12")
    for key in defs: gb[key] = regs[key]; st[key] = defs[key][1]
    def share(k, q, n):
        nU = PH[q]["n" + k]
        big = (k == "D") == (which == "A")
        if q in ("3b", "4"): big = (n % 2 == 0) == (which == "A")
        m = (nU + 1) // 2 if big else nU // 2
        return (0, m) if which == "A" else (nU - m, nU)
    def issue(x):
        k, q, n = x["k"], x["q"], x["n"]; nU = PH[q]["n" + k]; tag = (k, q, n); key = (k, q)
        sc = " sc1" if (k == "D" or q == "4") else ""
        g0 = n*2*st[key]; u, u1 = share(k, q, n)
        halo = (k == "D" and q == "1")
        if halo and u == 0:
            A(f"s_add_u32 m0, s{pof[nU]}, {x['addr']}\ns_add_u32 s54, s{gb[key]}, {g0}\ns_sub_u32 s54, s54, s56")
            A(f"buffer_load_dwordx4 v3, s[4:7], s54 offen{sc} lds"); issued.append(tag)
            u = 1
        assert u1 - u <= 4
        gu = u - 1 if halo else u
        A(f"s_add_u32 m0, s{pof[nU]}, {x['addr'] + u*KB}\ns_add_u32 s54, s{gb[key]}, {g0 + gu*KB}")
        if q == "5" and n == 13: A(f"s_mul_i32 s55, s19, {st[key]}\ns_sub_u32 s54, s54, s55")
        for j in range(u1 - u):
            vo = 9 if (key == ("W","1") and u + j == 7) else 3
            if nU == 7 and u + j == 6: A("s_sub_u32 s54, s54, s66")
            A(f"buffer_load_dwordx4 v{vo}, s[4:7], s54 offen offset:{j*KB}{sc} lds"); issued.append(tag)
    def poll(q):
        lab = f"PL{q}"
        A(f"s_cmp_lg_u32 s19, 0\ns_cbranch_scc1 {lab}_done")
        if q == "1": A(f"s_cmp_eq_u32 s14, 1\ns_cbranch_scc1 {lab}_done")
        if emit[0]: stamp(a, r=(8, 19))
        FL = CFG["FLAG"]
        tgt = 1 if FL else {"2": 16}.get(q, 8)
        o = "v56" if q == "2" else "v57"
        ad = f"{o}, s[4:7], s54 offen" if FL else "off, s[4:7], s54"
        if q == "2": A(f"s_lshr_b32 s54, s50, 1\ns_lshl_b32 s54, s54, 7\ns_add_u32 s54, s54, s52")
        elif q in ("3a", "5"): A(f"s_lshl_b32 s54, s50, 7\ns_add_u32 s54, s54, s52\ns_add_u32 s54, s54, {(CB if q == '3a' else CD)*128}")
        elif q == "4": ad = "v20, s[4:7], s52 offen"
        else: ad = "v21, s[4:7], 0 offen"
        A("s_mov_b32 s55, 0")
        if q == "4":
            wait([("p4",)], "p4"); A(f"s_branch {lab}_chk")
        if q == "4" and FL:
            A(f"{lab}:\nbuffer_load_dwordx4 v[60:63], {ad} sc1\ns_waitcnt vmcnt(0)\n{lab}_chk:\nv_and_b32 v60, v60, v61\nv_and_b32 v62, v62, v63\nv_and_b32 v22, v60, v62")
        else: A(f"{lab}:\nbuffer_load_dword v22, {ad} sc1\ns_waitcnt vmcnt(0)\n{lab}_chk:")
        A(f"v_cmp_ne_u32 vcc, {tgt}, v22\ns_cmp_eq_u64 vcc, 0\ns_cbranch_scc1 {lab}_ok")
        if CFG["PX"]: A("s_mov_b32 exec_lo, vcc_lo\ns_mov_b32 exec_hi, 0")
        A(f"s_sleep {CFG['SL4']}\ns_add_u32 s55, s55, 1\ns_cmp_lt_u32 s55, 0x40000\ns_cbranch_scc1 {lab}\n{lab}_ok:")
        if CFG["PX"]: A("s_mov_b64 exec, -1")
        if emit[0]: stamp(a, r=(8, 19))
        A(f"{lab}_done:")
    def poll4_issue():
        ld = "buffer_load_dwordx4 v[60:63]" if CFG["FLAG"] else "buffer_load_dword v22"
        A(f"s_cmp_lg_u32 s19, 0\ns_cbranch_scc1 PL4_i\n{ld}, v20, s[4:7], s52 offen sc1\nPL4_i:")
        marks["p4"] = len(issued)
    marks = {}
    def signal(q):
        c, r = {"1": (CA, "s48"), "2": (CB, "s50"), "3a": (CC, "s50"), "4": (CD, "s50"), "5": (CE, "s50")}[q]
        lab = f"SG{q}"
        A(f"s_cmp_lg_u32 s19, 0\ns_cbranch_scc1 {lab}\ns_lshl_b32 s54, {r}, 7\ns_add_u32 s54, s54, s52\ns_add_u32 s54, s54, {c*128}")
        if CFG["FLAG"]: A(f"s_lshl_b32 s55, {'s49' if q == '1' else 's51'}, 2\ns_add_u32 s54, s54, s55")
        A(f"s_mov_b64 exec, 1\n{'buffer_store_dword' if CFG['FLAG'] else 'buffer_atomic_add'} v13, off, s[4:7], s54 sc1\ns_mov_b64 exec, -1\n{lab}:")
    T = 24
    def zsload(js=range(4)):
        for j in js:
            if j: A(f"s_add_u32 s54, s47, {j*4096}")
            A(f"buffer_load_dwordx4 {vr(T+4*j,4)}, v3, s[4:7], s{54 if j else 47} offen sc1"); issued.append(("zs", j))
    waits = {}
    def wait(tags, key):
        if not emit[0]:
            if key == "p4": cnt = min(62, len(issued) - marks["p4"])
            else:
                idx = max([i for i, t in enumerate(issued) if t in tags], default=-1)
                cnt = min(62, len(issued) - 1 - idx) if idx >= 0 else 63
            waits.setdefault(key, {})[it[0]] = cnt
            return
        w0, w1 = waits[key][0], waits[key][0 if key[0] == "ws" else 1]
        if min(w0, w1) >= 40 or not CFG["DW"] and w0 < w1: w0 = w1 = min(w0, w1)
        if w0 != w1:
            lab = a.label("WW")
            A(f"s_cmp_eq_u32 s14, {int(w0 < w1)}\ns_cbranch_scc1 {lab}\ns_waitcnt vmcnt({min(w0, w1)})\n{lab}:")
        if max(w0, w1) < 63: A(f"s_waitcnt vmcnt({max(w0, w1)})")
    def tables(js=range(4)):
        for j in js:
            wait([("zs", j)], ("zs", j))
            b = T + 4*j; t = (10, 11, 12) if j & 1 else (14, 15, 23)
            for k in range(4): A(f"v_mul_f32 v{b+k}, {hex(f2u(1.0/FH))}, v{b+k}")
            for v in (b, b+2): A(f"v_fma_f32 v{v+1}, -v{v}, v{v}, v{v+1}")
            for v in (b, b+2): A(f"v_max_f32 v{v+1}, 0, v{v+1}")
            for v in (b, b+2): A(f"v_add_f32 v{v+1}, {hex(f2u(1e-5))}, v{v+1}")
            for v in (b, b+2): A(f"v_rsq_f32 v{v+1}, v{v+1}")
            A(f"v_cvt_pk_f16_f32 v{t[0]}, v{b}, v{b+2}\nv_cvt_pk_f16_f32 v{b+1}, v{b+1}, v{b+3}\nv_cvt_f32_f16 v{t[1]}, v{t[0]}\nv_cvt_f32_f16_sdwa v{t[2]}, v{t[0]} dst_sel:DWORD dst_unused:UNUSED_PAD src0_sel:WORD_1")
            A(f"ds_write_b32 v16, v{b+1} offset:{RS0+1024*j}\nds_write_b32 v17, v{t[0]} offset:{MU0+2048*j}")
            A(f"v_sub_f32 v{t[1]}, v{b}, v{t[1]}\nv_sub_f32 v{t[2]}, v{b+2}, v{t[2]}\nv_cvt_pk_f16_f32 v{t[1]}, v{t[1]}, v{t[2]}")
            A(f"ds_write_b32 v17, v{t[1]} offset:{MU0+2048*j+64}")
        A("s_waitcnt lgkmcnt(0)")
    WR = 64
    def wsp_load(ms=range(8)):
        if CFG["WS2"]:
            lab = f"WL{which}{ms[0]}"
            A(f"s_cmp_eq_u32 s14, 1\ns_cbranch_scc1 {lab}")
            for m in ms: A(f"buffer_load_dwordx4 {vr(WR+4*m,4)}, v4, s[8:11], s57 offen offset:{512*m}{' nt' if CFG['NT'] & 1 else ''}"); issued.extend([("ws", m)] * (it[0] == 0))
            A(f"{lab}:")
            return
        lab = f"WL{which}"
        A(f"s_cmp_eq_u32 s14, 1\ns_cbranch_scc1 {lab}")
        for m in range(8): A(f"buffer_load_dwordx4 {vr(WR+4*m,4)}, v4, s[8:11], s57 offen offset:{512*m}{' nt' if CFG['NT'] & 1 else ''}")
        A(f"{lab}:")
    def wsp_conv(ms=range(8)):
        lab = f"WC{which}{ms[0]}"
        A(f"s_cmp_eq_u32 s14, 1\ns_cbranch_scc1 {lab}")
        if not CFG["WS2"]: A("s_waitcnt vmcnt(0)")
        for m in ms:
            if CFG["WS2"]: wait([("ws", m)], ("ws", m))
            w = WR + 4*m; t = (96 if CFG["WS2"] else 40) + 8*(m & 1)
            for j in range(4): A(f"v_dot2_f32_bf16 v{t+2*j}, v{w+j}, s67, 0\nv_dot2_f32_bf16 v{t+2*j+1}, v{w+j}, s68, 0")
            for j in range(4): A(f"v_cvt_pk_f16_f32 v{w+j}, v{t+2*j}, v{t+2*j+1}")
            A(f"s_add_u32 s54, s59, {m*32768}")
            for hh in range(2): A(f"buffer_store_dwordx2 {vr(w+2*hh,2)}, v5, s[4:7], s54 offen offset:{256*hh} sc1")
        A(f"{lab}:")
    ev = {}; late = {}; pre = {}
    def at(b, f): ev.setdefault(BIDX[b], []).append(f)
    def lat(b, f): late.setdefault(BIDX[b], []).append(f)
    if which == "B":
        for q in ("1", "2", "4", "5"): at((q, "G"), lambda q=q: signal(q))
        at(("3b", CFG["SIG3"]), lambda: signal("3a"))
    if CFG["WS2"] != 5: pre[BIDX[("2", "G")]] = "s_waitcnt vmcnt(0)"
    if CFG["WS2"]:
        for b, ms in WSS[CFG["WS2"]][1].items(): lat(_b(b), lambda ms=ms: wsp_conv(ms))
        for b, ms in WSS[CFG["WS2"]][0].items():
            if b != -1: lat(_b(b), lambda ms=ms: wsp_load(ms))
        pre[BIDX[("3b", CFG["SIG3"])]] = "s_waitcnt vmcnt(8)"
    else: lat(("1", CFG["WSPL"]), wsp_load); at(("1", "G"), wsp_conv)
    SR = 40
    def stload(q):
        for c in range(3 if q == "1" else 1):
            A(f"s_add_u32 s54, s12, s{(69, 70, 71)[c] if q == '1' else 58}\ns_add_u32 s55, s54, 16384")
            A(f"buffer_load_dwordx2 {vr(SR+4*c,2)}, v6, s[4:7], s54 offen sc1\nbuffer_load_dwordx2 {vr(SR+4*c+2,2)}, v6, s[4:7], s55 offen sc1")
            issued.extend([("st", q)]*2)
    def stcalc(q):
        wait([("st", q)], ("st", q))
        if CFG["SP"]: A(f"s_setprio {CFG['SP']}")
        v = SR
        for c in range(3 if q == "1" else 1): A(f"v_pk_add_f32 {vr(v+4*c,2)}, {vr(v+4*c,2)}, {vr(v+4*c+2,2)}")
        if q == "1":
            A(f"v_mov_b32 v{v+6}, v{v+4}\nv_mov_b32 v{v+7}, v{v+5}")
            for k in range(2): A(f"v_permlane32_swap_b32 v{v+k}, v{v+8+k}")
            for k in range(2): A(f"v_permlane32_swap_b32 v{v+4+k}, v{v+6+k}")
            A(f"v_pk_add_f32 {vr(v,2)}, {vr(v,2)}, {vr(v+8,2)}\nv_pk_add_f32 {vr(v+2,2)}, {vr(v+4,2)}, {vr(v+6,2)}")
        else:
            A(f"v_mov_b32 v{v+2}, v{v}\nv_mov_b32 v{v+3}, v{v+1}")
            for k in range(2): A(f"v_permlane32_swap_b32 v{v+k}, v{v+2+k}")
            A(f"v_pk_add_f32 {vr(v,2)}, {vr(v,2)}, {vr(v+2,2)}\nv_mov_b32 v{v+2}, v{v}\nv_mov_b32 v{v+3}, v{v+1}")
        for k in range(2): A(f"v_permlane16_swap_b32 v{v+k}, v{v+2+k}")
        A(f"v_pk_add_f32 {vr(v,2)}, {vr(v,2)}, {vr(v+2,2)}")
        t = v + 2
        A(f"v_mul_f32 v{t}, {hex(f2u(1.0/640))}, v{v}\nv_mul_f32 v{v+1}, {hex(f2u(1.0/640))}, v{v+1}\nv_fma_f32 v{v+1}, -v{t}, v{t}, v{v+1}")
        A(f"v_max_f32 v{v+1}, 0, v{v+1}\nv_add_f32 v{v+1}, {hex(f2u(1e-5))}, v{v+1}\nv_rsq_f32 v{v}, v{v+1}")
        A(f"v_mul_f32 v{v+1}, -v{t}, v{v}")
        A(f"ds_write2_b32 v{7 if q == '1' else 18}, v{v}, v{v+1} offset0:0 offset1:{NM0//4}\ns_waitcnt lgkmcnt(0)")
        if CFG["SP"]: A("s_setprio 0")
    for q in ("1", "3a"):
        lat((q, CFG["STL"]), lambda q=q: stload(q)); lat((q, CFG["STC"]), lambda q=q: stcalc(q))
    if which == "A":
        if not CFG["CP"]: lat(("1","G"), lambda: poll("2")); lat(("2","G"), lambda: poll("3a")); lat(("4","G"), lambda: poll("5")); lat(("5","G"), lambda: poll("1"))
        at(("3b", CFG["G4"] - CFG["POLL4"]), poll4_issue); lat(("3b", CFG["G4"] - 1), lambda: poll("4"))
    if CFG["TSP"]:
        g4 = ("3b", CFG["G4"])
        at(g4, lambda: zsload([0])); lat(g4, lambda: zsload([1, 2, 3])); lat(g4, lambda: tables([0]))
        for j in (1, 2, 3): lat(("4", CFG["TSP"]*j), lambda j=j: tables([j]))
    else: at(("3b", CFG["G4"]), zsload); lat(("3b", min(10, CFG["G4"] + CFG["TBL"])), tables)
    def issue_at(bs):
        xs = [x for x in al if x["after"] in bs]
        xs.sort(key=lambda x: (x["use"] - x["after"], x["k"]))
        for x in xs: issue(x)
    def body():
        if not (CFG["ES"] and it[0] == 0 and not emit[0]): issue_at((-1,))
        if CFG["ES"]: A(f"{L}_in:")
        if CFG["WS2"] and -1 in WSS[CFG["WS2"]][0]: wsp_load(WSS[CFG["WS2"]][0][-1])
        for b in range(NB):
            tags = [(x["k"], x["q"], x["n"]) for x in al if x["use"] == b]
            if b in pre: A(pre[b])
            if emit[0] and isinstance(BARS[b][1], int) and BARS[b][1] < 30: stamp2(a, BARS[b][0], (8, 19))
            if tags: wait(tags, ("u", b))
            if emit[0] and isinstance(BARS[b][1], int) and BARS[b][1] < 30: stamp2(a, BARS[b][0], (8, 19))
            A("s_barrier")
            for f in ev.get(b, []): f()
            if b < NB - 1: issue_at((b, b - NB))
            for f in late.get(b, []): f()
    def pro():
        for x in sorted(al, key=lambda x: (x["use"], x["k"] == "W")) if CFG["ES"] else al:
            if x["after"] < (0 if CFG["ES"] else -1): issue(x)
    emit[0] = False
    pro(); body(); it[0] = 1; body()
    issued.clear(); emit[0] = True; it[0] = 0
    es = 2 if CFG["ES"] else 1
    setup(order[:es]); pro(); setup(order[es:])
    if CFG["FLAG"]:
        a(f"v_lshrrev_b32 v20, 1, v0\nv_lshlrev_b32 v20, 7, v20\nv_and_b32 v13, 1, v0\nv_lshl_add_u32 v20, v13, 4, v20\nv_add_u32 v20, {CC*128}, v20\nv_mov_b32 v13, 1")
        a("v_lshlrev_b32 v56, 2, v2\nv_and_b32 v57, 28, v56")
        a(f"v_min_u32 v21, 2, v1\ns_lshl_b32 s46, s48, 1\nv_add_u32 v21, s46, v21\nv_max_u32 v21, 1, v21\nv_lshl_add_u32 v21, v21, 7, v57\nv_add_u32 v21, {(CE-1)*128 + CNT}, v21")
    else:
        a(f"v_and_b32 v20, 31, v0\nv_lshlrev_b32 v20, 7, v20\nv_add_u32 v20, {CC*128}, v20\nv_mov_b32 v13, 1")
        a(f"v_min_u32 v21, 2, v0\ns_lshl_b32 s46, s48, 1\nv_add_u32 v21, s46, v21\nv_max_u32 v21, 1, v21\nv_lshlrev_b32 v21, 7, v21\nv_add_u32 v21, {(CE-1)*128 + CNT}, v21")
    a("v_bfe_u32 v18, v0, 1, 2\nv_lshlrev_b32 v17, 4, v18\nv_bfe_u32 v18, v0, 3, 1\nv_lshl_add_u32 v17, v18, 3, v17\nv_and_b32 v18, 1, v0\nv_lshl_add_u32 v17, v18, 2, v17")
    a(f"s_sub_u32 s46, s13, 4\ns_lshl_b32 s47, s46, 10\ns_add_u32 s47, s47, {IT0+ZS}\ns_lshl_b32 s54, s46, 2\nv_add_u32 v18, s54, v1\nv_lshl_add_u32 v16, v18, 6, v17\nv_lshl_add_u32 v17, v18, 7, v17")
    a.srd(8, 20, 2048*2048*2)
    a("v_lshrrev_b32 v10, 3, v0\nv_and_b32 v7, 7, v0\nv_lshlrev_b32 v7, 4, v7\nv_lshl_add_u32 v4, v10, 12, v7")
    a("v_lshlrev_b32 v5, 4, v10\nv_and_b32 v11, 1, v0\nv_lshl_add_u32 v5, v11, 9, v5\nv_and_b32 v11, 4, v0\nv_lshl_add_u32 v5, v11, 10, v5\nv_and_b32 v11, 2, v0\nv_lshl_add_u32 v5, v11, 2, v5")
    a(f"s_lshl_b32 s57, s50, 18\ns_lshl_b32 s54, s46, 13\ns_add_u32 s59, s57, s54\ns_lshr_b32 s54, s51, 1\ns_lshl_b32 s54, s54, 10\ns_add_u32 s59, s59, s54\ns_and_b32 s54, s51, 1\ns_lshl_b32 s54, s54, 7\ns_add_u32 s59, s59, s54\ns_add_u32 s59, s59, {WSP}")
    a("s_lshl_b32 s54, s46, 7\ns_add_u32 s57, s57, s54\ns_lshl_b32 s54, s51, 15\ns_add_u32 s57, s57, s54\ns_mov_b32 s67, 0x4280\ns_mov_b32 s68, 0x42800000")
    a("v_lshlrev_b32 v6, 15, v1\nv_lshl_add_u32 v6, v2, 3, v6\ns_lshl_b32 s54, s46, 6\nv_lshlrev_b32 v18, 2, v2\nv_add_u32 v18, s54, v18")
    a("v_and_b32 v7, 1, v1\nv_lshl_add_u32 v7, v7, 8, v18\nv_lshlrev_b32 v10, 2, v2\nv_add_u32 v10, 512, v10\nv_cmp_eq_u32 vcc, 2, v1\nv_cndmask_b32 v7, v7, v10, vcc")
    a(f"s_lshl_b32 s71, s48, 10\ns_lshl_b32 s54, s46, 7\ns_add_u32 s69, s71, s54\ns_add_u32 s70, s69, {STIN+384}\ns_max_u32 s69, s69, 128\ns_add_u32 s69, s69, {STIN-128}\ns_add_u32 s71, s71, {STIN+896}")
    a(f"s_lshl_b32 s58, s50, 9\ns_add_u32 s58, s58, s54\ns_add_u32 s58, s58, {STMID}")
    if CFG["CODEPF"] > 1 and which == "B":
        lab = a.label("CPM")
        a(f"s_getpc_b64 s[60:61]\n{lab}:\ns_sub_u32 s60, s60, {lab}-main_kernel\ns_subb_u32 s61, s61, 0")
        a(f"s_lshl_b32 s54, s53, 1\ns_add_u32 s54, s54, s19\ns_mul_i32 s54, s54, 1536\nv_min_u32 v10, 11, v0\nv_lshlrev_b32 v10, 7, v10\nv_add_u32 v10, s54, v10")
        a(f"v_min_u32 v10, MAIN_END-main_kernel-4, v10\nglobal_load_dword v11, v10, s[60:61]")
    if CFG["ES"]: a(f"s_branch {L}_in")
    a(f"{L}_loop:")
    body()
    a(f"s_cmp_eq_u32 s14, 1\ns_cbranch_scc1 FINL\ns_mov_b32 s14, 1\ns_add_u32 s47, s47, {ITS}\ns_add_u32 s12, s12, {ITS}\ns_add_u32 s52, s52, 32768")
    for j in range(5): a(f"s_add_u32 s{30+j}, s{30+j}, {ITS}")
    a(f"s_branch {L}_loop")

def cpoll(a, q):
    if not CFG["CP"]: return
    lab = f"CPL{q}"; tgt = {"2": 16}.get(q, 8); D = CFG["PD"]
    a(f"s_cmp_lg_u32 s13, {CFG['CP']-1}\ns_cbranch_scc1 {lab}_ok")
    if q == "1":
        a(f"s_lshl_b32 s72, s48, 8\ns_add_u32 s72, s72, {(CE-1)*128 + CNT}\ns_min_u32 s73, s48, 1\ns_or_b32 exec_lo, s73, 0x10100\ns_mov_b32 exec_hi, 0")
        ad = "v3, s[4:7], s72 offen"
    else:
        a(f"s_lshl_b32 s73, s14, 15\ns_add_u32 s73, s73, {CNT + {'2': CA, '3a': CB, '5': CD}[q]*128}")
        a(("s_lshr_b32 s72, s50, 1\ns_lshl_b32 s72, s72, 7" if q == "2" else "s_lshl_b32 s72, s50, 7") + "\ns_add_u32 s72, s72, s73\ns_mov_b64 exec, 1")
        ad = "off, s[4:7], s72"
    sl = f"s_sleep {CFG['SLEEP']}"
    a("s_mov_b32 s73, 0")
    for k in range(D - 1): a(f"buffer_load_dword v{253+k}, {ad} sc1\ns_sleep {CFG['PS']}")
    a(f"{lab}:")
    for k in range(D):
        a(f"buffer_load_dword v{253+(k+D-1)%D}, {ad} sc1\ns_waitcnt vmcnt({D-1})")
        a(f"v_cmp_ne_u32 vcc, {tgt}, v{253+k}\ns_cmp_eq_u64 vcc, 0\ns_cbranch_scc1 {lab}_x\n{sl}")
    a(f"s_add_u32 s73, s73, 1\ns_cmp_lt_u32 s73, 0x20000\ns_cbranch_scc1 {lab}\n{lab}_x:\ns_mov_b64 exec, -1\n{lab}_ok:")
def weave(a, lg, ms, rd, va=(), rpm=1, vpm=0, vskip=0):
    rd = list(rd); va = list(va); i = j = 0; acc = 0.0
    for mi, (txt, nd) in enumerate(ms):
        lg.need(nd); a(txt)
        acc += rpm
        while acc >= 1 and i < len(rd): lg.op(*rd[i]); i += 1; acc -= 1
        for _ in range(vpm if mi >= vskip else 0):
            if j < len(va):
                if va[j]: lg.need(va[j][1]); a(va[j][0])
                j += 1
    while i < len(rd): lg.op(*rd[i]); i += 1
    while j < len(va): lg.need(va[j][1]); a(va[j][0]); j += 1

def mainloop(a, lg, q, NBUF, reads, mf, hooks=None, last_hook=None, rpm=2, prebar=None, tailf=None, cv=None, roll=None, dz=None):
    ph = PH[q]; nks = ph["nks"]; nst = ph["nst"]
    hooks = hooks or {}; prebar = prebar or {}
    for n in range(nst):
        if roll:
            n0, per, lab, inc = roll
            if n == n0: assert not dz; a(f"s_mov_b32 s37, {(nst - n0)//per}\n{lab}:"); st0 = [set(x) for x in lg.out]
            if n == n0 + per:
                assert st0 == lg.out and (nst - n0) % per == 0
                for k in "DW": assert all(ph["addr"+k][m] == ph["addr"+k][m-per] for m in range(n, nst))
                a(f"{inc}\ns_sub_u32 s37, s37, 1\ns_cmp_lg_u32 s37, 0\ns_cbranch_scc1 {lab}")
                break
        if not ph["lag"] or n == 0: lg.drain()
        if n in prebar: a(prebar[n])
        if n == 0: stamp(a, lg)
        if n == 0 and q in ("2", "3a", "5"): cpoll(a, q); a("s_barrier")
        if n < 30: stamp2(a, q)
        a("s_barrier")
        if n < 30: stamp2(a, q)
        if n == 0: stamp(a, lg)
        if n in hooks: hooks[n]()
        ts = [t for t in (2*n, 2*n+1) if t < nks]
        if NBUF == 2:
            for t in ts:
                weave(a, lg, mf(t-1, (t-1) % 2) if t >= 1 else [], reads(t, t % 2), rpm=rpm)
        elif cv:
            r0, r1 = reads(2*n, (2*n) % 4), reads(2*n+1, (2*n+1) % 4)
            rd = r0[:3] + r1[:3] + r0[3:] + r1[3:]
            if n == 0:
                weave(a, lg, [], rd, cv(0, 0))
            else:
                h = len(rd) // 2
                def mix(c):
                    if not dz: return c, 1
                    o = []
                    for e in c:
                        o.append(e)
                        for _ in range(CFG["DZP"]): o.append((dz.pop(0), []) if dz else None)
                    return o, 1 + CFG["DZP"]
                for tt, rr in ((2*n-2, rd[:h]), (2*n-1, rd[h:])):
                    va, vpm = mix(cv(tt+1, (tt+1) % 4))
                    weave(a, lg, mf(tt, tt % 4), rr, va, rpm=1, vpm=vpm)
        else:
            rd = sum([reads(t, t % 4) for t in ts], [])
            ms = sum([mf(t, t % 4) for t in (2*n-2, 2*n-1) if t >= 0], [])
            weave(a, lg, ms, rd, rpm=rpm)
    tail = [nks-1] if NBUF == 2 else [t for t in (2*nst-2, 2*nst-1) if t < nks]
    extra = last_hook() if last_hook else []
    if tailf: tailf()
    else: weave(a, lg, sum([mf(t, t % NBUF) for t in tail], []), extra, rpm=rpm)
    if q != "4": stamp2(a, q)
    a("s_barrier")
    if q != "4": stamp2(a, q)
    stamp(a, lg)
def poolloop(a, lg, q, regions, spare, frags, mfs, last, L, rpm):
    ph = PH[q]; nks = ph["nks"]; nst = ph["nst"]
    RD = [(t, nm, fn) for t in range(nks) for nm, fn in frags(t)]
    MS = [(t, fn, nms) for t in range(nks) for fn, nms in mfs(t)]
    lastuse = {}
    for i, (t, fn, nms) in enumerate(MS):
        for nm in nms: lastuse[(t, nm)] = i
    per = len(MS) // nst
    free = [list(regions[0]), list(regions[1]), list(spare)]
    home = {r: k for k in range(3) for r in free[k]}
    loc = {}; ri = [0]; last = list(last)
    def rd(tmax, force=False):
        if ri[0] >= len(RD) or RD[ri[0]][0] > tmax: return False
        t, nm, fn = RD[ri[0]]
        for k in (t & 1, 2) + ((1 - (t & 1),) if force else ()):
            if free[k]:
                r = free[k].pop(0); loc[(t, nm)] = r; lg.op(*fn(r)); ri[0] += 1; return True
        assert not force
        return False
    def rdlast():
        busy = {x for r in loc.values() for x in R(r, 4)}
        for k, (txt, regs) in enumerate(last):
            if not busy & set(regs): lg.op(txt, regs); last.pop(k); return True
        return False
    mi = 0
    for n in range(nst):
        lg.drain()
        if n == 0:
            stamp(a, lg)
            if q == "1": a("s_cmp_eq_u32 s14, 0\ns_cbranch_scc1 P1_nof"); cpoll(a, q); a("s_barrier\nP1_nof:")
            elif q != "3b": cpoll(a, q); a("s_barrier")
        stamp2(a, q); a("s_barrier"); stamp2(a, q)
        if n == 0: stamp(a, lg)
        tmax = 2*n + 1; acc_ = 0.0
        end = per*(n+1) - L if n < nst - 1 else len(MS)
        if n == 0:
            for _ in range(len(frags(0))): rd(0)
        while mi < end:
            t, fn, nms = MS[mi]
            while any((t, nm) not in loc for nm in nms): rd(tmax, True)
            lg.need([x for nm in nms for x in R(loc[(t, nm)], 4)])
            a(fn({nm: loc[(t, nm)] for nm in nms}))
            for nm in nms:
                if lastuse[(t, nm)] == mi: r = loc.pop((t, nm)); free[home[r]].append(r)
            mi += 1; acc_ = min(acc_ + rpm, 2*rpm)
            while acc_ >= 1 and (rd(tmax) or (ri[0] >= len(RD) and rdlast())): acc_ -= 1
        while rd(tmax, True): pass
    while rdlast(): pass
    assert not last
    stamp2(a, q); a("s_barrier"); stamp2(a, q)
    stamp(a, lg)
class Cap(Asm):
    def __call__(s, t): s.lines += [l.strip() for l in t.split("\n") if l.strip()]
def gbar(a, nxt, first=False):
    if not first: stamp(a)
    c = Cap(); nxt(c); L = c.lines
    ld = [i for i, l in enumerate(L) if l.startswith("buffer_load")]
    K = max(ld[-1] + 1, CFG["SUK"])
    while K < len(L) and L[K].startswith("s_cselect"): K += 1
    for l in L[:K]: a(l)
    if first: a("s_cmp_eq_u32 s14, 0\ns_cbranch_scc1 P1_nog")
    a(f"s_waitcnt vmcnt({len(ld)})")
    stamp(a)
    a("s_barrier")
    if first: a("P1_nog:")
    for l in L[K:]: a(l)
    a("s_waitcnt vmcnt(0)")

def xreduce(a, op, v, t):
    a(f"v_mov_b32 v{t}, v{v}\nv_permlane32_swap_b32 v{t}, v{v}\n{op} v{v}, v{v}, v{t}")
    a(f"v_mov_b32 v{t}, v{v}\nv_permlane16_swap_b32 v{t}, v{v}\n{op} v{v}, v{v}, v{t}")
def bc2(hi): return "op_sel:[0,1] op_sel_hi:[1,1]" if hi else "op_sel:[0,0] op_sel_hi:[1,0]"
def bc3(hi): return "op_sel:[0,1,0] op_sel_hi:[1,1,1]" if hi else "op_sel:[0,0,0] op_sel_hi:[1,0,1]"
def fix_T(a, acc, cs, st, tmp):
    for h in (0, 2): a(f"v_pk_mul_f32 {vr(tmp+h,2)}, {vr(cs+h,2)}, {vr(st,2)} {bc2(1)}")
    for h in (0, 2): a(f"v_pk_fma_f32 {vr(acc+h,2)}, {vr(acc+h,2)}, {vr(st,2)}, {vr(tmp+h,2)} {bc3(0)}")
def fix_N(a, acc, csreg, rs, nm, tmp):
    cp = csreg & ~1
    for h in (0, 2): a(f"v_pk_mul_f32 {vr(tmp+h,2)}, {vr(nm+h,2)}, {vr(cp,2)} {bc2(csreg & 1)}")
    for h in (0, 2): a(f"v_pk_fma_f32 {vr(acc+h,2)}, {vr(acc+h,2)}, {vr(rs+h,2)}, {vr(tmp+h,2)}")
def cvt2(a, d, acc, ty="bf16"):
    a(f"v_cvt_pk_{ty}_f32 v{d}, v{acc}, v{acc+1}\nv_cvt_pk_{ty}_f32 v{d+1}, v{acc+2}, v{acc+3}")
def rdD(q, t, dst, bD, addr, v8, lo):
    if t < SPLIT[q]: return rd128(dst, bD(addr))
    o = (addr - lo) // 512
    assert (addr - lo) % 512 == 0 and o + 1 < 256
    return (f"ds_read2st64_b64 {vr(dst,4)}, v{v8} offset0:{o} offset1:{o+1}", R(dst,4))
def rd128(dst, ba): return (f"ds_read_b128 {vr(dst,4)}, v{ba[0]} offset:{ba[1]}", R(dst,4))

P1C = dict(ACC=32, FB=104, X=208)
def setup1(a):
    q = "1"; ACC = P1C["ACC"]; X = P1C["X"]
    dlo, dhi = rng(q, "D"); wlo, whi = rng(q, "W")
    a(f"s_lshl_b32 s34, s49, 9\ns_add_u32 s34, s34, {CSQ}\ns_add_u32 s35, s34, 8192\nv_lshlrev_b32 v19, 3, v0")
    a(f"buffer_load_dwordx2 {vr(X,2)}, v19, s[4:7], s34 offen\nbuffer_load_dwordx2 {vr(X+2,2)}, v19, s[4:7], s35 offen")
    a(f"s_lshl_b32 s30, s13, 11\ns_add_u32 s30, s30, {KB}\nv_add_u32 v13, s30, v3")
    P1C["bD"] = mkbase(a, [4, 5], dlo, dhi, 13); P1C["bH"] = mkbase(a, [6, 7], dlo, dhi, 3); P1C["bW"] = mkbase(a, [8], wlo, whi, 3)
    a(f"v_add_u32 v252, {dlo}, v19\nv_add_u32 v11, s30, v252")
    a("s_min_u32 s31, s13, 2\ns_lshl_b32 s32, s31, 1\ns_add_u32 s32, s32, 1\ns_min_u32 s32, s32, 4\ns_add_u32 s33, s31, 5")
    a("s_lshl_b32 s34, s32, 10\nv_add_u32 v9, s34, v8\ns_lshl_b32 s34, s33, 10\nv_add_u32 v10, s34, v8")
    BI = X+26; BIa = X+34; ONES = X+38
    a("s_mov_b32 s40, 0xffff\ns_mov_b32 s41, 0\ns_mov_b32 s42, 0xffff0000\ns_mov_b32 s43, 0")
    a("v_lshlrev_b32 v16, 2, v1\nv_sub_u32 v16, v2, v16\nv_mov_b32 v17, 0xff800000")
    for kt in range(2):
        for r in range(4):
            a(f"v_add_u32 v18, {16 - 16*kt - r}, v16\nv_and_b32 v18, 0xfffffff1, v18\nv_cmp_eq_u32 vcc, 0, v18\nv_cndmask_b32 v{BI+4*kt+r}, v17, 0, vcc")
    a("s_add_u32 s34, s48, s13\ns_cmp_eq_u32 s34, 0\ns_cselect_b64 s[38:39], -1, 0")
    for r in range(4): a(f"v_cndmask_b32 v{BIa+r}, v{BI+r}, v17, s[38:39]\nv_mov_b32 v{ONES+r}, 0x3f803f80")
    c = (DH ** -0.5) * math.log2(math.e)
    a(f"s_mov_b32 s44, {hex(f2u(c))}\ns_mov_b32 s45, {hex(f2u(c))}")
    a(f"s_lshl_b32 s46, s49, 17\ns_lshl_b32 s47, s48, 13\ns_lshl_b32 s37, s13, 11\ns_add_u32 s47, s47, s37\ns_add_u32 s47, s47, s12\ns_add_u32 s47, s47, {OB}\ns_add_u32 s46, s46, s47")
    a(f"s_lshr_b32 s37, s49, 2\ns_add_u32 s37, s37, 16\ns_lshl_b32 s37, s37, 17\ns_add_u32 s47, s47, s37\ns_and_b32 s37, s49, 3\ns_lshl_b32 s37, s37, 8\ns_add_u32 s47, s47, s37")
    a("s_lshl_b32 s36, s13, 7\nv_lshlrev_b32 v18, 2, v2\nv_add_u32 v13, s36, v18\nv_lshlrev_b32 v23, 4, v1\nv_add_u32 v14, s36, v23")
    a("s_lshl_b32 s34, s32, 6\nv_add_u32 v15, s34, v23\ns_lshl_b32 s34, s33, 6\nv_add_u32 v12, s34, v18")
    a("s_lshl_b32 s34, s31, 9\nv_add_u32 v20, s34, v19\ns_mul_i32 s34, s13, 3072\nv_add_u32 v21, s34, v19\nv_or_b32 v22, 256, v21")
def cons1(a):
    q = "1"; lg = LG(a)
    ACC = P1C["ACC"]; FB = P1C["FB"]; X = P1C["X"]; bD, bH, bW = P1C["bD"], P1C["bH"], P1C["bW"]
    def acc(t, x): return ACC + 4*(2*t + x)
    accHT, accHV = ACC + 64, ACC + 68
    dlo, dhi = rng(q, "D")
    BI = X+26; BIa = X+34; ONES = X+38
    a(f"v_pk_add_f32 {vr(X,2)}, {vr(X,2)}, {vr(X+2,2)}")
    lg.op(f"ds_write_b64 v19, {vr(X,2)} offset:{CS0}")
    def frags(t):
        d0 = uaddr(q, "D", t, 0); w0 = uaddr(q, "W", t, 0)
        out = [("Ah", lambda r: rdD(q, t, r, bH, d0, 252, dlo)), ("BT", lambda r: rd128(r, (9, bW(w0)[1]))), ("BV", lambda r: rd128(r, (10, bW(w0)[1])))]
        As = [("A0", lambda r: rdD(q, t, r, bD, d0, 11, dlo)), ("A1", lambda r: rdD(q, t, r, bD, d0+KB, 11, dlo))]
        Bs = [(f"B{u}", lambda r, u=u: rd128(r, bW(w0+u*KB))) for u in range(8)]
        if t == 19: return out + As[1:] + Bs + As[:1]
        return out + [As[0], Bs[0], As[1]] + Bs[1:]
    def mfs(t):
        out = []; C0 = "0" if t == 0 else None
        for u in range(8):
            for x in range(2):
                A, B = f"A{x}", f"B{u}"
                out.append((lambda m, u=u, x=x, A=A, B=B: mfma(acc(u,x), m[B], m[A], C0) if u < 5 else mfma(acc(u,x), m[A], m[B], C0), (A, B)))
        h = [(lambda m: mfma(accHT, m["BT"], m["Ah"], C0), ("BT", "Ah")), (lambda m: mfma(accHV, m["Ah"], m["BV"], C0), ("Ah", "BV"))]
        if t == 19: return h + out[1::2] + out[0::2]
        return h + out
    E = FB
    stT = [E, E+2, E+4]; rsN = [E+8, E+12, E+16]; nmN = [E+20, E+24, E+28]
    csT = [E+32, E+36, E+40, E+44, E+48]; csHT = X
    csV = [X+4, X+5, X+6]; csHV = X+7
    def last_hook():
        out = []
        for x in (2, 1, 0):
            va, vb, o = (18, 23, 0) if x == 2 else (13, 14, 64+64*x)
            out.append((f"ds_read2_b32 {vr(stT[x],2)}, v{va} offset0:{o//4} offset1:{(NM0+o)//4}", R(stT[x],2)))
            out.append(rd128(rsN[x], (vb, o))); out.append(rd128(nmN[x], (vb, NM0+o)))
            if x == 2:
                out.append(rd128(csHT, (15, CS0))); out.append((f"ds_read_b32 v{csHV}, v12 offset:{CS0}", [csHV]))
            if x == 1:
                for t in range(5): out.append(rd128(csT[t], (23, CS0+64*t)))
                for t in range(3): out.append((f"ds_read_b32 v{csV[t]}, v18 offset:{CS0+64*(5+t)}", [csV[t]]))
        return out
    poolloop(a, lg, q, [[FB+52*b+4*k for k in range(13)] for b in range(2)], [X+8, X+12, X+16, X+20, 24, 28], frags, mfs, last_hook(), CFG["L1"], CFG["RPM1"]/4)
    lg.drain()
    G = FB + 52
    QF = {(0,0): G, (1,0): G+4, (0,1): G+8, (1,1): G+12}
    KF = {(0,0): G+16, (1,0): G+20, (0,1): G+24, (1,1): G+28, (0,'p'): G+32, (1,'p'): G+36}
    VF = [X+8, X+14, X+20]
    TMP = G+40; HT, HV = G+44, G+46; T4r = G+48; TM2 = 24
    def prep_kv(x):
        for k, t in enumerate((1, 3, 4)): fix_T(a, acc(t,x), csT[t], stT[x], (TMP, TM2)[k & 1])
        for t in range(3): fix_N(a, acc(5+t,x), csV[t], rsN[x], nmN[x], (TM2, TMP)[t & 1])
        cvt2(a, KF[(0,x)], acc(1,x)); cvt2(a, KF[(1,x)], acc(3,x)); cvt2(a, T4r + 2*x, acc(4,x))
        for t in range(3): cvt2(a, VF[t] + 2 + 2*x, acc(5+t,x))
    def prep_q(x):
        for k, t in enumerate((0, 2)): fix_T(a, acc(t,x), csT[t], stT[x], (TMP, TM2)[k & 1])
        T4 = T4r + 2*x
        for j in range(2):
            a(f"v_mov_b32 v{KF[(0,x)]+2+j}, v{T4+j}\nv_mov_b32 v{KF[(1,x)]+2+j}, v{T4+j}")
        cvt2(a, QF[(0,x)], acc(0,x)); cvt2(a, QF[(1,x)], acc(2,x))
        for j in range(2): a(f"v_permlane32_swap_b32 v{KF[(0,x)]+2+j}, v{KF[(1,x)]+2+j}")
        for j in range(2):
            a(f"v_cndmask_b32 v{QF[(0,x)]+2+j}, 0, v{T4+j}, s[40:41]\nv_cndmask_b32 v{QF[(1,x)]+2+j}, 0, v{T4+j}, s[42:43]")
        for j in range(2): a(f"v_mov_b32 v{KF[(0,x)]+2+j}, v{KF[(1,x)]+2+j}")
    fix_T(a, accHT, csHT, stT[2], TMP); fix_N(a, accHV, csHV, rsN[2], nmN[2], TM2)
    cvt2(a, HT, accHT); cvt2(a, HV, accHV)
    a(f"ds_write_b64 v20, {vr(HT,2)} offset:4096\nds_write_b64 v20, {vr(HV,2)} offset:{4096+1536}")
    prep_kv(1)
    for k, r in enumerate([KF[(0,1)], KF[(1,1)], T4r+2, VF[0]+4, VF[1]+4, VF[2]+4]):
        a(f"ds_write_b64 v21, {vr(r,2)} offset:{4096+3072+512*k}")
    prep_kv(0)
    a("s_waitcnt lgkmcnt(0)\ns_barrier")
    lg.op(f"ds_read_b64 {vr(KF[(0,'p')],2)}, v21 offset:4096", R(KF[(0,'p')],2))
    lg.op(f"ds_read_b64 {vr(KF[(1,'p')],2)}, v21 offset:{4096+512}", R(KF[(1,'p')],2))
    lg.op(f"ds_read_b64 {vr(KF[(0,'p')]+2,2)}, v22 offset:{4096+1024}", R(KF[(0,'p')]+2,2))
    lg.op(f"ds_read_b64 {vr(KF[(1,'p')]+2,2)}, v22 offset:{4096+1024}", R(KF[(1,'p')]+2,2))
    for t in range(3): lg.op(f"ds_read_b64 {vr(VF[t],2)}, v21 offset:{4096+1536+512*t}", R(VF[t],2))
    prep_q(1); prep_q(0)
    lg.drain()
    XS = (1, 0)
    Wb = {1: ACC, 0: ACC + 36}
    Sr = {(x,h): Wb[x] + 8*h for x in XS for h in range(2)}
    M = {(x,h): Wb[x] + 16 + 2*h for x in XS for h in range(2)}
    PF = {(x,h): Wb[x] + 20 + 4*h for x in XS for h in range(2)}
    XH = [(x,h) for x in XS for h in range(2)]
    for (x,h) in XH:
        pk = 'p' if x == 0 else 0
        a(mfma(Sr[x,h], KF[(h,pk)], QF[(h,x)], "0")); a(mfma(Sr[x,h]+4, KF[(h,x)], QF[(h,x)], "0"))
    for (x,h) in XH:
        bp = BIa if x == 0 else BI
        for j in range(4):
            b = (bp + 2*j) if j < 2 else (BI + 2*j)
            a(f"v_pk_fma_f32 {vr(Sr[x,h]+2*j,2)}, {vr(Sr[x,h]+2*j,2)}, s[44:45], {vr(b,2)}")
        s_, m = Sr[x,h], M[x,h]
        a(f"v_max3_f32 v{m}, v{s_}, v{s_+1}, v{s_+2}\nv_max3_f32 v{m+1}, v{s_+3}, v{s_+4}, v{s_+5}\nv_max3_f32 v{m}, v{m}, v{s_+6}, v{s_+7}\nv_max_f32 v{m}, v{m}, v{m+1}")
    for sw in ("v_permlane32_swap_b32", "v_permlane16_swap_b32"):
        for k in XH: a(f"v_mov_b32 v{M[k]+1}, v{M[k]}")
        for k in XH: a(f"{sw} v{M[k]+1}, v{M[k]}")
        for k in XH: a(f"v_max_f32 v{M[k]}, v{M[k]}, v{M[k]+1}")
    for x in XS:
        for h in range(2):
            k = (x,h)
            for j in range(4):
                a(f"v_pk_add_f32 {vr(Sr[k]+2*j,2)}, {vr(Sr[k]+2*j,2)}, {vr(M[k],2)} op_sel:[0,0] op_sel_hi:[1,0] neg_lo:[0,1] neg_hi:[0,1]")
            for j in range(8): a(f"v_exp_f32 v{Sr[k]+j}, v{Sr[k]+j}")
        for h in range(2):
            cvt2(a, PF[x,h], Sr[x,h]); cvt2(a, PF[x,h]+2, Sr[x,h]+4)
        vo = 2*x; W = Wb[x]
        L0, L1, O0, O1a, O1b, O2 = W+28, W+32, W, W+4, W+8, W+12
        a(mfma(L0, ONES, PF[x,0], "0")); a(mfma(L1, ONES, PF[x,1], "0"))
        a(mfma(O0, VF[0]+vo, PF[x,0], "0")); a(mfma(O1a, VF[1]+vo, PF[x,0], "0"))
        a(mfma(O1b, VF[1]+vo, PF[x,1], "0")); a(mfma(O2, VF[2]+vo, PF[x,1], "0"))
    for x in XS:
        W = Wb[x]
        L0, L1, O0, O1a, O1b, O2 = W+28, W+32, W, W+4, W+8, W+12
        a(f"v_rcp_f32 v{L0}, v{L0}\nv_rcp_f32 v{L1}, v{L1}")
        for j in range(4): a(f"v_cndmask_b32 v{O1a+j}, v{O1b+j}, v{O1a+j}, s[40:41]")
        a(f"v_cndmask_b32 v{L0+1}, v{L1}, v{L0}, s[40:41]")
        for j in (0, 2): a(f"v_pk_mul_f32 {vr(O0+j,2)}, {vr(O0+j,2)}, {vr(L0,2)} {bc2(0)}")
        for j in (0, 2): a(f"v_pk_mul_f32 {vr(O1a+j,2)}, {vr(O1a+j,2)}, {vr(L0,2)} {bc2(1)}")
        for j in (0, 2): a(f"v_pk_mul_f32 {vr(O2+j,2)}, {vr(O2+j,2)}, {vr(L1,2)} {bc2(0)}")
        cvt2(a, PF[x,0], O0); cvt2(a, PF[x,0]+2, O1a); cvt2(a, PF[x,1], O2)
        a(f"buffer_store_dwordx4 {vr(PF[x,0],4)}, v3, s[4:7], s46 offen offset:{x*KB} sc1")
        a(f"s_mov_b64 exec, 0xffffffff\nbuffer_store_dwordx2 {vr(PF[x,1],2)}, v19, s[4:7], s47 offen offset:{x*KB} sc1\ns_mov_b64 exec, -1")
    gbar(a, lambda c: setup25(c, "2"))

P25 = {}
def setup25(a, q):
    X = 160
    dlo, dhi = rng(q, "D"); wlo, whi = rng(q, "W")
    a("v_lshlrev_b32 v8, 3, v0")
    a("s_lshl_b32 s33, s50, 2\ns_add_u32 s33, s33, s13\ns_lshl_b32 s34, s33, 10")
    a("s_lshl_b32 s31, s51, 18\ns_add_u32 s31, s31, s34")
    a("s_lshr_b32 s32, s51, 1\ns_add_u32 s32, s32, 16\ns_lshl_b32 s32, s32, 17\ns_add_u32 s32, s32, s34\ns_and_b32 s35, s51, 1\ns_lshl_b32 s35, s35, 9\ns_add_u32 s32, s32, s35")
    src = XIN if q == "2" else XMID
    a(f"s_add_u32 s35, s12, {src}\ns_add_u32 s36, s35, s31\ns_add_u32 s37, s36, {128*KB}\ns_add_u32 s35, s35, s32")
    a(f"buffer_load_dwordx4 {vr(X,4)}, v3, s[4:7], s36 offen sc1\nbuffer_load_dwordx4 {vr(X+4,4)}, v3, s[4:7], s37 offen sc1\nbuffer_load_dwordx2 {vr(X+8,2)}, v8, s[4:7], s35 offen sc1")
    a("s_lshl_b32 s30, s13, 10\nv_add_u32 v13, s30, v3")
    P25[q] = (mkbase(a, [4], dlo, dhi, 13), mkbase(a, [6, 7], wlo, whi, 3))
    a(f"s_add_u32 s30, s30, {dlo}\nv_add_u32 v5, s30, v8")
    dst = XMID if q == "2" else ITS + XIN
    dstst = STMID if q == "2" else ITS + STIN
    a(f"s_add_u32 s35, s12, {dst}\ns_add_u32 s36, s35, s31\ns_add_u32 s37, s36, {128*KB}\ns_add_u32 s35, s35, s32")
    a(f"s_lshl_b32 s39, s51, 14\ns_lshl_b32 s40, s33, 7\ns_add_u32 s39, s39, s40\ns_add_u32 s39, s39, s12\ns_add_u32 s39, s39, {dstst}")
    a(f"v_mov_b32 v{X+12}, 0\nv_mov_b32 v{X+13}, 0\nv_mov_b32 v{X+14}, 0x3f803f80\nv_lshlrev_b32 v{X+17}, 3, v2\nv_mov_b32 v{X+18}, 0\nv_mov_b32 v{X+19}, 0")
    if q == "5":
        a(f"s_mul_i32 s41, s13, 2816\ns_add_u32 s41, s41, 4096\nv_mul_u32_u24 v{X+40}, 176, v2\nv_lshl_add_u32 v{X+40}, v1, 3, v{X+40}\nv_add_u32 v{X+40}, s41, v{X+40}")
        for j in range(3):
            c, row, cc, la, ga = X+41, X+42, X+43, X+20+j, X+24+j
            a(f"v_add_u32 v{c}, {64*j}, v0\nv_mul_u32_u24 v{row}, 205, v{c}\nv_lshrrev_b32 v{row}, 11, v{row}\nv_mul_u32_u24 v{cc}, 10, v{row}\nv_sub_u32 v{cc}, v{c}, v{cc}\nv_lshlrev_b32 v{cc}, 4, v{cc}")
            a(f"v_mul_u32_u24 v{la}, 176, v{row}\nv_add3_u32 v{la}, v{la}, v{cc}, s41\nv_mul_u32_u24 v{ga}, 1280, v{row}\nv_add_u32 v{ga}, v{ga}, v{cc}")
        a(f"s_mul_i32 s42, s33, {16*1280}\ns_mul_i32 s43, s51, 160\ns_add_u32 s42, s42, s43")
        a.srd(8, 24, 2048*640*2)
    a("s_mov_b32 s38, 0xffff0000")
def cons25(a, q):
    lg = LG(a)
    ACC = 32; FB = 64; X = 160
    dlo, dhi = rng(q, "D"); bD, bW = P25[q]
    for j in range(10):
        a(f"v_lshlrev_b32 v{ACC+2*j}, 16, v{X+j}\nv_and_b32 v{ACC+2*j+1}, s38, v{X+j}")
    def fb(buf, k): return FB + 24*buf + 4*k
    def reads(t, buf):
        return [rdD(q, t, fb(buf,0), bD, uaddr(q, "D", t, 0), 5, dlo)] + [rd128(fb(buf,1+u), bW(uaddr(q, "W", t, u))) for u in range(5)]
    def mf(t, buf):
        return [(mfma(ACC+4*u, fb(buf,1+u), fb(buf,0)), list(R(fb(buf,0),4)) + list(R(fb(buf,1+u),4))) for u in range(5)]
    mainloop(a, lg, q, 4, reads, mf, rpm=1.25)
    for u in range(5): cvt2(a, X+2*u, ACC+4*u)
    if q == "5":
        a("s_cmp_eq_u32 s14, 1\ns_cbranch_scc1 P5_final")
    a(f"buffer_store_dwordx4 {vr(X,4)}, v3, s[4:7], s36 offen sc1\nbuffer_store_dwordx4 {vr(X+4,4)}, v3, s[4:7], s37 offen sc1\nbuffer_store_dwordx2 {vr(X+8,2)}, v8, s[4:7], s35 offen sc1")
    for j in range(0, 10, 2):
        a(f"v_dot2_f32_bf16 v{X+12}, v{X+j}, v{X+14}, v{X+12}\nv_dot2_f32_bf16 v{X+13}, v{X+j}, v{X+j}, v{X+13}")
        a(f"v_dot2_f32_bf16 v{X+18}, v{X+j+1}, v{X+14}, v{X+18}\nv_dot2_f32_bf16 v{X+19}, v{X+j+1}, v{X+j+1}, v{X+19}")
    a(f"v_pk_add_f32 {vr(X+12,2)}, {vr(X+12,2)}, {vr(X+18,2)}")
    for sw in ("v_permlane32_swap_b32", "v_permlane16_swap_b32"):
        a(f"v_mov_b32 v{X+18}, v{X+12}\nv_mov_b32 v{X+19}, v{X+13}\n{sw} v{X+18}, v{X+12}\n{sw} v{X+19}, v{X+13}\nv_pk_add_f32 {vr(X+12,2)}, {vr(X+12,2)}, {vr(X+18,2)}")
    a(f"s_mov_b64 exec, 0xffff\nbuffer_store_dwordx2 {vr(X+12,2)}, v{X+17}, s[4:7], s39 offen sc1\ns_mov_b64 exec, -1")
    if q == "2": gbar(a, setup3)
    if q == "5":
        a(f"s_mov_b32 s14, 1\ns_add_u32 s12, s12, {ITS}")
        stamp(a)
        a("s_branch C_loop")
        a("P5_final:")
        a.fence(2)
        for u in range(5): a(f"ds_write_b64 v{X+40}, {vr(X+2*u,2)} offset:{32*u}")
        a("s_waitcnt lgkmcnt(0)")
        for j in range(3): a(f"ds_read_b128 {vr(X+28+4*j,4)}, v{X+20+j}")
        for j in range(3):
            a(f"s_waitcnt lgkmcnt({2-j})")
            if j == 2: a("s_mov_b64 exec, 0xffffffff")
            a(f"buffer_store_dwordx4 {vr(X+28+4*j,4)}, v{X+24+j}, s[8:11], s42 offen{' sc1' if CFG['NT'] & 16 else ' nt' if CFG['NT'] & 32 else ''}")
        a("s_mov_b64 exec, -1")
        stamp(a)
        a("s_barrier\ns_barrier\ns_branch FIN")

GC1 = -2.0 * math.sqrt(2.0/math.pi) * math.log2(math.e)
GC2 = GC1 * 0.044715
def gelu(a, xs, ts):
    P = list(zip(xs, ts))
    for x, t in P:
        for h in (0, 2): a(f"v_pk_mul_f32 {vr(t+h,2)}, {vr(x+h,2)}, {vr(x+h,2)}")
    for x, t in P:
        for h in (0, 2): a(f"v_pk_fma_f32 {vr(t+h,2)}, {vr(t+h,2)}, s[44:45], v[14:15]")
    for x, t in P:
        for h in (0, 2): a(f"v_pk_mul_f32 {vr(t+h,2)}, {vr(t+h,2)}, {vr(x+h,2)}")
    for x, t in P:
        for j in range(4): a(f"v_exp_f32 v{t+j}, v{t+j}")
    for x, t in P:
        for h in (0, 2): a(f"v_pk_add_f32 {vr(t+h,2)}, {vr(t+h,2)}, 1.0 op_sel_hi:[1,0]")
    for x, t in P:
        for j in range(4): a(f"v_rcp_f32 v{t+j}, v{t+j}")
    for x, t in P:
        for h in (0, 2): a(f"v_pk_mul_f32 {vr(x+h,2)}, {vr(x+h,2)}, {vr(t+h,2)}")
ZR = 32
P3C = {}
def setup3(a):
    q = "3a"; X = 192; SM = 32
    dlo, dhi = rng(q, "D"); wlo, whi = rng(q, "W")
    a(f"s_lshl_b32 s34, s51, 9\ns_add_u32 s34, s34, {CSI}\ns_add_u32 s35, s34, 8192\nv_lshlrev_b32 v22, 3, v0")
    a("s_and_b32 s38, s51, 3\ns_cmp_eq_u32 s38, 3\ns_cselect_b32 s38, 47, 55\ns_lshl_b32 s38, s38, 3\nv_min_u32 v7, s38, v22")
    a(f"buffer_load_dwordx2 {vr(X,2)}, v7, s[4:7], s34 offen\nbuffer_load_dwordx2 {vr(X+2,2)}, v7, s[4:7], s35 offen")
    a(f"s_add_u32 s34, s34, 4096\ns_add_u32 s35, s35, 4096\nbuffer_load_dwordx2 {vr(X+4,2)}, v7, s[4:7], s34 offen\nbuffer_load_dwordx2 {vr(X+6,2)}, v7, s[4:7], s35 offen")
    a("s_and_b32 s31, s13, 1\ns_lshr_b32 s32, s13, 1")
    setup4(a)
    a("s_lshl_b32 s30, s31, 11\nv_add_u32 v13, s30, v3")
    P3C["bD"] = mkbase(a, [4, 5], dlo, dhi, 13)
    a(f"s_add_u32 s30, s30, {dlo}\nv_add_u32 v252, s30, v22")
    a("s_lshl_b32 s30, s32, 12\nv_add_u32 v13, s30, v3")
    P3C["bW"] = mkbase(a, [6], wlo, whi, 13)
    for r in range(16): a(f"v_mov_b32 v{SM+r}, 0")
    a(f"s_mov_b32 s44, {hex(f2u(GC2))}\ns_mov_b32 s45, {hex(f2u(GC2))}\nv_mov_b32 v14, {hex(f2u(GC1))}\nv_mov_b32 v15, {hex(f2u(GC1))}")
    a("s_lshl_b32 s34, s32, 8\ns_lshl_b32 s35, s31, 7\nv_lshlrev_b32 v10, 2, v2\nv_add_u32 v8, s34, v10\nv_add_u32 v10, s35, v10")
    a("v_lshlrev_b32 v12, 4, v1\nv_add_u32 v9, s35, v12\nv_add_u32 v12, s34, v12")
    a("s_and_b32 s38, s51, 3\ns_cmp_eq_u32 s38, 3\ns_cselect_b32 s38, 2, 3\ns_cmp_eq_u32 s32, 0\ns_cselect_b32 s38, 4, s38")
    a(f"s_lshl_b32 s36, s33, 8\ns_mul_i32 s39, s33, {56*KB}\ns_mul_i32 s34, s51, {7*KB}\ns_add_u32 s39, s39, s34\ns_lshl_b32 s34, s32, 12\ns_add_u32 s39, s39, s34\ns_add_u32 s39, s39, s12\ns_add_u32 s39, s39, {Z2}")
    a(f"s_add_u32 s36, s36, s12\ns_add_u32 s36, s36, {ZS}")
    a("s_mov_b32 s40, 0xaaaaaaaa\ns_mov_b32 s41, 0xaaaaaaaa\ns_mov_b32 s42, 0xcccccccc\ns_mov_b32 s43, 0xcccccccc")
    a("v_and_b32 v11, 3, v2\nv_lshl_add_u32 v11, v1, 2, v11\nv_bfe_u32 v13, v2, 2, 1\nv_lshl_add_u32 v11, v13, 4, v11\nv_lshlrev_b32 v11, 3, v11\nv_lshrrev_b32 v13, 3, v2\nv_lshl_add_u32 v11, v13, 2, v11")
def cons3(a):
    q = "3a"; lg = LG(a)
    ACC = 64; FB = 96; X = 192; SM = 32
    def acc(t, x): return ACC + 4*(2*t + x)
    dlo, dhi = rng(q, "D"); wlo, whi = rng(q, "W"); bD, bW = P3C["bD"], P3C["bW"]
    a(f"v_pk_add_f32 {vr(X,2)}, {vr(X,2)}, {vr(X+2,2)}\nv_pk_add_f32 {vr(X+4,2)}, {vr(X+4,2)}, {vr(X+6,2)}")
    lg.op(f"ds_write_b64 v22, {vr(X,2)} offset:{CS0}"); lg.op(f"ds_write_b64 v22, {vr(X+4,2)} offset:{CS1}")
    a(f"v_lshlrev_b32 v{P4R['BI']}, 16, v{P4R['BI']}\nv_lshlrev_b32 v{P4R['BI']+1}, 16, v{P4R['BI']+1}")
    def fb(buf, k): return FB + 24*buf + 4*k
    def reads(t, buf):
        d0 = uaddr(q, "D", t, 0); w0 = uaddr(q, "W", t, 0)
        return [rdD(q, t, fb(buf,0), bD, d0, 252, dlo), rd128(fb(buf,2), bW(w0)), rdD(q, t, fb(buf,1), bD, d0+KB, 252, dlo)] + [rd128(fb(buf,2+u), bW(w0+u*KB)) for u in range(1, 4)]
    def mf(t, buf):
        return [(mfma(acc(u,x), fb(buf,x), fb(buf,2+u), "0" if t == 0 else None), list(R(fb(buf,x),4)) + list(R(fb(buf,2+u),4))) for u in range(4) for x in range(2)]
    rsN = [X, X+4]; nmN = [X+8, X+12]; csV = [X+16+t for t in range(4)]
    def last_hook():
        out = []
        for x in range(2): out += [rd128(rsN[x], (9, 64*x)), rd128(nmN[x], (9, NM0+64*x))]
        return out + [(f"ds_read_b32 v{csV[t]}, v8 offset:{CS1+64*t}", [csV[t]]) for t in range(4)]
    mainloop(a, lg, q, 4, reads, mf, last_hook=last_hook, rpm=CFG["RPM3"]/4)
    lg.drain()
    TMP = X+40; PK = X+24
    for u in range(4):
        if u >= 2: a(f"s_cmp_eq_u32 s38, {u}\ns_cbranch_scc1 P3_red")
        for x in range(2): fix_N(a, acc(u,x), csV[u], rsN[x], nmN[x], TMP+4*x)
        gelu(a, [acc(u,0), acc(u,1)], [TMP, TMP+4])
        for x in range(2): cvt2(a, PK + 4*u + 2*x, acc(u,x), "f16")
        a(f"buffer_store_dwordx4 {vr(PK+4*u,4)}, v3, s[4:7], s39 offen offset:{u*KB} sc1")
        for x in range(2):
            for h in (0, 2):
                a(f"v_pk_add_f32 {vr(SM+4*x+h,2)}, {vr(SM+4*x+h,2)}, {vr(acc(u,x)+h,2)}")
                a(f"v_pk_fma_f32 {vr(SM+8+4*x+h,2)}, {vr(acc(u,x)+h,2)}, {vr(acc(u,x)+h,2)}, {vr(SM+8+4*x+h,2)}")
    a("P3_red:"); a.fence(2)
    RA = ACC
    for j in range(8):
        a(f"v_add_f32_dpp v{RA+j}, v{SM+j}, v{SM+j} row_ror:8 row_mask:0xf bank_mask:0x3")
    for j in range(8):
        a(f"v_add_f32_dpp v{RA+j}, v{SM+8+j}, v{SM+8+j} row_ror:8 row_mask:0xf bank_mask:0xc")
    for j in range(4): a(f"v_add_f32_dpp v{RA+8+j}, v{RA+j}, v{RA+j} row_half_mirror row_mask:0xf bank_mask:0x5")
    for j in range(4): a(f"v_add_f32_dpp v{RA+8+j}, v{RA+4+j}, v{RA+4+j} row_half_mirror row_mask:0xf bank_mask:0xa")
    for j in range(4): a(f"v_add_f32_dpp v{RA+8+j}, v{RA+8+j}, v{RA+8+j} quad_perm:[1,0,3,2] row_mask:0xf bank_mask:0xf")
    for j in range(4): a(f"v_add_f32_dpp v{RA+8+j}, v{RA+8+j}, v{RA+8+j} quad_perm:[2,3,0,1] row_mask:0xf bank_mask:0xf")
    a(f"v_cndmask_b32 v{RA}, v{RA+8}, v{RA+9}, s[40:41]\nv_cndmask_b32 v{RA+1}, v{RA+10}, v{RA+11}, s[40:41]\nv_cndmask_b32 v{RA}, v{RA}, v{RA+1}, s[42:43]")
    a(f"buffer_atomic_add_f32 v{RA}, v11, s[4:7], s36 offen")
    q = "3b"; lg = LG(a)
    assert rng(q, "W") == (wlo, whi)
    DEF = CFG["DEF"]
    if DEF: ACC = ZR; X = 212
    def mf(t, buf):
        return [(mfma(acc(u,x), fb(buf,2+u), fb(buf,x), "0" if t == 0 else None), list(R(fb(buf,x),4)) + list(R(fb(buf,2+u),4))) for u in range(4) for x in range(2)]
    stT = [X, X+2]; csT = [X+4+4*t for t in range(4)]
    def last_hook():
        return [(f"ds_read2_b32 {vr(stT[x],2)}, v10 offset0:{16*x} offset1:{NM0//4+16*x}", R(stT[x],2)) for x in range(2)] + [rd128(csT[t], (12, CS0+64*t)) for t in range(4)]
    mainloop(a, lg, q, 4, reads, mf, last_hook=last_hook, rpm=CFG["RPM3"]/4, prebar={CFG["SIG3"]: "s_waitcnt vmcnt(0)"})
    lg.drain()
    if DEF:
        TMP = 232
        def dzl(ch):
            c = Cap()
            for us in ((0, 1), (2, 3) if not ch else (2,)):
                tl = [(u, x) for u in us for x in range(2)]
                for k, (u, x) in enumerate(tl): fix_T(c, acc(u,x), csT[u], stT[x], TMP+4*k)
                gelu(c, [acc(u,x) for u, x in tl], [TMP+4*k for k in range(len(tl))])
                for k, (u, x) in enumerate(tl): cvt2(c, TMP+4*k, acc(u,x))
                for k, (u, x) in enumerate(tl):
                    for h in range(2): c(f"v_lshlrev_b32 v{acc(u,x)+2*h}, 16, v{TMP+4*k+h}\nv_and_b32 v{acc(u,x)+2*h+1}, s57, v{TMP+4*k+h}")
            return c.lines
        a("s_cmp_eq_u32 s32, 1\ns_cbranch_scc1 P3b_done1")
        cons4(a, 0, dzl(0))
    else:
        TMP = X+40
        for x in range(2):
            for u in range(2): fix_T(a, acc(u,x), csT[u], stT[x], TMP+4*(2*x+u))
        gelu(a, [acc(u,x) for x in range(2) for u in range(2)], [TMP+4*k for k in range(4)])
        for u in range(2):
            for x in range(2): cvt2(a, ZR+2*(2*u+x), acc(u,x))
        for u in (2, 3):
            a(f"s_cmp_eq_u32 s38, {u}\ns_cbranch_scc1 P3b_done1")
            for x in range(2): fix_T(a, acc(u,x), csT[u], stT[x], TMP+4*x)
            gelu(a, [acc(u,0), acc(u,1)], [TMP, TMP+4])
            for x in range(2): cvt2(a, ZR+2*(2*u+x), acc(u,x))
        cons4(a, 0)
    a("s_branch P4_done")
    a("P3b_done1:"); a.fence(2)
    cons4(a, 1, dzl(1) if DEF else None)
    a("P4_done:"); a.fence(2)
    gbar(a, lambda c: setup25(c, "5"))

P4R = dict(bD=[16, 17], W=[18, 19], MU=20, EX=21, L8=22, BI=24)
def setup4(a):
    q = "4"; r = P4R
    dlo, dhi = rng(q, "D"); wlo, whi = rng(q, "W")
    P4R["f"] = mkbase(a, r["bD"], dlo, dhi, 3)
    w0, rs = r["W"]; mu = r["MU"]
    a(f"s_lshl_b32 s34, s31, 11\ns_add_u32 s34, s34, {wlo}\nv_add_u32 v{w0}, s34, v3\nv_lshlrev_b32 v{rs}, 4, v1")
    a(f"v_and_b32 v{mu}, 1, v2\nv_lshlrev_b32 v{mu}, 6, v{mu}\nv_lshl_add_u32 v{mu}, v1, 4, v{mu}")
    a(f"s_lshl_b32 s34, s31, 9\nv_add_u32 v{r['EX']}, s34, v{r['L8']}")
    a(f"s_lshl_b32 s33, s50, 1\ns_add_u32 s33, s33, s31\nv_lshlrev_b32 v{r['BI']}, 1, v2")
    a(f"s_lshl_b32 s34, s33, 6\ns_add_u32 s34, s34, {BSP}\nbuffer_load_ushort v{r['BI']+1}, v{r['BI']}, s[4:7], s34 offen offset:32\nbuffer_load_ushort v{r['BI']}, v{r['BI']}, s[4:7], s34 offen")
    a(f"s_lshl_b32 s46, s33, 11\ns_add_u32 s46, s46, s12\ns_add_u32 s46, s46, {UB}\ns_mul_i32 s47, s51, 3\ns_lshl_b32 s34, s32, 1\ns_add_u32 s47, s47, s34\ns_lshl_b32 s47, s47, 17\ns_add_u32 s47, s47, s46")
    a(f"s_lshr_b32 s34, s51, 2\ns_sub_u32 s34, s51, s34\ns_lshr_b32 s56, s34, 1\ns_add_u32 s56, s56, 24\ns_lshl_b32 s56, s56, 17\ns_add_u32 s46, s46, s56\ns_and_b32 s34, s34, 1\ns_lshl_b32 s34, s34, 9\ns_add_u32 s46, s46, s34")
    a(f"s_add_u32 s56, s47, {128*KB}\ns_mov_b32 s57, 0xffff0000\ns_mov_b32 s58, {hex(f2u(1.0/WSCALE))}\ns_mov_b32 s59, {hex(f2u(1.0/WSCALE))}")
def cons4(a, ch, dz=None):
    q = "4"; lg = LG(a); r = P4R
    ACC = 64; FB = 96; X = 208
    wlo = rng(q, "W")[0]; bD = r["f"]
    def acc(t, x): return ACC + 4*(2*t + x)
    def fb(buf, k): return FB + 28*buf + 4*k
    def reads(t, buf):
        w = [rd128(fb(buf,x), (r["W"][0], uaddr(q, "W", t, x) - wlo)) for x in range(2)]
        z = [rd128(fb(buf,2+u), bD(uaddr(q, "D", t, 4*ch+u))) for u in range(4-ch)]
        if ch: z.append(rd128(fb(buf,5), (r["MU"], MU0 + t*128)))
        return [rd128(fb(buf,6), (r["W"][1], RS0 + t*64))] + w + z
    def cv(t, buf):
        rs = fb(buf,6)
        return [(f"v_pk_mul_f16 v{fb(buf,x)+j}, v{fb(buf,x)+j}, v{rs+j}", [fb(buf,x)+j, rs+j]) for x in range(2) for j in range(4)]
    def mf(t, buf):
        return [(mfma(acc(u,x), fb(buf,2+u), fb(buf,x), "0" if t == 0 else None, ty="f16"), list(R(fb(buf,2+u),4))) for x in range(2) for u in range(4)]
    B = r["BI"]
    def tail():
        m0, m1 = mf(62, 2), mf(63, 3)
        weave(a, lg, m0, [], cv(63, 3), vpm=2)
        if not ch: weave(a, lg, m1, []); return
        weave(a, lg, [m1[3], m1[7]] + m1[:3], [])
        for x in range(2): a(f"v_add_f32 v{X+x}, v{acc(3,x)}, v{acc(3,x)+1}")
        for x in range(2): a(f"v_fma_f32 v{B+x}, -v{X+x}, s58, v{B+x}")
        lg.op(f"ds_write_b64 v{r['EX']}, {vr(B,2)} offset:{EX0}")
        weave(a, lg, m1[4:7], [])
        lg.drain()
    inc = f"v_add_u32 v{r['W'][1]}, {12*64}, v{r['W'][1]}" + (f"\nv_add_u32 v{r['MU']}, {12*128}, v{r['MU']}" if ch else "")
    mainloop(a, lg, q, 4, reads, mf, cv=cv, tailf=tail, roll=(8 if dz else 2, 6, f"P4_loop{ch}", inc) if CFG["ROLL"] else None, dz=dz)
    if not ch: lg.op(f"ds_read_b64 {vr(B,2)}, v{r['EX']} offset:{EX0}", R(B,2))
    PK = FB; T2 = FB + 16 if dz is None else ZR
    for u0 in (0, 2):
        us = (u0, u0+1) if not (ch and u0) else (2,)
        if ch and u0: a("s_cmp_eq_u32 s38, 2\ns_cbranch_scc1 P4_done")
        for u in us if dz is None else ():
            for x in range(2):
                for h in range(2):
                    z = ZR + 2*(2*u+x) + h; t = T2 + 4*(2*u+x) + 2*h
                    a(f"v_lshlrev_b32 v{t}, 16, v{z}\nv_and_b32 v{t+1}, s57, v{z}")
        lg.drain()
        for x in range(2):
            for u in us:
                for h in (0, 2): a(f"v_pk_fma_f32 {vr(acc(u,x)+h,2)}, {vr(acc(u,x)+h,2)}, s[58:59], {vr(B,2)} op_sel:[0,0,{x}] op_sel_hi:[1,1,{x}]")
            for u in us:
                for h in (0, 2): a(f"v_pk_mul_f32 {vr(acc(u,x)+h,2)}, {vr(acc(u,x)+h,2)}, {vr(T2+4*(2*u+x)+h,2)}")
            pk = PK + 4*(u0 + x)
            for u in us: cvt2(a, pk + 2*(u & 1), acc(u,x))
            if len(us) == 2: a(f"buffer_store_dwordx4 {vr(pk,4)}, v3, s[4:7], s{56 if u0 else 47} offen offset:{x*KB} sc1")
            else: a(f"buffer_store_dwordx2 {vr(pk,2)}, v{r['L8']}, s[4:7], s46 offen offset:{x*KB} sc1")

def code_prefetch(a, va, vd):
    if not CFG["CODEPF"]: return
    lab = a.label("CPF")
    a(f"s_getpc_b64 s[56:57]\n{lab}:\ns_add_u32 s56, s56, main_kernel-{lab}\ns_addc_u32 s57, s57, 0")
    a(f"s_lshr_b32 s58, s2, 3\ns_lshl_b32 s58, s58, 2\ns_add_u32 s58, s58, s13\ns_mul_i32 s58, s58, 1024\nv_and_b32 v{va}, 7, v0\nv_lshlrev_b32 v{va}, 7, v{va}\nv_add_u32 v{va}, s58, v{va}")
    a(f"v_min_u32 v{va}, MAIN_END-main_kernel-4, v{va}\nglobal_load_dword v{vd}, v{va}, s[56:57]")

def build():
    plan()
    a = Asm()
    a.launch("k0_kernel", (488 if CFG["TOUCH"] else NJOBS,1,1), (256,1,1), lds=40960)
    a.launch("main_kernel", (256,1,1), (512,1,1), lds=LDS_TOTAL)
    emit_k0(a, code_prefetch=code_prefetch, touch=CFG["TOUCH"], dbg=(PROFB + 0x100000) * CFG["DBG"], nt=" nt" if CFG["NT"] & 2 else "", st=" sc1" if CFG["NT"] & 4 else "", st2=" sc1" if CFG["NT"] & 8 else "")
    a.begin_kernel("main_kernel")
    a("s_cmp_ge_u32 s2, 256\ns_cbranch_scc1 END")
    a("s_load_dwordx4 s[20:23], s[0:1], 40\ns_load_dwordx2 s[24:25], s[0:1], 64\ns_load_dwordx2 s[26:27], s[0:1], 80")
    a("v_lshrrev_b32 v1, 6, v0\nv_and_b32 v0, 63, v0\nv_readfirstlane_b32 s13, v1")
    a("v_lshrrev_b32 v1, 4, v0\nv_and_b32 v2, 15, v0\nv_lshlrev_b32 v3, 4, v0")
    a(f"s_mov_b32 s12, {IT0}\ns_mov_b32 s14, 0\ns_mov_b32 s52, {CNT}\ns_mov_b32 s62, 0")
    a("s_and_b32 s15, s2, 7\ns_lshr_b32 s53, s2, 3\ns_lshr_b32 s16, s15, 1\ns_and_b32 s17, s15, 1")
    a("s_lshl_b32 s48, s16, 2\ns_lshr_b32 s18, s53, 3\ns_add_u32 s48, s48, s18\ns_lshl_b32 s49, s17, 3\ns_and_b32 s18, s53, 7\ns_add_u32 s49, s49, s18")
    a("s_lshl_b32 s50, s16, 3\ns_lshr_b32 s18, s53, 2\ns_add_u32 s50, s50, s18\ns_lshl_b32 s51, s17, 2\ns_and_b32 s18, s53, 3\ns_add_u32 s51, s51, s18")
    a("s_waitcnt lgkmcnt(0)")
    a.srd(4, 26, 0x10000000)
    if CFG["PROF"]: a("s_memrealtime s[60:61]\ns_waitcnt lgkmcnt(0)\nv_writelane_b32 v250, s60, 62")
    stamp(a, force=True)
    a("s_cmp_ge_u32 s13, 6\ns_cbranch_scc1 LDB\ns_cmp_ge_u32 s13, 4\ns_cbranch_scc1 LDA")
    a("C_loop:"); a.fence(2)
    gbar(a, setup1, True)
    cons1(a); cons25(a, "2"); cons3(a); cons25(a, "5")
    a.hist = []; loader(a, "A"); a.hist = []; loader(a, "B")
    a("FINL:")
    if CFG["PROF"]: a("v_mov_b32 v250, v8")
    a("FIN:"); a.fence(4)
    a("s_waitcnt vmcnt(0)")
    if CFG["PROF"]:
        stamp(a)
        a("s_memrealtime s[60:61]\ns_waitcnt lgkmcnt(0)\nv_writelane_b32 v250, s60, 63")
        a(f"s_lshl_b32 s60, s2, 3\ns_add_u32 s60, s60, s13\ns_lshl_b32 s60, s60, 8\ns_add_u32 s60, s60, {PROFB}")
        a("v_lshlrev_b32 v251, 2, v0\nbuffer_store_dword v250, v251, s[4:7], s60 offen")
    if CFG["DBG"]:
        a("s_cmp_lg_u32 s2, 77\ns_cbranch_scc1 END\ns_cmp_lg_u32 s13, 0\ns_cbranch_scc1 END\ns_load_dwordx2 s[20:21], s[0:1], 72\ns_waitcnt lgkmcnt(0)")
        a.srd(8, 20, 256)
        a(f"buffer_load_dword v10, off, s[4:7], 0 offset:0 sc1\nv_mov_b32 v11, {PROFB + 0x100000}\nbuffer_load_dword v10, v11, s[4:7], 0 offen sc1\nv_readlane_b32 s30, v250, 0\ns_waitcnt vmcnt(0)\nv_readfirstlane_b32 s31, v10\ns_sub_u32 s31, s30, s31\nv_writelane_b32 v251, s31, 0")
        a(f"v_lshrrev_b32 v12, 2, v0\nv_mul_u32_u24 v12, {37*16}, v12\nv_and_b32 v13, 3, v0\nv_lshl_add_u32 v12, v13, 2, v12\nv_add_u32 v12, {PROFB + 0x100000 + 64 - 37*16 + 16}, v12\nv_max_u32 v12, {PROFB}, v12\nbuffer_load_dword v12, v12, s[4:7], 0 offen sc1\ns_waitcnt vmcnt(0)\nv_sub_u32 v12, s30, v12\nv_cmp_lt_u32 vcc, 3, v0\nv_cndmask_b32 v251, v251, v12, vcc")
        for k, idx in enumerate([2, 3, 51]):
            a(f"v_readlane_b32 s31, v250, {idx}\ns_sub_u32 s31, s31, s30\nv_writelane_b32 v251, s31, {k+1}")
        a("v_lshlrev_b32 v11, 2, v0\ns_mov_b64 exec, 0xffff\nbuffer_store_dword v251, v11, s[8:11], 0 offen")
    a("END:\ns_endpgm\nMAIN_END:")
    a.end_kernel("main_kernel", 256, sgpr=80)
    return a

if __name__ == "__main__":
    out = sys.argv[1] if len(sys.argv) > 1 else "mega.s"
    for kv in sys.argv[2:]:
        k, v = kv.split("="); CFG[k] = int(v)
    a = build()
    open(out, "w").write(a.text())
    print("lines", len(a.lines), "nops", a.nops_added, "bars", len(BARS))
    if CFG.get("SHOW"):
        for k in "DW":
            for x in ALLOC[k]: print(k, x["q"], x["n"], x["addr"]//KB, "after", bname(x["after"]), "rel", bname(x["rel"]))
```

```python
from asmlib import *
from layout import *

NJOBS = 230
import struct
def emit_k0(a, name="k0_kernel", code_prefetch=None, touch=0, dbg=0, nt="", st="", st2=""):
    a.begin_kernel(name)
    a(f"s_cmp_ge_u32 s2, {488 if touch else NJOBS}\ns_cbranch_scc1 K0_end")
    if dbg: a("s_memrealtime s[60:61]")
    a("s_load_dwordx16 s[16:31], s[0:1], 0\ns_load_dwordx2 s[32:33], s[0:1], 80")
    a("v_lshrrev_b32 v1, 6, v0\nv_and_b32 v0, 63, v0")
    a("v_readfirstlane_b32 s13, v1")
    a("v_lshrrev_b32 v2, 4, v0\nv_and_b32 v3, 15, v0")
    a("v_lshlrev_b32 v4, 4, v0")
    a("s_waitcnt lgkmcnt(0)")
    if dbg: a("s_memrealtime s[58:59]")
    a.srd(4, 32, 0x10000000)
    a("s_mov_b32 s11, 0x00020000")
    if touch: a("s_cmp_ge_u32 s2, 230\ns_cbranch_scc1 K0_touch")
    a("s_cmp_ge_u32 s2, 228\ns_cbranch_scc1 K0_zero")
    a("s_cmp_ge_u32 s2, 164\ns_cbranch_scc1 K0_x")
    a("v_lshrrev_b32 v5, 3, v0\nv_and_b32 v6, 7, v0\nv_lshrrev_b32 v7, 1, v5\nv_and_b32 v7, 3, v7\nv_lshlrev_b32 v7, 1, v7\nv_xor_b32 v6, v6, v7\nv_lshlrev_b32 v6, 4, v6")
    a("s_cmp_ge_u32 s2, 134\ns_cbranch_scc1 K0_wout")
    a("s_cmp_ge_u32 s2, 114\ns_cbranch_scc1 K0_wo")
    a("s_cmp_ge_u32 s2, 60\ns_cbranch_scc1 K0_win")

    def rowmap(kind):
        if kind == "x":
            a("s_lshr_b32 s44, s42, 4\ns_lshr_b32 s45, s44, 2\ns_add_u32 s45, s45, s44")
            a("s_mul_i32 s46, s44, 5\ns_sub_u32 s46, s46, 156\ns_cmp_lt_u32 s44, 32\ns_cselect_b32 s45, s45, s46")
            a("s_lshl_b32 s45, s45, 4\ns_and_b32 s46, s42, 8\ns_add_u32 s43, s45, s46")
        elif kind == "o":
            a("s_lshr_b32 s44, s42, 5\ns_lshl_b32 s44, s44, 3\ns_add_u32 s44, s44, s42")
            a(f"s_mul_i32 s45, s42, 5\ns_sub_u32 s45, s45, {5*512-32}\ns_cmp_lt_u32 s42, 512\ns_cselect_b32 s43, s44, s45")
        elif kind == "u":
            a("s_lshr_b32 s44, s42, 4\ns_mul_i32 s45, s44, 43\ns_lshr_b32 s45, s45, 8")
            a("s_add_u32 s46, s44, s45\ns_lshr_b32 s45, s45, 2\ns_sub_u32 s46, s46, s45")
            a("s_sub_u32 s47, s44, 48\ns_cmp_ge_u32 s44, 51\ns_cselect_b32 s45, 1, 0\ns_add_u32 s47, s47, s45")
            a("s_mul_i32 s47, s47, 7\ns_sub_u32 s47, s47, s45\ns_add_u32 s47, s47, 6")
            a("s_cmp_lt_u32 s44, 48\ns_cselect_b32 s45, s46, s47")
            a("s_lshl_b32 s45, s45, 4\ns_and_b32 s46, s42, 8\ns_add_u32 s43, s45, s46")
    def dma(kind, pitch, nper):
        a(f"s_mov_b32 s34, {pitch}\nv_mul_lo_u32 v8, v5, s34\nv_add_u32 v8, v8, v6")
        a("s_lshl_b32 s48, s13, 3\ns_add_u32 s48, s48, s36\ns_lshl_b32 s49, s13, 10")
        lab = a.label("KD")
        a(f"s_mov_b32 s42, s48\ns_mov_b32 m0, s49\ns_add_u32 s48, s48, {32*nper}\n{lab}:")
        rowmap(kind)
        a(f"s_mul_i32 s43, s43, {pitch}\ns_add_u32 s43, s43, s35")
        a(f"buffer_load_dwordx4 v8, s[8:11], s43 offen{nt} lds")
        a(f"s_add_u32 s42, s42, 32\ns_add_u32 s49, s49, 4096\ns_mov_b32 m0, s49\ns_cmp_lt_u32 s42, s48\ns_cbranch_scc1 {lab}")
        if dbg: a("s_memrealtime s[62:63]")
    def src(b, nbytes):
        a(f"s_mov_b32 s8, s{b}\ns_and_b32 s9, s{b+1}, 0xffff\ns_mov_b32 s10, {nbytes}")

    src(18, 640*1920*2)
    a("s_lshr_b32 s50, s2, 1\ns_and_b32 s51, s2, 1")
    a("s_lshl_b32 s35, s50, 7\ns_mul_i32 s36, s51, 320")
    dma("x", 3840, 10)
    a("s_mul_i32 s52, s50, 26\ns_lshr_b32 s52, s52, 8")
    a("s_mul_i32 s53, s52, 640\ns_lshl_b32 s54, s50, 6\ns_sub_u32 s54, s54, s53\ns_lshl_b32 s53, s13, 4\ns_add_u32 s54, s54, s53")
    a("v_add_u32 v10, s54, v3")
    a("v_mul_u32_u24 v11, 1639, v10\nv_lshrrev_b32 v11, 16, v11")
    a("v_mul_u32_u24 v12, 40, v11\nv_sub_u32 v12, v10, v12")
    a("v_add_u32 v13, 80, v12")
    a("v_cmp_le_u32 vcc, 20, v12\nv_cndmask_b32 v14, 0, 1, vcc")
    a("v_mul_u32_u24 v15, 20, v14\nv_sub_u32 v15, v12, v15")
    a("s_lshl_b32 s53, s52, 4\nv_lshl_add_u32 v16, v14, 5, v15\nv_add_u32 v16, s53, v16")
    a("s_lshl_b32 s53, s52, 3\ns_add_u32 s53, s53, 48\nv_lshl_add_u32 v17, v14, 2, v15\nv_add_u32 v17, s53, v17")
    a("v_cmp_gt_u32 vcc, 16, v15\nv_cndmask_b32 v16, v17, v16, vcc")
    a("s_cmp_eq_u32 s52, 2\ns_cselect_b64 vcc, -1, 0\nv_cndmask_b32 v16, v16, v13, vcc")
    a("v_lshrrev_b32 v13, 4, v16\nv_and_b32 v14, 15, v16\nv_lshlrev_b32 v13, 10, v13\nv_lshl_add_u32 v13, v14, 4, v13\nv_lshl_add_u32 v13, v2, 8, v13")
    a(f"s_mov_b32 s53, {160*KB}\nv_mul_lo_u32 v9, v11, s53\nv_add_u32 v9, v9, v13")
    a("v_lshl_add_u32 v18, v11, 7, v16\nv_lshlrev_b32 v18, 2, v18")
    a(f"s_mul_i32 s38, s51, {80*KB}\ns_add_u32 s38, s38, {WQ}\ns_mov_b32 s39, {8*KB}\ns_mov_b32 s40, 10")
    a(f"s_lshl_b32 s41, s51, 13\ns_add_u32 s41, s41, {CSQ}")
    a("s_branch K0_common")
    a("K0_win:")
    src(24, 640*1728*2)
    a("s_sub_u32 s50, s2, 60\ns_and_b32 s51, s50, 1\ns_lshr_b32 s50, s50, 1")
    a("s_lshl_b32 s35, s50, 7\ns_mul_i32 s36, s51, 320")
    dma("x", 3456, 10)
    a("s_lshl_b32 s52, s50, 2\ns_add_u32 s52, s52, s13")
    a("s_cmp_ge_u32 s52, 54\ns_cselect_b32 s53, 54, 0\ns_cselect_b32 s54, 8, 0\ns_sub_u32 s52, s52, s53")
    a("s_cmp_ge_u32 s52, 27\ns_cselect_b32 s53, 27, 0\ns_cselect_b32 s55, 4, 0\ns_sub_u32 s52, s52, s53\ns_add_u32 s54, s54, s55")
    a("s_mul_i32 s53, s52, 37\ns_lshr_b32 s53, s53, 8\ns_add_u32 s54, s54, s53\ns_mul_i32 s53, s53, 7\ns_sub_u32 s52, s52, s53")
    a(f"s_mul_i32 s38, s54, {140*KB}\ns_lshl_b32 s53, s52, 10\ns_add_u32 s38, s38, s53\ns_mul_i32 s53, s51, {70*KB}\ns_add_u32 s38, s38, s53\ns_add_u32 s38, s38, {WI}")
    a(f"s_mov_b32 s39, {7*KB}\ns_mov_b32 s40, 10\nv_mov_b32 v9, v4\nv_lshlrev_b32 v18, 2, v3")
    a(f"s_lshl_b32 s41, s51, 13\ns_lshl_b32 s53, s54, 9\ns_add_u32 s41, s41, s53\ns_lshl_b32 s53, s52, 6\ns_add_u32 s41, s41, s53\ns_add_u32 s41, s41, {CSI}")
    a("s_branch K0_common")
    a("K0_wo:")
    src(20, 640*640*2)
    a("s_sub_u32 s50, s2, 114\ns_and_b32 s51, s50, 1\ns_lshr_b32 s50, s50, 1")
    a("s_lshl_b32 s35, s50, 7\ns_mul_i32 s36, s51, 320")
    dma("o", 1280, 10)
    a("s_lshl_b32 s52, s50, 2\ns_add_u32 s52, s52, s13\ns_mul_i32 s54, s52, 52\ns_lshr_b32 s54, s54, 8\ns_mul_i32 s53, s54, 5\ns_sub_u32 s52, s52, s53")
    a(f"s_mul_i32 s38, s54, {100*KB}\ns_lshl_b32 s53, s52, 10\ns_add_u32 s38, s38, s53\ns_mul_i32 s53, s51, {50*KB}\ns_add_u32 s38, s38, s53\ns_add_u32 s38, s38, {WO}")
    a(f"s_mov_b32 s39, {5*KB}\ns_mov_b32 s40, 10\nv_mov_b32 v9, v4\nv_mov_b32 v18, 0\ns_mov_b32 s41, -1")
    a("s_branch K0_common")
    a("K0_wout:")
    src(30, 864*640*2)
    a("s_sub_u32 s51, s2, 134\ns_mul_i32 s50, s51, 86\ns_lshr_b32 s50, s50, 8\ns_mul_i32 s53, s50, 3\ns_sub_u32 s51, s51, s53")
    a("s_lshl_b32 s35, s50, 7\ns_mul_i32 s36, s51, 288")
    dma("u", 1280, 9)
    a("s_lshl_b32 s52, s50, 2\ns_add_u32 s52, s52, s13\ns_mul_i32 s54, s52, 52\ns_lshr_b32 s54, s54, 8\ns_mul_i32 s53, s54, 5\ns_sub_u32 s52, s52, s53")
    a(f"s_mul_i32 s38, s54, {135*KB}\ns_lshl_b32 s53, s52, 10\ns_add_u32 s38, s38, s53\ns_mul_i32 s53, s51, {45*KB}\ns_add_u32 s38, s38, s53\ns_add_u32 s38, s38, {WT}")
    a(f"s_mov_b32 s39, {5*KB}\ns_mov_b32 s40, 9\nv_mov_b32 v9, v4\nv_mov_b32 v18, 0\ns_mov_b32 s41, -1")
    a("K0_common:")
    a.fence(4)
    a("v_lshrrev_b32 v21, 2, v3\nv_lshl_add_u32 v21, v2, 2, v21")
    a("v_lshrrev_b32 v22, 1, v21\nv_and_b32 v22, 3, v22\nv_lshlrev_b32 v22, 1, v22")
    a("v_bfe_u32 v23, v3, 1, 1\ns_lshl_b32 s53, s13, 1\nv_add_u32 v23, s53, v23\nv_xor_b32 v23, v23, v22")
    a("v_lshlrev_b32 v20, 7, v21\nv_lshl_add_u32 v20, v23, 4, v20\nv_and_b32 v23, 1, v3\nv_lshl_add_u32 v20, v23, 3, v20")
    a("v_mov_b32 v19, 0\nv_mov_b32 v24, 0x3f803f80")
    if code_prefetch: code_prefetch(a, 25, 26)
    if dbg: a("s_memrealtime s[56:57]")
    a("s_waitcnt vmcnt(0)\ns_barrier")
    if dbg: a("s_waitcnt lgkmcnt(0)")
    for ks in range(10):
        a(f"ds_read_b64_tr_b16 v[{32+4*ks}:{33+4*ks}], v20 offset:{ks*4096}")
        a(f"ds_read_b64_tr_b16 v[{34+4*ks}:{35+4*ks}], v20 offset:{ks*4096+2048}")
    for ks in range(10):
        if ks == 9:
            a("s_cmp_lt_u32 s40, 10\ns_cbranch_scc1 K0_end")
        a(f"s_waitcnt lgkmcnt({min(15, 18-2*ks)})")
        a(f"buffer_store_dwordx4 v[{32+4*ks}:{35+4*ks}], v9, s[4:7], s38 offen{st}\ns_add_u32 s38, s38, s39")
        for j in range(4):
            a(f"v_dot2_f32_bf16 v19, v{32+4*ks+j}, v24, v19")
    a("s_cmp_eq_u32 s41, -1\ns_cbranch_scc1 K0_end")
    a("v_mov_b32 v21, v19\nv_permlane32_swap_b32 v21, v19\nv_add_f32 v19, v19, v21")
    a("v_mov_b32 v21, v19\nv_permlane16_swap_b32 v21, v19\nv_add_f32 v19, v19, v21")
    a(f"s_mov_b64 exec, 0xffff\nbuffer_store_dword v19, v18, s[4:7], s41 offen{st2}")
    if dbg: a(f"s_waitcnt vmcnt(0)\nv_mov_b32 v8, s60\nv_mov_b32 v9, s56\nv_mov_b32 v10, s58\nv_mov_b32 v11, s62\ns_lshl_b32 s38, s2, 4\nv_mov_b32 v12, {dbg+64}\ns_mov_b64 exec, 1\nbuffer_store_dwordx4 v[8:11], v12, s[4:7], s38 offen")
    a("s_endpgm")
    a("K0_x:")
    src(16, 2048*640*2)
    a(f"s_sub_u32 s50, s2, 164\ns_mul_i32 s35, s50, {32*1280}\ns_lshl_b32 s49, s13, 10\ns_lshl_b32 s48, s13, 6")
    a("v_add_u32 v5, s48, v0")
    a(f"s_add_u32 s48, s49, {10*4096}\nK0_xl:\nv_mul_u32_u24 v7, 52429, v5\nv_lshrrev_b32 v7, 22, v7\ns_mov_b32 m0, s49")
    a("v_and_b32 v8, 15, v7\nv_xor_b32 v8, v8, v5\nv_lshlrev_b32 v8, 4, v8\nv_add_u32 v5, 256, v5")
    a(f"buffer_load_dwordx4 v8, s[8:11], s35 offen{nt} lds")
    a("s_add_u32 s49, s49, 4096\ns_cmp_lt_u32 s49, s48\ns_cbranch_scc1 K0_xl")
    a("s_and_b32 s51, s13, 1\ns_lshr_b32 s52, s13, 1")
    a("s_lshl_b32 s53, s51, 4\nv_add_u32 v9, s53, v3\nv_mul_u32_u24 v10, 1280, v9\nv_and_b32 v11, 1, v2\nv_lshl_add_u32 v10, v11, 3, v10")
    a("v_lshrrev_b32 v11, 1, v2\nv_xor_b32 v11, v11, v3\nv_lshlrev_b32 v11, 4, v11")
    a("v_mov_b32 v18, 0\nv_mov_b32 v19, 0\nv_mov_b32 v24, 0x3f803f80")
    a(f"s_mul_i32 s38, s52, {10*128*KB}\ns_lshl_b32 s53, s50, 11\ns_add_u32 s38, s38, s53\ns_lshl_b32 s53, s51, 10\ns_add_u32 s38, s38, s53\ns_add_u32 s38, s38, {IT0+XIN}")
    a("s_mul_i32 s54, s52, 20")
    a("s_sub_u32 s53, 4, s52\nv_lshlrev_b32 v13, s53, v0\ns_mul_i32 s53, s52, 504\ns_add_u32 s53, s53, 8\nv_add_u32 v14, s53, v13")
    if code_prefetch: code_prefetch(a, 25, 26)
    def T(vt): return 32*(vt + (vt >> 2) if vt < 32 else 5*vt - 156)
    a("s_cmp_eq_u32 s52, 0\ns_cbranch_scc0 K0_xa1")
    for sh in range(2):
        if sh: a("s_branch K0_xa2\nK0_xa1:")
        for j in range(20):
            t = T(20*sh + j)
            a(f"v_xor_b32 v{72+j}, {t & 0xff}, v11\nv_add3_u32 v{72+j}, v{72+j}, v10, {t & ~0xff}" if (t & ~0xff) <= 64 else f"v_xor_b32 v{72+j}, {t}, v11\nv_add_u32 v{72+j}, v{72+j}, v10")
    a("K0_xa2:")
    a("s_waitcnt vmcnt(0)\ns_barrier")
    for j in range(20): a(f"ds_read_b64 v[{32+2*j}:{33+2*j}], v{72+j}")
    for ks in range(10):
        a(f"s_waitcnt lgkmcnt({min(15, 18-2*ks)})")
        if ks < 6: a(f"buffer_store_dwordx4 v[{32+4*ks}:{35+4*ks}], v4, s[4:7], s38 offen{st}")
        else: a(f"buffer_store_dwordx2 v[{32+4*ks}:{33+4*ks}], v13, s[4:7], s38 offen{st2}\nbuffer_store_dwordx2 v[{34+4*ks}:{35+4*ks}], v14, s[4:7], s38 offen{st2}")
        a(f"s_add_u32 s38, s38, {128*KB}")
        for j in range(4):
            a(f"v_dot2_f32_bf16 v18, v{32+4*ks+j}, v24, v18")
            a(f"v_dot2_f32_bf16 v19, v{32+4*ks+j}, v{32+4*ks+j}, v19")
    a("v_lshlrev_b32 v12, 14, v2\nv_lshl_add_u32 v12, v9, 3, v12")
    a(f"s_lshl_b32 s38, s52, 16\ns_lshl_b32 s53, s50, 8\ns_add_u32 s38, s38, s53\ns_add_u32 s38, s38, {IT0+STIN}")
    a(f"buffer_store_dwordx2 v[18:19], v12, s[4:7], s38 offen{st2}")
    a("s_endpgm")
    a("K0_zero:")
    if dbg: a(f"v_mov_b32 v8, s60\nv_mov_b32 v9, {dbg}\nbuffer_store_dword v8, v9, s[4:7], 0 offen")
    src(28, 4096)
    a("s_lshl_b32 s41, s13, 10\nbuffer_load_dwordx4 v[12:15], v4, s[8:11], s41 offen")
    a("v_mov_b32 v8, 0\nv_mov_b32 v9, 0\nv_mov_b32 v10, 0\nv_mov_b32 v11, 0")
    a(f"s_sub_u32 s50, s2, 228\ns_mul_i32 s38, s50, {ITS}\ns_add_u32 s38, s38, {IT0+ZS}\ns_lshl_b32 s53, s13, 12\ns_add_u32 s38, s38, s53")
    a(f"s_lshl_b32 s39, s50, 15\ns_add_u32 s39, s39, {CNT}\ns_lshl_b32 s53, s13, 13\ns_add_u32 s39, s39, s53\ns_add_u32 s40, s39, 4096")
    for j in range(4):
        a(f"buffer_store_dwordx4 v[8:11], v4, s[4:7], s38 offen offset:{j*1024}{st2}")
        a(f"buffer_store_dwordx4 v[8:11], v4, s[4:7], s39 offen offset:{j*1024}{st2}")
        a(f"buffer_store_dwordx4 v[8:11], v4, s[4:7], s40 offen offset:{j*1024}{st2}")
    a(f"s_add_u32 s41, s41, {BSP}\ns_waitcnt vmcnt(12)\nbuffer_store_dwordx4 v[12:15], v4, s[4:7], s41 offen{st2}")
    if touch:
        a("s_endpgm\nK0_touch:\ns_cmp_lt_u32 s2, 232\ns_cbranch_scc1 K0_end")
        src(26, 2048*2048*2)
        a("s_sub_u32 s40, s2, 232\ns_and_b32 s41, s40, 7\ns_lshr_b32 s42, s40, 3\ns_lshr_b32 s43, s41, 1\ns_lshl_b32 s43, s43, 3\ns_lshr_b32 s44, s42, 2\ns_add_u32 s43, s43, s44")
        a("s_and_b32 s41, s41, 1\ns_lshl_b32 s41, s41, 2\ns_and_b32 s42, s42, 3\ns_add_u32 s41, s41, s42\ns_lshl_b32 s43, s43, 18\ns_lshl_b32 s41, s41, 15\ns_add_u32 s43, s43, s41\ns_lshl_b32 s41, s13, 13\ns_add_u32 s43, s43, s41\ns_add_u32 s44, s43, 4096")
        if touch > 2: a(f"s_sleep {touch}")
        for j in range(8): a(f"buffer_load_dwordx4 v[{8+4*j}:{11+4*j}], v4, s[8:11], s{43 + j//4} offen offset:{(j%4)*1024}{nt if touch == 2 else str()}")
        a("s_waitcnt vmcnt(0)")
    a("K0_end:\ns_endpgm")
    a.end_kernel(name, 96, sgpr=72)

if __name__ == "__main__":
    a = Asm()
    a.launch("k0_kernel", (NJOBS,1,1), (256,1,1), lds=40960)
    emit_k0(a)
    open("k0.s","w").write(a.text())
```

```python
import sys, math, struct
from asmlib import *
from layout import *
from k0 import emit_k0, NJOBS

LDS_TOTAL = 163840
CFG = dict(XK=0, PX=1, SL4=1, SP=0, STC=8, DBG=0, ES=0, DW=1, NT=6, TSP=2, DEF=0, DZP=2, G4=10, TBL=0, PD=3, PS=2, P04=4, WS2=4, WS3=1, CP=4, PG=6, LT=6, ROLL=1, RT=0, WG=2, FLAG=0, L1=27, RPM1=4, RPM3=4, SUK=40, STL=5, PQ=1, PIT=1, ST=0, HOLD=1, ILV=0, PRIO=0, XA=0, XB=0, XC=0, XD=0, RPM4=4, NOWSP=0, PROF=0, TOUCH=0, ROT=1, POLL4=2, SLEEP=1, WSPL=9, SIG3=2, PKMUL=1, CODEPF=1, DSC1=1, PER=2, P0=4, P0S=7, DT=0)
PROFB = 200*1024*1024
def f2u(x): return struct.unpack("<I", struct.pack("<f", x))[0]

PH = {
    "1":  dict(nks=20, nD=9, nW=8, lag=0, D=(20, 4), W=(96, 4)),
    "2":  dict(nks=20, nD=4, nW=5, lag=1, D=(20, 7), W=(80, 8)),
    "3a": dict(nks=20, nD=4, nW=7, lag=0, D=(20, 10), W=(104, 4)),
    "3b": dict(nks=20, nD=0, nW=7, lag=0, D=None, W=(104, 4)),
    "4":  dict(nks=64, nD=7, nW=4, lag=1, D=(20, 6), W=(112, 6)),
    "5":  dict(nks=27, nD=4, nW=5, lag=1, D=(20, 7), W=(80, 8)),
}
ORDER = ["1", "2", "3a", "3b", "4", "5"]
RS0, MU0 = 4096, 8192
NM0, CS0, CS1, EX0 = 768, 1536, 2048, 3072
NROT = {'1': 8, '2': 8, '3a': 8, '3b': 8, '4': 32, '5': 12}
SPLIT = {'1': 16, '2': 16, '3a': 16, '3b': 16, '4': 99, '5': 24}
LSCHED = [(("1",7),2), (("1",8),2), (("1",9),2), (("1",10),10), (("1","X"),10)]
CSCHED = [(("1","G"),6), (("2",10),6), (("2","G"),6)] + [(("3a",n),1) for n in range(1,9)]
CA, CB, CC, CD, CE = 0, 16, 48, 80, 112

def _b(x): return x if isinstance(x, tuple) else ("1", x)
WSS = {
  1: ({1: [0,1], 2: [2,3], 3: [4,5], 4: [6,7]}, {6: [0,1], 7: [2,3], 9: [4,5], 10: [6,7]}),
  2: ({2: [0,1], 5: [2,3], 10: [4,5], "G": [6,7]}, {6: [0,1], 9: [2,3], "G": [4,5], ("2",8): [6,7]}),
  3: ({1: [0,1,2,3], 10: [4,5,6,7]}, {6: [0,1], 7: [2,3], "G": [4,5,6,7]}),
  4: ({0: [0,1,2,3,4,5,6,7]}, {6: [0,1], 7: [2,3], 9: [4,5], 10: [6,7]}),
  5: ({1: [0,1], 3: [2,3], 9: [4,5], ("2",9): [6,7]}, {6: [0,1], 7: [2,3], "G": [4,5], ("3a",2): [6], ("3a",3): [7]}),
  6: ({3: [0,1,2,3], 9: [4,5,6,7]}, {7: [0,1], 9: [2,3], "G": [4,5,6,7]}),
  8: ({-1: [0,1,2,3,4,5,6,7]}, {6: [0,1], 7: [2,3], 9: [4,5], 10: [6,7]}),
  9: ({-1: [0,1,2,3,4,5,6,7]}, {4: [0,1], 6: [2,3], 7: [4,5], 9: [6,7]}),
  10: ({-1: [0,1,2,3,4,5,6,7]}, {9: [0,1,2,3], 10: [4,5,6,7]}),
  7: ({6: [0,1,2,3], 7: [4,5,6,7]}, {10: [0,1,2,3], "X": [4,5,6,7]}),
}
OVR = {("4","W",0): 104*KB}
BARS = []; BIDX = {}
ALLOC = {"D": [], "W": []}
def plan():
    BARS.clear(); BIDX.clear(); ALLOC["D"].clear(); ALLOC["W"].clear()
    for q in ORDER:
        ph = PH[q]; ph["nst"] = (ph["nks"] + 1) // 2
        for n in range(ph["nst"] + 1): BARS.append((q, n))
        if q == "1": BARS.append((q, "X"))
        if q in ("1", "2", "4", "5"): BARS.append((q, "G")); BARS.append((q, "F"))
    for i, b in enumerate(BARS): BIDX[b] = i
    NB = len(BARS)
    gate = {"1": -1, "2": BIDX[("1","F")], "3a": BIDX[("2","F")], "4": BIDX[("3b", CFG["G4"])], "5": BIDX[("4","F")]}
    def rel(q, n, kind):
        if q == "3a" and kind == "D": q = "3b"
        return BIDX[(q, min(n + 1 + PH[q]["lag"], PH[q]["nst"]))]
    rot = {(q, k): 0 for q in ORDER for k in "DW"}
    def build():
        al = {"D": [], "W": []}
        for q in ORDER:
            ph = PH[q]
            for k in "DW":
                if ph[k] is None: continue
                base, ns = ph[k]; sz = 2*ph["n"+k]*KB
                for n in range(ph["nst"]):
                    al[k].append(dict(q=q, n=n, k=k, addr=OVR.get((q,k,n), base*KB + sz*((n + rot[(q,k)]) % ns)), size=sz, use=BIDX[(q,n)], rel=rel(q,n,k)))
        allv = al["D"] + al["W"]
        for k in "DW":
            prev = -NB; used = {}
            for x in al[k]:
                e = -NB
                for y in allv:
                    if y is x or not (y["addr"] < x["addr"] + x["size"] and x["addr"] < y["addr"] + y["size"]):
                        if y is x: e = max(e, y["rel"] - NB)
                        continue
                    if y["use"] < x["use"]: e = max(e, y["rel"])
                    else:
                        assert y["use"] > x["use"], (x, y)
                        e = max(e, y["rel"] - NB)
                if k == "D": e = max(e, gate[x["q"]])
                e = max(e, prev)
                def cap(b):
                    if BARS[b % NB] == ("3b", CFG["G4"]) and k == "D": return CFG["P04"]
                    if BARS[b % NB][1] == "F": return (CFG["P0"] if x["q"] == "1" else CFG["P0S"]) if k == "D" else 0
                    if CFG["WG"] and BARS[b % NB] in (("2", 10), ("4", 32), ("5", 14)): return 0
                    if CFG["WG"] and BARS[b % NB][1] == "G" and (CFG["WG"] > 1 or BARS[b % NB][0] != "1"): return CFG["PG"]
                    if BARS[b % NB][1] == "G" or (CFG["HOLD"] and BARS[b % NB] in (("1", 10), ("1", "X"))): return 0
                    return CFG["PER"]
                while used.get(e % NB, 0) >= cap(e): e += 1
                used[e % NB] = used.get(e % NB, 0) + 1
                prev = e
                x["after"] = e
            last = al[k][-1]["after"] - NB
            for x in al[k]: x["after"] = max(x["after"], last)
            for x in al[k]: assert x["after"] < x["use"], x
        return al
    def cost(al): return sum(max(0, CFG["LT"] - (x["use"] - x["after"]))**2 * 1000 + x["after"] for k in "DW" for x in al[k])
    import itertools
    keys = [k for k in rot if PH[k[0]][k[1]] is not None]
    def tryset(ks):
        best = None
        for rs_ in itertools.product(*[range(PH[k[0]][k[1]][1]) for k in ks]):
            for k, r in zip(ks, rs_): rot[k] = r
            try: c = cost(build())
            except AssertionError: continue
            if best is None or c < best[0]: best = (c, rs_)
        for k, r in zip(ks, best[1]): rot[k] = r
        return best[0]
    import os, pickle
    ck = repr((sorted((q, sorted((k, v) for k, v in PH[q].items() if k in ("nks","nD","nW","lag","D","W"))) for q in ORDER), sorted(OVR.items()), [CFG[k] for k in ("LT","P0","P0S","WG","HOLD","PER","PG","P04","G4")]))
    cache = pickle.load(open("plan.pkl", "rb")) if os.path.exists("plan.pkl") else {}
    if ck in cache: rot.update(cache[ck])
    else:
        wk = [k for k in keys if k[1] == "W"]
        for _ in range(2):
            for k in keys: tryset([k])
            for i in range(len(wk)):
                tryset([wk[i], wk[(i+1) % len(wk)]])
                dk = (wk[i][0], "D")
                if dk in keys: tryset([dk, wk[(i+1) % len(wk)]])
        cache[ck] = dict(rot); pickle.dump(cache, open("plan.pkl", "wb"))
    al = build()
    for k in "DW":
        ALLOC[k] += al[k]
        for x in al[k]: PH[x["q"]].setdefault("addr"+k, {})[x["n"]] = x["addr"]
    PH["3b"]["addrD"] = PH["3a"]["addrD"]; PH["3b"]["nD"] = 4
def bname(i):
    NB = len(BARS); return ("prev:" if i < 0 else "") + "%s.%s" % BARS[i % NB]

class LG:
    def __init__(s, a): s.a = a; s.out = []
    def op(s, text, regs=()):
        s.a(text); s.out.append(set(regs))
    def need(s, regs):
        regs = set(regs); idx = -1
        for k, r in enumerate(s.out):
            if r & regs: idx = k
        if idx >= 0:
            n = min(len(s.out) - 1 - idx, 15)
            s.a(f"s_waitcnt lgkmcnt({n})")
            s.out = s.out[len(s.out) - n:] if n else []
    def drain(s):
        if s.out: s.a("s_waitcnt lgkmcnt(0)"); s.out = []

def R(b, n): return range(b, b + n)
def mfma(d, A, B, C=None, ty="bf16"):
    c = vr(d, 4) if C is None else C
    return f"v_mfma_f32_16x16x32_{ty} {vr(d,4)}, {vr(A,4)}, {vr(B,4)}, {c}"
def stamp2(a, q, r=(250, 251)):
    if CFG["PROF"] == 2 and q in PQ[CFG["PQ"]]:
        lab = a.label("ST2")
        a(f"s_cmp_eq_u32 s14, {CFG['PIT']}\ns_cbranch_scc0 {lab}\ns_memtime s[60:61]\ns_mov_b32 m0, s62\ns_waitcnt lgkmcnt(0)\nv_writelane_b32 v{r[0]}, s60, m0\ns_add_u32 s62, s62, 1\n{lab}:")
PQ = {1: ("1", "2"), 3: ("3a", "3b"), 5: ("5", ), 4: ("4",)}
def stamp(a, lg=None, r=(250, 251), force=False):
    if CFG["PROF"] == 1 or (force and CFG["PROF"]):
        if lg: lg.drain()
        a(f"{'s_memrealtime' if CFG['RT'] else 's_memtime'} s[60:61]\nv_cmp_eq_u32 s[64:65], s62, v0\ns_waitcnt lgkmcnt(0)\nv_mov_b32 v{r[1]}, s60\nv_cndmask_b32 v{r[0]}, v{r[0]}, v{r[1]}, s[64:65]\ns_add_u32 s62, s62, 1")
def mkbase(a, regs, lo, hi, src):
    n = (hi - lo + 65535) // 65536
    assert n <= len(regs), (lo, hi, regs)
    for k in range(n): a(f"v_add_u32 v{regs[k]}, {lo + 65536*k}, v{src}")
    def f(addr):
        assert lo <= addr < hi, (lo, hi, addr)
        return regs[(addr - lo) >> 16], (addr - lo) & 0xffff
    return f
def uaddr(q, which, t, unit):
    ph = PH[q]
    return ph["addr" + which][t // 2] + (t % 2)*ph["n" + which]*KB + unit*KB
def rng(q, which):
    ph = PH[q]; ad = ph["addr" + which].values()
    return min(ad), max(ad) + 2*ph["n" + which]*KB

def loader(a, which):
    NB = len(BARS); al = [x for x in ALLOC["D"] + ALLOC["W"] if not x.get("local")]
    L = "LD" + which
    a(f"{L}:")
    if CFG["PROF"]: a("v_mov_b32 v8, v250")
    a("s_and_b32 s19, s13, 1")
    if CFG["PRIO"]: a(f"s_setprio {CFG['PRIO']}")
    gb = {}; st = {}
    defs = {("D","1"): (f"s_lshl_b32 @, s48, 13\ns_add_u32 @, @, {XIN}", 128*KB),
            ("D","2"): (f"s_lshl_b32 @, s50, 12\ns_add_u32 @, @, {OB}", 128*KB),
            ("D","3a"): (f"s_lshl_b32 @, s50, 12\ns_add_u32 @, @, {XMID}", 128*KB),
            ("D","4"): (f"s_mul_i32 @, s51, {7*KB}\ns_add_u32 @, @, {Z2}", 56*KB),
            ("D","5"): (f"s_lshl_b32 @, s50, 12\ns_add_u32 @, @, {UB}", 128*KB),
            ("W","1"): (f"s_mul_i32 @, s49, {160*KB}\ns_add_u32 @, @, {WQ}", 8*KB),
            ("W","2"): (f"s_mul_i32 @, s51, {100*KB}\ns_add_u32 @, @, {WO}", 5*KB),
            ("W","3a"): (f"s_mul_i32 @, s51, {140*KB}\ns_add_u32 @, @, {WI + 8*140*KB}", 7*KB),
            ("W","3b"): (f"s_mul_i32 @, s51, {140*KB}\ns_add_u32 @, @, {WI}", 7*KB),
            ("W","4"): (f"s_lshl_b32 @, s50, 18\ns_add_u32 @, @, {WSP}", 4*KB),
            ("W","5"): (f"s_mul_i32 @, s51, {135*KB}\ns_add_u32 @, @, {WT}", 5*KB)}
    order = [("W","1"), ("D","1")] + [k for k in defs if k[1] != "1"]
    regs = {k: 30 + j for j, k in enumerate(defs)}
    pof = {4: 41, 5: 42, 7: 43, 8: 44, 9: 45}
    for nU, r in pof.items(): a(f"s_mul_i32 s{r}, s19, {nU*KB}")
    a(f"s_cmp_eq_u32 s48, 0\ns_cselect_b32 s56, 0, {KB}")
    a(f"v_and_b32 v9, 0xffffff7f, v3\ns_and_b32 s66, s51, 3\ns_cmp_eq_u32 s66, 3\ns_cselect_b32 s66, {KB}, 0")
    issued = []; emit = [True]; it = [0]
    cap = [None]
    def A(t):
        if cap[0] is not None: cap[0] += [l for l in t.split("\n") if l.strip()]
        elif emit[0]: a(t)
    def setup(keys):
        for key in keys:
            txt, stride = defs[key]; r = regs[key]
            a(txt.replace("@", f"s{r}")); gb[key] = r; st[key] = stride
            a(f"s_mul_i32 s46, s19, {stride}\ns_add_u32 s{r}, s{r}, s46")
            if key[0] == "D": a(f"s_add_u32 s{r}, s{r}, s12")
    for key in defs: gb[key] = regs[key]; st[key] = defs[key][1]
    def share(k, q, n):
        nU = PH[q]["n" + k]
        big = (k == "D") == (which == "A")
        if q in ("3b", "4"): big = (n % 2 == 0) == (which == "A")
        m = (nU + 1) // 2 if big else nU // 2
        return (0, m) if which == "A" else (nU - m, nU)
    def issue(x):
        k, q, n = x["k"], x["q"], x["n"]; nU = PH[q]["n" + k]; tag = (k, q, n); key = (k, q)
        sc = " sc1" if (k == "D" or q == "4") else ""
        g0 = n*2*st[key]; u, u1 = share(k, q, n)
        halo = (k == "D" and q == "1")
        if halo and u == 0:
            A(f"s_add_u32 m0, s{pof[nU]}, {x['addr']}\ns_add_u32 s54, s{gb[key]}, {g0}\ns_sub_u32 s54, s54, s56")
            A(f"buffer_load_dwordx4 v3, s[4:7], s54 offen{sc} lds"); issued.append(tag)
            u = 1
        assert u1 - u <= 4
        gu = u - 1 if halo else u
        A(f"s_add_u32 m0, s{pof[nU]}, {x['addr'] + u*KB}\ns_add_u32 s54, s{gb[key]}, {g0 + gu*KB}")
        if q == "5" and n == 13: A(f"s_mul_i32 s55, s19, {st[key]}\ns_sub_u32 s54, s54, s55")
        for j in range(u1 - u):
            vo = 9 if (key == ("W","1") and u + j == 7) else 3
            if nU == 7 and u + j == 6: A("s_sub_u32 s54, s54, s66")
            A(f"buffer_load_dwordx4 v{vo}, s[4:7], s54 offen offset:{j*KB}{sc} lds"); issued.append(tag)
    def poll(q):
        lab = f"PL{q}"
        A(f"s_cmp_lg_u32 s19, 0\ns_cbranch_scc1 {lab}_done")
        if q == "1": A(f"s_cmp_eq_u32 s14, 1\ns_cbranch_scc1 {lab}_done")
        if emit[0]: stamp(a, r=(8, 19))
        FL = CFG["FLAG"]
        tgt = 1 if FL else {"2": 16}.get(q, 8)
        o = "v56" if q == "2" else "v57"
        ad = f"{o}, s[4:7], s54 offen" if FL else "off, s[4:7], s54"
        if q == "2": A(f"s_lshr_b32 s54, s50, 1\ns_lshl_b32 s54, s54, 7\ns_add_u32 s54, s54, s52")
        elif q in ("3a", "5"): A(f"s_lshl_b32 s54, s50, 7\ns_add_u32 s54, s54, s52\ns_add_u32 s54, s54, {(CB if q == '3a' else CD)*128}")
        elif q == "4": ad = "v20, s[4:7], s52 offen"
        else: ad = "v21, s[4:7], 0 offen"
        A("s_mov_b32 s55, 0")
        if q == "4":
            wait([("p4",)], "p4"); A(f"s_branch {lab}_chk")
        if q == "4" and FL:
            A(f"{lab}:\nbuffer_load_dwordx4 v[60:63], {ad} sc1\ns_waitcnt vmcnt(0)\n{lab}_chk:\nv_and_b32 v60, v60, v61\nv_and_b32 v62, v62, v63\nv_and_b32 v22, v60, v62")
        else: A(f"{lab}:\nbuffer_load_dword v22, {ad} sc1\ns_waitcnt vmcnt(0)\n{lab}_chk:")
        A(f"v_cmp_ne_u32 vcc, {tgt}, v22\ns_cmp_eq_u64 vcc, 0\ns_cbranch_scc1 {lab}_ok")
        if CFG["PX"]: A("s_mov_b32 exec_lo, vcc_lo\ns_mov_b32 exec_hi, 0")
        A(f"s_sleep {CFG['SL4']}\ns_add_u32 s55, s55, 1\ns_cmp_lt_u32 s55, 0x40000\ns_cbranch_scc1 {lab}\n{lab}_ok:")
        if CFG["PX"]: A("s_mov_b64 exec, -1")
        if emit[0]: stamp(a, r=(8, 19))
        A(f"{lab}_done:")
    def poll4_issue():
        ld = "buffer_load_dwordx4 v[60:63]" if CFG["FLAG"] else "buffer_load_dword v22"
        A(f"s_cmp_lg_u32 s19, 0\ns_cbranch_scc1 PL4_i\n{ld}, v20, s[4:7], s52 offen sc1\nPL4_i:")
        marks["p4"] = len(issued)
    marks = {}
    def signal(q):
        c, r = {"1": (CA, "s48"), "2": (CB, "s50"), "3a": (CC, "s50"), "4": (CD, "s50"), "5": (CE, "s50")}[q]
        lab = f"SG{q}"
        A(f"s_cmp_lg_u32 s19, 0\ns_cbranch_scc1 {lab}\ns_lshl_b32 s54, {r}, 7\ns_add_u32 s54, s54, s52\ns_add_u32 s54, s54, {c*128}")
        if CFG["FLAG"]: A(f"s_lshl_b32 s55, {'s49' if q == '1' else 's51'}, 2\ns_add_u32 s54, s54, s55")
        A(f"s_mov_b64 exec, 1\n{'buffer_store_dword' if CFG['FLAG'] else 'buffer_atomic_add'} v13, off, s[4:7], s54 sc1\ns_mov_b64 exec, -1\n{lab}:")
    T = 24
    def zsload(js=range(4)):
        for j in js:
            if j: A(f"s_add_u32 s54, s47, {j*4096}")
            A(f"buffer_load_dwordx4 {vr(T+4*j,4)}, v3, s[4:7], s{54 if j else 47} offen sc1"); issued.append(("zs", j))
    waits = {}
    def wait(tags, key):
        if not emit[0]:
            if key == "p4": cnt = min(62, len(issued) - marks["p4"])
            else:
                idx = max([i for i, t in enumerate(issued) if t in tags], default=-1)
                cnt = min(62, len(issued) - 1 - idx) if idx >= 0 else 63
            waits.setdefault(key, {})[it[0]] = cnt
            return
        w0, w1 = waits[key][0], waits[key][0 if key[0] == "ws" else 1]
        if min(w0, w1) >= 40 or not CFG["DW"] and w0 < w1: w0 = w1 = min(w0, w1)
        if w0 != w1:
            lab = a.label("WW")
            A(f"s_cmp_eq_u32 s14, {int(w0 < w1)}\ns_cbranch_scc1 {lab}\ns_waitcnt vmcnt({min(w0, w1)})\n{lab}:")
        if max(w0, w1) < 63: A(f"s_waitcnt vmcnt({max(w0, w1)})")
    def tables(js=range(4)):
        for j in js:
            wait([("zs", j)], ("zs", j))
            b = T + 4*j; t = (10, 11, 12) if j & 1 else (14, 15, 23)
            for k in range(4): A(f"v_mul_f32 v{b+k}, {hex(f2u(1.0/FH))}, v{b+k}")
            for v in (b, b+2): A(f"v_fma_f32 v{v+1}, -v{v}, v{v}, v{v+1}")
            for v in (b, b+2): A(f"v_max_f32 v{v+1}, 0, v{v+1}")
            for v in (b, b+2): A(f"v_add_f32 v{v+1}, {hex(f2u(1e-5))}, v{v+1}")
            for v in (b, b+2): A(f"v_rsq_f32 v{v+1}, v{v+1}")
            A(f"v_cvt_pk_f16_f32 v{t[0]}, v{b}, v{b+2}\nv_cvt_pk_f16_f32 v{b+1}, v{b+1}, v{b+3}\nv_cvt_f32_f16 v{t[1]}, v{t[0]}\nv_cvt_f32_f16_sdwa v{t[2]}, v{t[0]} dst_sel:DWORD dst_unused:UNUSED_PAD src0_sel:WORD_1")
            A(f"ds_write_b32 v16, v{b+1} offset:{RS0+1024*j}\nds_write_b32 v17, v{t[0]} offset:{MU0+2048*j}")
            A(f"v_sub_f32 v{t[1]}, v{b}, v{t[1]}\nv_sub_f32 v{t[2]}, v{b+2}, v{t[2]}\nv_cvt_pk_f16_f32 v{t[1]}, v{t[1]}, v{t[2]}")
            A(f"ds_write_b32 v17, v{t[1]} offset:{MU0+2048*j+64}")
        A("s_waitcnt lgkmcnt(0)")
    WR = 64
    def wsp_load(ms=range(8)):
        if CFG["WS2"]:
            lab = f"WL{which}{ms[0]}"
            A(f"s_cmp_eq_u32 s14, 1\ns_cbranch_scc1 {lab}")
            for m in ms: A(f"buffer_load_dwordx4 {vr(WR+4*m,4)}, v4, s[8:11], s57 offen offset:{512*m}{' nt' if CFG['NT'] & 1 else ''}"); issued.extend([("ws", m)] * (it[0] == 0))
            A(f"{lab}:")
            return
        lab = f"WL{which}"
        A(f"s_cmp_eq_u32 s14, 1\ns_cbranch_scc1 {lab}")
        for m in range(8): A(f"buffer_load_dwordx4 {vr(WR+4*m,4)}, v4, s[8:11], s57 offen offset:{512*m}{' nt' if CFG['NT'] & 1 else ''}")
        A(f"{lab}:")
    def wsp_conv(ms=range(8)):
        lab = f"WC{which}{ms[0]}"
        A(f"s_cmp_eq_u32 s14, 1\ns_cbranch_scc1 {lab}")
        if not CFG["WS2"]: A("s_waitcnt vmcnt(0)")
        for m in ms:
            if CFG["WS2"]: wait([("ws", m)], ("ws", m))
            w = WR + 4*m; t = (96 if CFG["WS2"] else 40) + 8*(m & 1)
            for j in range(4): A(f"v_dot2_f32_bf16 v{t+2*j}, v{w+j}, s67, 0\nv_dot2_f32_bf16 v{t+2*j+1}, v{w+j}, s68, 0")
            for j in range(4): A(f"v_cvt_pk_f16_f32 v{w+j}, v{t+2*j}, v{t+2*j+1}")
            A(f"s_add_u32 s54, s59, {m*32768}")
            for hh in range(2): A(f"buffer_store_dwordx2 {vr(w+2*hh,2)}, v5, s[4:7], s54 offen offset:{256*hh} sc1")
        A(f"{lab}:")
    ev = {}; late = {}; pre = {}
    def at(b, f): ev.setdefault(BIDX[b], []).append(f)
    def lat(b, f): late.setdefault(BIDX[b], []).append(f)
    if which == "B":
        for q in ("1", "2", "4", "5"): at((q, "G"), lambda q=q: signal(q))
        at(("3b", CFG["SIG3"]), lambda: signal("3a"))
    if CFG["WS2"] != 5: pre[BIDX[("2", "G")]] = "s_waitcnt vmcnt(0)"
    if CFG["WS2"]:
        for b, ms in WSS[CFG["WS2"]][1].items(): lat(_b(b), lambda ms=ms: wsp_conv(ms))
        for b, ms in WSS[CFG["WS2"]][0].items():
            if b != -1: lat(_b(b), lambda ms=ms: wsp_load(ms))
        pre[BIDX[("3b", CFG["SIG3"])]] = "s_waitcnt vmcnt(8)"
    else: lat(("1", CFG["WSPL"]), wsp_load); at(("1", "G"), wsp_conv)
    SR = 40
    def stload(q):
        for c in range(3 if q == "1" else 1):
            A(f"s_add_u32 s54, s12, s{(69, 70, 71)[c] if q == '1' else 58}\ns_add_u32 s55, s54, 16384")
            A(f"buffer_load_dwordx2 {vr(SR+4*c,2)}, v6, s[4:7], s54 offen sc1\nbuffer_load_dwordx2 {vr(SR+4*c+2,2)}, v6, s[4:7], s55 offen sc1")
            issued.extend([("st", q)]*2)
    def stcalc(q):
        wait([("st", q)], ("st", q))
        if CFG["SP"]: A(f"s_setprio {CFG['SP']}")
        v = SR
        for c in range(3 if q == "1" else 1): A(f"v_pk_add_f32 {vr(v+4*c,2)}, {vr(v+4*c,2)}, {vr(v+4*c+2,2)}")
        if q == "1":
            A(f"v_mov_b32 v{v+6}, v{v+4}\nv_mov_b32 v{v+7}, v{v+5}")
            for k in range(2): A(f"v_permlane32_swap_b32 v{v+k}, v{v+8+k}")
            for k in range(2): A(f"v_permlane32_swap_b32 v{v+4+k}, v{v+6+k}")
            A(f"v_pk_add_f32 {vr(v,2)}, {vr(v,2)}, {vr(v+8,2)}\nv_pk_add_f32 {vr(v+2,2)}, {vr(v+4,2)}, {vr(v+6,2)}")
        else:
            A(f"v_mov_b32 v{v+2}, v{v}\nv_mov_b32 v{v+3}, v{v+1}")
            for k in range(2): A(f"v_permlane32_swap_b32 v{v+k}, v{v+2+k}")
            A(f"v_pk_add_f32 {vr(v,2)}, {vr(v,2)}, {vr(v+2,2)}\nv_mov_b32 v{v+2}, v{v}\nv_mov_b32 v{v+3}, v{v+1}")
        for k in range(2): A(f"v_permlane16_swap_b32 v{v+k}, v{v+2+k}")
        A(f"v_pk_add_f32 {vr(v,2)}, {vr(v,2)}, {vr(v+2,2)}")
        t = v + 2
        A(f"v_mul_f32 v{t}, {hex(f2u(1.0/640))}, v{v}\nv_mul_f32 v{v+1}, {hex(f2u(1.0/640))}, v{v+1}\nv_fma_f32 v{v+1}, -v{t}, v{t}, v{v+1}")
        A(f"v_max_f32 v{v+1}, 0, v{v+1}\nv_add_f32 v{v+1}, {hex(f2u(1e-5))}, v{v+1}\nv_rsq_f32 v{v}, v{v+1}")
        A(f"v_mul_f32 v{v+1}, -v{t}, v{v}")
        A(f"ds_write2_b32 v{7 if q == '1' else 18}, v{v}, v{v+1} offset0:0 offset1:{NM0//4}\ns_waitcnt lgkmcnt(0)")
        if CFG["SP"]: A("s_setprio 0")
    for q in ("1", "3a"):
        lat((q, CFG["STL"]), lambda q=q: stload(q)); lat((q, CFG["STC"]), lambda q=q: stcalc(q))
    if which == "A":
        if not CFG["CP"]: lat(("1","G"), lambda: poll("2")); lat(("2","G"), lambda: poll("3a")); lat(("4","G"), lambda: poll("5")); lat(("5","G"), lambda: poll("1"))
        at(("3b", CFG["G4"] - CFG["POLL4"]), poll4_issue); lat(("3b", CFG["G4"] - 1), lambda: poll("4"))
    if CFG["TSP"]:
        g4 = ("3b", CFG["G4"])
        at(g4, lambda: zsload([0])); lat(g4, lambda: zsload([1, 2, 3])); lat(g4, lambda: tables([0]))
        for j in (1, 2, 3): lat(("4", CFG["TSP"]*j), lambda j=j: tables([j]))
    else: at(("3b", CFG["G4"]), zsload); lat(("3b", min(10, CFG["G4"] + CFG["TBL"])), tables)
    def issue_at(bs):
        xs = [x for x in al if x["after"] in bs]
        xs.sort(key=lambda x: (x["use"] - x["after"], x["k"]))
        for x in xs: issue(x)
    def body():
        if not (CFG["ES"] and it[0] == 0 and not emit[0]): issue_at((-1,))
        if CFG["ES"]: A(f"{L}_in:")
        if CFG["WS2"] and -1 in WSS[CFG["WS2"]][0]: wsp_load(WSS[CFG["WS2"]][0][-1])
        for b in range(NB):
            tags = [(x["k"], x["q"], x["n"]) for x in al if x["use"] == b]
            if b in pre: A(pre[b])
            if emit[0] and isinstance(BARS[b][1], int) and BARS[b][1] < 30: stamp2(a, BARS[b][0], (8, 19))
            if tags: wait(tags, ("u", b))
            if emit[0] and isinstance(BARS[b][1], int) and BARS[b][1] < 30: stamp2(a, BARS[b][0], (8, 19))
            A("s_barrier")
            for f in ev.get(b, []): f()
            if b < NB - 1: issue_at((b, b - NB))
            for f in late.get(b, []): f()
    def pro():
        for x in sorted(al, key=lambda x: (x["use"], x["k"] == "W")) if CFG["ES"] else al:
            if x["after"] < (0 if CFG["ES"] else -1): issue(x)
    emit[0] = False
    pro(); body(); it[0] = 1; body()
    issued.clear(); emit[0] = True; it[0] = 0
    es = 2 if CFG["ES"] else 1
    setup(order[:es]); pro(); setup(order[es:])
    if CFG["FLAG"]:
        a(f"v_lshrrev_b32 v20, 1, v0\nv_lshlrev_b32 v20, 7, v20\nv_and_b32 v13, 1, v0\nv_lshl_add_u32 v20, v13, 4, v20\nv_add_u32 v20, {CC*128}, v20\nv_mov_b32 v13, 1")
        a("v_lshlrev_b32 v56, 2, v2\nv_and_b32 v57, 28, v56")
        a(f"v_min_u32 v21, 2, v1\ns_lshl_b32 s46, s48, 1\nv_add_u32 v21, s46, v21\nv_max_u32 v21, 1, v21\nv_lshl_add_u32 v21, v21, 7, v57\nv_add_u32 v21, {(CE-1)*128 + CNT}, v21")
    else:
        a(f"v_and_b32 v20, 31, v0\nv_lshlrev_b32 v20, 7, v20\nv_add_u32 v20, {CC*128}, v20\nv_mov_b32 v13, 1")
        a(f"v_min_u32 v21, 2, v0\ns_lshl_b32 s46, s48, 1\nv_add_u32 v21, s46, v21\nv_max_u32 v21, 1, v21\nv_lshlrev_b32 v21, 7, v21\nv_add_u32 v21, {(CE-1)*128 + CNT}, v21")
    a("v_bfe_u32 v18, v0, 1, 2\nv_lshlrev_b32 v17, 4, v18\nv_bfe_u32 v18, v0, 3, 1\nv_lshl_add_u32 v17, v18, 3, v17\nv_and_b32 v18, 1, v0\nv_lshl_add_u32 v17, v18, 2, v17")
    a(f"s_sub_u32 s46, s13, 4\ns_lshl_b32 s47, s46, 10\ns_add_u32 s47, s47, {IT0+ZS}\ns_lshl_b32 s54, s46, 2\nv_add_u32 v18, s54, v1\nv_lshl_add_u32 v16, v18, 6, v17\nv_lshl_add_u32 v17, v18, 7, v17")
    a.srd(8, 20, 2048*2048*2)
    a("v_lshrrev_b32 v10, 3, v0\nv_and_b32 v7, 7, v0\nv_lshlrev_b32 v7, 4, v7\nv_lshl_add_u32 v4, v10, 12, v7")
    a("v_lshlrev_b32 v5, 4, v10\nv_and_b32 v11, 1, v0\nv_lshl_add_u32 v5, v11, 9, v5\nv_and_b32 v11, 4, v0\nv_lshl_add_u32 v5, v11, 10, v5\nv_and_b32 v11, 2, v0\nv_lshl_add_u32 v5, v11, 2, v5")
    a(f"s_lshl_b32 s57, s50, 18\ns_lshl_b32 s54, s46, 13\ns_add_u32 s59, s57, s54\ns_lshr_b32 s54, s51, 1\ns_lshl_b32 s54, s54, 10\ns_add_u32 s59, s59, s54\ns_and_b32 s54, s51, 1\ns_lshl_b32 s54, s54, 7\ns_add_u32 s59, s59, s54\ns_add_u32 s59, s59, {WSP}")
    a("s_lshl_b32 s54, s46, 7\ns_add_u32 s57, s57, s54\ns_lshl_b32 s54, s51, 15\ns_add_u32 s57, s57, s54\ns_mov_b32 s67, 0x4280\ns_mov_b32 s68, 0x42800000")
    a("v_lshlrev_b32 v6, 15, v1\nv_lshl_add_u32 v6, v2, 3, v6\ns_lshl_b32 s54, s46, 6\nv_lshlrev_b32 v18, 2, v2\nv_add_u32 v18, s54, v18")
    a("v_and_b32 v7, 1, v1\nv_lshl_add_u32 v7, v7, 8, v18\nv_lshlrev_b32 v10, 2, v2\nv_add_u32 v10, 512, v10\nv_cmp_eq_u32 vcc, 2, v1\nv_cndmask_b32 v7, v7, v10, vcc")
    a(f"s_lshl_b32 s71, s48, 10\ns_lshl_b32 s54, s46, 7\ns_add_u32 s69, s71, s54\ns_add_u32 s70, s69, {STIN+384}\ns_max_u32 s69, s69, 128\ns_add_u32 s69, s69, {STIN-128}\ns_add_u32 s71, s71, {STIN+896}")
    a(f"s_lshl_b32 s58, s50, 9\ns_add_u32 s58, s58, s54\ns_add_u32 s58, s58, {STMID}")
    if CFG["CODEPF"] > 1 and which == "B":
        lab = a.label("CPM")
        a(f"s_getpc_b64 s[60:61]\n{lab}:\ns_sub_u32 s60, s60, {lab}-main_kernel\ns_subb_u32 s61, s61, 0")
        a(f"s_lshl_b32 s54, s53, 1\ns_add_u32 s54, s54, s19\ns_mul_i32 s54, s54, 1536\nv_min_u32 v10, 11, v0\nv_lshlrev_b32 v10, 7, v10\nv_add_u32 v10, s54, v10")
        a(f"v_min_u32 v10, MAIN_END-main_kernel-4, v10\nglobal_load_dword v11, v10, s[60:61]")
    if CFG["ES"]: a(f"s_branch {L}_in")
    a(f"{L}_loop:")
    body()
    a(f"s_cmp_eq_u32 s14, 1\ns_cbranch_scc1 FINL\ns_mov_b32 s14, 1\ns_add_u32 s47, s47, {ITS}\ns_add_u32 s12, s12, {ITS}\ns_add_u32 s52, s52, 32768")
    for j in range(5): a(f"s_add_u32 s{30+j}, s{30+j}, {ITS}")
    a(f"s_branch {L}_loop")

def cpoll(a, q):
    if not CFG["CP"]: return
    lab = f"CPL{q}"; tgt = {"2": 16}.get(q, 8); D = CFG["PD"]
    a(f"s_cmp_lg_u32 s13, {CFG['CP']-1}\ns_cbranch_scc1 {lab}_ok")
    if q == "1":
        a(f"s_lshl_b32 s72, s48, 8\ns_add_u32 s72, s72, {(CE-1)*128 + CNT}\ns_min_u32 s73, s48, 1\ns_or_b32 exec_lo, s73, 0x10100\ns_mov_b32 exec_hi, 0")
        ad = "v3, s[4:7], s72 offen"
    else:
        a(f"s_lshl_b32 s73, s14, 15\ns_add_u32 s73, s73, {CNT + {'2': CA, '3a': CB, '5': CD}[q]*128}")
        a(("s_lshr_b32 s72, s50, 1\ns_lshl_b32 s72, s72, 7" if q == "2" else "s_lshl_b32 s72, s50, 7") + "\ns_add_u32 s72, s72, s73\ns_mov_b64 exec, 1")
        ad = "off, s[4:7], s72"
    sl = f"s_sleep {CFG['SLEEP']}"
    a("s_mov_b32 s73, 0")
    for k in range(D - 1): a(f"buffer_load_dword v{253+k}, {ad} sc1\ns_sleep {CFG['PS']}")
    a(f"{lab}:")
    for k in range(D):
        a(f"buffer_load_dword v{253+(k+D-1)%D}, {ad} sc1\ns_waitcnt vmcnt({D-1})")
        a(f"v_cmp_ne_u32 vcc, {tgt}, v{253+k}\ns_cmp_eq_u64 vcc, 0\ns_cbranch_scc1 {lab}_x\n{sl}")
    a(f"s_add_u32 s73, s73, 1\ns_cmp_lt_u32 s73, 0x20000\ns_cbranch_scc1 {lab}\n{lab}_x:\ns_mov_b64 exec, -1\n{lab}_ok:")
def weave(a, lg, ms, rd, va=(), rpm=1, vpm=0, vskip=0):
    rd = list(rd); va = list(va); i = j = 0; acc = 0.0
    for mi, (txt, nd) in enumerate(ms):
        lg.need(nd); a(txt)
        acc += rpm
        while acc >= 1 and i < len(rd): lg.op(*rd[i]); i += 1; acc -= 1
        for _ in range(vpm if mi >= vskip else 0):
            if j < len(va):
                if va[j]: lg.need(va[j][1]); a(va[j][0])
                j += 1
    while i < len(rd): lg.op(*rd[i]); i += 1
    while j < len(va): lg.need(va[j][1]); a(va[j][0]); j += 1

def mainloop(a, lg, q, NBUF, reads, mf, hooks=None, last_hook=None, rpm=2, prebar=None, tailf=None, cv=None, roll=None, dz=None):
    ph = PH[q]; nks = ph["nks"]; nst = ph["nst"]
    hooks = hooks or {}; prebar = prebar or {}
    for n in range(nst):
        if roll:
            n0, per, lab, inc = roll
            if n == n0: assert not dz; a(f"s_mov_b32 s37, {(nst - n0)//per}\n{lab}:"); st0 = [set(x) for x in lg.out]
            if n == n0 + per:
                assert st0 == lg.out and (nst - n0) % per == 0
                for k in "DW": assert all(ph["addr"+k][m] == ph["addr"+k][m-per] for m in range(n, nst))
                a(f"{inc}\ns_sub_u32 s37, s37, 1\ns_cmp_lg_u32 s37, 0\ns_cbranch_scc1 {lab}")
                break
        if not ph["lag"] or n == 0: lg.drain()
        if n in prebar: a(prebar[n])
        if n == 0: stamp(a, lg)
        if n == 0 and q in ("2", "3a", "5"): cpoll(a, q); a("s_barrier")
        if n < 30: stamp2(a, q)
        a("s_barrier")
        if n < 30: stamp2(a, q)
        if n == 0: stamp(a, lg)
        if n in hooks: hooks[n]()
        ts = [t for t in (2*n, 2*n+1) if t < nks]
        if NBUF == 2:
            for t in ts:
                weave(a, lg, mf(t-1, (t-1) % 2) if t >= 1 else [], reads(t, t % 2), rpm=rpm)
        elif cv:
            r0, r1 = reads(2*n, (2*n) % 4), reads(2*n+1, (2*n+1) % 4)
            rd = r0[:3] + r1[:3] + r0[3:] + r1[3:]
            if n == 0:
                weave(a, lg, [], rd, cv(0, 0))
            else:
                h = len(rd) // 2
                def mix(c):
                    if not dz: return c, 1
                    o = []
                    for e in c:
                        o.append(e)
                        for _ in range(CFG["DZP"]): o.append((dz.pop(0), []) if dz else None)
                    return o, 1 + CFG["DZP"]
                for tt, rr in ((2*n-2, rd[:h]), (2*n-1, rd[h:])):
                    va, vpm = mix(cv(tt+1, (tt+1) % 4))
                    weave(a, lg, mf(tt, tt % 4), rr, va, rpm=1, vpm=vpm)
        else:
            rd = sum([reads(t, t % 4) for t in ts], [])
            ms = sum([mf(t, t % 4) for t in (2*n-2, 2*n-1) if t >= 0], [])
            weave(a, lg, ms, rd, rpm=rpm)
    tail = [nks-1] if NBUF == 2 else [t for t in (2*nst-2, 2*nst-1) if t < nks]
    extra = last_hook() if last_hook else []
    if tailf: tailf()
    else: weave(a, lg, sum([mf(t, t % NBUF) for t in tail], []), extra, rpm=rpm)
    if q != "4": stamp2(a, q)
    a("s_barrier")
    if q != "4": stamp2(a, q)
    stamp(a, lg)
def poolloop(a, lg, q, regions, spare, frags, mfs, last, L, rpm):
    ph = PH[q]; nks = ph["nks"]; nst = ph["nst"]
    RD = [(t, nm, fn) for t in range(nks) for nm, fn in frags(t)]
    MS = [(t, fn, nms) for t in range(nks) for fn, nms in mfs(t)]
    lastuse = {}
    for i, (t, fn, nms) in enumerate(MS):
        for nm in nms: lastuse[(t, nm)] = i
    per = len(MS) // nst
    free = [list(regions[0]), list(regions[1]), list(spare)]
    home = {r: k for k in range(3) for r in free[k]}
    loc = {}; ri = [0]; last = list(last)
    def rd(tmax, force=False):
        if ri[0] >= len(RD) or RD[ri[0]][0] > tmax: return False
        t, nm, fn = RD[ri[0]]
        for k in (t & 1, 2) + ((1 - (t & 1),) if force else ()):
            if free[k]:
                r = free[k].pop(0); loc[(t, nm)] = r; lg.op(*fn(r)); ri[0] += 1; return True
        assert not force
        return False
    def rdlast():
        busy = {x for r in loc.values() for x in R(r, 4)}
        for k, (txt, regs) in enumerate(last):
            if not busy & set(regs): lg.op(txt, regs); last.pop(k); return True
        return False
    mi = 0
    for n in range(nst):
        lg.drain()
        if n == 0:
            stamp(a, lg)
            if q == "1": a("s_cmp_eq_u32 s14, 0\ns_cbranch_scc1 P1_nof"); cpoll(a, q); a("s_barrier\nP1_nof:")
            elif q != "3b": cpoll(a, q); a("s_barrier")
        stamp2(a, q); a("s_barrier"); stamp2(a, q)
        if n == 0: stamp(a, lg)
        tmax = 2*n + 1; acc_ = 0.0
        end = per*(n+1) - L if n < nst - 1 else len(MS)
        if n == 0:
            for _ in range(len(frags(0))): rd(0)
        while mi < end:
            t, fn, nms = MS[mi]
            while any((t, nm) not in loc for nm in nms): rd(tmax, True)
            lg.need([x for nm in nms for x in R(loc[(t, nm)], 4)])
            a(fn({nm: loc[(t, nm)] for nm in nms}))
            for nm in nms:
                if lastuse[(t, nm)] == mi: r = loc.pop((t, nm)); free[home[r]].append(r)
            mi += 1; acc_ = min(acc_ + rpm, 2*rpm)
            while acc_ >= 1 and (rd(tmax) or (ri[0] >= len(RD) and rdlast())): acc_ -= 1
        while rd(tmax, True): pass
    while rdlast(): pass
    assert not last
    stamp2(a, q); a("s_barrier"); stamp2(a, q)
    stamp(a, lg)
class Cap(Asm):
    def __call__(s, t): s.lines += [l.strip() for l in t.split("\n") if l.strip()]
def gbar(a, nxt, first=False):
    if not first: stamp(a)
    c = Cap(); nxt(c); L = c.lines
    ld = [i for i, l in enumerate(L) if l.startswith("buffer_load")]
    K = max(ld[-1] + 1, CFG["SUK"])
    while K < len(L) and L[K].startswith("s_cselect"): K += 1
    for l in L[:K]: a(l)
    if first: a("s_cmp_eq_u32 s14, 0\ns_cbranch_scc1 P1_nog")
    a(f"s_waitcnt vmcnt({len(ld)})")
    stamp(a)
    a("s_barrier")
    if first: a("P1_nog:")
    for l in L[K:]: a(l)
    a("s_waitcnt vmcnt(0)")

def xreduce(a, op, v, t):
    a(f"v_mov_b32 v{t}, v{v}\nv_permlane32_swap_b32 v{t}, v{v}\n{op} v{v}, v{v}, v{t}")
    a(f"v_mov_b32 v{t}, v{v}\nv_permlane16_swap_b32 v{t}, v{v}\n{op} v{v}, v{v}, v{t}")
def bc2(hi): return "op_sel:[0,1] op_sel_hi:[1,1]" if hi else "op_sel:[0,0] op_sel_hi:[1,0]"
def bc3(hi): return "op_sel:[0,1,0] op_sel_hi:[1,1,1]" if hi else "op_sel:[0,0,0] op_sel_hi:[1,0,1]"
def fix_T(a, acc, cs, st, tmp):
    for h in (0, 2): a(f"v_pk_mul_f32 {vr(tmp+h,2)}, {vr(cs+h,2)}, {vr(st,2)} {bc2(1)}")
    for h in (0, 2): a(f"v_pk_fma_f32 {vr(acc+h,2)}, {vr(acc+h,2)}, {vr(st,2)}, {vr(tmp+h,2)} {bc3(0)}")
def fix_N(a, acc, csreg, rs, nm, tmp):
    cp = csreg & ~1
    for h in (0, 2): a(f"v_pk_mul_f32 {vr(tmp+h,2)}, {vr(nm+h,2)}, {vr(cp,2)} {bc2(csreg & 1)}")
    for h in (0, 2): a(f"v_pk_fma_f32 {vr(acc+h,2)}, {vr(acc+h,2)}, {vr(rs+h,2)}, {vr(tmp+h,2)}")
def cvt2(a, d, acc, ty="bf16"):
    a(f"v_cvt_pk_{ty}_f32 v{d}, v{acc}, v{acc+1}\nv_cvt_pk_{ty}_f32 v{d+1}, v{acc+2}, v{acc+3}")
def rdD(q, t, dst, bD, addr, v8, lo):
    if t < SPLIT[q]: return rd128(dst, bD(addr))
    o = (addr - lo) // 512
    assert (addr - lo) % 512 == 0 and o + 1 < 256
    return (f"ds_read2st64_b64 {vr(dst,4)}, v{v8} offset0:{o} offset1:{o+1}", R(dst,4))
def rd128(dst, ba): return (f"ds_read_b128 {vr(dst,4)}, v{ba[0]} offset:{ba[1]}", R(dst,4))

P1C = dict(ACC=32, FB=104, X=208)
def setup1(a):
    q = "1"; ACC = P1C["ACC"]; X = P1C["X"]
    dlo, dhi = rng(q, "D"); wlo, whi = rng(q, "W")
    a(f"s_lshl_b32 s34, s49, 9\ns_add_u32 s34, s34, {CSQ}\ns_add_u32 s35, s34, 8192\nv_lshlrev_b32 v19, 3, v0")
    a(f"buffer_load_dwordx2 {vr(X,2)}, v19, s[4:7], s34 offen\nbuffer_load_dwordx2 {vr(X+2,2)}, v19, s[4:7], s35 offen")
    a(f"s_lshl_b32 s30, s13, 11\ns_add_u32 s30, s30, {KB}\nv_add_u32 v13, s30, v3")
    P1C["bD"] = mkbase(a, [4, 5], dlo, dhi, 13); P1C["bH"] = mkbase(a, [6, 7], dlo, dhi, 3); P1C["bW"] = mkbase(a, [8], wlo, whi, 3)
    a(f"v_add_u32 v252, {dlo}, v19\nv_add_u32 v11, s30, v252")
    a("s_min_u32 s31, s13, 2\ns_lshl_b32 s32, s31, 1\ns_add_u32 s32, s32, 1\ns_min_u32 s32, s32, 4\ns_add_u32 s33, s31, 5")
    a("s_lshl_b32 s34, s32, 10\nv_add_u32 v9, s34, v8\ns_lshl_b32 s34, s33, 10\nv_add_u32 v10, s34, v8")
    BI = X+26; BIa = X+34; ONES = X+38
    a("s_mov_b32 s40, 0xffff\ns_mov_b32 s41, 0\ns_mov_b32 s42, 0xffff0000\ns_mov_b32 s43, 0")
    a("v_lshlrev_b32 v16, 2, v1\nv_sub_u32 v16, v2, v16\nv_mov_b32 v17, 0xff800000")
    for kt in range(2):
        for r in range(4):
            a(f"v_add_u32 v18, {16 - 16*kt - r}, v16\nv_and_b32 v18, 0xfffffff1, v18\nv_cmp_eq_u32 vcc, 0, v18\nv_cndmask_b32 v{BI+4*kt+r}, v17, 0, vcc")
    a("s_add_u32 s34, s48, s13\ns_cmp_eq_u32 s34, 0\ns_cselect_b64 s[38:39], -1, 0")
    for r in range(4): a(f"v_cndmask_b32 v{BIa+r}, v{BI+r}, v17, s[38:39]\nv_mov_b32 v{ONES+r}, 0x3f803f80")
    c = (DH ** -0.5) * math.log2(math.e)
    a(f"s_mov_b32 s44, {hex(f2u(c))}\ns_mov_b32 s45, {hex(f2u(c))}")
    a(f"s_lshl_b32 s46, s49, 17\ns_lshl_b32 s47, s48, 13\ns_lshl_b32 s37, s13, 11\ns_add_u32 s47, s47, s37\ns_add_u32 s47, s47, s12\ns_add_u32 s47, s47, {OB}\ns_add_u32 s46, s46, s47")
    a(f"s_lshr_b32 s37, s49, 2\ns_add_u32 s37, s37, 16\ns_lshl_b32 s37, s37, 17\ns_add_u32 s47, s47, s37\ns_and_b32 s37, s49, 3\ns_lshl_b32 s37, s37, 8\ns_add_u32 s47, s47, s37")
    a("s_lshl_b32 s36, s13, 7\nv_lshlrev_b32 v18, 2, v2\nv_add_u32 v13, s36, v18\nv_lshlrev_b32 v23, 4, v1\nv_add_u32 v14, s36, v23")
    a("s_lshl_b32 s34, s32, 6\nv_add_u32 v15, s34, v23\ns_lshl_b32 s34, s33, 6\nv_add_u32 v12, s34, v18")
    a("s_lshl_b32 s34, s31, 9\nv_add_u32 v20, s34, v19\ns_mul_i32 s34, s13, 3072\nv_add_u32 v21, s34, v19\nv_or_b32 v22, 256, v21")
def cons1(a):
    q = "1"; lg = LG(a)
    ACC = P1C["ACC"]; FB = P1C["FB"]; X = P1C["X"]; bD, bH, bW = P1C["bD"], P1C["bH"], P1C["bW"]
    def acc(t, x): return ACC + 4*(2*t + x)
    accHT, accHV = ACC + 64, ACC + 68
    dlo, dhi = rng(q, "D")
    BI = X+26; BIa = X+34; ONES = X+38
    a(f"v_pk_add_f32 {vr(X,2)}, {vr(X,2)}, {vr(X+2,2)}")
    lg.op(f"ds_write_b64 v19, {vr(X,2)} offset:{CS0}")
    def frags(t):
        d0 = uaddr(q, "D", t, 0); w0 = uaddr(q, "W", t, 0)
        out = [("Ah", lambda r: rdD(q, t, r, bH, d0, 252, dlo)), ("BT", lambda r: rd128(r, (9, bW(w0)[1]))), ("BV", lambda r: rd128(r, (10, bW(w0)[1])))]
        As = [("A0", lambda r: rdD(q, t, r, bD, d0, 11, dlo)), ("A1", lambda r: rdD(q, t, r, bD, d0+KB, 11, dlo))]
        Bs = [(f"B{u}", lambda r, u=u: rd128(r, bW(w0+u*KB))) for u in range(8)]
        if t == 19: return out + As[1:] + Bs + As[:1]
        return out + [As[0], Bs[0], As[1]] + Bs[1:]
    def mfs(t):
        out = []; C0 = "0" if t == 0 else None
        for u in range(8):
            for x in range(2):
                A, B = f"A{x}", f"B{u}"
                out.append((lambda m, u=u, x=x, A=A, B=B: mfma(acc(u,x), m[B], m[A], C0) if u < 5 else mfma(acc(u,x), m[A], m[B], C0), (A, B)))
        h = [(lambda m: mfma(accHT, m["BT"], m["Ah"], C0), ("BT", "Ah")), (lambda m: mfma(accHV, m["Ah"], m["BV"], C0), ("Ah", "BV"))]
        if t == 19: return h + out[1::2] + out[0::2]
        return h + out
    E = FB
    stT = [E, E+2, E+4]; rsN = [E+8, E+12, E+16]; nmN = [E+20, E+24, E+28]
    csT = [E+32, E+36, E+40, E+44, E+48]; csHT = X
    csV = [X+4, X+5, X+6]; csHV = X+7
    def last_hook():
        out = []
        for x in (2, 1, 0):
            va, vb, o = (18, 23, 0) if x == 2 else (13, 14, 64+64*x)
            out.append((f"ds_read2_b32 {vr(stT[x],2)}, v{va} offset0:{o//4} offset1:{(NM0+o)//4}", R(stT[x],2)))
            out.append(rd128(rsN[x], (vb, o))); out.append(rd128(nmN[x], (vb, NM0+o)))
            if x == 2:
                out.append(rd128(csHT, (15, CS0))); out.append((f"ds_read_b32 v{csHV}, v12 offset:{CS0}", [csHV]))
            if x == 1:
                for t in range(5): out.append(rd128(csT[t], (23, CS0+64*t)))
                for t in range(3): out.append((f"ds_read_b32 v{csV[t]}, v18 offset:{CS0+64*(5+t)}", [csV[t]]))
        return out
    poolloop(a, lg, q, [[FB+52*b+4*k for k in range(13)] for b in range(2)], [X+8, X+12, X+16, X+20, 24, 28], frags, mfs, last_hook(), CFG["L1"], CFG["RPM1"]/4)
    lg.drain()
    G = FB + 52
    QF = {(0,0): G, (1,0): G+4, (0,1): G+8, (1,1): G+12}
    KF = {(0,0): G+16, (1,0): G+20, (0,1): G+24, (1,1): G+28, (0,'p'): G+32, (1,'p'): G+36}
    VF = [X+8, X+14, X+20]
    TMP = G+40; HT, HV = G+44, G+46; T4r = G+48; TM2 = 24
    def prep_kv(x):
        for k, t in enumerate((1, 3, 4)): fix_T(a, acc(t,x), csT[t], stT[x], (TMP, TM2)[k & 1])
        for t in range(3): fix_N(a, acc(5+t,x), csV[t], rsN[x], nmN[x], (TM2, TMP)[t & 1])
        cvt2(a, KF[(0,x)], acc(1,x)); cvt2(a, KF[(1,x)], acc(3,x)); cvt2(a, T4r + 2*x, acc(4,x))
        for t in range(3): cvt2(a, VF[t] + 2 + 2*x, acc(5+t,x))
    def prep_q(x):
        for k, t in enumerate((0, 2)): fix_T(a, acc(t,x), csT[t], stT[x], (TMP, TM2)[k & 1])
        T4 = T4r + 2*x
        for j in range(2):
            a(f"v_mov_b32 v{KF[(0,x)]+2+j}, v{T4+j}\nv_mov_b32 v{KF[(1,x)]+2+j}, v{T4+j}")
        cvt2(a, QF[(0,x)], acc(0,x)); cvt2(a, QF[(1,x)], acc(2,x))
        for j in range(2): a(f"v_permlane32_swap_b32 v{KF[(0,x)]+2+j}, v{KF[(1,x)]+2+j}")
        for j in range(2):
            a(f"v_cndmask_b32 v{QF[(0,x)]+2+j}, 0, v{T4+j}, s[40:41]\nv_cndmask_b32 v{QF[(1,x)]+2+j}, 0, v{T4+j}, s[42:43]")
        for j in range(2): a(f"v_mov_b32 v{KF[(0,x)]+2+j}, v{KF[(1,x)]+2+j}")
    fix_T(a, accHT, csHT, stT[2], TMP); fix_N(a, accHV, csHV, rsN[2], nmN[2], TM2)
    cvt2(a, HT, accHT); cvt2(a, HV, accHV)
    a(f"ds_write_b64 v20, {vr(HT,2)} offset:4096\nds_write_b64 v20, {vr(HV,2)} offset:{4096+1536}")
    prep_kv(1)
    for k, r in enumerate([KF[(0,1)], KF[(1,1)], T4r+2, VF[0]+4, VF[1]+4, VF[2]+4]):
        a(f"ds_write_b64 v21, {vr(r,2)} offset:{4096+3072+512*k}")
    prep_kv(0)
    a("s_waitcnt lgkmcnt(0)\ns_barrier")
    lg.op(f"ds_read_b64 {vr(KF[(0,'p')],2)}, v21 offset:4096", R(KF[(0,'p')],2))
    lg.op(f"ds_read_b64 {vr(KF[(1,'p')],2)}, v21 offset:{4096+512}", R(KF[(1,'p')],2))
    lg.op(f"ds_read_b64 {vr(KF[(0,'p')]+2,2)}, v22 offset:{4096+1024}", R(KF[(0,'p')]+2,2))
    lg.op(f"ds_read_b64 {vr(KF[(1,'p')]+2,2)}, v22 offset:{4096+1024}", R(KF[(1,'p')]+2,2))
    for t in range(3): lg.op(f"ds_read_b64 {vr(VF[t],2)}, v21 offset:{4096+1536+512*t}", R(VF[t],2))
    prep_q(1); prep_q(0)
    lg.drain()
    XS = (1, 0)
    Wb = {1: ACC, 0: ACC + 36}
    Sr = {(x,h): Wb[x] + 8*h for x in XS for h in range(2)}
    M = {(x,h): Wb[x] + 16 + 2*h for x in XS for h in range(2)}
    PF = {(x,h): Wb[x] + 20 + 4*h for x in XS for h in range(2)}
    XH = [(x,h) for x in XS for h in range(2)]
    for (x,h) in XH:
        pk = 'p' if x == 0 else 0
        a(mfma(Sr[x,h], KF[(h,pk)], QF[(h,x)], "0")); a(mfma(Sr[x,h]+4, KF[(h,x)], QF[(h,x)], "0"))
    for (x,h) in XH:
        bp = BIa if x == 0 else BI
        for j in range(4):
            b = (bp + 2*j) if j < 2 else (BI + 2*j)
            a(f"v_pk_fma_f32 {vr(Sr[x,h]+2*j,2)}, {vr(Sr[x,h]+2*j,2)}, s[44:45], {vr(b,2)}")
        s_, m = Sr[x,h], M[x,h]
        a(f"v_max3_f32 v{m}, v{s_}, v{s_+1}, v{s_+2}\nv_max3_f32 v{m+1}, v{s_+3}, v{s_+4}, v{s_+5}\nv_max3_f32 v{m}, v{m}, v{s_+6}, v{s_+7}\nv_max_f32 v{m}, v{m}, v{m+1}")
    for sw in ("v_permlane32_swap_b32", "v_permlane16_swap_b32"):
        for k in XH: a(f"v_mov_b32 v{M[k]+1}, v{M[k]}")
        for k in XH: a(f"{sw} v{M[k]+1}, v{M[k]}")
        for k in XH: a(f"v_max_f32 v{M[k]}, v{M[k]}, v{M[k]+1}")
    for x in XS:
        for h in range(2):
            k = (x,h)
            for j in range(4):
                a(f"v_pk_add_f32 {vr(Sr[k]+2*j,2)}, {vr(Sr[k]+2*j,2)}, {vr(M[k],2)} op_sel:[0,0] op_sel_hi:[1,0] neg_lo:[0,1] neg_hi:[0,1]")
            for j in range(8): a(f"v_exp_f32 v{Sr[k]+j}, v{Sr[k]+j}")
        for h in range(2):
            cvt2(a, PF[x,h], Sr[x,h]); cvt2(a, PF[x,h]+2, Sr[x,h]+4)
        vo = 2*x; W = Wb[x]
        L0, L1, O0, O1a, O1b, O2 = W+28, W+32, W, W+4, W+8, W+12
        a(mfma(L0, ONES, PF[x,0], "0")); a(mfma(L1, ONES, PF[x,1], "0"))
        a(mfma(O0, VF[0]+vo, PF[x,0], "0")); a(mfma(O1a, VF[1]+vo, PF[x,0], "0"))
        a(mfma(O1b, VF[1]+vo, PF[x,1], "0")); a(mfma(O2, VF[2]+vo, PF[x,1], "0"))
    for x in XS:
        W = Wb[x]
        L0, L1, O0, O1a, O1b, O2 = W+28, W+32, W, W+4, W+8, W+12
        a(f"v_rcp_f32 v{L0}, v{L0}\nv_rcp_f32 v{L1}, v{L1}")
        for j in range(4): a(f"v_cndmask_b32 v{O1a+j}, v{O1b+j}, v{O1a+j}, s[40:41]")
        a(f"v_cndmask_b32 v{L0+1}, v{L1}, v{L0}, s[40:41]")
        for j in (0, 2): a(f"v_pk_mul_f32 {vr(O0+j,2)}, {vr(O0+j,2)}, {vr(L0,2)} {bc2(0)}")
        for j in (0, 2): a(f"v_pk_mul_f32 {vr(O1a+j,2)}, {vr(O1a+j,2)}, {vr(L0,2)} {bc2(1)}")
        for j in (0, 2): a(f"v_pk_mul_f32 {vr(O2+j,2)}, {vr(O2+j,2)}, {vr(L1,2)} {bc2(0)}")
        cvt2(a, PF[x,0], O0); cvt2(a, PF[x,0]+2, O1a); cvt2(a, PF[x,1], O2)
        a(f"buffer_store_dwordx4 {vr(PF[x,0],4)}, v3, s[4:7], s46 offen offset:{x*KB} sc1")
        a(f"s_mov_b64 exec, 0xffffffff\nbuffer_store_dwordx2 {vr(PF[x,1],2)}, v19, s[4:7], s47 offen offset:{x*KB} sc1\ns_mov_b64 exec, -1")
    gbar(a, lambda c: setup25(c, "2"))

P25 = {}
def setup25(a, q):
    X = 160
    dlo, dhi = rng(q, "D"); wlo, whi = rng(q, "W")
    a("v_lshlrev_b32 v8, 3, v0")
    a("s_lshl_b32 s33, s50, 2\ns_add_u32 s33, s33, s13\ns_lshl_b32 s34, s33, 10")
    a("s_lshl_b32 s31, s51, 18\ns_add_u32 s31, s31, s34")
    a("s_lshr_b32 s32, s51, 1\ns_add_u32 s32, s32, 16\ns_lshl_b32 s32, s32, 17\ns_add_u32 s32, s32, s34\ns_and_b32 s35, s51, 1\ns_lshl_b32 s35, s35, 9\ns_add_u32 s32, s32, s35")
    src = XIN if q == "2" else XMID
    a(f"s_add_u32 s35, s12, {src}\ns_add_u32 s36, s35, s31\ns_add_u32 s37, s36, {128*KB}\ns_add_u32 s35, s35, s32")
    a(f"buffer_load_dwordx4 {vr(X,4)}, v3, s[4:7], s36 offen sc1\nbuffer_load_dwordx4 {vr(X+4,4)}, v3, s[4:7], s37 offen sc1\nbuffer_load_dwordx2 {vr(X+8,2)}, v8, s[4:7], s35 offen sc1")
    a("s_lshl_b32 s30, s13, 10\nv_add_u32 v13, s30, v3")
    P25[q] = (mkbase(a, [4], dlo, dhi, 13), mkbase(a, [6, 7], wlo, whi, 3))
    a(f"s_add_u32 s30, s30, {dlo}\nv_add_u32 v5, s30, v8")
    dst = XMID if q == "2" else ITS + XIN
    dstst = STMID if q == "2" else ITS + STIN
    a(f"s_add_u32 s35, s12, {dst}\ns_add_u32 s36, s35, s31\ns_add_u32 s37, s36, {128*KB}\ns_add_u32 s35, s35, s32")
    a(f"s_lshl_b32 s39, s51, 14\ns_lshl_b32 s40, s33, 7\ns_add_u32 s39, s39, s40\ns_add_u32 s39, s39, s12\ns_add_u32 s39, s39, {dstst}")
    a(f"v_mov_b32 v{X+12}, 0\nv_mov_b32 v{X+13}, 0\nv_mov_b32 v{X+14}, 0x3f803f80\nv_lshlrev_b32 v{X+17}, 3, v2\nv_mov_b32 v{X+18}, 0\nv_mov_b32 v{X+19}, 0")
    if q == "5":
        a(f"s_mul_i32 s41, s13, 2816\ns_add_u32 s41, s41, 4096\nv_mul_u32_u24 v{X+40}, 176, v2\nv_lshl_add_u32 v{X+40}, v1, 3, v{X+40}\nv_add_u32 v{X+40}, s41, v{X+40}")
        for j in range(3):
            c, row, cc, la, ga = X+41, X+42, X+43, X+20+j, X+24+j
            a(f"v_add_u32 v{c}, {64*j}, v0\nv_mul_u32_u24 v{row}, 205, v{c}\nv_lshrrev_b32 v{row}, 11, v{row}\nv_mul_u32_u24 v{cc}, 10, v{row}\nv_sub_u32 v{cc}, v{c}, v{cc}\nv_lshlrev_b32 v{cc}, 4, v{cc}")
            a(f"v_mul_u32_u24 v{la}, 176, v{row}\nv_add3_u32 v{la}, v{la}, v{cc}, s41\nv_mul_u32_u24 v{ga}, 1280, v{row}\nv_add_u32 v{ga}, v{ga}, v{cc}")
        a(f"s_mul_i32 s42, s33, {16*1280}\ns_mul_i32 s43, s51, 160\ns_add_u32 s42, s42, s43")
        a.srd(8, 24, 2048*640*2)
    a("s_mov_b32 s38, 0xffff0000")
def cons25(a, q):
    lg = LG(a)
    ACC = 32; FB = 64; X = 160
    dlo, dhi = rng(q, "D"); bD, bW = P25[q]
    for j in range(10):
        a(f"v_lshlrev_b32 v{ACC+2*j}, 16, v{X+j}\nv_and_b32 v{ACC+2*j+1}, s38, v{X+j}")
    def fb(buf, k): return FB + 24*buf + 4*k
    def reads(t, buf):
        return [rdD(q, t, fb(buf,0), bD, uaddr(q, "D", t, 0), 5, dlo)] + [rd128(fb(buf,1+u), bW(uaddr(q, "W", t, u))) for u in range(5)]
    def mf(t, buf):
        return [(mfma(ACC+4*u, fb(buf,1+u), fb(buf,0)), list(R(fb(buf,0),4)) + list(R(fb(buf,1+u),4))) for u in range(5)]
    mainloop(a, lg, q, 4, reads, mf, rpm=1.25)
    for u in range(5): cvt2(a, X+2*u, ACC+4*u)
    if q == "5":
        a("s_cmp_eq_u32 s14, 1\ns_cbranch_scc1 P5_final")
    a(f"buffer_store_dwordx4 {vr(X,4)}, v3, s[4:7], s36 offen sc1\nbuffer_store_dwordx4 {vr(X+4,4)}, v3, s[4:7], s37 offen sc1\nbuffer_store_dwordx2 {vr(X+8,2)}, v8, s[4:7], s35 offen sc1")
    for j in range(0, 10, 2):
        a(f"v_dot2_f32_bf16 v{X+12}, v{X+j}, v{X+14}, v{X+12}\nv_dot2_f32_bf16 v{X+13}, v{X+j}, v{X+j}, v{X+13}")
        a(f"v_dot2_f32_bf16 v{X+18}, v{X+j+1}, v{X+14}, v{X+18}\nv_dot2_f32_bf16 v{X+19}, v{X+j+1}, v{X+j+1}, v{X+19}")
    a(f"v_pk_add_f32 {vr(X+12,2)}, {vr(X+12,2)}, {vr(X+18,2)}")
    for sw in ("v_permlane32_swap_b32", "v_permlane16_swap_b32"):
        a(f"v_mov_b32 v{X+18}, v{X+12}\nv_mov_b32 v{X+19}, v{X+13}\n{sw} v{X+18}, v{X+12}\n{sw} v{X+19}, v{X+13}\nv_pk_add_f32 {vr(X+12,2)}, {vr(X+12,2)}, {vr(X+18,2)}")
    a(f"s_mov_b64 exec, 0xffff\nbuffer_store_dwordx2 {vr(X+12,2)}, v{X+17}, s[4:7], s39 offen sc1\ns_mov_b64 exec, -1")
    if q == "2": gbar(a, setup3)
    if q == "5":
        a(f"s_mov_b32 s14, 1\ns_add_u32 s12, s12, {ITS}")
        stamp(a)
        a("s_branch C_loop")
        a("P5_final:")
        a.fence(2)
        for u in range(5): a(f"ds_write_b64 v{X+40}, {vr(X+2*u,2)} offset:{32*u}")
        a("s_waitcnt lgkmcnt(0)")
        for j in range(3): a(f"ds_read_b128 {vr(X+28+4*j,4)}, v{X+20+j}")
        for j in range(3):
            a(f"s_waitcnt lgkmcnt({2-j})")
            if j == 2: a("s_mov_b64 exec, 0xffffffff")
            a(f"buffer_store_dwordx4 {vr(X+28+4*j,4)}, v{X+24+j}, s[8:11], s42 offen{' sc1' if CFG['NT'] & 16 else ' nt' if CFG['NT'] & 32 else ''}")
        a("s_mov_b64 exec, -1")
        stamp(a)
        a("s_barrier\ns_barrier\ns_branch FIN")

GC1 = -2.0 * math.sqrt(2.0/math.pi) * math.log2(math.e)
GC2 = GC1 * 0.044715
def gelu(a, xs, ts):
    P = list(zip(xs, ts))
    for x, t in P:
        for h in (0, 2): a(f"v_pk_mul_f32 {vr(t+h,2)}, {vr(x+h,2)}, {vr(x+h,2)}")
    for x, t in P:
        for h in (0, 2): a(f"v_pk_fma_f32 {vr(t+h,2)}, {vr(t+h,2)}, s[44:45], v[14:15]")
    for x, t in P:
        for h in (0, 2): a(f"v_pk_mul_f32 {vr(t+h,2)}, {vr(t+h,2)}, {vr(x+h,2)}")
    for x, t in P:
        for j in range(4): a(f"v_exp_f32 v{t+j}, v{t+j}")
    for x, t in P:
        for h in (0, 2): a(f"v_pk_add_f32 {vr(t+h,2)}, {vr(t+h,2)}, 1.0 op_sel_hi:[1,0]")
    for x, t in P:
        for j in range(4): a(f"v_rcp_f32 v{t+j}, v{t+j}")
    for x, t in P:
        for h in (0, 2): a(f"v_pk_mul_f32 {vr(x+h,2)}, {vr(x+h,2)}, {vr(t+h,2)}")
ZR = 32
P3C = {}
def setup3(a):
    q = "3a"; X = 192; SM = 32
    dlo, dhi = rng(q, "D"); wlo, whi = rng(q, "W")
    a(f"s_lshl_b32 s34, s51, 9\ns_add_u32 s34, s34, {CSI}\ns_add_u32 s35, s34, 8192\nv_lshlrev_b32 v22, 3, v0")
    a("s_and_b32 s38, s51, 3\ns_cmp_eq_u32 s38, 3\ns_cselect_b32 s38, 47, 55\ns_lshl_b32 s38, s38, 3\nv_min_u32 v7, s38, v22")
    a(f"buffer_load_dwordx2 {vr(X,2)}, v7, s[4:7], s34 offen\nbuffer_load_dwordx2 {vr(X+2,2)}, v7, s[4:7], s35 offen")
    a(f"s_add_u32 s34, s34, 4096\ns_add_u32 s35, s35, 4096\nbuffer_load_dwordx2 {vr(X+4,2)}, v7, s[4:7], s34 offen\nbuffer_load_dwordx2 {vr(X+6,2)}, v7, s[4:7], s35 offen")
    a("s_and_b32 s31, s13, 1\ns_lshr_b32 s32, s13, 1")
    setup4(a)
    a("s_lshl_b32 s30, s31, 11\nv_add_u32 v13, s30, v3")
    P3C["bD"] = mkbase(a, [4, 5], dlo, dhi, 13)
    a(f"s_add_u32 s30, s30, {dlo}\nv_add_u32 v252, s30, v22")
    a("s_lshl_b32 s30, s32, 12\nv_add_u32 v13, s30, v3")
    P3C["bW"] = mkbase(a, [6], wlo, whi, 13)
    for r in range(16): a(f"v_mov_b32 v{SM+r}, 0")
    a(f"s_mov_b32 s44, {hex(f2u(GC2))}\ns_mov_b32 s45, {hex(f2u(GC2))}\nv_mov_b32 v14, {hex(f2u(GC1))}\nv_mov_b32 v15, {hex(f2u(GC1))}")
    a("s_lshl_b32 s34, s32, 8\ns_lshl_b32 s35, s31, 7\nv_lshlrev_b32 v10, 2, v2\nv_add_u32 v8, s34, v10\nv_add_u32 v10, s35, v10")
    a("v_lshlrev_b32 v12, 4, v1\nv_add_u32 v9, s35, v12\nv_add_u32 v12, s34, v12")
    a("s_and_b32 s38, s51, 3\ns_cmp_eq_u32 s38, 3\ns_cselect_b32 s38, 2, 3\ns_cmp_eq_u32 s32, 0\ns_cselect_b32 s38, 4, s38")
    a(f"s_lshl_b32 s36, s33, 8\ns_mul_i32 s39, s33, {56*KB}\ns_mul_i32 s34, s51, {7*KB}\ns_add_u32 s39, s39, s34\ns_lshl_b32 s34, s32, 12\ns_add_u32 s39, s39, s34\ns_add_u32 s39, s39, s12\ns_add_u32 s39, s39, {Z2}")
    a(f"s_add_u32 s36, s36, s12\ns_add_u32 s36, s36, {ZS}")
    a("s_mov_b32 s40, 0xaaaaaaaa\ns_mov_b32 s41, 0xaaaaaaaa\ns_mov_b32 s42, 0xcccccccc\ns_mov_b32 s43, 0xcccccccc")
    a("v_and_b32 v11, 3, v2\nv_lshl_add_u32 v11, v1, 2, v11\nv_bfe_u32 v13, v2, 2, 1\nv_lshl_add_u32 v11, v13, 4, v11\nv_lshlrev_b32 v11, 3, v11\nv_lshrrev_b32 v13, 3, v2\nv_lshl_add_u32 v11, v13, 2, v11")
def cons3(a):
    q = "3a"; lg = LG(a)
    ACC = 64; FB = 96; X = 192; SM = 32
    def acc(t, x): return ACC + 4*(2*t + x)
    dlo, dhi = rng(q, "D"); wlo, whi = rng(q, "W"); bD, bW = P3C["bD"], P3C["bW"]
    a(f"v_pk_add_f32 {vr(X,2)}, {vr(X,2)}, {vr(X+2,2)}\nv_pk_add_f32 {vr(X+4,2)}, {vr(X+4,2)}, {vr(X+6,2)}")
    lg.op(f"ds_write_b64 v22, {vr(X,2)} offset:{CS0}"); lg.op(f"ds_write_b64 v22, {vr(X+4,2)} offset:{CS1}")
    a(f"v_lshlrev_b32 v{P4R['BI']}, 16, v{P4R['BI']}\nv_lshlrev_b32 v{P4R['BI']+1}, 16, v{P4R['BI']+1}")
    def fb(buf, k): return FB + 24*buf + 4*k
    def reads(t, buf):
        d0 = uaddr(q, "D", t, 0); w0 = uaddr(q, "W", t, 0)
        return [rdD(q, t, fb(buf,0), bD, d0, 252, dlo), rd128(fb(buf,2), bW(w0)), rdD(q, t, fb(buf,1), bD, d0+KB, 252, dlo)] + [rd128(fb(buf,2+u), bW(w0+u*KB)) for u in range(1, 4)]
    def mf(t, buf):
        return [(mfma(acc(u,x), fb(buf,x), fb(buf,2+u), "0" if t == 0 else None), list(R(fb(buf,x),4)) + list(R(fb(buf,2+u),4))) for u in range(4) for x in range(2)]
    rsN = [X, X+4]; nmN = [X+8, X+12]; csV = [X+16+t for t in range(4)]
    def last_hook():
        out = []
        for x in range(2): out += [rd128(rsN[x], (9, 64*x)), rd128(nmN[x], (9, NM0+64*x))]
        return out + [(f"ds_read_b32 v{csV[t]}, v8 offset:{CS1+64*t}", [csV[t]]) for t in range(4)]
    mainloop(a, lg, q, 4, reads, mf, last_hook=last_hook, rpm=CFG["RPM3"]/4)
    lg.drain()
    TMP = X+40; PK = X+24
    for u in range(4):
        if u >= 2: a(f"s_cmp_eq_u32 s38, {u}\ns_cbranch_scc1 P3_red")
        for x in range(2): fix_N(a, acc(u,x), csV[u], rsN[x], nmN[x], TMP+4*x)
        gelu(a, [acc(u,0), acc(u,1)], [TMP, TMP+4])
        for x in range(2): cvt2(a, PK + 4*u + 2*x, acc(u,x), "f16")
        a(f"buffer_store_dwordx4 {vr(PK+4*u,4)}, v3, s[4:7], s39 offen offset:{u*KB} sc1")
        for x in range(2):
            for h in (0, 2):
                a(f"v_pk_add_f32 {vr(SM+4*x+h,2)}, {vr(SM+4*x+h,2)}, {vr(acc(u,x)+h,2)}")
                a(f"v_pk_fma_f32 {vr(SM+8+4*x+h,2)}, {vr(acc(u,x)+h,2)}, {vr(acc(u,x)+h,2)}, {vr(SM+8+4*x+h,2)}")
    a("P3_red:"); a.fence(2)
    RA = ACC
    for j in range(8):
        a(f"v_add_f32_dpp v{RA+j}, v{SM+j}, v{SM+j} row_ror:8 row_mask:0xf bank_mask:0x3")
    for j in range(8):
        a(f"v_add_f32_dpp v{RA+j}, v{SM+8+j}, v{SM+8+j} row_ror:8 row_mask:0xf bank_mask:0xc")
    for j in range(4): a(f"v_add_f32_dpp v{RA+8+j}, v{RA+j}, v{RA+j} row_half_mirror row_mask:0xf bank_mask:0x5")
    for j in range(4): a(f"v_add_f32_dpp v{RA+8+j}, v{RA+4+j}, v{RA+4+j} row_half_mirror row_mask:0xf bank_mask:0xa")
    for j in range(4): a(f"v_add_f32_dpp v{RA+8+j}, v{RA+8+j}, v{RA+8+j} quad_perm:[1,0,3,2] row_mask:0xf bank_mask:0xf")
    for j in range(4): a(f"v_add_f32_dpp v{RA+8+j}, v{RA+8+j}, v{RA+8+j} quad_perm:[2,3,0,1] row_mask:0xf bank_mask:0xf")
    a(f"v_cndmask_b32 v{RA}, v{RA+8}, v{RA+9}, s[40:41]\nv_cndmask_b32 v{RA+1}, v{RA+10}, v{RA+11}, s[40:41]\nv_cndmask_b32 v{RA}, v{RA}, v{RA+1}, s[42:43]")
    a(f"buffer_atomic_add_f32 v{RA}, v11, s[4:7], s36 offen")
    q = "3b"; lg = LG(a)
    assert rng(q, "W") == (wlo, whi)
    DEF = CFG["DEF"]
    if DEF: ACC = ZR; X = 212
    def mf(t, buf):
        return [(mfma(acc(u,x), fb(buf,2+u), fb(buf,x), "0" if t == 0 else None), list(R(fb(buf,x),4)) + list(R(fb(buf,2+u),4))) for u in range(4) for x in range(2)]
    stT = [X, X+2]; csT = [X+4+4*t for t in range(4)]
    def last_hook():
        return [(f"ds_read2_b32 {vr(stT[x],2)}, v10 offset0:{16*x} offset1:{NM0//4+16*x}", R(stT[x],2)) for x in range(2)] + [rd128(csT[t], (12, CS0+64*t)) for t in range(4)]
    mainloop(a, lg, q, 4, reads, mf, last_hook=last_hook, rpm=CFG["RPM3"]/4, prebar={CFG["SIG3"]: "s_waitcnt vmcnt(0)"})
    lg.drain()
    if DEF:
        TMP = 232
        def dzl(ch):
            c = Cap()
            for us in ((0, 1), (2, 3) if not ch else (2,)):
                tl = [(u, x) for u in us for x in range(2)]
                for k, (u, x) in enumerate(tl): fix_T(c, acc(u,x), csT[u], stT[x], TMP+4*k)
                gelu(c, [acc(u,x) for u, x in tl], [TMP+4*k for k in range(len(tl))])
                for k, (u, x) in enumerate(tl): cvt2(c, TMP+4*k, acc(u,x))
                for k, (u, x) in enumerate(tl):
                    for h in range(2): c(f"v_lshlrev_b32 v{acc(u,x)+2*h}, 16, v{TMP+4*k+h}\nv_and_b32 v{acc(u,x)+2*h+1}, s57, v{TMP+4*k+h}")
            return c.lines
        a("s_cmp_eq_u32 s32, 1\ns_cbranch_scc1 P3b_done1")
        cons4(a, 0, dzl(0))
    else:
        TMP = X+40
        for x in range(2):
            for u in range(2): fix_T(a, acc(u,x), csT[u], stT[x], TMP+4*(2*x+u))
        gelu(a, [acc(u,x) for x in range(2) for u in range(2)], [TMP+4*k for k in range(4)])
        for u in range(2):
            for x in range(2): cvt2(a, ZR+2*(2*u+x), acc(u,x))
        for u in (2, 3):
            a(f"s_cmp_eq_u32 s38, {u}\ns_cbranch_scc1 P3b_done1")
            for x in range(2): fix_T(a, acc(u,x), csT[u], stT[x], TMP+4*x)
            gelu(a, [acc(u,0), acc(u,1)], [TMP, TMP+4])
            for x in range(2): cvt2(a, ZR+2*(2*u+x), acc(u,x))
        cons4(a, 0)
    a("s_branch P4_done")
    a("P3b_done1:"); a.fence(2)
    cons4(a, 1, dzl(1) if DEF else None)
    a("P4_done:"); a.fence(2)
    gbar(a, lambda c: setup25(c, "5"))

P4R = dict(bD=[16, 17], W=[18, 19], MU=20, EX=21, L8=22, BI=24)
def setup4(a):
    q = "4"; r = P4R
    dlo, dhi = rng(q, "D"); wlo, whi = rng(q, "W")
    P4R["f"] = mkbase(a, r["bD"], dlo, dhi, 3)
    w0, rs = r["W"]; mu = r["MU"]
    a(f"s_lshl_b32 s34, s31, 11\ns_add_u32 s34, s34, {wlo}\nv_add_u32 v{w0}, s34, v3\nv_lshlrev_b32 v{rs}, 4, v1")
    a(f"v_and_b32 v{mu}, 1, v2\nv_lshlrev_b32 v{mu}, 6, v{mu}\nv_lshl_add_u32 v{mu}, v1, 4, v{mu}")
    a(f"s_lshl_b32 s34, s31, 9\nv_add_u32 v{r['EX']}, s34, v{r['L8']}")
    a(f"s_lshl_b32 s33, s50, 1\ns_add_u32 s33, s33, s31\nv_lshlrev_b32 v{r['BI']}, 1, v2")
    a(f"s_lshl_b32 s34, s33, 6\ns_add_u32 s34, s34, {BSP}\nbuffer_load_ushort v{r['BI']+1}, v{r['BI']}, s[4:7], s34 offen offset:32\nbuffer_load_ushort v{r['BI']}, v{r['BI']}, s[4:7], s34 offen")
    a(f"s_lshl_b32 s46, s33, 11\ns_add_u32 s46, s46, s12\ns_add_u32 s46, s46, {UB}\ns_mul_i32 s47, s51, 3\ns_lshl_b32 s34, s32, 1\ns_add_u32 s47, s47, s34\ns_lshl_b32 s47, s47, 17\ns_add_u32 s47, s47, s46")
    a(f"s_lshr_b32 s34, s51, 2\ns_sub_u32 s34, s51, s34\ns_lshr_b32 s56, s34, 1\ns_add_u32 s56, s56, 24\ns_lshl_b32 s56, s56, 17\ns_add_u32 s46, s46, s56\ns_and_b32 s34, s34, 1\ns_lshl_b32 s34, s34, 9\ns_add_u32 s46, s46, s34")
    a(f"s_add_u32 s56, s47, {128*KB}\ns_mov_b32 s57, 0xffff0000\ns_mov_b32 s58, {hex(f2u(1.0/WSCALE))}\ns_mov_b32 s59, {hex(f2u(1.0/WSCALE))}")
def cons4(a, ch, dz=None):
    q = "4"; lg = LG(a); r = P4R
    ACC = 64; FB = 96; X = 208
    wlo = rng(q, "W")[0]; bD = r["f"]
    def acc(t, x): return ACC + 4*(2*t + x)
    def fb(buf, k): return FB + 28*buf + 4*k
    def reads(t, buf):
        w = [rd128(fb(buf,x), (r["W"][0], uaddr(q, "W", t, x) - wlo)) for x in range(2)]
        z = [rd128(fb(buf,2+u), bD(uaddr(q, "D", t, 4*ch+u))) for u in range(4-ch)]
        if ch: z.append(rd128(fb(buf,5), (r["MU"], MU0 + t*128)))
        return [rd128(fb(buf,6), (r["W"][1], RS0 + t*64))] + w + z
    def cv(t, buf):
        rs = fb(buf,6)
        return [(f"v_pk_mul_f16 v{fb(buf,x)+j}, v{fb(buf,x)+j}, v{rs+j}", [fb(buf,x)+j, rs+j]) for x in range(2) for j in range(4)]
    def mf(t, buf):
        return [(mfma(acc(u,x), fb(buf,2+u), fb(buf,x), "0" if t == 0 else None, ty="f16"), list(R(fb(buf,2+u),4))) for x in range(2) for u in range(4)]
    B = r["BI"]
    def tail():
        m0, m1 = mf(62, 2), mf(63, 3)
        weave(a, lg, m0, [], cv(63, 3), vpm=2)
        if not ch: weave(a, lg, m1, []); return
        weave(a, lg, [m1[3], m1[7]] + m1[:3], [])
        for x in range(2): a(f"v_add_f32 v{X+x}, v{acc(3,x)}, v{acc(3,x)+1}")
        for x in range(2): a(f"v_fma_f32 v{B+x}, -v{X+x}, s58, v{B+x}")
        lg.op(f"ds_write_b64 v{r['EX']}, {vr(B,2)} offset:{EX0}")
        weave(a, lg, m1[4:7], [])
        lg.drain()
    inc = f"v_add_u32 v{r['W'][1]}, {12*64}, v{r['W'][1]}" + (f"\nv_add_u32 v{r['MU']}, {12*128}, v{r['MU']}" if ch else "")
    mainloop(a, lg, q, 4, reads, mf, cv=cv, tailf=tail, roll=(8 if dz else 2, 6, f"P4_loop{ch}", inc) if CFG["ROLL"] else None, dz=dz)
    if not ch: lg.op(f"ds_read_b64 {vr(B,2)}, v{r['EX']} offset:{EX0}", R(B,2))
    PK = FB; T2 = FB + 16 if dz is None else ZR
    for u0 in (0, 2):
        us = (u0, u0+1) if not (ch and u0) else (2,)
        if ch and u0: a("s_cmp_eq_u32 s38, 2\ns_cbranch_scc1 P4_done")
        for u in us if dz is None else ():
            for x in range(2):
                for h in range(2):
                    z = ZR + 2*(2*u+x) + h; t = T2 + 4*(2*u+x) + 2*h
                    a(f"v_lshlrev_b32 v{t}, 16, v{z}\nv_and_b32 v{t+1}, s57, v{z}")
        lg.drain()
        for x in range(2):
            for u in us:
                for h in (0, 2): a(f"v_pk_fma_f32 {vr(acc(u,x)+h,2)}, {vr(acc(u,x)+h,2)}, s[58:59], {vr(B,2)} op_sel:[0,0,{x}] op_sel_hi:[1,1,{x}]")
            for u in us:
                for h in (0, 2): a(f"v_pk_mul_f32 {vr(acc(u,x)+h,2)}, {vr(acc(u,x)+h,2)}, {vr(T2+4*(2*u+x)+h,2)}")
            pk = PK + 4*(u0 + x)
            for u in us: cvt2(a, pk + 2*(u & 1), acc(u,x))
            if len(us) == 2: a(f"buffer_store_dwordx4 {vr(pk,4)}, v3, s[4:7], s{56 if u0 else 47} offen offset:{x*KB} sc1")
            else: a(f"buffer_store_dwordx2 {vr(pk,2)}, v{r['L8']}, s[4:7], s46 offen offset:{x*KB} sc1")

def code_prefetch(a, va, vd):
    if not CFG["CODEPF"]: return
    lab = a.label("CPF")
    a(f"s_getpc_b64 s[64:65]\n{lab}:\ns_add_u32 s64, s64, main_kernel-{lab}\ns_addc_u32 s65, s65, 0")
    a(f"s_lshr_b32 s66, s2, 3\ns_lshl_b32 s66, s66, 2\ns_add_u32 s66, s66, s13\ns_mul_i32 s66, s66, 1024\nv_and_b32 v{va}, 7, v0\nv_lshlrev_b32 v{va}, 7, v{va}\nv_add_u32 v{va}, s66, v{va}")
    a(f"v_min_u32 v{va}, MAIN_END-main_kernel-4, v{va}\nglobal_load_dword v{vd}, v{va}, s[64:65]")

def build():
    plan()
    a = Asm()
    a.launch("k0_kernel", (488 if CFG["TOUCH"] else NJOBS,1,1), (256,1,1), lds=40960)
    a.launch("main_kernel", (256,1,1), (512,1,1), lds=LDS_TOTAL)
    for _ in range(CFG["XK"]): a.launch("nop_kernel", (256,1,1), (64,1,1), lds=0)
    if CFG["XK"]:
        a.begin_kernel("nop_kernel"); a("s_endpgm"); a.end_kernel("nop_kernel", 8, sgpr=16)
    emit_k0(a, code_prefetch=code_prefetch, touch=CFG["TOUCH"], dbg=(PROFB + 0x100000) * CFG["DBG"], nt=" nt" if CFG["NT"] & 2 else "", st=" sc1" if CFG["NT"] & 4 else "", st2=" sc1" if CFG["NT"] & 8 else "")
    a.begin_kernel("main_kernel")
    a("s_cmp_ge_u32 s2, 256\ns_cbranch_scc1 END")
    a("s_load_dwordx4 s[20:23], s[0:1], 40\ns_load_dwordx2 s[24:25], s[0:1], 64\ns_load_dwordx2 s[26:27], s[0:1], 80")
    a("v_lshrrev_b32 v1, 6, v0\nv_and_b32 v0, 63, v0\nv_readfirstlane_b32 s13, v1")
    a("v_lshrrev_b32 v1, 4, v0\nv_and_b32 v2, 15, v0\nv_lshlrev_b32 v3, 4, v0")
    a(f"s_mov_b32 s12, {IT0}\ns_mov_b32 s14, 0\ns_mov_b32 s52, {CNT}\ns_mov_b32 s62, 0")
    a("s_and_b32 s15, s2, 7\ns_lshr_b32 s53, s2, 3\ns_lshr_b32 s16, s15, 1\ns_and_b32 s17, s15, 1")
    a("s_lshl_b32 s48, s16, 2\ns_lshr_b32 s18, s53, 3\ns_add_u32 s48, s48, s18\ns_lshl_b32 s49, s17, 3\ns_and_b32 s18, s53, 7\ns_add_u32 s49, s49, s18")
    a("s_lshl_b32 s50, s16, 3\ns_lshr_b32 s18, s53, 2\ns_add_u32 s50, s50, s18\ns_lshl_b32 s51, s17, 2\ns_and_b32 s18, s53, 3\ns_add_u32 s51, s51, s18")
    a("s_waitcnt lgkmcnt(0)")
    a.srd(4, 26, 0x10000000)
    if CFG["PROF"]: a("s_memrealtime s[60:61]\ns_waitcnt lgkmcnt(0)\nv_writelane_b32 v250, s60, 62")
    stamp(a, force=True)
    a("s_cmp_ge_u32 s13, 6\ns_cbranch_scc1 LDB\ns_cmp_ge_u32 s13, 4\ns_cbranch_scc1 LDA")
    a("C_loop:"); a.fence(2)
    gbar(a, setup1, True)
    cons1(a); cons25(a, "2"); cons3(a); cons25(a, "5")
    a.hist = []; loader(a, "A"); a.hist = []; loader(a, "B")
    a("FINL:")
    if CFG["PROF"]: a("v_mov_b32 v250, v8")
    a("FIN:"); a.fence(4)
    a("s_waitcnt vmcnt(0)")
    if CFG["PROF"]:
        stamp(a)
        a("s_memrealtime s[60:61]\ns_waitcnt lgkmcnt(0)\nv_writelane_b32 v250, s60, 63")
        a(f"s_lshl_b32 s60, s2, 3\ns_add_u32 s60, s60, s13\ns_lshl_b32 s60, s60, 8\ns_add_u32 s60, s60, {PROFB}")
        a("v_lshlrev_b32 v251, 2, v0\nbuffer_store_dword v250, v251, s[4:7], s60 offen")
    if CFG["DBG"]:
        a("s_cmp_lg_u32 s2, 77\ns_cbranch_scc1 END\ns_cmp_lg_u32 s13, 0\ns_cbranch_scc1 END\ns_load_dwordx2 s[20:21], s[0:1], 72\ns_waitcnt lgkmcnt(0)")
        a.srd(8, 20, 256)
        a(f"buffer_load_dword v10, off, s[4:7], 0 offset:0 sc1\nv_mov_b32 v11, {PROFB + 0x100000}\nbuffer_load_dword v10, v11, s[4:7], 0 offen sc1\nv_readlane_b32 s30, v250, 0\ns_waitcnt vmcnt(0)\nv_readfirstlane_b32 s31, v10\ns_sub_u32 s31, s30, s31\nv_writelane_b32 v251, s31, 0")
        a(f"v_lshrrev_b32 v12, 2, v0\nv_mul_u32_u24 v12, {37*16}, v12\nv_and_b32 v13, 3, v0\nv_lshl_add_u32 v12, v13, 2, v12\nv_add_u32 v12, {PROFB + 0x100000 + 64 - 37*16 + 16}, v12\nv_max_u32 v12, {PROFB}, v12\nbuffer_load_dword v12, v12, s[4:7], 0 offen sc1\ns_waitcnt vmcnt(0)\nv_sub_u32 v12, s30, v12\nv_cmp_lt_u32 vcc, 3, v0\nv_cndmask_b32 v251, v251, v12, vcc")
        for k, idx in enumerate([2, 3, 51]):
            a(f"v_readlane_b32 s31, v250, {idx}\ns_sub_u32 s31, s31, s30\nv_writelane_b32 v251, s31, {k+1}")
        a("v_lshlrev_b32 v11, 2, v0\ns_mov_b64 exec, 0xffff\nbuffer_store_dword v251, v11, s[8:11], 0 offen")
    a("END:\ns_endpgm\nMAIN_END:")
    a.end_kernel("main_kernel", 256, sgpr=80)
    return a

if __name__ == "__main__":
    out = sys.argv[1] if len(sys.argv) > 1 else "mega.s"
    for kv in sys.argv[2:]:
        k, v = kv.split("="); CFG[k] = int(v)
    a = build()
    open(out, "w").write(a.text())
    print("lines", len(a.lines), "nops", a.nops_added, "bars", len(BARS))
    if CFG.get("SHOW"):
        for k in "DW":
            for x in ALLOC[k]: print(k, x["q"], x["n"], x["addr"]//KB, "after", bname(x["after"]), "rel", bname(x["rel"]))
```

```python
import sys, math, struct
from asmlib import *
from layout import *
from k0 import emit_k0, NJOBS

LDS_TOTAL = 163840
CFG = dict(SK=1, XK=0, PX=1, SL4=1, SP=0, STC=8, DBG=0, ES=0, DW=1, NT=22, TSP=2, DEF=0, DZP=2, G4=10, TBL=0, PD=3, PS=2, P04=4, WS2=4, WS3=1, CP=4, PG=6, LT=6, ROLL=1, RT=0, WG=2, FLAG=0, L1=27, RPM1=4, RPM3=4, SUK=40, STL=5, PQ=1, PIT=1, ST=0, HOLD=1, ILV=0, PRIO=0, XA=0, XB=0, XC=0, XD=0, RPM4=4, NOWSP=0, PROF=0, TOUCH=0, ROT=1, POLL4=2, SLEEP=1, WSPL=9, SIG3=2, PKMUL=1, CODEPF=1, DSC1=1, PER=2, P0=4, P0S=7, DT=0)
PROFB = 200*1024*1024
def f2u(x): return struct.unpack("<I", struct.pack("<f", x))[0]

PH = {
    "1":  dict(nks=20, nD=9, nW=8, lag=0, D=(20, 4), W=(96, 4)),
    "2":  dict(nks=20, nD=4, nW=5, lag=1, D=(20, 7), W=(80, 8)),
    "3a": dict(nks=20, nD=4, nW=7, lag=0, D=(20, 10), W=(104, 4)),
    "3b": dict(nks=20, nD=0, nW=7, lag=0, D=None, W=(104, 4)),
    "4":  dict(nks=64, nD=7, nW=4, lag=1, D=(20, 6), W=(112, 6)),
    "5":  dict(nks=27, nD=4, nW=5, lag=1, D=(20, 7), W=(80, 8)),
}
ORDER = ["1", "2", "3a", "3b", "4", "5"]
RS0, MU0 = 4096, 8192
NM0, CS0, CS1, EX0 = 768, 1536, 2048, 3072
NROT = {'1': 8, '2': 8, '3a': 8, '3b': 8, '4': 32, '5': 12}
SPLIT = {'1': 16, '2': 16, '3a': 16, '3b': 16, '4': 99, '5': 24}
LSCHED = [(("1",7),2), (("1",8),2), (("1",9),2), (("1",10),10), (("1","X"),10)]
CSCHED = [(("1","G"),6), (("2",10),6), (("2","G"),6)] + [(("3a",n),1) for n in range(1,9)]
CA, CB, CC, CD, CE = 0, 16, 48, 80, 112

def _b(x): return x if isinstance(x, tuple) else ("1", x)
WSS = {
  1: ({1: [0,1], 2: [2,3], 3: [4,5], 4: [6,7]}, {6: [0,1], 7: [2,3], 9: [4,5], 10: [6,7]}),
  2: ({2: [0,1], 5: [2,3], 10: [4,5], "G": [6,7]}, {6: [0,1], 9: [2,3], "G": [4,5], ("2",8): [6,7]}),
  3: ({1: [0,1,2,3], 10: [4,5,6,7]}, {6: [0,1], 7: [2,3], "G": [4,5,6,7]}),
  4: ({0: [0,1,2,3,4,5,6,7]}, {6: [0,1], 7: [2,3], 9: [4,5], 10: [6,7]}),
  5: ({1: [0,1], 3: [2,3], 9: [4,5], ("2",9): [6,7]}, {6: [0,1], 7: [2,3], "G": [4,5], ("3a",2): [6], ("3a",3): [7]}),
  6: ({3: [0,1,2,3], 9: [4,5,6,7]}, {7: [0,1], 9: [2,3], "G": [4,5,6,7]}),
  8: ({-1: [0,1,2,3,4,5,6,7]}, {6: [0,1], 7: [2,3], 9: [4,5], 10: [6,7]}),
  9: ({-1: [0,1,2,3,4,5,6,7]}, {4: [0,1], 6: [2,3], 7: [4,5], 9: [6,7]}),
  10: ({-1: [0,1,2,3,4,5,6,7]}, {9: [0,1,2,3], 10: [4,5,6,7]}),
  7: ({6: [0,1,2,3], 7: [4,5,6,7]}, {10: [0,1,2,3], "X": [4,5,6,7]}),
}
OVR = {("4","W",0): 104*KB}
BARS = []; BIDX = {}
ALLOC = {"D": [], "W": []}
def plan():
    BARS.clear(); BIDX.clear(); ALLOC["D"].clear(); ALLOC["W"].clear()
    for q in ORDER:
        ph = PH[q]; ph["nst"] = (ph["nks"] + 1) // 2
        for n in range(ph["nst"] + 1): BARS.append((q, n))
        if q == "1": BARS.append((q, "X"))
        if q in ("1", "2", "4", "5"): BARS.append((q, "G")); BARS.append((q, "F"))
    for i, b in enumerate(BARS): BIDX[b] = i
    NB = len(BARS)
    gate = {"1": -1, "2": BIDX[("1","F")], "3a": BIDX[("2","F")], "4": BIDX[("3b", CFG["G4"])], "5": BIDX[("4","F")]}
    def rel(q, n, kind):
        if q == "3a" and kind == "D": q = "3b"
        return BIDX[(q, min(n + 1 + PH[q]["lag"], PH[q]["nst"]))]
    rot = {(q, k): 0 for q in ORDER for k in "DW"}
    def build():
        al = {"D": [], "W": []}
        for q in ORDER:
            ph = PH[q]
            for k in "DW":
                if ph[k] is None: continue
                base, ns = ph[k]; sz = 2*ph["n"+k]*KB
                for n in range(ph["nst"]):
                    al[k].append(dict(q=q, n=n, k=k, addr=OVR.get((q,k,n), base*KB + sz*((n + rot[(q,k)]) % ns)), size=sz, use=BIDX[(q,n)], rel=rel(q,n,k)))
        allv = al["D"] + al["W"]
        for k in "DW":
            prev = -NB; used = {}
            for x in al[k]:
                e = -NB
                for y in allv:
                    if y is x or not (y["addr"] < x["addr"] + x["size"] and x["addr"] < y["addr"] + y["size"]):
                        if y is x: e = max(e, y["rel"] - NB)
                        continue
                    if y["use"] < x["use"]: e = max(e, y["rel"])
                    else:
                        assert y["use"] > x["use"], (x, y)
                        e = max(e, y["rel"] - NB)
                if k == "D": e = max(e, gate[x["q"]])
                e = max(e, prev)
                def cap(b):
                    if BARS[b % NB] == ("3b", CFG["G4"]) and k == "D": return CFG["P04"]
                    if BARS[b % NB][1] == "F": return (CFG["P0"] if x["q"] == "1" else CFG["P0S"]) if k == "D" else 0
                    if CFG["WG"] and BARS[b % NB] in (("2", 10), ("4", 32), ("5", 14)): return 0
                    if CFG["WG"] and BARS[b % NB][1] == "G" and (CFG["WG"] > 1 or BARS[b % NB][0] != "1"): return CFG["PG"]
                    if BARS[b % NB][1] == "G" or (CFG["HOLD"] and BARS[b % NB] in (("1", 10), ("1", "X"))): return 0
                    return CFG["PER"]
                while used.get(e % NB, 0) >= cap(e): e += 1
                used[e % NB] = used.get(e % NB, 0) + 1
                prev = e
                x["after"] = e
            last = al[k][-1]["after"] - NB
            for x in al[k]: x["after"] = max(x["after"], last)
            for x in al[k]: assert x["after"] < x["use"], x
        return al
    def cost(al): return sum(max(0, CFG["LT"] - (x["use"] - x["after"]))**2 * 1000 + x["after"] for k in "DW" for x in al[k])
    import itertools
    keys = [k for k in rot if PH[k[0]][k[1]] is not None]
    def tryset(ks):
        best = None
        for rs_ in itertools.product(*[range(PH[k[0]][k[1]][1]) for k in ks]):
            for k, r in zip(ks, rs_): rot[k] = r
            try: c = cost(build())
            except AssertionError: continue
            if best is None or c < best[0]: best = (c, rs_)
        for k, r in zip(ks, best[1]): rot[k] = r
        return best[0]
    import os, pickle
    ck = repr((sorted((q, sorted((k, v) for k, v in PH[q].items() if k in ("nks","nD","nW","lag","D","W"))) for q in ORDER), sorted(OVR.items()), [CFG[k] for k in ("LT","P0","P0S","WG","HOLD","PER","PG","P04","G4")]))
    cache = pickle.load(open("plan.pkl", "rb")) if os.path.exists("plan.pkl") else {}
    if ck in cache: rot.update(cache[ck])
    else:
        wk = [k for k in keys if k[1] == "W"]
        for _ in range(2):
            for k in keys: tryset([k])
            for i in range(len(wk)):
                tryset([wk[i], wk[(i+1) % len(wk)]])
                dk = (wk[i][0], "D")
                if dk in keys: tryset([dk, wk[(i+1) % len(wk)]])
        cache[ck] = dict(rot); pickle.dump(cache, open("plan.pkl", "wb"))
    al = build()
    for k in "DW":
        ALLOC[k] += al[k]
        for x in al[k]: PH[x["q"]].setdefault("addr"+k, {})[x["n"]] = x["addr"]
    PH["3b"]["addrD"] = PH["3a"]["addrD"]; PH["3b"]["nD"] = 4
def bname(i):
    NB = len(BARS); return ("prev:" if i < 0 else "") + "%s.%s" % BARS[i % NB]

class LG:
    def __init__(s, a): s.a = a; s.out = []
    def op(s, text, regs=()):
        s.a(text); s.out.append(set(regs))
    def need(s, regs):
        regs = set(regs); idx = -1
        for k, r in enumerate(s.out):
            if r & regs: idx = k
        if idx >= 0:
            n = min(len(s.out) - 1 - idx, 15)
            s.a(f"s_waitcnt lgkmcnt({n})")
            s.out = s.out[len(s.out) - n:] if n else []
    def drain(s):
        if s.out: s.a("s_waitcnt lgkmcnt(0)"); s.out = []

def R(b, n): return range(b, b + n)
def mfma(d, A, B, C=None, ty="bf16"):
    c = vr(d, 4) if C is None else C
    return f"v_mfma_f32_16x16x32_{ty} {vr(d,4)}, {vr(A,4)}, {vr(B,4)}, {c}"
def stamp2(a, q, r=(250, 251)):
    if CFG["PROF"] == 2 and q in PQ[CFG["PQ"]]:
        lab = a.label("ST2")
        a(f"s_cmp_eq_u32 s14, {CFG['PIT']}\ns_cbranch_scc0 {lab}\ns_memtime s[60:61]\ns_mov_b32 m0, s62\ns_waitcnt lgkmcnt(0)\nv_writelane_b32 v{r[0]}, s60, m0\ns_add_u32 s62, s62, 1\n{lab}:")
PQ = {1: ("1", "2"), 3: ("3a", "3b"), 5: ("5", ), 4: ("4",)}
def stamp(a, lg=None, r=(250, 251), force=False):
    if CFG["PROF"] == 1 or (force and CFG["PROF"]):
        if lg: lg.drain()
        a(f"{'s_memrealtime' if CFG['RT'] else 's_memtime'} s[60:61]\nv_cmp_eq_u32 s[64:65], s62, v0\ns_waitcnt lgkmcnt(0)\nv_mov_b32 v{r[1]}, s60\nv_cndmask_b32 v{r[0]}, v{r[0]}, v{r[1]}, s[64:65]\ns_add_u32 s62, s62, 1")
def mkbase(a, regs, lo, hi, src):
    n = (hi - lo + 65535) // 65536
    assert n <= len(regs), (lo, hi, regs)
    for k in range(n): a(f"v_add_u32 v{regs[k]}, {lo + 65536*k}, v{src}")
    def f(addr):
        assert lo <= addr < hi, (lo, hi, addr)
        return regs[(addr - lo) >> 16], (addr - lo) & 0xffff
    return f
def uaddr(q, which, t, unit):
    ph = PH[q]
    return ph["addr" + which][t // 2] + (t % 2)*ph["n" + which]*KB + unit*KB
def rng(q, which):
    ph = PH[q]; ad = ph["addr" + which].values()
    return min(ad), max(ad) + 2*ph["n" + which]*KB

def loader(a, which):
    NB = len(BARS); al = [x for x in ALLOC["D"] + ALLOC["W"] if not x.get("local")]
    L = "LD" + which
    a(f"{L}:")
    if CFG["PROF"]: a("v_mov_b32 v8, v250")
    a("s_and_b32 s19, s13, 1")
    if CFG["PRIO"]: a(f"s_setprio {CFG['PRIO']}")
    gb = {}; st = {}
    defs = {("D","1"): (f"s_lshl_b32 @, s48, 13\ns_add_u32 @, @, {XIN}", 128*KB),
            ("D","2"): (f"s_lshl_b32 @, s50, 12\ns_add_u32 @, @, {OB}", 128*KB),
            ("D","3a"): (f"s_lshl_b32 @, s50, 12\ns_add_u32 @, @, {XMID}", 128*KB),
            ("D","4"): (f"s_mul_i32 @, s51, {7*KB}\ns_add_u32 @, @, {Z2}", 56*KB),
            ("D","5"): (f"s_lshl_b32 @, s50, 12\ns_add_u32 @, @, {UB}", 128*KB),
            ("W","1"): (f"s_mul_i32 @, s49, {160*KB}\ns_add_u32 @, @, {WQ}", 8*KB),
            ("W","2"): (f"s_mul_i32 @, s51, {100*KB}\ns_add_u32 @, @, {WO}", 5*KB),
            ("W","3a"): (f"s_mul_i32 @, s51, {140*KB}\ns_add_u32 @, @, {WI + 8*140*KB}", 7*KB),
            ("W","3b"): (f"s_mul_i32 @, s51, {140*KB}\ns_add_u32 @, @, {WI}", 7*KB),
            ("W","4"): (f"s_lshl_b32 @, s50, 18\ns_add_u32 @, @, {WSP}", 4*KB),
            ("W","5"): (f"s_mul_i32 @, s51, {135*KB}\ns_add_u32 @, @, {WT}", 5*KB)}
    order = [("W","1"), ("D","1")] + [k for k in defs if k[1] != "1"]
    regs = {k: 30 + j for j, k in enumerate(defs)}
    pof = {4: 41, 5: 42, 7: 43, 8: 44, 9: 45}
    for nU, r in pof.items(): a(f"s_mul_i32 s{r}, s19, {nU*KB}")
    a(f"s_cmp_eq_u32 s48, 0\ns_cselect_b32 s56, 0, {KB}")
    a(f"v_and_b32 v9, 0xffffff7f, v3\ns_and_b32 s66, s51, 3\ns_cmp_eq_u32 s66, 3\ns_cselect_b32 s66, {KB}, 0")
    issued = []; emit = [True]; it = [0]
    cap = [None]
    def A(t):
        if cap[0] is not None: cap[0] += [l for l in t.split("\n") if l.strip()]
        elif emit[0]: a(t)
    def setup(keys):
        for key in keys:
            txt, stride = defs[key]; r = regs[key]
            a(txt.replace("@", f"s{r}")); gb[key] = r; st[key] = stride
            a(f"s_mul_i32 s46, s19, {stride}\ns_add_u32 s{r}, s{r}, s46")
            if key[0] == "D": a(f"s_add_u32 s{r}, s{r}, s12")
    for key in defs: gb[key] = regs[key]; st[key] = defs[key][1]
    def share(k, q, n):
        nU = PH[q]["n" + k]
        big = (k == "D") == (which == "A")
        if q in ("3b", "4"): big = (n % 2 == 0) == (which == "A")
        m = (nU + 1) // 2 if big else nU // 2
        return (0, m) if which == "A" else (nU - m, nU)
    def issue(x):
        k, q, n = x["k"], x["q"], x["n"]; nU = PH[q]["n" + k]; tag = (k, q, n); key = (k, q)
        sc = " sc1" if (k == "D" or q == "4") else ""
        g0 = n*2*st[key]; u, u1 = share(k, q, n)
        halo = (k == "D" and q == "1")
        if halo and u == 0:
            A(f"s_add_u32 m0, s{pof[nU]}, {x['addr']}\ns_add_u32 s54, s{gb[key]}, {g0}\ns_sub_u32 s54, s54, s56")
            A(f"buffer_load_dwordx4 v3, s[4:7], s54 offen{sc} lds"); issued.append(tag)
            u = 1
        assert u1 - u <= 4
        gu = u - 1 if halo else u
        A(f"s_add_u32 m0, s{pof[nU]}, {x['addr'] + u*KB}\ns_add_u32 s54, s{gb[key]}, {g0 + gu*KB}")
        if q == "5" and n == 13: A(f"s_mul_i32 s55, s19, {st[key]}\ns_sub_u32 s54, s54, s55")
        for j in range(u1 - u):
            vo = 9 if (key == ("W","1") and u + j == 7) else 3
            if nU == 7 and u + j == 6: A("s_sub_u32 s54, s54, s66")
            A(f"buffer_load_dwordx4 v{vo}, s[4:7], s54 offen offset:{j*KB}{sc} lds"); issued.append(tag)
    def poll(q):
        lab = f"PL{q}"
        A(f"s_cmp_lg_u32 s19, 0\ns_cbranch_scc1 {lab}_done")
        if q == "1": A(f"s_cmp_eq_u32 s14, 1\ns_cbranch_scc1 {lab}_done")
        if emit[0]: stamp(a, r=(8, 19))
        FL = CFG["FLAG"]
        tgt = 1 if FL else {"2": 16}.get(q, 8)
        o = "v56" if q == "2" else "v57"
        ad = f"{o}, s[4:7], s54 offen" if FL else "off, s[4:7], s54"
        if q == "2": A(f"s_lshr_b32 s54, s50, 1\ns_lshl_b32 s54, s54, 7\ns_add_u32 s54, s54, s52")
        elif q in ("3a", "5"): A(f"s_lshl_b32 s54, s50, 7\ns_add_u32 s54, s54, s52\ns_add_u32 s54, s54, {(CB if q == '3a' else CD)*128}")
        elif q == "4": ad = "v20, s[4:7], s52 offen"
        else: ad = "v21, s[4:7], 0 offen"
        A("s_mov_b32 s55, 0")
        if q == "4":
            wait([("p4",)], "p4"); A(f"s_branch {lab}_chk")
        if q == "4" and FL:
            A(f"{lab}:\nbuffer_load_dwordx4 v[60:63], {ad} sc1\ns_waitcnt vmcnt(0)\n{lab}_chk:\nv_and_b32 v60, v60, v61\nv_and_b32 v62, v62, v63\nv_and_b32 v22, v60, v62")
        else: A(f"{lab}:\nbuffer_load_dword v22, {ad} sc1\ns_waitcnt vmcnt(0)\n{lab}_chk:")
        A(f"v_cmp_ne_u32 vcc, {tgt}, v22\ns_cmp_eq_u64 vcc, 0\ns_cbranch_scc1 {lab}_ok")
        if CFG["PX"]: A("s_mov_b32 exec_lo, vcc_lo\ns_mov_b32 exec_hi, 0")
        A(f"s_sleep {CFG['SL4']}\ns_add_u32 s55, s55, 1\ns_cmp_lt_u32 s55, 0x40000\ns_cbranch_scc1 {lab}\n{lab}_ok:")
        if CFG["PX"]: A("s_mov_b64 exec, -1")
        if emit[0]: stamp(a, r=(8, 19))
        A(f"{lab}_done:")
    def poll4_issue():
        ld = "buffer_load_dwordx4 v[60:63]" if CFG["FLAG"] else "buffer_load_dword v22"
        A(f"s_cmp_lg_u32 s19, 0\ns_cbranch_scc1 PL4_i\n{ld}, v20, s[4:7], s52 offen sc1\nPL4_i:")
        marks["p4"] = len(issued)
    marks = {}
    def signal(q):
        c, r = {"1": (CA, "s48"), "2": (CB, "s50"), "3a": (CC, "s50"), "4": (CD, "s50"), "5": (CE, "s50")}[q]
        lab = f"SG{q}"
        A(f"s_cmp_lg_u32 s19, 0\ns_cbranch_scc1 {lab}\ns_lshl_b32 s54, {r}, 7\ns_add_u32 s54, s54, s52\ns_add_u32 s54, s54, {c*128}")
        if CFG["FLAG"]: A(f"s_lshl_b32 s55, {'s49' if q == '1' else 's51'}, 2\ns_add_u32 s54, s54, s55")
        A(f"s_mov_b64 exec, 1\n{'buffer_store_dword' if CFG['FLAG'] else 'buffer_atomic_add'} v13, off, s[4:7], s54 sc1\ns_mov_b64 exec, -1\n{lab}:")
    T = 24
    def zsload(js=range(4)):
        for j in js:
            if j: A(f"s_add_u32 s54, s47, {j*4096}")
            A(f"buffer_load_dwordx4 {vr(T+4*j,4)}, v3, s[4:7], s{54 if j else 47} offen sc1"); issued.append(("zs", j))
    waits = {}
    def wait(tags, key):
        if not emit[0]:
            if key == "p4": cnt = min(62, len(issued) - marks["p4"])
            else:
                idx = max([i for i, t in enumerate(issued) if t in tags], default=-1)
                cnt = min(62, len(issued) - 1 - idx) if idx >= 0 else 63
            waits.setdefault(key, {})[it[0]] = cnt
            return
        w0, w1 = waits[key][0], waits[key][0 if key[0] == "ws" else 1]
        if min(w0, w1) >= 40 or not CFG["DW"] and w0 < w1: w0 = w1 = min(w0, w1)
        if w0 != w1:
            lab = a.label("WW")
            A(f"s_cmp_eq_u32 s14, {int(w0 < w1)}\ns_cbranch_scc1 {lab}\ns_waitcnt vmcnt({min(w0, w1)})\n{lab}:")
        if max(w0, w1) < 63: A(f"s_waitcnt vmcnt({max(w0, w1)})")
    def tables(js=range(4)):
        for j in js:
            wait([("zs", j)], ("zs", j))
            b = T + 4*j; t = (10, 11, 12) if j & 1 else (14, 15, 23)
            for k in range(4): A(f"v_mul_f32 v{b+k}, {hex(f2u(1.0/FH))}, v{b+k}")
            for v in (b, b+2): A(f"v_fma_f32 v{v+1}, -v{v}, v{v}, v{v+1}")
            for v in (b, b+2): A(f"v_max_f32 v{v+1}, 0, v{v+1}")
            for v in (b, b+2): A(f"v_add_f32 v{v+1}, {hex(f2u(1e-5))}, v{v+1}")
            for v in (b, b+2): A(f"v_rsq_f32 v{v+1}, v{v+1}")
            A(f"v_cvt_pk_f16_f32 v{t[0]}, v{b}, v{b+2}\nv_cvt_pk_f16_f32 v{b+1}, v{b+1}, v{b+3}\nv_cvt_f32_f16 v{t[1]}, v{t[0]}\nv_cvt_f32_f16_sdwa v{t[2]}, v{t[0]} dst_sel:DWORD dst_unused:UNUSED_PAD src0_sel:WORD_1")
            A(f"ds_write_b32 v16, v{b+1} offset:{RS0+1024*j}\nds_write_b32 v17, v{t[0]} offset:{MU0+2048*j}")
            A(f"v_sub_f32 v{t[1]}, v{b}, v{t[1]}\nv_sub_f32 v{t[2]}, v{b+2}, v{t[2]}\nv_cvt_pk_f16_f32 v{t[1]}, v{t[1]}, v{t[2]}")
            A(f"ds_write_b32 v17, v{t[1]} offset:{MU0+2048*j+64}")
        A("s_waitcnt lgkmcnt(0)")
    WR = 64
    def wsp_load(ms=range(8)):
        if CFG["WS2"]:
            lab = f"WL{which}{ms[0]}"
            A(f"s_cmp_eq_u32 s14, 1\ns_cbranch_scc1 {lab}")
            for m in ms: A(f"buffer_load_dwordx4 {vr(WR+4*m,4)}, v4, s[8:11], s57 offen offset:{512*m}{' nt' if CFG['NT'] & 1 else ''}"); issued.extend([("ws", m)] * (it[0] == 0))
            A(f"{lab}:")
            return
        lab = f"WL{which}"
        A(f"s_cmp_eq_u32 s14, 1\ns_cbranch_scc1 {lab}")
        for m in range(8): A(f"buffer_load_dwordx4 {vr(WR+4*m,4)}, v4, s[8:11], s57 offen offset:{512*m}{' nt' if CFG['NT'] & 1 else ''}")
        A(f"{lab}:")
    def wsp_conv(ms=range(8)):
        lab = f"WC{which}{ms[0]}"
        A(f"s_cmp_eq_u32 s14, 1\ns_cbranch_scc1 {lab}")
        if not CFG["WS2"]: A("s_waitcnt vmcnt(0)")
        for m in ms:
            if CFG["WS2"]: wait([("ws", m)], ("ws", m))
            w = WR + 4*m; t = (96 if CFG["WS2"] else 40) + 8*(m & 1)
            for j in range(4): A(f"v_dot2_f32_bf16 v{t+2*j}, v{w+j}, s67, 0\nv_dot2_f32_bf16 v{t+2*j+1}, v{w+j}, s68, 0")
            for j in range(4): A(f"v_cvt_pk_f16_f32 v{w+j}, v{t+2*j}, v{t+2*j+1}")
            A(f"s_add_u32 s54, s59, {m*32768}")
            for hh in range(2): A(f"buffer_store_dwordx2 {vr(w+2*hh,2)}, v5, s[4:7], s54 offen offset:{256*hh} sc1")
        A(f"{lab}:")
    ev = {}; late = {}; pre = {}
    def at(b, f): ev.setdefault(BIDX[b], []).append(f)
    def lat(b, f): late.setdefault(BIDX[b], []).append(f)
    if which == "B":
        for q in ("1", "2", "4", "5"): at((q, "G"), lambda q=q: signal(q))
        at(("3b", CFG["SIG3"]), lambda: signal("3a"))
    if CFG["WS2"] != 5: pre[BIDX[("2", "G")]] = "s_waitcnt vmcnt(0)"
    if CFG["WS2"]:
        for b, ms in WSS[CFG["WS2"]][1].items(): lat(_b(b), lambda ms=ms: wsp_conv(ms))
        for b, ms in WSS[CFG["WS2"]][0].items():
            if b != -1: lat(_b(b), lambda ms=ms: wsp_load(ms))
        pre[BIDX[("3b", CFG["SIG3"])]] = "s_waitcnt vmcnt(8)"
    else: lat(("1", CFG["WSPL"]), wsp_load); at(("1", "G"), wsp_conv)
    SR = 40
    def stload(q):
        for c in range(3 if q == "1" else 1):
            A(f"s_add_u32 s54, s12, s{(69, 70, 71)[c] if q == '1' else 58}\ns_add_u32 s55, s54, 16384")
            A(f"buffer_load_dwordx2 {vr(SR+4*c,2)}, v6, s[4:7], s54 offen sc1\nbuffer_load_dwordx2 {vr(SR+4*c+2,2)}, v6, s[4:7], s55 offen sc1")
            issued.extend([("st", q)]*2)
    def stcalc(q):
        wait([("st", q)], ("st", q))
        if CFG["SP"]: A(f"s_setprio {CFG['SP']}")
        v = SR
        for c in range(3 if q == "1" else 1): A(f"v_pk_add_f32 {vr(v+4*c,2)}, {vr(v+4*c,2)}, {vr(v+4*c+2,2)}")
        if q == "1":
            A(f"v_mov_b32 v{v+6}, v{v+4}\nv_mov_b32 v{v+7}, v{v+5}")
            for k in range(2): A(f"v_permlane32_swap_b32 v{v+k}, v{v+8+k}")
            for k in range(2): A(f"v_permlane32_swap_b32 v{v+4+k}, v{v+6+k}")
            A(f"v_pk_add_f32 {vr(v,2)}, {vr(v,2)}, {vr(v+8,2)}\nv_pk_add_f32 {vr(v+2,2)}, {vr(v+4,2)}, {vr(v+6,2)}")
        else:
            A(f"v_mov_b32 v{v+2}, v{v}\nv_mov_b32 v{v+3}, v{v+1}")
            for k in range(2): A(f"v_permlane32_swap_b32 v{v+k}, v{v+2+k}")
            A(f"v_pk_add_f32 {vr(v,2)}, {vr(v,2)}, {vr(v+2,2)}\nv_mov_b32 v{v+2}, v{v}\nv_mov_b32 v{v+3}, v{v+1}")
        for k in range(2): A(f"v_permlane16_swap_b32 v{v+k}, v{v+2+k}")
        A(f"v_pk_add_f32 {vr(v,2)}, {vr(v,2)}, {vr(v+2,2)}")
        t = v + 2
        A(f"v_mul_f32 v{t}, {hex(f2u(1.0/640))}, v{v}\nv_mul_f32 v{v+1}, {hex(f2u(1.0/640))}, v{v+1}\nv_fma_f32 v{v+1}, -v{t}, v{t}, v{v+1}")
        A(f"v_max_f32 v{v+1}, 0, v{v+1}\nv_add_f32 v{v+1}, {hex(f2u(1e-5))}, v{v+1}\nv_rsq_f32 v{v}, v{v+1}")
        A(f"v_mul_f32 v{v+1}, -v{t}, v{v}")
        A(f"ds_write2_b32 v{7 if q == '1' else 18}, v{v}, v{v+1} offset0:0 offset1:{NM0//4}\ns_waitcnt lgkmcnt(0)")
        if CFG["SP"]: A("s_setprio 0")
    for q in ("1", "3a"):
        lat((q, CFG["STL"]), lambda q=q: stload(q)); lat((q, CFG["STC"]), lambda q=q: stcalc(q))
    if which == "A":
        if not CFG["CP"]: lat(("1","G"), lambda: poll("2")); lat(("2","G"), lambda: poll("3a")); lat(("4","G"), lambda: poll("5")); lat(("5","G"), lambda: poll("1"))
        at(("3b", CFG["G4"] - CFG["POLL4"]), poll4_issue); lat(("3b", CFG["G4"] - 1), lambda: poll("4"))
    if CFG["TSP"]:
        g4 = ("3b", CFG["G4"])
        at(g4, lambda: zsload([0])); lat(g4, lambda: zsload([1, 2, 3])); lat(g4, lambda: tables([0]))
        for j in (1, 2, 3): lat(("4", CFG["TSP"]*j), lambda j=j: tables([j]))
    else: at(("3b", CFG["G4"]), zsload); lat(("3b", min(10, CFG["G4"] + CFG["TBL"])), tables)
    def issue_at(bs):
        xs = [x for x in al if x["after"] in bs]
        xs.sort(key=lambda x: (x["use"] - x["after"], x["k"]))
        for x in xs:
            if CFG["SK"] and x["after"] < -1:
                lab = a.label("SK") if emit[0] else ""
                A(f"s_cmp_eq_u32 s14, 1\ns_cbranch_scc1 {lab}")
                if emit[0] or it[0] == 0: issue(x)
                A(f"{lab}:")
            else: issue(x)
    def body():
        if not (CFG["ES"] and it[0] == 0 and not emit[0]): issue_at((-1,))
        if CFG["ES"]: A(f"{L}_in:")
        if CFG["WS2"] and -1 in WSS[CFG["WS2"]][0]: wsp_load(WSS[CFG["WS2"]][0][-1])
        for b in range(NB):
            tags = [(x["k"], x["q"], x["n"]) for x in al if x["use"] == b]
            if b in pre: A(pre[b])
            if emit[0] and isinstance(BARS[b][1], int) and BARS[b][1] < 30: stamp2(a, BARS[b][0], (8, 19))
            if tags: wait(tags, ("u", b))
            if emit[0] and isinstance(BARS[b][1], int) and BARS[b][1] < 30: stamp2(a, BARS[b][0], (8, 19))
            A("s_barrier")
            if CFG["SK"] and BARS[b] == ("5", 14): A("s_cmp_eq_u32 s14, 1\ns_cbranch_scc1 FINL")
            for f in ev.get(b, []): f()
            if b < NB - 1: issue_at((b, b - NB))
            for f in late.get(b, []): f()
    def pro():
        for x in sorted(al, key=lambda x: (x["use"], x["k"] == "W")) if CFG["ES"] else al:
            if x["after"] < (0 if CFG["ES"] else -1): issue(x)
    emit[0] = False
    pro(); body(); it[0] = 1; body()
    issued.clear(); emit[0] = True; it[0] = 0
    es = 2 if CFG["ES"] else 1
    setup(order[:es]); pro(); setup(order[es:])
    if CFG["FLAG"]:
        a(f"v_lshrrev_b32 v20, 1, v0\nv_lshlrev_b32 v20, 7, v20\nv_and_b32 v13, 1, v0\nv_lshl_add_u32 v20, v13, 4, v20\nv_add_u32 v20, {CC*128}, v20\nv_mov_b32 v13, 1")
        a("v_lshlrev_b32 v56, 2, v2\nv_and_b32 v57, 28, v56")
        a(f"v_min_u32 v21, 2, v1\ns_lshl_b32 s46, s48, 1\nv_add_u32 v21, s46, v21\nv_max_u32 v21, 1, v21\nv_lshl_add_u32 v21, v21, 7, v57\nv_add_u32 v21, {(CE-1)*128 + CNT}, v21")
    else:
        a(f"v_and_b32 v20, 31, v0\nv_lshlrev_b32 v20, 7, v20\nv_add_u32 v20, {CC*128}, v20\nv_mov_b32 v13, 1")
        a(f"v_min_u32 v21, 2, v0\ns_lshl_b32 s46, s48, 1\nv_add_u32 v21, s46, v21\nv_max_u32 v21, 1, v21\nv_lshlrev_b32 v21, 7, v21\nv_add_u32 v21, {(CE-1)*128 + CNT}, v21")
    a("v_bfe_u32 v18, v0, 1, 2\nv_lshlrev_b32 v17, 4, v18\nv_bfe_u32 v18, v0, 3, 1\nv_lshl_add_u32 v17, v18, 3, v17\nv_and_b32 v18, 1, v0\nv_lshl_add_u32 v17, v18, 2, v17")
    a(f"s_sub_u32 s46, s13, 4\ns_lshl_b32 s47, s46, 10\ns_add_u32 s47, s47, {IT0+ZS}\ns_lshl_b32 s54, s46, 2\nv_add_u32 v18, s54, v1\nv_lshl_add_u32 v16, v18, 6, v17\nv_lshl_add_u32 v17, v18, 7, v17")
    a.srd(8, 20, 2048*2048*2)
    a("v_lshrrev_b32 v10, 3, v0\nv_and_b32 v7, 7, v0\nv_lshlrev_b32 v7, 4, v7\nv_lshl_add_u32 v4, v10, 12, v7")
    a("v_lshlrev_b32 v5, 4, v10\nv_and_b32 v11, 1, v0\nv_lshl_add_u32 v5, v11, 9, v5\nv_and_b32 v11, 4, v0\nv_lshl_add_u32 v5, v11, 10, v5\nv_and_b32 v11, 2, v0\nv_lshl_add_u32 v5, v11, 2, v5")
    a(f"s_lshl_b32 s57, s50, 18\ns_lshl_b32 s54, s46, 13\ns_add_u32 s59, s57, s54\ns_lshr_b32 s54, s51, 1\ns_lshl_b32 s54, s54, 10\ns_add_u32 s59, s59, s54\ns_and_b32 s54, s51, 1\ns_lshl_b32 s54, s54, 7\ns_add_u32 s59, s59, s54\ns_add_u32 s59, s59, {WSP}")
    a("s_lshl_b32 s54, s46, 7\ns_add_u32 s57, s57, s54\ns_lshl_b32 s54, s51, 15\ns_add_u32 s57, s57, s54\ns_mov_b32 s67, 0x4280\ns_mov_b32 s68, 0x42800000")
    a("v_lshlrev_b32 v6, 15, v1\nv_lshl_add_u32 v6, v2, 3, v6\ns_lshl_b32 s54, s46, 6\nv_lshlrev_b32 v18, 2, v2\nv_add_u32 v18, s54, v18")
    a("v_and_b32 v7, 1, v1\nv_lshl_add_u32 v7, v7, 8, v18\nv_lshlrev_b32 v10, 2, v2\nv_add_u32 v10, 512, v10\nv_cmp_eq_u32 vcc, 2, v1\nv_cndmask_b32 v7, v7, v10, vcc")
    a(f"s_lshl_b32 s71, s48, 10\ns_lshl_b32 s54, s46, 7\ns_add_u32 s69, s71, s54\ns_add_u32 s70, s69, {STIN+384}\ns_max_u32 s69, s69, 128\ns_add_u32 s69, s69, {STIN-128}\ns_add_u32 s71, s71, {STIN+896}")
    a(f"s_lshl_b32 s58, s50, 9\ns_add_u32 s58, s58, s54\ns_add_u32 s58, s58, {STMID}")
    if CFG["CODEPF"] > 1 and which == "B":
        lab = a.label("CPM")
        a(f"s_getpc_b64 s[60:61]\n{lab}:\ns_sub_u32 s60, s60, {lab}-main_kernel\ns_subb_u32 s61, s61, 0")
        a(f"s_lshl_b32 s54, s53, 1\ns_add_u32 s54, s54, s19\ns_mul_i32 s54, s54, 1536\nv_min_u32 v10, 11, v0\nv_lshlrev_b32 v10, 7, v10\nv_add_u32 v10, s54, v10")
        a(f"v_min_u32 v10, MAIN_END-main_kernel-4, v10\nglobal_load_dword v11, v10, s[60:61]")
    if CFG["ES"]: a(f"s_branch {L}_in")
    a(f"{L}_loop:")
    body()
    a(f"s_cmp_eq_u32 s14, 1\ns_cbranch_scc1 FINL\ns_mov_b32 s14, 1\ns_add_u32 s47, s47, {ITS}\ns_add_u32 s12, s12, {ITS}\ns_add_u32 s52, s52, 32768")
    for j in range(5): a(f"s_add_u32 s{30+j}, s{30+j}, {ITS}")
    a(f"s_branch {L}_loop")

def cpoll(a, q):
    if not CFG["CP"]: return
    lab = f"CPL{q}"; tgt = {"2": 16}.get(q, 8); D = CFG["PD"]
    a(f"s_cmp_lg_u32 s13, {CFG['CP']-1}\ns_cbranch_scc1 {lab}_ok")
    if q == "1":
        a(f"s_lshl_b32 s72, s48, 8\ns_add_u32 s72, s72, {(CE-1)*128 + CNT}\ns_min_u32 s73, s48, 1\ns_or_b32 exec_lo, s73, 0x10100\ns_mov_b32 exec_hi, 0")
        ad = "v3, s[4:7], s72 offen"
    else:
        a(f"s_lshl_b32 s73, s14, 15\ns_add_u32 s73, s73, {CNT + {'2': CA, '3a': CB, '5': CD}[q]*128}")
        a(("s_lshr_b32 s72, s50, 1\ns_lshl_b32 s72, s72, 7" if q == "2" else "s_lshl_b32 s72, s50, 7") + "\ns_add_u32 s72, s72, s73\ns_mov_b64 exec, 1")
        ad = "off, s[4:7], s72"
    sl = f"s_sleep {CFG['SLEEP']}"
    a("s_mov_b32 s73, 0")
    for k in range(D - 1): a(f"buffer_load_dword v{253+k}, {ad} sc1\ns_sleep {CFG['PS']}")
    a(f"{lab}:")
    for k in range(D):
        a(f"buffer_load_dword v{253+(k+D-1)%D}, {ad} sc1\ns_waitcnt vmcnt({D-1})")
        a(f"v_cmp_ne_u32 vcc, {tgt}, v{253+k}\ns_cmp_eq_u64 vcc, 0\ns_cbranch_scc1 {lab}_x\n{sl}")
    a(f"s_add_u32 s73, s73, 1\ns_cmp_lt_u32 s73, 0x20000\ns_cbranch_scc1 {lab}\n{lab}_x:\ns_mov_b64 exec, -1\n{lab}_ok:")
def weave(a, lg, ms, rd, va=(), rpm=1, vpm=0, vskip=0):
    rd = list(rd); va = list(va); i = j = 0; acc = 0.0
    for mi, (txt, nd) in enumerate(ms):
        lg.need(nd); a(txt)
        acc += rpm
        while acc >= 1 and i < len(rd): lg.op(*rd[i]); i += 1; acc -= 1
        for _ in range(vpm if mi >= vskip else 0):
            if j < len(va):
                if va[j]: lg.need(va[j][1]); a(va[j][0])
                j += 1
    while i < len(rd): lg.op(*rd[i]); i += 1
    while j < len(va): lg.need(va[j][1]); a(va[j][0]); j += 1

def mainloop(a, lg, q, NBUF, reads, mf, hooks=None, last_hook=None, rpm=2, prebar=None, tailf=None, cv=None, roll=None, dz=None):
    ph = PH[q]; nks = ph["nks"]; nst = ph["nst"]
    hooks = hooks or {}; prebar = prebar or {}
    for n in range(nst):
        if roll:
            n0, per, lab, inc = roll
            if n == n0: assert not dz; a(f"s_mov_b32 s37, {(nst - n0)//per}\n{lab}:"); st0 = [set(x) for x in lg.out]
            if n == n0 + per:
                assert st0 == lg.out and (nst - n0) % per == 0
                for k in "DW": assert all(ph["addr"+k][m] == ph["addr"+k][m-per] for m in range(n, nst))
                a(f"{inc}\ns_sub_u32 s37, s37, 1\ns_cmp_lg_u32 s37, 0\ns_cbranch_scc1 {lab}")
                break
        if not ph["lag"] or n == 0: lg.drain()
        if n in prebar: a(prebar[n])
        if n == 0: stamp(a, lg)
        if n == 0 and q in ("2", "3a", "5"): cpoll(a, q); a("s_barrier")
        if n < 30: stamp2(a, q)
        a("s_barrier")
        if n < 30: stamp2(a, q)
        if n == 0: stamp(a, lg)
        if n in hooks: hooks[n]()
        ts = [t for t in (2*n, 2*n+1) if t < nks]
        if NBUF == 2:
            for t in ts:
                weave(a, lg, mf(t-1, (t-1) % 2) if t >= 1 else [], reads(t, t % 2), rpm=rpm)
        elif cv:
            r0, r1 = reads(2*n, (2*n) % 4), reads(2*n+1, (2*n+1) % 4)
            rd = r0[:3] + r1[:3] + r0[3:] + r1[3:]
            if n == 0:
                weave(a, lg, [], rd, cv(0, 0))
            else:
                h = len(rd) // 2
                def mix(c):
                    if not dz: return c, 1
                    o = []
                    for e in c:
                        o.append(e)
                        for _ in range(CFG["DZP"]): o.append((dz.pop(0), []) if dz else None)
                    return o, 1 + CFG["DZP"]
                for tt, rr in ((2*n-2, rd[:h]), (2*n-1, rd[h:])):
                    va, vpm = mix(cv(tt+1, (tt+1) % 4))
                    weave(a, lg, mf(tt, tt % 4), rr, va, rpm=1, vpm=vpm)
        else:
            rd = sum([reads(t, t % 4) for t in ts], [])
            ms = sum([mf(t, t % 4) for t in (2*n-2, 2*n-1) if t >= 0], [])
            weave(a, lg, ms, rd, rpm=rpm)
    tail = [nks-1] if NBUF == 2 else [t for t in (2*nst-2, 2*nst-1) if t < nks]
    extra = last_hook() if last_hook else []
    if tailf: tailf()
    else: weave(a, lg, sum([mf(t, t % NBUF) for t in tail], []), extra, rpm=rpm)
    if q != "4": stamp2(a, q)
    a("s_barrier")
    if q != "4": stamp2(a, q)
    stamp(a, lg)
def poolloop(a, lg, q, regions, spare, frags, mfs, last, L, rpm):
    ph = PH[q]; nks = ph["nks"]; nst = ph["nst"]
    RD = [(t, nm, fn) for t in range(nks) for nm, fn in frags(t)]
    MS = [(t, fn, nms) for t in range(nks) for fn, nms in mfs(t)]
    lastuse = {}
    for i, (t, fn, nms) in enumerate(MS):
        for nm in nms: lastuse[(t, nm)] = i
    per = len(MS) // nst
    free = [list(regions[0]), list(regions[1]), list(spare)]
    home = {r: k for k in range(3) for r in free[k]}
    loc = {}; ri = [0]; last = list(last)
    def rd(tmax, force=False):
        if ri[0] >= len(RD) or RD[ri[0]][0] > tmax: return False
        t, nm, fn = RD[ri[0]]
        for k in (t & 1, 2) + ((1 - (t & 1),) if force else ()):
            if free[k]:
                r = free[k].pop(0); loc[(t, nm)] = r; lg.op(*fn(r)); ri[0] += 1; return True
        assert not force
        return False
    def rdlast():
        busy = {x for r in loc.values() for x in R(r, 4)}
        for k, (txt, regs) in enumerate(last):
            if not busy & set(regs): lg.op(txt, regs); last.pop(k); return True
        return False
    mi = 0
    for n in range(nst):
        lg.drain()
        if n == 0:
            stamp(a, lg)
            if q == "1": a("s_cmp_eq_u32 s14, 0\ns_cbranch_scc1 P1_nof"); cpoll(a, q); a("s_barrier\nP1_nof:")
            elif q != "3b": cpoll(a, q); a("s_barrier")
        stamp2(a, q); a("s_barrier"); stamp2(a, q)
        if n == 0: stamp(a, lg)
        tmax = 2*n + 1; acc_ = 0.0
        end = per*(n+1) - L if n < nst - 1 else len(MS)
        if n == 0:
            for _ in range(len(frags(0))): rd(0)
        while mi < end:
            t, fn, nms = MS[mi]
            while any((t, nm) not in loc for nm in nms): rd(tmax, True)
            lg.need([x for nm in nms for x in R(loc[(t, nm)], 4)])
            a(fn({nm: loc[(t, nm)] for nm in nms}))
            for nm in nms:
                if lastuse[(t, nm)] == mi: r = loc.pop((t, nm)); free[home[r]].append(r)
            mi += 1; acc_ = min(acc_ + rpm, 2*rpm)
            while acc_ >= 1 and (rd(tmax) or (ri[0] >= len(RD) and rdlast())): acc_ -= 1
        while rd(tmax, True): pass
    while rdlast(): pass
    assert not last
    stamp2(a, q); a("s_barrier"); stamp2(a, q)
    stamp(a, lg)
class Cap(Asm):
    def __call__(s, t): s.lines += [l.strip() for l in t.split("\n") if l.strip()]
def gbar(a, nxt, first=False):
    if not first: stamp(a)
    c = Cap(); nxt(c); L = c.lines
    ld = [i for i, l in enumerate(L) if l.startswith("buffer_load")]
    K = max(ld[-1] + 1, CFG["SUK"])
    while K < len(L) and L[K].startswith("s_cselect"): K += 1
    for l in L[:K]: a(l)
    if first: a("s_cmp_eq_u32 s14, 0\ns_cbranch_scc1 P1_nog")
    a(f"s_waitcnt vmcnt({len(ld)})")
    stamp(a)
    a("s_barrier")
    if first: a("P1_nog:")
    for l in L[K:]: a(l)
    a("s_waitcnt vmcnt(0)")

def xreduce(a, op, v, t):
    a(f"v_mov_b32 v{t}, v{v}\nv_permlane32_swap_b32 v{t}, v{v}\n{op} v{v}, v{v}, v{t}")
    a(f"v_mov_b32 v{t}, v{v}\nv_permlane16_swap_b32 v{t}, v{v}\n{op} v{v}, v{v}, v{t}")
def bc2(hi): return "op_sel:[0,1] op_sel_hi:[1,1]" if hi else "op_sel:[0,0] op_sel_hi:[1,0]"
def bc3(hi): return "op_sel:[0,1,0] op_sel_hi:[1,1,1]" if hi else "op_sel:[0,0,0] op_sel_hi:[1,0,1]"
def fix_T(a, acc, cs, st, tmp):
    for h in (0, 2): a(f"v_pk_mul_f32 {vr(tmp+h,2)}, {vr(cs+h,2)}, {vr(st,2)} {bc2(1)}")
    for h in (0, 2): a(f"v_pk_fma_f32 {vr(acc+h,2)}, {vr(acc+h,2)}, {vr(st,2)}, {vr(tmp+h,2)} {bc3(0)}")
def fix_N(a, acc, csreg, rs, nm, tmp):
    cp = csreg & ~1
    for h in (0, 2): a(f"v_pk_mul_f32 {vr(tmp+h,2)}, {vr(nm+h,2)}, {vr(cp,2)} {bc2(csreg & 1)}")
    for h in (0, 2): a(f"v_pk_fma_f32 {vr(acc+h,2)}, {vr(acc+h,2)}, {vr(rs+h,2)}, {vr(tmp+h,2)}")
def cvt2(a, d, acc, ty="bf16"):
    a(f"v_cvt_pk_{ty}_f32 v{d}, v{acc}, v{acc+1}\nv_cvt_pk_{ty}_f32 v{d+1}, v{acc+2}, v{acc+3}")
def rdD(q, t, dst, bD, addr, v8, lo):
    if t < SPLIT[q]: return rd128(dst, bD(addr))
    o = (addr - lo) // 512
    assert (addr - lo) % 512 == 0 and o + 1 < 256
    return (f"ds_read2st64_b64 {vr(dst,4)}, v{v8} offset0:{o} offset1:{o+1}", R(dst,4))
def rd128(dst, ba): return (f"ds_read_b128 {vr(dst,4)}, v{ba[0]} offset:{ba[1]}", R(dst,4))

P1C = dict(ACC=32, FB=104, X=208)
def setup1(a):
    q = "1"; ACC = P1C["ACC"]; X = P1C["X"]
    dlo, dhi = rng(q, "D"); wlo, whi = rng(q, "W")
    a(f"s_lshl_b32 s34, s49, 9\ns_add_u32 s34, s34, {CSQ}\ns_add_u32 s35, s34, 8192\nv_lshlrev_b32 v19, 3, v0")
    a(f"buffer_load_dwordx2 {vr(X,2)}, v19, s[4:7], s34 offen\nbuffer_load_dwordx2 {vr(X+2,2)}, v19, s[4:7], s35 offen")
    a(f"s_lshl_b32 s30, s13, 11\ns_add_u32 s30, s30, {KB}\nv_add_u32 v13, s30, v3")
    P1C["bD"] = mkbase(a, [4, 5], dlo, dhi, 13); P1C["bH"] = mkbase(a, [6, 7], dlo, dhi, 3); P1C["bW"] = mkbase(a, [8], wlo, whi, 3)
    a(f"v_add_u32 v252, {dlo}, v19\nv_add_u32 v11, s30, v252")
    a("s_min_u32 s31, s13, 2\ns_lshl_b32 s32, s31, 1\ns_add_u32 s32, s32, 1\ns_min_u32 s32, s32, 4\ns_add_u32 s33, s31, 5")
    a("s_lshl_b32 s34, s32, 10\nv_add_u32 v9, s34, v8\ns_lshl_b32 s34, s33, 10\nv_add_u32 v10, s34, v8")
    BI = X+26; BIa = X+34; ONES = X+38
    a("s_mov_b32 s40, 0xffff\ns_mov_b32 s41, 0\ns_mov_b32 s42, 0xffff0000\ns_mov_b32 s43, 0")
    a("v_lshlrev_b32 v16, 2, v1\nv_sub_u32 v16, v2, v16\nv_mov_b32 v17, 0xff800000")
    for kt in range(2):
        for r in range(4):
            a(f"v_add_u32 v18, {16 - 16*kt - r}, v16\nv_and_b32 v18, 0xfffffff1, v18\nv_cmp_eq_u32 vcc, 0, v18\nv_cndmask_b32 v{BI+4*kt+r}, v17, 0, vcc")
    a("s_add_u32 s34, s48, s13\ns_cmp_eq_u32 s34, 0\ns_cselect_b64 s[38:39], -1, 0")
    for r in range(4): a(f"v_cndmask_b32 v{BIa+r}, v{BI+r}, v17, s[38:39]\nv_mov_b32 v{ONES+r}, 0x3f803f80")
    c = (DH ** -0.5) * math.log2(math.e)
    a(f"s_mov_b32 s44, {hex(f2u(c))}\ns_mov_b32 s45, {hex(f2u(c))}")
    a(f"s_lshl_b32 s46, s49, 17\ns_lshl_b32 s47, s48, 13\ns_lshl_b32 s37, s13, 11\ns_add_u32 s47, s47, s37\ns_add_u32 s47, s47, s12\ns_add_u32 s47, s47, {OB}\ns_add_u32 s46, s46, s47")
    a(f"s_lshr_b32 s37, s49, 2\ns_add_u32 s37, s37, 16\ns_lshl_b32 s37, s37, 17\ns_add_u32 s47, s47, s37\ns_and_b32 s37, s49, 3\ns_lshl_b32 s37, s37, 8\ns_add_u32 s47, s47, s37")
    a("s_lshl_b32 s36, s13, 7\nv_lshlrev_b32 v18, 2, v2\nv_add_u32 v13, s36, v18\nv_lshlrev_b32 v23, 4, v1\nv_add_u32 v14, s36, v23")
    a("s_lshl_b32 s34, s32, 6\nv_add_u32 v15, s34, v23\ns_lshl_b32 s34, s33, 6\nv_add_u32 v12, s34, v18")
    a("s_lshl_b32 s34, s31, 9\nv_add_u32 v20, s34, v19\ns_mul_i32 s34, s13, 3072\nv_add_u32 v21, s34, v19\nv_or_b32 v22, 256, v21")
def cons1(a):
    q = "1"; lg = LG(a)
    ACC = P1C["ACC"]; FB = P1C["FB"]; X = P1C["X"]; bD, bH, bW = P1C["bD"], P1C["bH"], P1C["bW"]
    def acc(t, x): return ACC + 4*(2*t + x)
    accHT, accHV = ACC + 64, ACC + 68
    dlo, dhi = rng(q, "D")
    BI = X+26; BIa = X+34; ONES = X+38
    a(f"v_pk_add_f32 {vr(X,2)}, {vr(X,2)}, {vr(X+2,2)}")
    lg.op(f"ds_write_b64 v19, {vr(X,2)} offset:{CS0}")
    def frags(t):
        d0 = uaddr(q, "D", t, 0); w0 = uaddr(q, "W", t, 0)
        out = [("Ah", lambda r: rdD(q, t, r, bH, d0, 252, dlo)), ("BT", lambda r: rd128(r, (9, bW(w0)[1]))), ("BV", lambda r: rd128(r, (10, bW(w0)[1])))]
        As = [("A0", lambda r: rdD(q, t, r, bD, d0, 11, dlo)), ("A1", lambda r: rdD(q, t, r, bD, d0+KB, 11, dlo))]
        Bs = [(f"B{u}", lambda r, u=u: rd128(r, bW(w0+u*KB))) for u in range(8)]
        if t == 19: return out + As[1:] + Bs + As[:1]
        return out + [As[0], Bs[0], As[1]] + Bs[1:]
    def mfs(t):
        out = []; C0 = "0" if t == 0 else None
        for u in range(8):
            for x in range(2):
                A, B = f"A{x}", f"B{u}"
                out.append((lambda m, u=u, x=x, A=A, B=B: mfma(acc(u,x), m[B], m[A], C0) if u < 5 else mfma(acc(u,x), m[A], m[B], C0), (A, B)))
        h = [(lambda m: mfma(accHT, m["BT"], m["Ah"], C0), ("BT", "Ah")), (lambda m: mfma(accHV, m["Ah"], m["BV"], C0), ("Ah", "BV"))]
        if t == 19: return h + out[1::2] + out[0::2]
        return h + out
    E = FB
    stT = [E, E+2, E+4]; rsN = [E+8, E+12, E+16]; nmN = [E+20, E+24, E+28]
    csT = [E+32, E+36, E+40, E+44, E+48]; csHT = X
    csV = [X+4, X+5, X+6]; csHV = X+7
    def last_hook():
        out = []
        for x in (2, 1, 0):
            va, vb, o = (18, 23, 0) if x == 2 else (13, 14, 64+64*x)
            out.append((f"ds_read2_b32 {vr(stT[x],2)}, v{va} offset0:{o//4} offset1:{(NM0+o)//4}", R(stT[x],2)))
            out.append(rd128(rsN[x], (vb, o))); out.append(rd128(nmN[x], (vb, NM0+o)))
            if x == 2:
                out.append(rd128(csHT, (15, CS0))); out.append((f"ds_read_b32 v{csHV}, v12 offset:{CS0}", [csHV]))
            if x == 1:
                for t in range(5): out.append(rd128(csT[t], (23, CS0+64*t)))
                for t in range(3): out.append((f"ds_read_b32 v{csV[t]}, v18 offset:{CS0+64*(5+t)}", [csV[t]]))
        return out
    poolloop(a, lg, q, [[FB+52*b+4*k for k in range(13)] for b in range(2)], [X+8, X+12, X+16, X+20, 24, 28], frags, mfs, last_hook(), CFG["L1"], CFG["RPM1"]/4)
    lg.drain()
    G = FB + 52
    QF = {(0,0): G, (1,0): G+4, (0,1): G+8, (1,1): G+12}
    KF = {(0,0): G+16, (1,0): G+20, (0,1): G+24, (1,1): G+28, (0,'p'): G+32, (1,'p'): G+36}
    VF = [X+8, X+14, X+20]
    TMP = G+40; HT, HV = G+44, G+46; T4r = G+48; TM2 = 24
    def prep_kv(x):
        for k, t in enumerate((1, 3, 4)): fix_T(a, acc(t,x), csT[t], stT[x], (TMP, TM2)[k & 1])
        for t in range(3): fix_N(a, acc(5+t,x), csV[t], rsN[x], nmN[x], (TM2, TMP)[t & 1])
        cvt2(a, KF[(0,x)], acc(1,x)); cvt2(a, KF[(1,x)], acc(3,x)); cvt2(a, T4r + 2*x, acc(4,x))
        for t in range(3): cvt2(a, VF[t] + 2 + 2*x, acc(5+t,x))
    def prep_q(x):
        for k, t in enumerate((0, 2)): fix_T(a, acc(t,x), csT[t], stT[x], (TMP, TM2)[k & 1])
        T4 = T4r + 2*x
        for j in range(2):
            a(f"v_mov_b32 v{KF[(0,x)]+2+j}, v{T4+j}\nv_mov_b32 v{KF[(1,x)]+2+j}, v{T4+j}")
        cvt2(a, QF[(0,x)], acc(0,x)); cvt2(a, QF[(1,x)], acc(2,x))
        for j in range(2): a(f"v_permlane32_swap_b32 v{KF[(0,x)]+2+j}, v{KF[(1,x)]+2+j}")
        for j in range(2):
            a(f"v_cndmask_b32 v{QF[(0,x)]+2+j}, 0, v{T4+j}, s[40:41]\nv_cndmask_b32 v{QF[(1,x)]+2+j}, 0, v{T4+j}, s[42:43]")
        for j in range(2): a(f"v_mov_b32 v{KF[(0,x)]+2+j}, v{KF[(1,x)]+2+j}")
    fix_T(a, accHT, csHT, stT[2], TMP); fix_N(a, accHV, csHV, rsN[2], nmN[2], TM2)
    cvt2(a, HT, accHT); cvt2(a, HV, accHV)
    a(f"ds_write_b64 v20, {vr(HT,2)} offset:4096\nds_write_b64 v20, {vr(HV,2)} offset:{4096+1536}")
    prep_kv(1)
    for k, r in enumerate([KF[(0,1)], KF[(1,1)], T4r+2, VF[0]+4, VF[1]+4, VF[2]+4]):
        a(f"ds_write_b64 v21, {vr(r,2)} offset:{4096+3072+512*k}")
    prep_kv(0)
    a("s_waitcnt lgkmcnt(0)\ns_barrier")
    lg.op(f"ds_read_b64 {vr(KF[(0,'p')],2)}, v21 offset:4096", R(KF[(0,'p')],2))
    lg.op(f"ds_read_b64 {vr(KF[(1,'p')],2)}, v21 offset:{4096+512}", R(KF[(1,'p')],2))
    lg.op(f"ds_read_b64 {vr(KF[(0,'p')]+2,2)}, v22 offset:{4096+1024}", R(KF[(0,'p')]+2,2))
    lg.op(f"ds_read_b64 {vr(KF[(1,'p')]+2,2)}, v22 offset:{4096+1024}", R(KF[(1,'p')]+2,2))
    for t in range(3): lg.op(f"ds_read_b64 {vr(VF[t],2)}, v21 offset:{4096+1536+512*t}", R(VF[t],2))
    prep_q(1); prep_q(0)
    lg.drain()
    XS = (1, 0)
    Wb = {1: ACC, 0: ACC + 36}
    Sr = {(x,h): Wb[x] + 8*h for x in XS for h in range(2)}
    M = {(x,h): Wb[x] + 16 + 2*h for x in XS for h in range(2)}
    PF = {(x,h): Wb[x] + 20 + 4*h for x in XS for h in range(2)}
    XH = [(x,h) for x in XS for h in range(2)]
    for (x,h) in XH:
        pk = 'p' if x == 0 else 0
        a(mfma(Sr[x,h], KF[(h,pk)], QF[(h,x)], "0")); a(mfma(Sr[x,h]+4, KF[(h,x)], QF[(h,x)], "0"))
    for (x,h) in XH:
        bp = BIa if x == 0 else BI
        for j in range(4):
            b = (bp + 2*j) if j < 2 else (BI + 2*j)
            a(f"v_pk_fma_f32 {vr(Sr[x,h]+2*j,2)}, {vr(Sr[x,h]+2*j,2)}, s[44:45], {vr(b,2)}")
        s_, m = Sr[x,h], M[x,h]
        a(f"v_max3_f32 v{m}, v{s_}, v{s_+1}, v{s_+2}\nv_max3_f32 v{m+1}, v{s_+3}, v{s_+4}, v{s_+5}\nv_max3_f32 v{m}, v{m}, v{s_+6}, v{s_+7}\nv_max_f32 v{m}, v{m}, v{m+1}")
    for sw in ("v_permlane32_swap_b32", "v_permlane16_swap_b32"):
        for k in XH: a(f"v_mov_b32 v{M[k]+1}, v{M[k]}")
        for k in XH: a(f"{sw} v{M[k]+1}, v{M[k]}")
        for k in XH: a(f"v_max_f32 v{M[k]}, v{M[k]}, v{M[k]+1}")
    for x in XS:
        for h in range(2):
            k = (x,h)
            for j in range(4):
                a(f"v_pk_add_f32 {vr(Sr[k]+2*j,2)}, {vr(Sr[k]+2*j,2)}, {vr(M[k],2)} op_sel:[0,0] op_sel_hi:[1,0] neg_lo:[0,1] neg_hi:[0,1]")
            for j in range(8): a(f"v_exp_f32 v{Sr[k]+j}, v{Sr[k]+j}")
        for h in range(2):
            cvt2(a, PF[x,h], Sr[x,h]); cvt2(a, PF[x,h]+2, Sr[x,h]+4)
        vo = 2*x; W = Wb[x]
        L0, L1, O0, O1a, O1b, O2 = W+28, W+32, W, W+4, W+8, W+12
        a(mfma(L0, ONES, PF[x,0], "0")); a(mfma(L1, ONES, PF[x,1], "0"))
        a(mfma(O0, VF[0]+vo, PF[x,0], "0")); a(mfma(O1a, VF[1]+vo, PF[x,0], "0"))
        a(mfma(O1b, VF[1]+vo, PF[x,1], "0")); a(mfma(O2, VF[2]+vo, PF[x,1], "0"))
    for x in XS:
        W = Wb[x]
        L0, L1, O0, O1a, O1b, O2 = W+28, W+32, W, W+4, W+8, W+12
        a(f"v_rcp_f32 v{L0}, v{L0}\nv_rcp_f32 v{L1}, v{L1}")
        for j in range(4): a(f"v_cndmask_b32 v{O1a+j}, v{O1b+j}, v{O1a+j}, s[40:41]")
        a(f"v_cndmask_b32 v{L0+1}, v{L1}, v{L0}, s[40:41]")
        for j in (0, 2): a(f"v_pk_mul_f32 {vr(O0+j,2)}, {vr(O0+j,2)}, {vr(L0,2)} {bc2(0)}")
        for j in (0, 2): a(f"v_pk_mul_f32 {vr(O1a+j,2)}, {vr(O1a+j,2)}, {vr(L0,2)} {bc2(1)}")
        for j in (0, 2): a(f"v_pk_mul_f32 {vr(O2+j,2)}, {vr(O2+j,2)}, {vr(L1,2)} {bc2(0)}")
        cvt2(a, PF[x,0], O0); cvt2(a, PF[x,0]+2, O1a); cvt2(a, PF[x,1], O2)
        a(f"buffer_store_dwordx4 {vr(PF[x,0],4)}, v3, s[4:7], s46 offen offset:{x*KB} sc1")
        a(f"s_mov_b64 exec, 0xffffffff\nbuffer_store_dwordx2 {vr(PF[x,1],2)}, v19, s[4:7], s47 offen offset:{x*KB} sc1\ns_mov_b64 exec, -1")
    gbar(a, lambda c: setup25(c, "2"))

P25 = {}
def setup25(a, q):
    X = 160
    dlo, dhi = rng(q, "D"); wlo, whi = rng(q, "W")
    a("v_lshlrev_b32 v8, 3, v0")
    a("s_lshl_b32 s33, s50, 2\ns_add_u32 s33, s33, s13\ns_lshl_b32 s34, s33, 10")
    a("s_lshl_b32 s31, s51, 18\ns_add_u32 s31, s31, s34")
    a("s_lshr_b32 s32, s51, 1\ns_add_u32 s32, s32, 16\ns_lshl_b32 s32, s32, 17\ns_add_u32 s32, s32, s34\ns_and_b32 s35, s51, 1\ns_lshl_b32 s35, s35, 9\ns_add_u32 s32, s32, s35")
    src = XIN if q == "2" else XMID
    a(f"s_add_u32 s35, s12, {src}\ns_add_u32 s36, s35, s31\ns_add_u32 s37, s36, {128*KB}\ns_add_u32 s35, s35, s32")
    a(f"buffer_load_dwordx4 {vr(X,4)}, v3, s[4:7], s36 offen sc1\nbuffer_load_dwordx4 {vr(X+4,4)}, v3, s[4:7], s37 offen sc1\nbuffer_load_dwordx2 {vr(X+8,2)}, v8, s[4:7], s35 offen sc1")
    a("s_lshl_b32 s30, s13, 10\nv_add_u32 v13, s30, v3")
    P25[q] = (mkbase(a, [4], dlo, dhi, 13), mkbase(a, [6, 7], wlo, whi, 3))
    a(f"s_add_u32 s30, s30, {dlo}\nv_add_u32 v5, s30, v8")
    dst = XMID if q == "2" else ITS + XIN
    dstst = STMID if q == "2" else ITS + STIN
    a(f"s_add_u32 s35, s12, {dst}\ns_add_u32 s36, s35, s31\ns_add_u32 s37, s36, {128*KB}\ns_add_u32 s35, s35, s32")
    a(f"s_lshl_b32 s39, s51, 14\ns_lshl_b32 s40, s33, 7\ns_add_u32 s39, s39, s40\ns_add_u32 s39, s39, s12\ns_add_u32 s39, s39, {dstst}")
    a(f"v_mov_b32 v{X+12}, 0\nv_mov_b32 v{X+13}, 0\nv_mov_b32 v{X+14}, 0x3f803f80\nv_lshlrev_b32 v{X+17}, 3, v2\nv_mov_b32 v{X+18}, 0\nv_mov_b32 v{X+19}, 0")
    if q == "5":
        a(f"s_mul_i32 s41, s13, 2816\ns_add_u32 s41, s41, 4096\nv_mul_u32_u24 v{X+40}, 176, v2\nv_lshl_add_u32 v{X+40}, v1, 3, v{X+40}\nv_add_u32 v{X+40}, s41, v{X+40}")
        for j in range(3):
            c, row, cc, la, ga = X+41, X+42, X+43, X+20+j, X+24+j
            a(f"v_add_u32 v{c}, {64*j}, v0\nv_mul_u32_u24 v{row}, 205, v{c}\nv_lshrrev_b32 v{row}, 11, v{row}\nv_mul_u32_u24 v{cc}, 10, v{row}\nv_sub_u32 v{cc}, v{c}, v{cc}\nv_lshlrev_b32 v{cc}, 4, v{cc}")
            a(f"v_mul_u32_u24 v{la}, 176, v{row}\nv_add3_u32 v{la}, v{la}, v{cc}, s41\nv_mul_u32_u24 v{ga}, 1280, v{row}\nv_add_u32 v{ga}, v{ga}, v{cc}")
        a(f"s_mul_i32 s42, s33, {16*1280}\ns_mul_i32 s43, s51, 160\ns_add_u32 s42, s42, s43")
        a.srd(8, 24, 2048*640*2)
    a("s_mov_b32 s38, 0xffff0000")
def cons25(a, q):
    lg = LG(a)
    ACC = 32; FB = 64; X = 160
    dlo, dhi = rng(q, "D"); bD, bW = P25[q]
    for j in range(10):
        a(f"v_lshlrev_b32 v{ACC+2*j}, 16, v{X+j}\nv_and_b32 v{ACC+2*j+1}, s38, v{X+j}")
    def fb(buf, k): return FB + 24*buf + 4*k
    def reads(t, buf):
        return [rdD(q, t, fb(buf,0), bD, uaddr(q, "D", t, 0), 5, dlo)] + [rd128(fb(buf,1+u), bW(uaddr(q, "W", t, u))) for u in range(5)]
    def mf(t, buf):
        return [(mfma(ACC+4*u, fb(buf,1+u), fb(buf,0)), list(R(fb(buf,0),4)) + list(R(fb(buf,1+u),4))) for u in range(5)]
    mainloop(a, lg, q, 4, reads, mf, rpm=1.25)
    for u in range(5): cvt2(a, X+2*u, ACC+4*u)
    if q == "5":
        a("s_cmp_eq_u32 s14, 1\ns_cbranch_scc1 P5_final")
    a(f"buffer_store_dwordx4 {vr(X,4)}, v3, s[4:7], s36 offen sc1\nbuffer_store_dwordx4 {vr(X+4,4)}, v3, s[4:7], s37 offen sc1\nbuffer_store_dwordx2 {vr(X+8,2)}, v8, s[4:7], s35 offen sc1")
    for j in range(0, 10, 2):
        a(f"v_dot2_f32_bf16 v{X+12}, v{X+j}, v{X+14}, v{X+12}\nv_dot2_f32_bf16 v{X+13}, v{X+j}, v{X+j}, v{X+13}")
        a(f"v_dot2_f32_bf16 v{X+18}, v{X+j+1}, v{X+14}, v{X+18}\nv_dot2_f32_bf16 v{X+19}, v{X+j+1}, v{X+j+1}, v{X+19}")
    a(f"v_pk_add_f32 {vr(X+12,2)}, {vr(X+12,2)}, {vr(X+18,2)}")
    for sw in ("v_permlane32_swap_b32", "v_permlane16_swap_b32"):
        a(f"v_mov_b32 v{X+18}, v{X+12}\nv_mov_b32 v{X+19}, v{X+13}\n{sw} v{X+18}, v{X+12}\n{sw} v{X+19}, v{X+13}\nv_pk_add_f32 {vr(X+12,2)}, {vr(X+12,2)}, {vr(X+18,2)}")
    a(f"s_mov_b64 exec, 0xffff\nbuffer_store_dwordx2 {vr(X+12,2)}, v{X+17}, s[4:7], s39 offen sc1\ns_mov_b64 exec, -1")
    if q == "2": gbar(a, setup3)
    if q == "5":
        a(f"s_mov_b32 s14, 1\ns_add_u32 s12, s12, {ITS}")
        stamp(a)
        a("s_branch C_loop")
        a("P5_final:")
        a.fence(2)
        for u in range(5): a(f"ds_write_b64 v{X+40}, {vr(X+2*u,2)} offset:{32*u}")
        a("s_waitcnt lgkmcnt(0)")
        for j in range(3): a(f"ds_read_b128 {vr(X+28+4*j,4)}, v{X+20+j}")
        for j in range(3):
            a(f"s_waitcnt lgkmcnt({2-j})")
            if j == 2: a("s_mov_b64 exec, 0xffffffff")
            a(f"buffer_store_dwordx4 {vr(X+28+4*j,4)}, v{X+24+j}, s[8:11], s42 offen{' sc1' if CFG['NT'] & 16 else ' nt' if CFG['NT'] & 32 else ''}")
        a("s_mov_b64 exec, -1")
        stamp(a)
        a("s_branch FIN" if CFG["SK"] else "s_barrier\ns_barrier\ns_branch FIN")

GC1 = -2.0 * math.sqrt(2.0/math.pi) * math.log2(math.e)
GC2 = GC1 * 0.044715
def gelu(a, xs, ts):
    P = list(zip(xs, ts))
    for x, t in P:
        for h in (0, 2): a(f"v_pk_mul_f32 {vr(t+h,2)}, {vr(x+h,2)}, {vr(x+h,2)}")
    for x, t in P:
        for h in (0, 2): a(f"v_pk_fma_f32 {vr(t+h,2)}, {vr(t+h,2)}, s[44:45], v[14:15]")
    for x, t in P:
        for h in (0, 2): a(f"v_pk_mul_f32 {vr(t+h,2)}, {vr(t+h,2)}, {vr(x+h,2)}")
    for x, t in P:
        for j in range(4): a(f"v_exp_f32 v{t+j}, v{t+j}")
    for x, t in P:
        for h in (0, 2): a(f"v_pk_add_f32 {vr(t+h,2)}, {vr(t+h,2)}, 1.0 op_sel_hi:[1,0]")
    for x, t in P:
        for j in range(4): a(f"v_rcp_f32 v{t+j}, v{t+j}")
    for x, t in P:
        for h in (0, 2): a(f"v_pk_mul_f32 {vr(x+h,2)}, {vr(x+h,2)}, {vr(t+h,2)}")
ZR = 32
P3C = {}
def setup3(a):
    q = "3a"; X = 192; SM = 32
    dlo, dhi = rng(q, "D"); wlo, whi = rng(q, "W")
    a(f"s_lshl_b32 s34, s51, 9\ns_add_u32 s34, s34, {CSI}\ns_add_u32 s35, s34, 8192\nv_lshlrev_b32 v22, 3, v0")
    a("s_and_b32 s38, s51, 3\ns_cmp_eq_u32 s38, 3\ns_cselect_b32 s38, 47, 55\ns_lshl_b32 s38, s38, 3\nv_min_u32 v7, s38, v22")
    a(f"buffer_load_dwordx2 {vr(X,2)}, v7, s[4:7], s34 offen\nbuffer_load_dwordx2 {vr(X+2,2)}, v7, s[4:7], s35 offen")
    a(f"s_add_u32 s34, s34, 4096\ns_add_u32 s35, s35, 4096\nbuffer_load_dwordx2 {vr(X+4,2)}, v7, s[4:7], s34 offen\nbuffer_load_dwordx2 {vr(X+6,2)}, v7, s[4:7], s35 offen")
    a("s_and_b32 s31, s13, 1\ns_lshr_b32 s32, s13, 1")
    setup4(a)
    a("s_lshl_b32 s30, s31, 11\nv_add_u32 v13, s30, v3")
    P3C["bD"] = mkbase(a, [4, 5], dlo, dhi, 13)
    a(f"s_add_u32 s30, s30, {dlo}\nv_add_u32 v252, s30, v22")
    a("s_lshl_b32 s30, s32, 12\nv_add_u32 v13, s30, v3")
    P3C["bW"] = mkbase(a, [6], wlo, whi, 13)
    for r in range(16): a(f"v_mov_b32 v{SM+r}, 0")
    a(f"s_mov_b32 s44, {hex(f2u(GC2))}\ns_mov_b32 s45, {hex(f2u(GC2))}\nv_mov_b32 v14, {hex(f2u(GC1))}\nv_mov_b32 v15, {hex(f2u(GC1))}")
    a("s_lshl_b32 s34, s32, 8\ns_lshl_b32 s35, s31, 7\nv_lshlrev_b32 v10, 2, v2\nv_add_u32 v8, s34, v10\nv_add_u32 v10, s35, v10")
    a("v_lshlrev_b32 v12, 4, v1\nv_add_u32 v9, s35, v12\nv_add_u32 v12, s34, v12")
    a("s_and_b32 s38, s51, 3\ns_cmp_eq_u32 s38, 3\ns_cselect_b32 s38, 2, 3\ns_cmp_eq_u32 s32, 0\ns_cselect_b32 s38, 4, s38")
    a(f"s_lshl_b32 s36, s33, 8\ns_mul_i32 s39, s33, {56*KB}\ns_mul_i32 s34, s51, {7*KB}\ns_add_u32 s39, s39, s34\ns_lshl_b32 s34, s32, 12\ns_add_u32 s39, s39, s34\ns_add_u32 s39, s39, s12\ns_add_u32 s39, s39, {Z2}")
    a(f"s_add_u32 s36, s36, s12\ns_add_u32 s36, s36, {ZS}")
    a("s_mov_b32 s40, 0xaaaaaaaa\ns_mov_b32 s41, 0xaaaaaaaa\ns_mov_b32 s42, 0xcccccccc\ns_mov_b32 s43, 0xcccccccc")
    a("v_and_b32 v11, 3, v2\nv_lshl_add_u32 v11, v1, 2, v11\nv_bfe_u32 v13, v2, 2, 1\nv_lshl_add_u32 v11, v13, 4, v11\nv_lshlrev_b32 v11, 3, v11\nv_lshrrev_b32 v13, 3, v2\nv_lshl_add_u32 v11, v13, 2, v11")
def cons3(a):
    q = "3a"; lg = LG(a)
    ACC = 64; FB = 96; X = 192; SM = 32
    def acc(t, x): return ACC + 4*(2*t + x)
    dlo, dhi = rng(q, "D"); wlo, whi = rng(q, "W"); bD, bW = P3C["bD"], P3C["bW"]
    a(f"v_pk_add_f32 {vr(X,2)}, {vr(X,2)}, {vr(X+2,2)}\nv_pk_add_f32 {vr(X+4,2)}, {vr(X+4,2)}, {vr(X+6,2)}")
    lg.op(f"ds_write_b64 v22, {vr(X,2)} offset:{CS0}"); lg.op(f"ds_write_b64 v22, {vr(X+4,2)} offset:{CS1}")
    a(f"v_lshlrev_b32 v{P4R['BI']}, 16, v{P4R['BI']}\nv_lshlrev_b32 v{P4R['BI']+1}, 16, v{P4R['BI']+1}")
    def fb(buf, k): return FB + 24*buf + 4*k
    def reads(t, buf):
        d0 = uaddr(q, "D", t, 0); w0 = uaddr(q, "W", t, 0)
        return [rdD(q, t, fb(buf,0), bD, d0, 252, dlo), rd128(fb(buf,2), bW(w0)), rdD(q, t, fb(buf,1), bD, d0+KB, 252, dlo)] + [rd128(fb(buf,2+u), bW(w0+u*KB)) for u in range(1, 4)]
    def mf(t, buf):
        return [(mfma(acc(u,x), fb(buf,x), fb(buf,2+u), "0" if t == 0 else None), list(R(fb(buf,x),4)) + list(R(fb(buf,2+u),4))) for u in range(4) for x in range(2)]
    rsN = [X, X+4]; nmN = [X+8, X+12]; csV = [X+16+t for t in range(4)]
    def last_hook():
        out = []
        for x in range(2): out += [rd128(rsN[x], (9, 64*x)), rd128(nmN[x], (9, NM0+64*x))]
        return out + [(f"ds_read_b32 v{csV[t]}, v8 offset:{CS1+64*t}", [csV[t]]) for t in range(4)]
    mainloop(a, lg, q, 4, reads, mf, last_hook=last_hook, rpm=CFG["RPM3"]/4)
    lg.drain()
    TMP = X+40; PK = X+24
    for u in range(4):
        if u >= 2: a(f"s_cmp_eq_u32 s38, {u}\ns_cbranch_scc1 P3_red")
        for x in range(2): fix_N(a, acc(u,x), csV[u], rsN[x], nmN[x], TMP+4*x)
        gelu(a, [acc(u,0), acc(u,1)], [TMP, TMP+4])
        for x in range(2): cvt2(a, PK + 4*u + 2*x, acc(u,x), "f16")
        a(f"buffer_store_dwordx4 {vr(PK+4*u,4)}, v3, s[4:7], s39 offen offset:{u*KB} sc1")
        for x in range(2):
            for h in (0, 2):
                a(f"v_pk_add_f32 {vr(SM+4*x+h,2)}, {vr(SM+4*x+h,2)}, {vr(acc(u,x)+h,2)}")
                a(f"v_pk_fma_f32 {vr(SM+8+4*x+h,2)}, {vr(acc(u,x)+h,2)}, {vr(acc(u,x)+h,2)}, {vr(SM+8+4*x+h,2)}")
    a("P3_red:"); a.fence(2)
    RA = ACC
    for j in range(8):
        a(f"v_add_f32_dpp v{RA+j}, v{SM+j}, v{SM+j} row_ror:8 row_mask:0xf bank_mask:0x3")
    for j in range(8):
        a(f"v_add_f32_dpp v{RA+j}, v{SM+8+j}, v{SM+8+j} row_ror:8 row_mask:0xf bank_mask:0xc")
    for j in range(4): a(f"v_add_f32_dpp v{RA+8+j}, v{RA+j}, v{RA+j} row_half_mirror row_mask:0xf bank_mask:0x5")
    for j in range(4): a(f"v_add_f32_dpp v{RA+8+j}, v{RA+4+j}, v{RA+4+j} row_half_mirror row_mask:0xf bank_mask:0xa")
    for j in range(4): a(f"v_add_f32_dpp v{RA+8+j}, v{RA+8+j}, v{RA+8+j} quad_perm:[1,0,3,2] row_mask:0xf bank_mask:0xf")
    for j in range(4): a(f"v_add_f32_dpp v{RA+8+j}, v{RA+8+j}, v{RA+8+j} quad_perm:[2,3,0,1] row_mask:0xf bank_mask:0xf")
    a(f"v_cndmask_b32 v{RA}, v{RA+8}, v{RA+9}, s[40:41]\nv_cndmask_b32 v{RA+1}, v{RA+10}, v{RA+11}, s[40:41]\nv_cndmask_b32 v{RA}, v{RA}, v{RA+1}, s[42:43]")
    a(f"buffer_atomic_add_f32 v{RA}, v11, s[4:7], s36 offen")
    q = "3b"; lg = LG(a)
    assert rng(q, "W") == (wlo, whi)
    DEF = CFG["DEF"]
    if DEF: ACC = ZR; X = 212
    def mf(t, buf):
        return [(mfma(acc(u,x), fb(buf,2+u), fb(buf,x), "0" if t == 0 else None), list(R(fb(buf,x),4)) + list(R(fb(buf,2+u),4))) for u in range(4) for x in range(2)]
    stT = [X, X+2]; csT = [X+4+4*t for t in range(4)]
    def last_hook():
        return [(f"ds_read2_b32 {vr(stT[x],2)}, v10 offset0:{16*x} offset1:{NM0//4+16*x}", R(stT[x],2)) for x in range(2)] + [rd128(csT[t], (12, CS0+64*t)) for t in range(4)]
    mainloop(a, lg, q, 4, reads, mf, last_hook=last_hook, rpm=CFG["RPM3"]/4, prebar={CFG["SIG3"]: "s_waitcnt vmcnt(0)"})
    lg.drain()
    if DEF:
        TMP = 232
        def dzl(ch):
            c = Cap()
            for us in ((0, 1), (2, 3) if not ch else (2,)):
                tl = [(u, x) for u in us for x in range(2)]
                for k, (u, x) in enumerate(tl): fix_T(c, acc(u,x), csT[u], stT[x], TMP+4*k)
                gelu(c, [acc(u,x) for u, x in tl], [TMP+4*k for k in range(len(tl))])
                for k, (u, x) in enumerate(tl): cvt2(c, TMP+4*k, acc(u,x))
                for k, (u, x) in enumerate(tl):
                    for h in range(2): c(f"v_lshlrev_b32 v{acc(u,x)+2*h}, 16, v{TMP+4*k+h}\nv_and_b32 v{acc(u,x)+2*h+1}, s57, v{TMP+4*k+h}")
            return c.lines
        a("s_cmp_eq_u32 s32, 1\ns_cbranch_scc1 P3b_done1")
        cons4(a, 0, dzl(0))
    else:
        TMP = X+40
        for x in range(2):
            for u in range(2): fix_T(a, acc(u,x), csT[u], stT[x], TMP+4*(2*x+u))
        gelu(a, [acc(u,x) for x in range(2) for u in range(2)], [TMP+4*k for k in range(4)])
        for u in range(2):
            for x in range(2): cvt2(a, ZR+2*(2*u+x), acc(u,x))
        for u in (2, 3):
            a(f"s_cmp_eq_u32 s38, {u}\ns_cbranch_scc1 P3b_done1")
            for x in range(2): fix_T(a, acc(u,x), csT[u], stT[x], TMP+4*x)
            gelu(a, [acc(u,0), acc(u,1)], [TMP, TMP+4])
            for x in range(2): cvt2(a, ZR+2*(2*u+x), acc(u,x))
        cons4(a, 0)
    a("s_branch P4_done")
    a("P3b_done1:"); a.fence(2)
    cons4(a, 1, dzl(1) if DEF else None)
    a("P4_done:"); a.fence(2)
    gbar(a, lambda c: setup25(c, "5"))

P4R = dict(bD=[16, 17], W=[18, 19], MU=20, EX=21, L8=22, BI=24)
def setup4(a):
    q = "4"; r = P4R
    dlo, dhi = rng(q, "D"); wlo, whi = rng(q, "W")
    P4R["f"] = mkbase(a, r["bD"], dlo, dhi, 3)
    w0, rs = r["W"]; mu = r["MU"]
    a(f"s_lshl_b32 s34, s31, 11\ns_add_u32 s34, s34, {wlo}\nv_add_u32 v{w0}, s34, v3\nv_lshlrev_b32 v{rs}, 4, v1")
    a(f"v_and_b32 v{mu}, 1, v2\nv_lshlrev_b32 v{mu}, 6, v{mu}\nv_lshl_add_u32 v{mu}, v1, 4, v{mu}")
    a(f"s_lshl_b32 s34, s31, 9\nv_add_u32 v{r['EX']}, s34, v{r['L8']}")
    a(f"s_lshl_b32 s33, s50, 1\ns_add_u32 s33, s33, s31\nv_lshlrev_b32 v{r['BI']}, 1, v2")
    a(f"s_lshl_b32 s34, s33, 6\ns_add_u32 s34, s34, {BSP}\nbuffer_load_ushort v{r['BI']+1}, v{r['BI']}, s[4:7], s34 offen offset:32\nbuffer_load_ushort v{r['BI']}, v{r['BI']}, s[4:7], s34 offen")
    a(f"s_lshl_b32 s46, s33, 11\ns_add_u32 s46, s46, s12\ns_add_u32 s46, s46, {UB}\ns_mul_i32 s47, s51, 3\ns_lshl_b32 s34, s32, 1\ns_add_u32 s47, s47, s34\ns_lshl_b32 s47, s47, 17\ns_add_u32 s47, s47, s46")
    a(f"s_lshr_b32 s34, s51, 2\ns_sub_u32 s34, s51, s34\ns_lshr_b32 s56, s34, 1\ns_add_u32 s56, s56, 24\ns_lshl_b32 s56, s56, 17\ns_add_u32 s46, s46, s56\ns_and_b32 s34, s34, 1\ns_lshl_b32 s34, s34, 9\ns_add_u32 s46, s46, s34")
    a(f"s_add_u32 s56, s47, {128*KB}\ns_mov_b32 s57, 0xffff0000\ns_mov_b32 s58, {hex(f2u(1.0/WSCALE))}\ns_mov_b32 s59, {hex(f2u(1.0/WSCALE))}")
def cons4(a, ch, dz=None):
    q = "4"; lg = LG(a); r = P4R
    ACC = 64; FB = 96; X = 208
    wlo = rng(q, "W")[0]; bD = r["f"]
    def acc(t, x): return ACC + 4*(2*t + x)
    def fb(buf, k): return FB + 28*buf + 4*k
    def reads(t, buf):
        w = [rd128(fb(buf,x), (r["W"][0], uaddr(q, "W", t, x) - wlo)) for x in range(2)]
        z = [rd128(fb(buf,2+u), bD(uaddr(q, "D", t, 4*ch+u))) for u in range(4-ch)]
        if ch: z.append(rd128(fb(buf,5), (r["MU"], MU0 + t*128)))
        return [rd128(fb(buf,6), (r["W"][1], RS0 + t*64))] + w + z
    def cv(t, buf):
        rs = fb(buf,6)
        return [(f"v_pk_mul_f16 v{fb(buf,x)+j}, v{fb(buf,x)+j}, v{rs+j}", [fb(buf,x)+j, rs+j]) for x in range(2) for j in range(4)]
    def mf(t, buf):
        return [(mfma(acc(u,x), fb(buf,2+u), fb(buf,x), "0" if t == 0 else None, ty="f16"), list(R(fb(buf,2+u),4))) for x in range(2) for u in range(4)]
    B = r["BI"]
    def tail():
        m0, m1 = mf(62, 2), mf(63, 3)
        weave(a, lg, m0, [], cv(63, 3), vpm=2)
        if not ch: weave(a, lg, m1, []); return
        weave(a, lg, [m1[3], m1[7]] + m1[:3], [])
        for x in range(2): a(f"v_add_f32 v{X+x}, v{acc(3,x)}, v{acc(3,x)+1}")
        for x in range(2): a(f"v_fma_f32 v{B+x}, -v{X+x}, s58, v{B+x}")
        lg.op(f"ds_write_b64 v{r['EX']}, {vr(B,2)} offset:{EX0}")
        weave(a, lg, m1[4:7], [])
        lg.drain()
    inc = f"v_add_u32 v{r['W'][1]}, {12*64}, v{r['W'][1]}" + (f"\nv_add_u32 v{r['MU']}, {12*128}, v{r['MU']}" if ch else "")
    mainloop(a, lg, q, 4, reads, mf, cv=cv, tailf=tail, roll=(8 if dz else 2, 6, f"P4_loop{ch}", inc) if CFG["ROLL"] else None, dz=dz)
    if not ch: lg.op(f"ds_read_b64 {vr(B,2)}, v{r['EX']} offset:{EX0}", R(B,2))
    PK = FB; T2 = FB + 16 if dz is None else ZR
    for u0 in (0, 2):
        us = (u0, u0+1) if not (ch and u0) else (2,)
        if ch and u0: a("s_cmp_eq_u32 s38, 2\ns_cbranch_scc1 P4_done")
        for u in us if dz is None else ():
            for x in range(2):
                for h in range(2):
                    z = ZR + 2*(2*u+x) + h; t = T2 + 4*(2*u+x) + 2*h
                    a(f"v_lshlrev_b32 v{t}, 16, v{z}\nv_and_b32 v{t+1}, s57, v{z}")
        lg.drain()
        for x in range(2):
            for u in us:
                for h in (0, 2): a(f"v_pk_fma_f32 {vr(acc(u,x)+h,2)}, {vr(acc(u,x)+h,2)}, s[58:59], {vr(B,2)} op_sel:[0,0,{x}] op_sel_hi:[1,1,{x}]")
            for u in us:
                for h in (0, 2): a(f"v_pk_mul_f32 {vr(acc(u,x)+h,2)}, {vr(acc(u,x)+h,2)}, {vr(T2+4*(2*u+x)+h,2)}")
            pk = PK + 4*(u0 + x)
            for u in us: cvt2(a, pk + 2*(u & 1), acc(u,x))
            if len(us) == 2: a(f"buffer_store_dwordx4 {vr(pk,4)}, v3, s[4:7], s{56 if u0 else 47} offen offset:{x*KB} sc1")
            else: a(f"buffer_store_dwordx2 {vr(pk,2)}, v{r['L8']}, s[4:7], s46 offen offset:{x*KB} sc1")

def code_prefetch(a, va, vd):
    if not CFG["CODEPF"]: return
    lab = a.label("CPF")
    a(f"s_getpc_b64 s[64:65]\n{lab}:\ns_add_u32 s64, s64, main_kernel-{lab}\ns_addc_u32 s65, s65, 0")
    a(f"s_lshr_b32 s66, s2, 3\ns_lshl_b32 s66, s66, 2\ns_add_u32 s66, s66, s13\ns_mul_i32 s66, s66, 1024\nv_and_b32 v{va}, 7, v0\nv_lshlrev_b32 v{va}, 7, v{va}\nv_add_u32 v{va}, s66, v{va}")
    a(f"v_min_u32 v{va}, MAIN_END-main_kernel-4, v{va}\nglobal_load_dword v{vd}, v{va}, s[64:65]")

def build():
    plan()
    a = Asm()
    a.launch("k0_kernel", (488 if CFG["TOUCH"] else NJOBS,1,1), (256,1,1), lds=40960)
    a.launch("main_kernel", (256,1,1), (512,1,1), lds=LDS_TOTAL)
    for _ in range(CFG["XK"]): a.launch("nop_kernel", (256,1,1), (64,1,1), lds=0)
    if CFG["XK"]:
        a.begin_kernel("nop_kernel"); a("s_endpgm"); a.end_kernel("nop_kernel", 8, sgpr=16)
    emit_k0(a, code_prefetch=code_prefetch, touch=CFG["TOUCH"], dbg=(PROFB + 0x100000) * CFG["DBG"], nt=" nt" if CFG["NT"] & 2 else "", st=" sc1" if CFG["NT"] & 4 else "", st2=" sc1" if CFG["NT"] & 8 else "")
    a.begin_kernel("main_kernel")
    a("s_cmp_ge_u32 s2, 256\ns_cbranch_scc1 END")
    a("s_load_dwordx4 s[20:23], s[0:1], 40\ns_load_dwordx2 s[24:25], s[0:1], 64\ns_load_dwordx2 s[26:27], s[0:1], 80")
    a("v_lshrrev_b32 v1, 6, v0\nv_and_b32 v0, 63, v0\nv_readfirstlane_b32 s13, v1")
    a("v_lshrrev_b32 v1, 4, v0\nv_and_b32 v2, 15, v0\nv_lshlrev_b32 v3, 4, v0")
    a(f"s_mov_b32 s12, {IT0}\ns_mov_b32 s14, 0\ns_mov_b32 s52, {CNT}\ns_mov_b32 s62, 0")
    a("s_and_b32 s15, s2, 7\ns_lshr_b32 s53, s2, 3\ns_lshr_b32 s16, s15, 1\ns_and_b32 s17, s15, 1")
    a("s_lshl_b32 s48, s16, 2\ns_lshr_b32 s18, s53, 3\ns_add_u32 s48, s48, s18\ns_lshl_b32 s49, s17, 3\ns_and_b32 s18, s53, 7\ns_add_u32 s49, s49, s18")
    a("s_lshl_b32 s50, s16, 3\ns_lshr_b32 s18, s53, 2\ns_add_u32 s50, s50, s18\ns_lshl_b32 s51, s17, 2\ns_and_b32 s18, s53, 3\ns_add_u32 s51, s51, s18")
    a("s_waitcnt lgkmcnt(0)")
    a.srd(4, 26, 0x10000000)
    if CFG["PROF"]: a("s_memrealtime s[60:61]\ns_waitcnt lgkmcnt(0)\nv_writelane_b32 v250, s60, 62")
    stamp(a, force=True)
    a("s_cmp_ge_u32 s13, 6\ns_cbranch_scc1 LDB\ns_cmp_ge_u32 s13, 4\ns_cbranch_scc1 LDA")
    a("C_loop:"); a.fence(2)
    gbar(a, setup1, True)
    cons1(a); cons25(a, "2"); cons3(a); cons25(a, "5")
    a.hist = []; loader(a, "A"); a.hist = []; loader(a, "B")
    a("FINL:")
    if CFG["PROF"]: a("v_mov_b32 v250, v8")
    a("FIN:"); a.fence(4)
    if CFG["PROF"] or CFG["SK"] < 2: a("s_waitcnt vmcnt(0)")
    if CFG["PROF"]:
        stamp(a)
        a("s_memrealtime s[60:61]\ns_waitcnt lgkmcnt(0)\nv_writelane_b32 v250, s60, 63")
        a(f"s_lshl_b32 s60, s2, 3\ns_add_u32 s60, s60, s13\ns_lshl_b32 s60, s60, 8\ns_add_u32 s60, s60, {PROFB}")
        a("v_lshlrev_b32 v251, 2, v0\nbuffer_store_dword v250, v251, s[4:7], s60 offen")
    if CFG["DBG"]:
        a("s_cmp_lg_u32 s2, 77\ns_cbranch_scc1 END\ns_cmp_lg_u32 s13, 0\ns_cbranch_scc1 END\ns_load_dwordx2 s[20:21], s[0:1], 72\ns_waitcnt lgkmcnt(0)")
        a.srd(8, 20, 256)
        a(f"buffer_load_dword v10, off, s[4:7], 0 offset:0 sc1\nv_mov_b32 v11, {PROFB + 0x100000}\nbuffer_load_dword v10, v11, s[4:7], 0 offen sc1\nv_readlane_b32 s30, v250, 0\ns_waitcnt vmcnt(0)\nv_readfirstlane_b32 s31, v10\ns_sub_u32 s31, s30, s31\nv_writelane_b32 v251, s31, 0")
        a(f"v_lshrrev_b32 v12, 2, v0\nv_mul_u32_u24 v12, {37*16}, v12\nv_and_b32 v13, 3, v0\nv_lshl_add_u32 v12, v13, 2, v12\nv_add_u32 v12, {PROFB + 0x100000 + 64 - 37*16 + 16}, v12\nv_max_u32 v12, {PROFB}, v12\nbuffer_load_dword v12, v12, s[4:7], 0 offen sc1\ns_waitcnt vmcnt(0)\nv_sub_u32 v12, s30, v12\nv_cmp_lt_u32 vcc, 3, v0\nv_cndmask_b32 v251, v251, v12, vcc")
        for k, idx in enumerate([2, 3, 51]):
            a(f"v_readlane_b32 s31, v250, {idx}\ns_sub_u32 s31, s31, s30\nv_writelane_b32 v251, s31, {k+1}")
        a("v_lshlrev_b32 v11, 2, v0\ns_mov_b64 exec, 0xffff\nbuffer_store_dword v251, v11, s[8:11], 0 offen")
    a("END:\ns_endpgm\nMAIN_END:")
    a.end_kernel("main_kernel", 256, sgpr=80)
    return a

if __name__ == "__main__":
    out = sys.argv[1] if len(sys.argv) > 1 else "mega.s"
    for kv in sys.argv[2:]:
        k, v = kv.split("="); CFG[k] = int(v)
    a = build()
    open(out, "w").write(a.text())
    print("lines", len(a.lines), "nops", a.nops_added, "bars", len(BARS))
    if CFG.get("SHOW"):
        for k in "DW":
            for x in ALLOC[k]: print(k, x["q"], x["n"], x["addr"]//KB, "after", bname(x["after"]), "rel", bname(x["rel"]))
```
